```python
import torch

def _softmax(x, axis=-1):
    return torch.softmax(x, dim=axis)

def _gelu(x):
    return torch.nn.functional.gelu(x, approximate='tanh')

def _silu(x):
    return torch.nn.functional.silu(x)

def _sigmoid(x):
    return torch.sigmoid(x)

def _layernorm(x, axis=-1, eps=1e-05):
    m = x.mean(dim=axis, keepdim=True)
    v = x.var(dim=axis, keepdim=True, unbiased=False)
    return (x - m) / torch.sqrt(v + eps)

def _scatter_add(tgt, idx, src, axis=0):
    return tgt.clone().index_add_(axis, idx, src)

def _segment_sum(src, seg, n):
    out = torch.zeros((n,) + src.shape[1:], dtype=src.dtype)
    return out.index_add_(0, seg, src)

def _pad(x, pw):
    flat = tuple((v for pair in reversed(pw) for v in pair))
    return torch.nn.functional.pad(x, flat)
kernel_name = 'adaLN_cond__compressed_kv_cla__mixer_token_mlp__prompt'

def setup_inputs():

    _w = lambda a: (lambda t: t.to(torch.bfloat16) if t.is_floating_point() else t)(torch.as_tensor(a))

    def _A_setup():
        B, H, Sq, Sk, D, M = (1, 32, 2048, 2048, 128, 576)
        Dc = 4 * D
        return {'x': _w((lambda *s: torch.randn(*s, dtype=torch.bfloat16) * 0.05)(B, Sq, M)), 'c_kv': _w((lambda *s: torch.randn(*s, dtype=torch.bfloat16) * 0.8)(B, Sk, Dc)), 'w_q': _w((lambda *s: torch.randn(*s, dtype=torch.bfloat16) * 1.6)(M, H, D) * M ** (-0.5)), 'w_uk': _w((lambda *s: torch.randn(*s, dtype=torch.bfloat16) * 1.6)(Dc, H, D) * Dc ** (-0.5)), 'w_uv': _w((lambda *s: torch.randn(*s, dtype=torch.bfloat16) * 0.8)(Dc, H, D) * Dc ** (-0.5)), 'w_o': _w((lambda *s: torch.randn(*s, dtype=torch.bfloat16) * 0.8)(H, D, M) * (H * D) ** (-0.5))}
    _A_in = _A_setup()

    def _B_setup():
        B, S, D, F = (1, 2048, 576, 4608)
        return {'x': _w((lambda *s: torch.randn(*s, dtype=torch.bfloat16) * 0.05)(B, S, D)), 'w1': _w((lambda *s: torch.randn(*s, dtype=torch.bfloat16) * 0.8)(S, F) * S ** (-0.5)), 'b1': _w((lambda *s: torch.randn(*s, dtype=torch.bfloat16) * 12.8)(F) * 0.02), 'w2': _w((lambda *s: torch.randn(*s, dtype=torch.bfloat16) * 0.4)(F, S) * F ** (-0.5)), 'b2': _w((lambda *s: torch.randn(*s, dtype=torch.bfloat16) * 3.2)(S) * 0.02)}
    _B_in = _B_setup()
    return {'A_x': _A_in['x'], 'A_c_kv': _A_in['c_kv'], 'A_w_q': _A_in['w_q'], 'A_w_uk': _A_in['w_uk'], 'A_w_uv': _A_in['w_uv'], 'A_w_o': _A_in['w_o'], 'B_x': _B_in['x'], 'B_w1': _B_in['w1'], 'B_b1': _B_in['b1'], 'B_w2': _B_in['w2'], 'B_b2': _B_in['b2'], 'c': _w((lambda *s: torch.randn(*s, dtype=torch.bfloat16) * 0.1)(1, 576) * 8.0), 'w_mod': _w((lambda *s: torch.randn(*s, dtype=torch.bfloat16) * 0.1)(576, 6 * 576) * 576 ** (-0.5) * 8.0)}

def reference(A_x, A_c_kv, A_w_q, A_w_uk, A_w_uv, A_w_o, B_x, B_w1, B_b1, B_w2, B_b2, c, w_mod):

    def _A_ref(x, c_kv, w_q, w_uk, w_uv, w_o):
        B, Sq, M = (x.shape[0], x.shape[1], x.shape[2])
        Sk = c_kv.shape[1]
        H, D = (w_q.shape[1], w_q.shape[2])
        q = torch.einsum('bqm,mhd->bhqd', x, w_q)
        k = torch.einsum('bkc,chd->bhkd', c_kv, w_uk)
        v = torch.einsum('bkc,chd->bhkd', c_kv, w_uv)
        scores = torch.einsum('bhqd,bhkd->bhqk', q, k) * D ** (-0.5)
        off = Sk - Sq
        qi = torch.arange(Sq)[:, None]
        kj = torch.arange(Sk)[None, :]
        cmask = kj <= qi + off
        scores = torch.where(cmask[None, None], scores, -1000000000.0)
        p = _softmax(scores, axis=-1)
        ctx = torch.einsum('bhqk,bhkd->bhqd', p, v)
        return torch.einsum('bhqd,hdm->bqm', ctx, w_o)

    def _B_ref(x, w1, b1, w2, b2):
        B, S, D = x.shape
        h = _layernorm(x, axis=-1)
        u = torch.einsum('bsd,sf->bdf', h, w1) + b1
        u = _gelu(u)
        y = torch.einsum('bdf,fs->bds', u, w2) + b2
        return (lambda x, *d: x.permute(*d))(y, 0, 2, 1)
    x = A_x
    mod = (_silu(c) @ w_mod).reshape(c.shape[0], 6, 1, -1)
    sa, ca, ga, sb, cb, gb = (mod[:, 0].clone(), mod[:, 1].clone(), mod[:, 2].clone(), mod[:, 3].clone(), mod[:, 4].clone(), mod[:, 5].clone())
    h = _layernorm(x, axis=-1) * (1 + ca) + sa
    x = x + ga * _A_ref(h, A_c_kv, A_w_q, A_w_uk, A_w_uv, A_w_o)
    h = _layernorm(x, axis=-1) * (1 + cb) + sb
    x = x + gb * _B_ref(h, B_w1, B_b1, B_w2, B_b2)
    return x
```

```python
NAME = 'adaLN_cond__compressed_kv_cla__mixer_token_mlp__prompt'

class Asm:
    def __init__(self):
        self.lines = []
    def __call__(self, s=''):
        for l in s.split('\n'):
            t = l.strip()
            if not t: continue
            self.lines.append(t if t.endswith(':') else '    ' + t)
    def label(self, s): self.lines.append(s + ':')
    def text(self): return '\n'.join(self.lines) + '\n'

def kernel_header(name):
    return f".text\n.globl {name}\n.p2align 8\n.type {name},@function\n{name}:\n"

def kernel_desc(name, vgpr, sgpr=102, accum=None):
    if accum is None: accum = (vgpr + 3) // 4 * 4
    return f""".section .rodata,"a"
.p2align 6
.amdhsa_kernel {name}
  .amdhsa_next_free_vgpr {vgpr}
  .amdhsa_next_free_sgpr {sgpr}
  .amdhsa_accum_offset {accum}
  .amdhsa_group_segment_fixed_size 0
  .amdhsa_kernarg_size 128
  .amdhsa_user_sgpr_count 2
  .amdhsa_user_sgpr_kernarg_segment_ptr 1
  .amdhsa_system_sgpr_workgroup_id_x 1
.end_amdhsa_kernel
"""

KA = dict(x=0, ckv=8, wq=16, wuk=24, wuv=32, wo=40, bx=48, w1=56, b1=64, w2=72, b2=80, c=88, wmod=96, out=104, dbg=112, ws=120)
SIZES = dict(x=2048*576*2, ckv=2048*512*2, wq=576*4096*2, wuk=512*4096*2, wuv=512*4096*2, wo=4096*576*2,
             w1=2048*4608*2, b1=4608*2, w2=4608*2048*2, b2=2048*2, c=576*2, wmod=576*3456*2, out=2048*576*2, dbg=256)

MB = 1 << 20
WS = {}
def _ws():
    off = 0
    for n, sz in [('mod', 3456*4), ('h1', 2048*576*2), ('kf', 32*2048*128*2), ('vf', 32*2048*128*2), ('ctx', 2048*4096*2),
                  ('p3', 4*2048*576*4), ('x1', 2048*576*2), ('h2', 2048*576*2), ('u', 576*4608*2), ('p6', 4*2048*576*4)]:
        WS[n] = (off, sz)
        off += (sz + 0xffff) & ~0xffff
_ws()

def vr(b, n): return f"v[{b}:{b+n-1}]" if n > 1 else f"v{b}"
def sr(b, n): return f"s[{b}:{b+n-1}]" if n > 1 else f"s{b}"

def load_ptr(a, sdst, name):
    a(f"s_load_dwordx2 {sr(sdst,2)}, s[0:1], {KA[name]}")

def make_srd(a, srd, sptr, size, add=0):
    if add:
        a(f"s_add_u32 s{srd}, s{sptr}, {add}")
        a(f"s_addc_u32 s{srd+1}, s{sptr+1}, 0")
        a(f"s_and_b32 s{srd+1}, s{srd+1}, 0xffff")
    else:
        a(f"s_mov_b32 s{srd}, s{sptr}")
        a(f"s_and_b32 s{srd+1}, s{sptr+1}, 0xffff")
    a(f"s_mov_b32 s{srd+2}, {size}")
    a(f"s_mov_b32 s{srd+3}, 0x20000")

def make_ws_srd(a, srd, sws, name):
    make_srd(a, srd, sws, WS[name][1], WS[name][0])

def interleave(primary, secondary, start=0, every=1):
    out = []
    sec = list(secondary)
    for i, p in enumerate(primary):
        out.append(p)
        if i >= start and (i - start) % every == 0 and sec:
            out.append(sec.pop(0))
    out.extend(sec)
    return out

def spread(primary, secondary):
    n = len(primary); m = len(secondary)
    out = []; k = 0
    for i, p in enumerate(primary):
        out.append(p)
        tgt = (m * (i + 1) + n - 1) // n
        while k < tgt:
            out.append(secondary[k]); k += 1
    return out

def round_bf16(a, v, tmp=None):
    a(f"v_cvt_pk_bf16_f32 v{v}, v{v}, v{v}")
    a(f"v_and_b32 v{v}, 0xffff0000, v{v}")

def wave_allsum(a, v, t):
    for r in (8, 4, 2, 1):
        a("s_nop 1")
        a(f"v_add_f32_dpp v{v}, v{v}, v{v} row_ror:{r} row_mask:0xf bank_mask:0xf")
    a(f"v_mov_b32 v{t}, v{v}")
    a("s_nop 1")
    a(f"v_permlane16_swap_b32 v{v}, v{t}")
    a("s_nop 1")
    a(f"v_add_f32 v{v}, v{v}, v{t}")
    a(f"v_mov_b32 v{t}, v{v}")
    a("s_nop 1")
    a(f"v_permlane32_swap_b32 v{v}, v{t}")
    a("s_nop 1")
    a(f"v_add_f32 v{v}, v{v}, v{t}")

import os
STAMP = os.environ.get('STAMP', '') != ''
def stamp(a, i):
    if STAMP:
        a(f"s_memtime s[{64+4*i}:{65+4*i}]")
        a(f"s_memrealtime s[{66+4*i}:{67+4*i}]")
def stamp_flush(a, n, wg, lab):
    if not STAMP: return
    assert n <= 8
    a(f"s_cmp_lg_u32 s2, {wg}\ns_cbranch_scc1 {lab}")
    a(f"v_cmp_gt_u32 vcc, 64, v0\ns_cbranch_vccz {lab}")
    a("s_load_dwordx2 s[60:61], s[0:1], 112\ns_waitcnt lgkmcnt(0)")
    a("s_mov_b32 s56, s60\ns_and_b32 s57, s61, 0xffff\ns_mov_b32 s58, 256\ns_mov_b32 s59, 0x20000")
    a("v_mov_b32 v1, 0")
    for i in range(n):
        a(f"s_sub_u32 s62, s{64+4*i}, s64\nv_mov_b32 v2, s62\nbuffer_store_dword v2, v1, s[56:59], 0 offen offset:{4*i}\ns_nop 1")
        a(f"s_sub_u32 s62, s{66+4*i}, s66\nv_mov_b32 v2, s62\nbuffer_store_dword v2, v1, s[56:59], 0 offen offset:{32+4*i}\ns_nop 1")
    a.label(lab)
```

```python
from gen_common import *
import struct, math

def f32(x): return "0x%08x" % struct.unpack('<I', struct.pack('<f', x))[0]
BIG = 2.0 ** 100
QSCALE = math.log2(math.e) / math.sqrt(128.0)
THRESH = 2.0 ** 30
SLOT = 32768
NSLOT = 4
WQ_BYTES = 8 * 1088

V_LANE16, V_RD, V_L, V_LU, V_NEGM, V_Y, V_YD, V_T0 = 1, 2, 3, 4, 5, 6, 7, 240
T = 8
CI = 16
S = [32, 48]
P = [64, 72]
FR = 80
Q, Q2 = 112, 144
O = 176
CR = [(r & 3) + 8 * (r >> 2) for r in range(16)]

def mf(d, a_, b_, c): return f"v_mfma_f32_32x32x16_bf16 {d}, {a_}, {b_}, {c}"

def qk_group(par):
    s = vr(S[par], 16)
    return [mf(s, vr(FR + 4*i, 4), vr(Q + 4*i, 4), vr(CI, 16) if i == 0 else s) for i in range(8)]
def pv_group(par):
    return [mf(vr(O + 16*(i & 3), 16), vr(FR + 4*i, 4), vr(P[par] + 4*(i >> 2), 4), vr(O + 16*(i & 3), 16)) for i in range(8)]
def rd(i, pos): return f"ds_read_b128 {vr(FR + 4*i, 4)}, v{V_RD} offset:{pos + 1024*i}"
KPOS = [0, 8192]; VPOS = [16384, 24576]
W4 = "s_waitcnt lgkmcnt(4)"

def sm_ops(par):
    e = lambda k: f"v_exp_f32 v{T + k % 8}, v{S[par] + k}"
    ad = lambda k: (f"v_add_f32 v{V_LU}, v{T}, v{T+1}" if k == 1 else f"v_add_f32 v{V_LU}, v{V_LU}, v{T + k % 8}")
    cv = lambda k: f"v_cvt_pk_bf16_f32 v{P[par] + k // 2}, v{T + k % 8}, v{T + (k + 1) % 8}"
    return e, ad, cv

def build_ci():
    ops = []
    for r in range(16):
        if CR[r] == 0:
            ops.append(f"v_min_f32 v{CI+r}, v{V_Y}, v{V_NEGM}")
        else:
            ops.append(f"v_add_f32 v{CI+r}, {f32(-CR[r]*BIG)}, v{V_Y}")
            ops.append(f"v_min_f32 v{CI+r}, v{CI+r}, v{V_NEGM}")
    ops.append(f"v_add_f32 v{V_Y}, {f32(-32*BIG)}, v{V_Y}")
    return ops

ADV = [f"s_add_u32 s40, s40, {SLOT}\ns_and_b32 s40, s40, {SLOT*NSLOT-1}", f"v_add_u32 v{V_RD}, s40, v{V_LANE16}"]

def period(a, par, site, next1, next2, qk=True, rebuild=False, adv=False, tail_ops=()):
    e, ad, cv = sm_ops(par)
    lacc = f"v_add_f32 v{V_L}, v{V_L}, v{V_LU}"
    if qk:
        m = qk_group(1 - par) + pv_group(1 - par)
        g = [[lacc, e(0), e(1)], [e(2), ad(1), cv(0)], [e(3), ad(2), e(4)], [e(5), ad(3), cv(2)],
             [e(6), ad(4), ad(5)], [e(7), cv(4), ad(6)], [e(8), ad(7), cv(6)], [e(9), ad(8)],
             [e(10), ad(9), cv(8)], [e(11), ad(10)], [e(12), ad(11), cv(10)], [e(13), ad(12)],
             [e(14), ad(13), cv(12)], [e(15), ad(14)], [ad(15), cv(14)], []]
        for i in range(8): g[i].append(rd(i, next1))
        if adv:
            g[7].append(ADV[0]); g[8].insert(0, ADV[1])
        for i in range(8): g[8 + i].append(rd(i, next2))
        if rebuild:
            ci = build_ci()
            for i, o in enumerate(ci): g[8 + min(7, i * 8 // len(ci))].append(o)
    else:
        m = pv_group(1 - par)
        g = [[lacc, e(0), e(1), e(2)], [e(3), ad(1), cv(0), ad(2), e(4)], [e(5), ad(3), cv(2), ad(4), e(6)],
             [e(7), ad(5), cv(4), ad(6), e(8)], [e(9), ad(7), cv(6), ad(8), e(10)], [e(11), ad(9), cv(8), ad(10), e(12)],
             [e(13), ad(11), cv(10), ad(12), e(14)], [e(15), ad(13), cv(12), ad(14), "s_nop 0", ad(15), cv(14)]]
        if adv:
            g[0].insert(0, ADV[0] + "\n" + ADV[1])
        for i in range(8): g[i].insert(2, rd(i, next2))
    n = len(m)
    last = g[n - 1]
    if qk:
        rdl = [o for o in last if o.startswith('ds_read')]
        oth = [o for o in last if not o.startswith('ds_read')]
        last = oth + [f"v_cmp_nle_f32 vcc, v{V_LU}, v{V_T0+1}"] + rdl + list(tail_ops)
    else:
        last = last + [f"v_cmp_nle_f32 vcc, v{V_LU}, v{V_T0+1}", "s_nop 0"] + list(tail_ops)
    last += [f"s_cbranch_vccnz Lat_rs{site}", f"Lat_rb{site}:"]
    g[n - 1] = last
    for i in range(n):
        if i % 4 == 0: a(W4)
        a(m[i])
        for o in g[i]: a(o)
    return (site, par)

def rare_path(a, par):
    a.label(f"Lat_rare{par}")
    s = S[par]; s2 = S[1 - par]; t = V_T0 + 2; d = V_T0 + 3
    a("s_nop 15")
    a(f"v_max3_f32 v{d}, v{s}, v{s+1}, v{s+2}")
    for r in range(3, 15, 2): a(f"v_max3_f32 v{d}, v{d}, v{s+r}, v{s+r+1}")
    a(f"v_max_f32 v{d}, v{d}, v{s+15}")
    a(f"v_mov_b32 v{t}, v{d}\ns_nop 1\nv_permlane32_swap_b32 v{d}, v{t}\ns_nop 1")
    a(f"v_max3_f32 v{d}, v{d}, v{t}, 0")
    a(f"v_exp_f32 v{t}, -v{d}")
    a(f"v_sub_f32 v{V_NEGM}, v{V_NEGM}, v{d}")
    for r in range(16):
        a(f"v_sub_f32 v{CI+r}, v{CI+r}, v{d}\nv_sub_f32 v{s2+r}, v{s2+r}, v{d}\nv_sub_f32 v{s+r}, v{s+r}, v{d}")
    for r in range(64): a(f"v_mul_f32 v{O+r}, v{O+r}, v{t}")
    a(f"v_mul_f32 v{V_L}, v{V_L}, v{t}")
    e, ad, cv = sm_ops(par)
    for k in range(0, 16, 2):
        a(e(k)); a(e(k + 1)); a("s_nop 0")
        if k: a(ad(k))
        a(ad(k + 1)); a(cv(k))
    a("s_nop 1")
    a("s_setpc_b64 s[44:45]")

def k_attn():
    a = Asm(); n = 'attn_kernel'
    a("s_cmp_ge_u32 s2, 256\ns_cbranch_scc1 Lat_done")
    stamp(a, 0)
    load_ptr(a, 4, 'wq'); load_ptr(a, 6, 'ws')
    a("v_and_b32 v8, 63, v0\nv_lshrrev_b32 v9, 6, v0\ns_nop 1\nv_readfirstlane_b32 s3, v9")
    a("s_and_b32 s28, s2, 7\ns_lshr_b32 s29, s2, 3")
    a("s_and_b32 s30, s29, 3\ns_lshl_b32 s28, s28, 2\ns_add_u32 s28, s28, s30")
    a("s_lshr_b32 s31, s29, 2\ns_sub_u32 s30, 15, s31")
    a(f"v_lshlrev_b32 v{V_LANE16}, 4, v8")
    a("s_cmp_ge_u32 s3, 4\ns_cbranch_scc1 Lat_load")

    a("v_bfe_u32 v2, v8, 2, 2\nv_mul_u32_u24 v2, 1088, v2\nv_lshrrev_b32 v9, 5, v8\nv_lshl_add_u32 v2, v9, 9, v2")
    a("v_bfe_u32 v9, v8, 4, 1\nv_lshl_add_u32 v2, v9, 5, v2\nv_and_b32 v9, 3, v8\nv_lshl_add_u32 v2, v9, 3, v2")
    a(f"s_lshl_b32 s32, s3, 11\ns_add_u32 s32, s32, {WQ_BYTES}\nv_add_u32 v3, s32, v{V_LANE16}")
    a("v_mov_b32 v4, v2\nv_mov_b32 v5, v3")
    a("v_and_b32 v9, 31, v8\ns_lshl_b32 s32, s3, 5\nv_add_u32 v9, s32, v9\nv_lshrrev_b32 v10, 5, v8\nv_lshlrev_b32 v10, 2, v10")
    a(f"v_sub_u32 v9, v9, v10\nv_cvt_f32_i32 v9, v9\nv_add_f32 v9, 0.5, v9\nv_mul_f32 v{V_YD}, {f32(BIG)}, v9")
    a("v_bfe_u32 v9, v8, 4, 1\nv_lshlrev_b32 v9, 17, v9\nv_lshrrev_b32 v10, 5, v8\nv_lshl_add_u32 v9, v10, 8, v9")
    a("v_and_b32 v10, 15, v8\nv_lshl_add_u32 v6, v10, 4, v9")
    QACC = lambda qt, t: (16 + 16*t) if qt == 0 else (O + 16*t)
    QSET = [FR, FR + 24]
    for i in range(64): a(f"v_mov_b32 v{16+i}, 0\nv_mov_b32 v{O+i}, 0")
    a("s_waitcnt lgkmcnt(0)")
    make_ws_srd(a, 20, 6, 'ctx')
    a(f"s_mov_b32 s46, {f32(QSCALE)}\ns_mov_b32 s47, {f32(QSCALE)}")
    def qreads(ks, st):
        b = QSET[st]; r = []
        for qt in range(2): r.append(f"ds_read_b128 {vr(b+16+4*qt,4)}, v3 offset:{qt*8192 + ks*1024}")
        for t in range(4):
            for e in range(2):
                r.append(f"ds_read_b64_tr_b16 {vr(b+4*t+2*e,2)}, v2 offset:{ks*4352 + e*256 + t*64}")
        return r
    def qmf(st):
        b = QSET[st]
        return [mf(vr(QACC(qt, t), 16), vr(b+4*t, 4), vr(b+16+4*qt, 4), vr(QACC(qt, t), 16)) for t in range(4) for qt in range(2)]
    def front(m, r):
        out = []
        for i, x in enumerate(m):
            out.append(x); out += r[2*i:2*i+2]
        return out
    a("s_mov_b32 s40, 0\ns_mov_b32 s41, 18")
    stamp(a, 1)
    a("s_barrier")
    stamp(a, 2)
    for o in qreads(0, 0): a(o)
    a.label("Lat_qloop")
    a("s_waitcnt lgkmcnt(0)")
    for o in front(qmf(0), qreads(1, 1)): a(o)
    a(ADV[0])
    a("v_add_u32 v2, s40, v4\nv_add_u32 v3, s40, v5")
    a("s_waitcnt lgkmcnt(0)")
    for o in front(qmf(1), qreads(0, 0)): a(o)
    a("s_sub_u32 s41, s41, 1\ns_cmp_lg_u32 s41, 0\ns_barrier\ns_cbranch_scc1 Lat_qloop")
    stamp(a, 3)
    a("s_waitcnt lgkmcnt(0)")
    a(ADV[1])
    a(f"v_mov_b32 v{V_T0}, v6\nv_mov_b32 v{V_T0+1}, {f32(THRESH)}")
    a("s_nop 7")
    for qt in (1, 0):
        for t in range(4):
            for e in range(2):
                for p in range(4):
                    s_ = QACC(qt, t) + 8*e + 2*p
                    a(f"v_pk_mul_f32 {vr(s_,2)}, {vr(s_,2)}, s[46:47]")
                for p in range(4):
                    s_ = QACC(qt, t) + 8*e + 2*p
                    a(f"v_cvt_pk_bf16_f32 v{(Q, Q2)[qt] + 4*(2*t+e) + p}, v{s_}, v{s_+1}")
        if qt == 1:
            for i in range(8): a(rd(i, KPOS[1]))
    a("s_mov_b32 s42, s30\ns_mov_b32 s43, 0")
    a.label("Lat_qk0")
    a(f"s_lshl_b32 s32, s42, 7\nv_cvt_f32_u32 v{V_Y}, s32\nv_mul_f32 v{V_Y}, {f32(BIG)}, v{V_Y}\nv_add_f32 v{V_Y}, v{V_Y}, v{V_YD}")
    a(f"v_mov_b32 v{V_NEGM}, 0")
    for o in build_ci(): a(o)
    a(ADV[0]); a(ADV[1])
    z = [f"v_mov_b32 v{O+i}, 0" for i in range(64)] + [f"v_mov_b32 v{P[1]+i}, 0" for i in range(8)]
    m = qk_group(0)
    for i in range(8):
        if i % 4 == 0: a(W4)
        a(m[i]); a(rd(i, KPOS[0]))
        for o in z[9*i:9*i+9]: a(o)
    a(f"v_mov_b32 v{V_L}, 0\nv_mov_b32 v{V_LU}, 0")
    a("s_nop 7\ns_nop 1")
    s = S[0]; t = V_T0 + 2; d = V_T0 + 3
    a(f"v_max3_f32 v{d}, v{s}, v{s+1}, v{s+2}")
    for r in range(3, 15, 2): a(f"v_max3_f32 v{d}, v{d}, v{s+r}, v{s+r+1}")
    a(f"v_max_f32 v{d}, v{d}, v{s+15}")
    a(f"v_mov_b32 v{t}, v{d}\ns_nop 1\nv_permlane32_swap_b32 v{d}, v{t}\ns_nop 1")
    a(f"v_max_f32 v{d}, v{d}, v{t}")
    a(f"v_sub_f32 v{V_NEGM}, 0, v{d}")
    for r in range(16): a(f"v_sub_f32 v{s+r}, v{s+r}, v{d}")
    for o in build_ci(): a(o)
    sites = []
    a(f"v_mov_b32 v{V_Y}, v{V_YD}")
    a("s_cmp_eq_u32 s42, 0\ns_cbranch_scc0 Lat_plain_pre")
    a(f"v_add_f32 v{V_Y}, {f32(-64*BIG)}, v{V_Y}\ns_mov_b32 s41, 1\ns_branch Lat_rebuild")
    a.label("Lat_plain_pre")
    a("s_lshl_b32 s41, s42, 1\ns_sub_u32 s41, s41, 1")
    a.label("Lat_plain")
    a("s_barrier")
    sites.append(period(a, 0, 0, VPOS[0], KPOS[1]))
    sites.append(period(a, 1, 1, VPOS[1], KPOS[0], adv=True, tail_ops=["s_sub_u32 s41, s41, 1\ns_cmp_lg_u32 s41, 0"]))
    a("s_cbranch_scc1 Lat_plain")
    a("s_mov_b32 s41, 2")
    a.label("Lat_rebuild")
    a("s_barrier")
    sites.append(period(a, 0, 2, VPOS[0], KPOS[1], rebuild=True))
    sites.append(period(a, 1, 3, VPOS[1], KPOS[0], rebuild=True, adv=True, tail_ops=["s_sub_u32 s41, s41, 1\ns_cmp_lg_u32 s41, 0"]))
    a("s_cbranch_scc1 Lat_rebuild")
    a("s_barrier")
    sites.append(period(a, 0, 4, VPOS[0], VPOS[1]))
    sites.append(period(a, 1, 5, None, VPOS[0], qk=False, adv=True))
    a("s_barrier")
    m = pv_group(1)
    mv = [f"v_mov_b32 v{Q+i}, v{Q2+i}" for i in range(32)]
    for i in range(8):
        if i % 4 == 0: a(W4)
        a(m[i]); a(rd(i, KPOS[1]))
        for o in mv[4*i:4*i+4]: a(o)
    a(f"v_add_f32 v{V_L}, v{V_L}, v{V_LU}")
    a(f"v_mov_b32 v{t}, v{V_L}\ns_nop 1\nv_permlane32_swap_b32 v{V_L}, v{t}\ns_nop 1\nv_add_f32 v{V_L}, v{V_L}, v{t}")
    a(f"v_rcp_f32 v{T}, v{V_L}\ns_nop 0\nv_mov_b32 v{T+1}, v{T}")
    a("s_lshl_b32 s32, s42, 20\ns_lshl_b32 s33, s3, 18\ns_add_u32 s32, s32, s33\ns_lshl_b32 s33, s28, 12\ns_add_u32 s32, s32, s33")
    a("s_nop 3")
    k = 0
    for tt in range(4):
        for e in range(2):
            src = O + 16*tt + 8*e; dst = S[0] + 4 * k; k += 1
            for p in range(4): a(f"v_pk_mul_f32 {vr(src+2*p,2)}, {vr(src+2*p,2)}, {vr(T,2)}")
            for p in range(4): a(f"v_cvt_pk_bf16_f32 v{dst+p}, v{src+2*p}, v{src+2*p+1}")
            a(f"buffer_store_dwordx4 {vr(dst,4)}, v{V_T0}, s[20:23], s32 offen offset:{tt*1024 + e*512}")
    a("s_cmp_lg_u32 s43, 0\ns_cbranch_scc1 Lat_cend")
    stamp(a, 4)
    a("s_mov_b32 s43, 1\ns_mov_b32 s42, s31\ns_branch Lat_qk0")
    a.label("Lat_cend")
    if STAMP:
        stamp(a, 5)
        a("s_waitcnt vmcnt(0) lgkmcnt(0)")
        stamp_flush(a, 6, 100, "Lat_st")
    a("s_endpgm")
    for site, par in sites:
        a.label(f"Lat_rs{site}")
        a(f"s_call_b64 s[44:45], Lat_rare{par}\ns_branch Lat_rb{site}")
    rare_path(a, 0); rare_path(a, 1)

    a.label("Lat_load")
    a("s_sub_u32 s3, s3, 4")
    a("v_lshrrev_b32 v2, 4, v8\nv_lshlrev_b32 v2, 15, v2\nv_and_b32 v3, 15, v8\nv_lshl_add_u32 v2, v3, 4, v2")
    a("s_and_b32 s32, s3, 1\ns_lshl_b32 s32, s32, 14\ns_lshr_b32 s33, s3, 1\ns_lshl_b32 s33, s33, 17\ns_add_u32 s32, s32, s33")
    a("v_add_u32 v2, s32, v2")
    a(f"s_lshl_b32 s32, s3, 12\nv_add_u32 v3, s32, v{V_LANE16}")
    a("s_waitcnt lgkmcnt(0)")
    make_srd(a, 8, 4, SIZES['wq'])
    make_ws_srd(a, 12, 6, 'h1')
    a("s_lshl_b32 s32, s28, 19")
    a(f"s_add_u32 s33, s32, {WS['kf'][0] - 8192}\ns_add_u32 s16, s6, s33\ns_addc_u32 s17, s7, 0\ns_and_b32 s17, s17, 0xffff")
    a(f"s_mov_b32 s18, {576*1024}\ns_mov_b32 s19, 0x20000")
    a(f"s_add_u32 s33, s32, {WS['vf'][0] - 24576}\ns_add_u32 s20, s6, s33\ns_addc_u32 s21, s7, 0\ns_and_b32 s21, s21, 0xffff")
    a(f"s_mov_b32 s22, {576*1024}\ns_mov_b32 s23, 0x20000")
    a("s_lshl_b32 s34, s28, 8")
    a("s_lshl_b32 s35, s30, 2\ns_add_u32 s35, s35, s3\ns_mul_i32 s35, s35, 36864")
    a("s_lshl_b32 s36, s31, 2\ns_add_u32 s36, s36, s3\ns_mul_i32 s36, s36, 36864")
    a("s_mul_i32 s37, s3, 2176")
    a(f"s_lshl_b32 s38, s3, 11\ns_add_u32 s38, s38, {WQ_BYTES}")
    a("s_lshl_b32 s39, s3, 12")
    a("s_mov_b32 s40, 0")
    a("s_mov_b32 s46, 0\ns_mov_b32 s47, 0\ns_mov_b32 s48, 0")
    a("s_lshl_b32 s49, s30, 1\ns_add_u32 s49, s49, 3")
    def qload():
        a("s_add_u32 m0, s40, s37\ns_nop 0\nbuffer_load_dwordx4 v2, s[8:11], s34 offen lds")
        a("s_add_u32 s32, s40, s37\ns_add_u32 m0, s32, 1088\ns_add_u32 s33, s34, 8192\nbuffer_load_dwordx4 v2, s[8:11], s33 offen lds")
        a(f"s_add_u32 m0, s40, s38\ns_nop 0\nbuffer_load_dwordx4 v{V_LANE16}, s[12:15], s35 offen lds\nbuffer_load_dwordx4 v{V_LANE16}, s[12:15], s35 offen offset:1024 lds")
        a(f"s_add_u32 s32, s40, s38\ns_add_u32 m0, s32, 8192\ns_nop 0\nbuffer_load_dwordx4 v{V_LANE16}, s[12:15], s36 offen lds\nbuffer_load_dwordx4 v{V_LANE16}, s[12:15], s36 offen offset:1024 lds")
        a(f"s_add_u32 s34, s34, {32*8192}\ns_add_u32 s35, s35, 2048\ns_add_u32 s36, s36, 2048")
        a(ADV[0])
    def kvload():
        a("s_add_u32 m0, s40, s39\ns_nop 0")
        for j in range(4): a(f"buffer_load_dwordx4 v3, s[16:19], s46 offen offset:{1024*j} lds")
        a("s_add_u32 s32, s40, s39\ns_add_u32 m0, s32, 16384\ns_nop 0")
        for j in range(4): a(f"buffer_load_dwordx4 v3, s[20:23], s47 offen offset:{1024*j} lds")
        a("s_add_u32 s46, s46, 16384\ns_add_u32 s47, s47, 16384\ns_add_u32 s48, s48, 1")
        a("s_cmp_eq_u32 s48, s49\ns_cselect_b32 s46, 0, s46")
        a("s_add_u32 s32, s49, 1\ns_cmp_eq_u32 s48, s32\ns_cselect_b32 s47, 16384, s47")
        a(ADV[0])
    for i in range(3): qload()
    a("s_mov_b32 s41, 15")
    a.label("Lat_lq")
    a("s_waitcnt vmcnt(6)\ns_barrier")
    qload()
    a("s_sub_u32 s41, s41, 1\ns_cmp_lg_u32 s41, 0\ns_cbranch_scc1 Lat_lq")
    a("s_waitcnt vmcnt(6)\ns_barrier")
    kvload()
    a("s_mov_b32 s41, 36")
    a.label("Lat_lkv")
    a("s_waitcnt vmcnt(8)\ns_barrier")
    kvload()
    a("s_sub_u32 s41, s41, 1\ns_cmp_lg_u32 s41, 0\ns_cbranch_scc1 Lat_lkv")
    a("s_waitcnt vmcnt(8)\ns_barrier")
    a("s_waitcnt vmcnt(0)\ns_barrier")
    a("s_barrier")
    a.label("Lat_done")
    a("s_endpgm")
    return n, a, dict(grid=256, block=512, lds=SLOT*NSLOT, vgpr=256)
```

```python
from gen_common import *
import struct, math
def f32(x): return "0x%08x" % struct.unpack('<I', struct.pack('<f', x))[0]

def loader_loop(a, pre, nst, nslot, per, issue):
    ahead = nslot - 1
    for i in range(ahead): issue()
    a(f"s_mov_b32 s41, {nst - ahead}")
    a.label(f"{pre}_lloop")
    a(f"s_waitcnt vmcnt({per * (ahead - 2)})\ns_barrier")
    issue()
    a(f"s_sub_u32 s41, s41, 1\ns_cmp_lg_u32 s41, 0\ns_cbranch_scc1 {pre}_lloop")
    for r in range(ahead):
        left = max(0, ahead - 2 - r)
        a(f"s_waitcnt vmcnt({per * left})\ns_barrier")

def adv_slot(slot, nslot):
    return f"s_add_u32 s40, s40, {slot}\ns_cmp_eq_u32 s40, {slot*nslot}\ns_cselect_b32 s40, 0, s40"

def gemm16(kind):
    a = Asm(); n = 'oproj_kernel' if kind == 'o' else 'mlp2_kernel'; pre = 'Lg' + kind
    NSLOT = 4
    if kind == 'o':
        F_BYTES, W_BYTES, NST = 16384, 20480, 16
    else:
        F_BYTES, W_BYTES, NST = 20480, 16896, 18
    SLOT = F_BYTES + W_BYTES
    a(f"s_cmp_ge_u32 s2, 256\ns_cbranch_scc1 {pre}_done")
    stamp(a, 0)
    load_ptr(a, 4, 'wo' if kind == 'o' else 'w2'); load_ptr(a, 6, 'ws')
    a("v_and_b32 v8, 63, v0\nv_lshrrev_b32 v9, 6, v0\ns_nop 1\nv_readfirstlane_b32 s3, v9")
    a("s_bfe_u32 s28, s2, 0x20001")
    a("s_and_b32 s29, s2, 1\ns_lshl_b32 s29, s29, 3\ns_lshr_b32 s30, s2, 5\ns_add_u32 s29, s29, s30")
    a("s_bfe_u32 s30, s2, 0x20003")
    a("v_lshlrev_b32 v1, 4, v8")
    a(f"s_cmp_ge_u32 s3, 4\ns_cbranch_scc1 {pre}_load")
    ACC = 16; SET = [96, 144]
    a("v_bfe_u32 v2, v8, 4, 1\nv_lshlrev_b32 v2, 2, v2\nv_bfe_u32 v9, v8, 2, 2\nv_add_u32 v2, v2, v9")
    a("v_lshrrev_b32 v9, 5, v8\nv_and_b32 v10, 3, v8")
    if kind == 'o':
        a("v_lshl_add_u32 v2, v9, 4, v2\nv_mul_u32_u24 v2, 288, v2\nv_lshl_add_u32 v2, v10, 3, v2")
        a(f"v_add_u32 v4, {F_BYTES}, v2")
        a("s_lshl_b32 s32, s3, 12\nv_add_u32 v5, s32, v1")
    else:
        a("v_mul_u32_u24 v2, 1056, v2\nv_lshl_add_u32 v2, v9, 9, v2\nv_lshl_add_u32 v2, v10, 3, v2")
        a(f"s_lshl_b32 s32, s3, 6\ns_add_u32 s32, s32, {F_BYTES}\nv_add_u32 v4, s32, v2")
        a("v_mov_b32 v5, v1")
    a("v_mov_b32 v2, v4\nv_mov_b32 v3, v5")
    for i in range(72): a(f"v_mov_b32 v{ACC+i}, 0")
    a("s_waitcnt lgkmcnt(0)")
    make_ws_srd(a, 20, 6, 'p3' if kind == 'o' else 'p6')
    def reads(ks, st):
        b = SET[st]; r = []
        if kind == 'o':
            for t in range(2): r.append(f"ds_read_b128 {vr(b+4*t,4)}, v3 offset:{t*2048 + ks*1024}")
            for c in range(9):
                for e in range(2): r.append(f"ds_read_b64_tr_b16 {vr(b+8+4*c+2*e,2)}, v2 offset:{(32*ks + 8*e)*288 + c*32}")
        else:
            for t in range(2):
                for e in range(2): r.append(f"ds_read_b64_tr_b16 {vr(b+4*t+2*e,2)}, v2 offset:{8*ks*1056 + e*256 + t*32}")
            for c in range(9): r.append(f"ds_read_b128 {vr(b+8+4*c,4)}, v3 offset:{c*2048 + ks*1024}")
        return r
    def mfs(st):
        b = SET[st]
        return [f"v_mfma_f32_16x16x32_bf16 {vr(ACC+4*(9*t+c),4)}, {vr(b+4*t,4)}, {vr(b+8+4*c,4)}, {vr(ACC+4*(9*t+c),4)}"
                for c in range(9) for t in range(2)]
    def front(m, r):
        out = []
        for i, x in enumerate(m):
            out.append(x); out += r[2*i:2*i+2]
        return out
    a(f"s_mov_b32 s40, 0\ns_mov_b32 s41, {NST}")
    stamp(a, 1)
    a("s_barrier")
    stamp(a, 2)
    for o in reads(0, 0): a(o)
    a.label(f"{pre}_cloop")
    a("s_waitcnt lgkmcnt(0)")
    for o in front(mfs(0), reads(1, 1)): a(o)
    a(adv_slot(SLOT, NSLOT))
    a("v_add_u32 v2, s40, v4\nv_add_u32 v3, s40, v5")
    a("s_waitcnt lgkmcnt(0)")
    for o in front(mfs(1), reads(0, 0)): a(o)
    a(f"s_sub_u32 s41, s41, 1\ns_cmp_eq_u32 s41, 0\ns_cbranch_scc1 {pre}_cend\ns_barrier\ns_branch {pre}_cloop")
    a.label(f"{pre}_cend")
    stamp(a, 3)
    a("s_lshl_b32 s32, s28, 7\ns_lshl_b32 s33, s29, 3\ns_add_u32 s32, s32, s33\ns_lshl_b32 s33, s3, 1\ns_add_u32 s32, s32, s33")
    a("s_mul_i32 s32, s32, 36\ns_mul_i32 s33, s30, 9\ns_add_u32 s32, s32, s33\ns_lshl_b32 s32, s32, 10")
    a("s_nop 3")
    for t in range(2):
        for c in range(9):
            off = (t*36 + c) * 1024
            if c % 4 == 0: a(f"s_add_u32 s33, s32, {off}")
            a(f"buffer_store_dwordx4 {vr(ACC+4*(9*t+c),4)}, v1, s[20:23], s33 offen offset:{(c % 4)*1024}")
    if STAMP:
        stamp(a, 4); a("s_waitcnt vmcnt(0)"); stamp(a, 5); a("s_waitcnt lgkmcnt(0)")
        stamp_flush(a, 6, 100, f"{pre}_st")
    a("s_endpgm")
    a.label(f"{pre}_load")
    a("s_sub_u32 s3, s3, 4")
    if kind == 'o':
        a("s_mul_i32 s32, s3, 320\ns_mov_b32 s33, 0xe38e38f")
        for jj in range(5):
            a(f"v_add_u32 v9, s32, v8\nv_add_u32 v9, {64*jj}, v9\nv_mul_hi_u32 v10, v9, s33")
            a(f"v_mul_u32_u24 v11, 18, v10\nv_sub_u32 v11, v9, v11\nv_mul_u32_u24 v10, 1152, v10\nv_lshl_add_u32 v{2+jj}, v11, 4, v10")
            a(f"v_cmp_gt_u32 vcc, 1152, v9\nv_mov_b32 v10, 0xffffff00\ns_nop 1\nv_cndmask_b32 v{2+jj}, v10, v{2+jj}, vcc")
        a("s_waitcnt lgkmcnt(0)")
        make_srd(a, 8, 4, SIZES['wo']); make_ws_srd(a, 12, 6, 'ctx')
        a(f"s_mul_i32 s34, s28, {1024*1152}\ns_mul_i32 s32, s30, 288\ns_add_u32 s34, s34, s32")
        a("s_lshl_b32 s35, s29, 3\ns_lshl_b32 s32, s3, 1\ns_add_u32 s35, s35, s32\ns_lshl_b32 s35, s35, 17\ns_lshl_b32 s32, s28, 15\ns_add_u32 s35, s35, s32")
        a(f"s_mul_i32 s37, s3, 5120\ns_add_u32 s37, s37, {F_BYTES}\ns_lshl_b32 s38, s3, 12\ns_mov_b32 s40, 0")
        def issue():
            a("s_add_u32 m0, s40, s38\ns_add_u32 s33, s35, 0x20000")
            a("buffer_load_dwordx4 v1, s[12:15], s35 offen lds\nbuffer_load_dwordx4 v1, s[12:15], s35 offen offset:1024 lds")
            a("s_add_u32 s32, s40, s38\ns_add_u32 m0, s32, 2048\ns_add_u32 s32, s40, s37")
            a("buffer_load_dwordx4 v1, s[12:15], s33 offen lds\nbuffer_load_dwordx4 v1, s[12:15], s33 offen offset:1024 lds")
            for jj in range(5):
                a(f"s_add_u32 m0, s32, {1024*jj}\ns_nop 0\nbuffer_load_dwordx4 v{2+jj}, s[8:11], s34 offen lds")
            a(f"s_add_u32 s34, s34, {64*1152}\ns_add_u32 s35, s35, 2048")
            a(adv_slot(SLOT, NSLOT))
    else:
        a("v_lshrrev_b32 v2, 4, v8\nv_lshlrev_b32 v2, 15, v2\nv_and_b32 v9, 15, v8\nv_lshl_add_u32 v2, v9, 4, v2")
        a("s_and_b32 s32, s3, 1\ns_lshl_b32 s32, s32, 14\ns_lshr_b32 s33, s3, 1\ns_lshl_b32 s33, s33, 17\ns_add_u32 s32, s32, s33\nv_add_u32 v2, s32, v2")
        a("s_waitcnt lgkmcnt(0)")
        make_srd(a, 8, 4, SIZES['w2']); make_ws_srd(a, 12, 6, 'u')
        a(f"s_mul_i32 s34, s28, {1152*4096}\ns_lshl_b32 s32, s29, 8\ns_add_u32 s34, s34, s32")
        a(f"s_mul_i32 s35, s30, {9*147456}\ns_mul_i32 s32, s28, {36*1024}\ns_add_u32 s35, s35, s32")
        for jj in range(5):
            a(f"s_mul_i32 s32, s3, 5\ns_add_u32 s32, s32, {jj}\ns_lshr_b32 s33, s32, 1\ns_mul_i32 s33, s33, 147456")
            a(f"s_and_b32 s36, s32, 1\ns_lshl_b32 s36, s36, 10\ns_add_u32 s33, s33, s36\ns_add_u32 s33, s33, s35")
            a(f"s_cmp_lt_u32 s32, 18\ns_cselect_b32 s{50+jj}, s33, 0x7f000000")
        a(f"s_mul_i32 s37, s3, 4224\ns_add_u32 s37, s37, {F_BYTES}\ns_mul_i32 s38, s3, 5120\ns_mov_b32 s40, 0")
        def issue():
            a("s_add_u32 s32, s40, s37")
            for jj in range(4):
                a(f"s_add_u32 m0, s32, {1056*jj}\ns_add_u32 s33, s34, {4096*jj}\nbuffer_load_dwordx4 v2, s[8:11], s33 offen lds")
            a("s_add_u32 s32, s40, s38")
            for jj in range(5):
                a(f"s_add_u32 m0, s32, {1024*jj}\ns_nop 0\nbuffer_load_dwordx4 v1, s[12:15], s{50+jj} offen lds\ns_add_u32 s{50+jj}, s{50+jj}, 2048")
            a(f"s_add_u32 s34, s34, {64*4096}")
            a(adv_slot(SLOT, NSLOT))
    loader_loop(a, pre, NST, NSLOT, 9, issue)
    a.label(f"{pre}_done")
    a("s_endpgm")
    return n, a, dict(grid=256, block=512, lds=SLOT*NSLOT, vgpr=192)

def k_mlp1():
    a = Asm(); n = 'mlp1_kernel'; pre = 'Lm1'
    NSLOT = 5; W_BYTES = 17408; SLOT = W_BYTES + 12288; NST = 32
    a(f"s_cmp_ge_u32 s2, 216\ns_cbranch_scc1 {pre}_done")
    stamp(a, 0)
    load_ptr(a, 4, 'w1'); load_ptr(a, 6, 'ws'); load_ptr(a, 24, 'b1')
    a("v_and_b32 v8, 63, v0\nv_lshrrev_b32 v9, 6, v0\ns_nop 1\nv_readfirstlane_b32 s3, v9")
    a("s_and_b32 s32, s2, 7\ns_mul_i32 s32, s32, 27\ns_lshr_b32 s33, s2, 3\ns_add_u32 s32, s32, s33")
    a("s_mul_hi_u32 s28, s32, 0x2aaaaaab\ns_mul_i32 s33, s28, 6\ns_sub_u32 s29, s32, s33")
    a("v_lshlrev_b32 v1, 4, v8")
    a(f"s_cmp_ge_u32 s3, 4\ns_cbranch_scc1 {pre}_load")
    ACC = 16; SET = [112, 132]
    a("v_bfe_u32 v2, v8, 2, 2\nv_mul_u32_u24 v2, 1088, v2\nv_lshrrev_b32 v9, 5, v8\nv_lshl_add_u32 v2, v9, 9, v2")
    a("v_bfe_u32 v9, v8, 4, 1\nv_lshl_add_u32 v2, v9, 5, v2\nv_and_b32 v9, 3, v8\nv_lshl_add_u32 v2, v9, 3, v2")
    a("s_and_b32 s30, s3, 1\ns_lshr_b32 s31, s3, 1")
    a("s_lshl_b32 s32, s30, 7\ns_mul_i32 s33, s31, 8704\ns_add_u32 s32, s32, s33\nv_add_u32 v4, s32, v2")
    a(f"s_lshl_b32 s32, s31, 11\ns_add_u32 s32, s32, {W_BYTES}\nv_add_u32 v5, s32, v1")
    a("v_mov_b32 v2, v4\nv_mov_b32 v3, v5")
    for i in range(96): a(f"v_mov_b32 v{ACC+i}, 0")
    a("s_waitcnt lgkmcnt(0)")
    make_ws_srd(a, 20, 6, 'u'); make_srd(a, 12, 24, SIZES['b1'])
    a("s_lshl_b32 s32, s28, 2\ns_lshl_b32 s33, s30, 1\ns_add_u32 s32, s32, s33\ns_add_u32 s34, s32, s31")
    a("s_lshl_b32 s32, s34, 6\nv_lshrrev_b32 v9, 5, v8\nv_lshlrev_b32 v9, 3, v9")
    for q in range(4): a(f"buffer_load_dwordx2 {vr(152+2*q,2)}, v9, s[12:15], s32 offen offset:{16*q}")
    def reads(ks, st):
        b = SET[st]; r = []
        for d in range(3): r.append(f"ds_read_b128 {vr(b+8+4*d,4)}, v3 offset:{d*4096 + ks*1024}")
        for t in range(2):
            for e in range(2): r.append(f"ds_read_b64_tr_b16 {vr(b+4*t+2*e,2)}, v2 offset:{ks*4352 + e*256 + t*64}")
        return r
    def mfs(st):
        b = SET[st]
        return [f"v_mfma_f32_32x32x16_bf16 {vr(ACC+16*(3*t+d),16)}, {vr(b+4*t,4)}, {vr(b+8+4*d,4)}, {vr(ACC+16*(3*t+d),16)}"
                for t in range(2) for d in range(3)]
    def front(m, r):
        out = []
        for i, x in enumerate(m):
            out.append(x); out += r[2*i:2*i+2]
        return out
    a(f"s_mov_b32 s40, 0\ns_mov_b32 s41, {NST}")
    stamp(a, 1)
    a("s_barrier")
    stamp(a, 2)
    for o in reads(0, 0): a(o)
    a.label(f"{pre}_cloop")
    a("s_waitcnt lgkmcnt(0)")
    for o in front(mfs(0), reads(1, 1)): a(o)
    a(adv_slot(SLOT, NSLOT))
    a("v_add_u32 v2, s40, v4\nv_add_u32 v3, s40, v5")
    a("s_waitcnt lgkmcnt(0)")
    for o in front(mfs(1), reads(0, 0)): a(o)
    a(f"s_sub_u32 s41, s41, 1\ns_cmp_lg_u32 s41, 0\ns_barrier\ns_cbranch_scc1 {pre}_cloop")
    stamp(a, 3)
    a("s_waitcnt lgkmcnt(0)")
    a("s_mul_i32 s32, s3, 12288\nv_add_u32 v2, s32, v1")
    a("s_xor_b32 s33, s3, 2\ns_mul_i32 s33, s33, 12288\nv_add_u32 v3, s33, v1")
    a(f"s_cmp_eq_u32 s31, 0\ns_cbranch_scc1 {pre}_k0")
    for kh in (1, 0):
        if kh == 0: a.label(f"{pre}_k0")
        keep = ACC + 48 * kh; send = ACC + 48 * (1 - kh)
        a("s_nop 7")
        for i in range(12): a(f"ds_write_b128 v2, {vr(send+4*i,4)} offset:{1024*i}")
        a("s_waitcnt lgkmcnt(0)\ns_barrier")
        for i in range(12): a(f"ds_read_b128 {vr(send+4*i,4)}, v3 offset:{1024*i}")
        a("s_waitcnt vmcnt(0)")
        for q in range(4):
            for h in range(2):
                a(f"v_lshlrev_b32 v{160+4*q+2*h}, 16, v{152+2*q+h}\nv_and_b32 v{161+4*q+2*h}, 0xffff0000, v{152+2*q+h}")
        a("v_bfe_u32 v9, v8, 4, 1\nv_mul_u32_u24 v9, 147456, v9\nv_lshrrev_b32 v10, 5, v8\nv_lshl_add_u32 v9, v10, 8, v9")
        a("v_and_b32 v10, 15, v8\nv_lshl_add_u32 v6, v10, 4, v9")
        a(f"s_mul_i32 s32, s29, {6*147456}\ns_lshl_b32 s33, s34, 10\ns_add_u32 s32, s32, s33")
        c1 = -2 * math.sqrt(2 / math.pi) * math.log2(math.e); c2 = c1 * 0.044715
        a(f"s_mov_b32 s36, {f32(c1)}\ns_mov_b32 s37, {f32(c2)}")
        for d in range(3):
            a(f"s_waitcnt lgkmcnt({8 - 4*d})")
            for e in range(2):
                b = keep + 16*d + 8*e; o = send + 16*d + 8*e
                for r in range(8): a(f"v_add_f32 v{b+r}, v{b+r}, v{o+r}")
                for r in range(8): a(f"v_add_f32 v{b+r}, v{b+r}, v{160+8*e+r}")
                for r in range(8): a(f"v_mul_f32 v{o+r}, v{b+r}, v{b+r}")
                a(f"v_mov_b32 v10, s36")
                for r in range(8): a(f"v_fma_f32 v{o+r}, v{o+r}, s37, v10")
                for r in range(8): a(f"v_mul_f32 v{o+r}, v{o+r}, v{b+r}")
                for r in range(8): a(f"v_exp_f32 v{o+r}, v{o+r}")
                for r in range(8): a(f"v_add_f32 v{o+r}, 1.0, v{o+r}")
                for r in range(8): a(f"v_rcp_f32 v{o+r}, v{o+r}")
                for r in range(8): a(f"v_mul_f32 v{b+r}, v{b+r}, v{o+r}")
                for p in range(4): a(f"v_cvt_pk_bf16_f32 v{o+p}, v{b+2*p}, v{b+2*p+1}")
                a(f"buffer_store_dwordx4 {vr(o,4)}, v6, s[20:23], s32 offen offset:{e*512}")
            a(f"s_add_u32 s32, s32, {2*147456}")
        if STAMP:
            stamp(a, 4); a("s_waitcnt vmcnt(0)"); stamp(a, 5); a("s_waitcnt lgkmcnt(0)")
            stamp_flush(a, 6, 100, f"{pre}_st{kh}")
        a("s_endpgm")
    a.label(f"{pre}_load")
    a("s_sub_u32 s3, s3, 4")
    a("v_lshrrev_b32 v2, 4, v8\nv_mul_u32_u24 v2, 36864, v2\nv_and_b32 v9, 15, v8\nv_lshl_add_u32 v2, v9, 4, v2")
    a(f"s_mul_i32 s32, s3, {16*9216}\nv_add_u32 v2, s32, v2")
    a("s_waitcnt lgkmcnt(0)")
    make_srd(a, 8, 4, SIZES['w1']); make_ws_srd(a, 12, 6, 'h2')
    a("s_lshl_b32 s34, s28, 8")
    a(f"s_mul_i32 s35, s29, {3*131072}\ns_lshl_b32 s32, s3, 10\ns_add_u32 s35, s35, s32")
    a(f"s_mul_i32 s37, s3, 4352\ns_lshl_b32 s38, s3, 10\ns_add_u32 s38, s38, {W_BYTES}\ns_mov_b32 s40, 0")
    def issue():
        a("s_add_u32 s32, s40, s37")
        for jj in range(4):
            a(f"s_add_u32 m0, s32, {1088*jj}\ns_add_u32 s33, s34, {9216*jj}\nbuffer_load_dwordx4 v2, s[8:11], s33 offen lds")
        a("s_add_u32 s32, s40, s38")
        for d in range(3):
            a(f"s_add_u32 m0, s32, {4096*d}\ns_add_u32 s33, s35, {131072*d}\nbuffer_load_dwordx4 v1, s[12:15], s33 offen lds")
        a(f"s_add_u32 s34, s34, {64*9216}\ns_add_u32 s35, s35, 4096")
        a(adv_slot(SLOT, NSLOT))
    loader_loop(a, pre, NST, NSLOT, 7, issue)
    a("s_barrier\ns_barrier")
    a.label(f"{pre}_done")
    a("s_endpgm")
    return n, a, dict(grid=216, block=512, lds=SLOT*NSLOT, vgpr=176)
```

```python
from gen_common import *

A_BYTES = 32 * 1040
W_BYTES = 16 * 1088
SLOT = A_BYTES + 2 * W_BYTES

def k_kv():
    a = Asm(); n = 'kv_kernel'
    ACC = 64
    SET = [16, 40]
    a("s_cmp_ge_u32 s2, 256\ns_cbranch_scc1 Lkv_done")
    stamp(a, 0)
    load_ptr(a, 4, 'ckv'); load_ptr(a, 6, 'wuk'); load_ptr(a, 8, 'wuv'); load_ptr(a, 10, 'ws')
    a("v_and_b32 v1, 63, v0\nv_lshrrev_b32 v2, 6, v0\ns_nop 1\nv_readfirstlane_b32 s3, v2")
    a("s_and_b32 s28, s2, 7\ns_lshr_b32 s29, s2, 3")
    a("s_and_b32 s30, s29, 3\ns_lshl_b32 s28, s28, 2\ns_add_u32 s28, s28, s30")
    a("s_lshr_b32 s29, s29, 2")
    a("v_lshrrev_b32 v3, 3, v1\nv_lshlrev_b32 v3, 13, v3\nv_and_b32 v4, 7, v1\nv_lshl_add_u32 v3, v4, 4, v3")
    a("s_and_b32 s30, s3, 1\ns_lshl_b32 s30, s30, 12\ns_lshr_b32 s31, s3, 1\ns_lshl_b32 s31, s31, 16\ns_add_u32 s30, s30, s31")
    a("v_add_u32 v3, s30, v3")
    a("v_lshrrev_b32 v4, 4, v1\nv_lshlrev_b32 v4, 15, v4\nv_and_b32 v5, 15, v1\nv_lshl_add_u32 v4, v5, 4, v4")
    a("s_and_b32 s30, s3, 3\ns_lshl_b32 s30, s30, 17\nv_add_u32 v4, s30, v4")
    a("v_and_b32 v5, 7, v1\nv_mul_u32_u24 v5, 1040, v5\nv_bfe_u32 v6, v1, 3, 2\nv_lshl_add_u32 v5, v6, 7, v5")
    a("v_lshrrev_b32 v6, 5, v1\nv_lshl_add_u32 v5, v6, 4, v5")
    a("s_and_b32 s30, s3, 1\ns_mul_i32 s30, s30, 16640\nv_add_u32 v5, s30, v5")
    a("v_bfe_u32 v6, v1, 2, 2\nv_mul_u32_u24 v6, 1088, v6\nv_lshrrev_b32 v7, 5, v1\nv_lshl_add_u32 v6, v7, 9, v6")
    a("v_bfe_u32 v7, v1, 4, 1\nv_lshl_add_u32 v6, v7, 5, v6\nv_and_b32 v7, 3, v1\nv_lshl_add_u32 v6, v7, 3, v6")
    a(f"s_lshr_b32 s30, s3, 2\ns_mul_i32 s30, s30, {W_BYTES}\ns_bfe_u32 s31, s3, 0x10001\ns_lshl_b32 s31, s31, 7")
    a(f"s_add_u32 s30, s30, s31\ns_add_u32 s30, s30, {A_BYTES}\nv_add_u32 v6, s30, v6")
    a("s_waitcnt lgkmcnt(0)")
    make_srd(a, 12, 4, SIZES['ckv'])
    a(f"s_mov_b32 s31, {WS['vf'][0]}")
    a("s_cmp_lt_u32 s3, 4\ns_cselect_b32 s6, s6, s8\ns_cselect_b32 s7, s7, s9")
    a(f"s_cselect_b32 s30, {WS['kf'][0]}, s31")
    make_srd(a, 16, 6, SIZES['wuk'])
    a("s_add_u32 s20, s10, s30\ns_addc_u32 s21, s11, 0\ns_and_b32 s21, s21, 0xffff")
    a(f"s_mov_b32 s22, {WS['kf'][1]}\ns_mov_b32 s23, 0x20000")
    a("s_lshl_b32 s32, s29, 18")
    a("s_lshl_b32 s33, s28, 8")
    a("s_mul_i32 s34, s3, 4160")
    a(f"s_mul_i32 s35, s3, 4352\ns_add_u32 s35, s35, {A_BYTES}")
    a("s_mov_b32 s36, 0")

    def dma_ops():
        ops = []
        for jj in range(4):
            ops.append(f"s_add_u32 s37, s34, s36\ns_add_u32 m0, s37, {16*jj}\ns_nop 0\nbuffer_load_dwordx4 v3, s[12:15], s32 offen offset:{1024*jj} lds")
        for jj in range(4):
            ops.append(f"s_add_u32 s37, s35, s36\ns_add_u32 m0, s37, {1088*jj}\ns_add_u32 s38, s33, {8192*jj}\nbuffer_load_dwordx4 v4, s[16:19], s38 offen lds")
        return ops
    def dma_advance():
        return f"s_add_u32 s32, s32, 128\ns_add_u32 s33, s33, {64*8192}\ns_xor_b32 s36, s36, {SLOT}"
    for st in range(2):
        for o in dma_ops(): a(o)
        a(dma_advance())
    for i in range(128): a(f"v_mov_b32 v{ACC+i}, 0")

    def reads(ks, s):
        b = SET[s]
        r = []
        for nn in range(2):
            for e in range(2):
                r.append(f"ds_read_b64_tr_b16 {vr(b+16+4*nn+2*e,2)}, v6 offset:{ks*4352 + e*256 + nn*64}")
        for m in range(4):
            r.append(f"ds_read_b128 {vr(b+4*m,4)}, v5 offset:{(m>>1)*8320 + (m&1)*512 + ks*32}")
        return r
    def mfmas(s, role):
        b = SET[s]; r = []
        for m in range(4):
            for nn in range(2):
                acc = vr(ACC + 16*(2*m+nn), 16)
                c = vr(b+4*m, 4); w = vr(b+16+4*nn, 4)
                r.append(f"v_mfma_f32_32x32x16_bf16 {acc}, {w}, {c}, {acc}" if role == 0 else
                         f"v_mfma_f32_32x32x16_bf16 {acc}, {c}, {w}, {acc}")
        return r
    stamp(a, 1)
    a("s_waitcnt vmcnt(8)\ns_barrier")
    stamp(a, 2)
    for o in reads(0, 0): a(o)
    a("s_mov_b32 s39, 0")
    a(f"s_mov_b32 s40, {SLOT}")
    a("s_cmp_lt_u32 s3, 4\ns_cbranch_scc0 Lkv_loop1")
    for role in range(2):
        a.label(f"Lkv_loop{role}")
        for ks in range(3):
            a("s_waitcnt lgkmcnt(0)")
            for o in interleave(mfmas(ks & 1, role), reads(ks + 1, (ks + 1) & 1)): a(o)
        a("s_cmp_ge_u32 s39, 6\ns_cselect_b32 s14, 0, s14\ns_cselect_b32 s18, 0, s18")
        a("v_add_u32 v5, s40, v5\nv_add_u32 v6, s40, v6\ns_sub_u32 s40, 0, s40")
        a("s_waitcnt vmcnt(0) lgkmcnt(0)\ns_barrier")
        rd = reads(0, 0); dm = dma_ops()
        mf = mfmas(1, role)
        for i in range(8):
            a(mf[i]); a(rd[i]); a(dm[i])
        a(dma_advance())
        a(f"s_add_u32 s39, s39, 1\ns_cmp_lt_u32 s39, 8\ns_cbranch_scc1 Lkv_loop{role}")
        stamp(a, 3)
        a("s_lshl_b32 s30, s28, 19\ns_lshl_b32 s31, s29, 16\ns_add_u32 s30, s30, s31")
        a("s_and_b32 s31, s3, 1\ns_lshl_b32 s31, s31, 15\ns_add_u32 s30, s30, s31")
        a("s_bfe_u32 s31, s3, 0x10001")
        a(f"s_lshl_b32 s31, s31, {12 if role == 0 else 11}\ns_add_u32 s30, s30, s31")
        a("v_lshlrev_b32 v7, 4, v1")
        a("s_nop 7\ns_nop 3")
        k = 0
        for m in range(4):
            a(f"s_add_u32 s31, s30, {m*8192}")
            for nn in range(2):
                for e in range(2):
                    src = ACC + 16*(2*m+nn) + 8*e
                    dst = 16 + 4 * (k % 8); k += 1
                    for p in range(4): a(f"v_cvt_pk_bf16_f32 v{dst+p}, v{src+2*p}, v{src+2*p+1}")
                    off = (2*nn + e) * 1024 if role == 0 else (e*4 + nn) * 1024
                    if off >= 4096:
                        a(f"s_add_u32 s38, s31, 4096")
                        a(f"buffer_store_dwordx4 {vr(dst,4)}, v7, s[20:23], s38 offen offset:{off-4096}")
                    else:
                        a(f"buffer_store_dwordx4 {vr(dst,4)}, v7, s[20:23], s31 offen offset:{off}")
        if STAMP:
            stamp(a, 4)
            a("s_waitcnt vmcnt(0)")
            stamp(a, 5)
            a("s_waitcnt lgkmcnt(0)")
            stamp_flush(a, 6, 100, f"Lkv_st{role}")
        a("s_endpgm")
    a.label("Lkv_done")
    a("s_endpgm")
    return n, a, dict(grid=256, block=512, lds=2*SLOT, vgpr=192)
```

```python
from gen_common import *

LOG2E = 0x3fb8aa3b

def k_mod():
    a = Asm(); n = 'mod_kernel'
    a("s_cmp_ge_u32 s2, 54\ns_cbranch_scc1 Lmod_done")
    load_ptr(a, 4, 'c'); load_ptr(a, 6, 'wmod'); load_ptr(a, 8, 'ws')
    a("v_and_b32 v1, 7, v0\nv_lshrrev_b32 v2, 3, v0")
    a("s_lshl_b32 s3, s2, 7")
    a("v_mul_u32_u24 v3, 6912, v2")
    a("v_lshl_add_u32 v3, v1, 4, v3\nv_add_u32 v3, s3, v3")
    a("v_lshlrev_b32 v4, 1, v2")
    a("s_waitcnt lgkmcnt(0)")
    make_srd(a, 12, 4, SIZES['c']); make_srd(a, 16, 6, SIZES['wmod']); make_ws_srd(a, 20, 8, 'mod')
    for i in range(18):
        a(f"buffer_load_ushort v{8+i}, v4, s[12:15], 0 offen offset:{i*64}")
    for i in range(18):
        a(f"s_mov_b32 s24, {i*32*6912}")
        a(f"buffer_load_dwordx4 {vr(40+4*i,4)}, v3, s[16:19], s24 offen")
    for k in range(8): a(f"v_mov_b32 v{28+k}, 0")
    a("s_waitcnt vmcnt(18)")
    for i in range(18):
        c = 8 + i
        a(f"v_lshlrev_b32 v{c}, 16, v{c}")
        a(f"v_mul_f32 v36, 0xbfb8aa3b, v{c}")
        a("v_exp_f32 v36, v36\ns_nop 0\nv_add_f32 v36, 1.0, v36\nv_rcp_f32 v36, v36\ns_nop 0")
        a(f"v_mul_f32 v{c}, v{c}, v36")
        round_bf16(a, c)
    for i in range(18):
        a(f"s_waitcnt vmcnt({17-i})")
        for d in range(4):
            w = 40 + 4*i + d
            a(f"v_lshlrev_b32 v36, 16, v{w}\nv_and_b32 v37, 0xffff0000, v{w}")
            a(f"v_fmac_f32 v{28+2*d}, v{8+i}, v36\nv_fmac_f32 v{29+2*d}, v{8+i}, v37")
    a("v_lshlrev_b32 v5, 8, v2\nv_lshl_add_u32 v5, v1, 5, v5")
    a("ds_write_b128 v5, v[28:31]\nds_write_b128 v5, v[32:35] offset:16")
    a("s_waitcnt lgkmcnt(0)\ns_barrier")
    a("v_cmp_gt_u32 vcc, 64, v0\ns_and_saveexec_b64 s[26:27], vcc\ns_cbranch_execz Lmod_done")
    a("v_lshlrev_b32 v5, 2, v0")
    for r in range(32): a(f"ds_read_b32 v{40+r}, v5 offset:{r*256}")
    a("s_waitcnt lgkmcnt(0)")
    for r in range(1, 32): a(f"v_add_f32 v40, v40, v{40+r}")
    round_bf16(a, 40)
    a("s_lshl_b32 s3, s2, 8\nv_add_u32 v5, s3, v5")
    a("buffer_store_dword v40, v5, s[20:23], 0 offen")
    a.label("Lmod_done")
    a("s_endpgm")
    return n, a, dict(grid=54, block=256, lds=8192, vgpr=112)

def unpack8(a, src, dst):
    for d in range(4):
        a(f"v_lshlrev_b32 v{dst+2*d}, 16, v{src+d}\nv_and_b32 v{dst+2*d+1}, 0xffff0000, v{src+d}")

def round_pairs(a, base, n, tmp):
    for p in range(0, n, 2):
        a(f"v_cvt_pk_bf16_f32 v{tmp}, v{base+p}, v{base+p+1}")
        a(f"v_lshlrev_b32 v{base+p}, 16, v{tmp}\nv_and_b32 v{base+p+1}, 0xffff0000, v{tmp}")

def k_h1():
    a = Asm(); n = 'h1_kernel'
    a("s_cmp_ge_u32 s2, 256\ns_cbranch_scc1 Lh1_done")
    load_ptr(a, 4, 'x'); load_ptr(a, 8, 'ws')
    a("v_and_b32 v1, 63, v0\nv_lshrrev_b32 v2, 6, v0")
    a("s_lshl_b32 s3, s2, 3\nv_add_u32 v2, s3, v2")
    a("v_mul_u32_u24 v3, 1152, v2\nv_lshl_add_u32 v3, v1, 4, v3")
    a("v_add_u32 v4, 1024, v3")
    a("v_cmp_gt_u32 vcc, 8, v1\nv_mov_b32 v5, 0xffffff00\ns_nop 1")
    a("v_cndmask_b32 v4, v5, v4, vcc")
    a("v_lshlrev_b32 v6, 5, v1\nv_add_u32 v7, 2048, v6")
    a("v_cndmask_b32 v7, v5, v7, vcc")
    a("s_waitcnt lgkmcnt(0)")
    make_srd(a, 12, 4, SIZES['x']); make_ws_srd(a, 16, 8, 'mod'); make_ws_srd(a, 20, 8, 'h1')
    a("buffer_load_dwordx4 v[10:13], v3, s[12:15], 0 offen")
    a("buffer_load_dwordx4 v[14:17], v4, s[12:15], 0 offen")
    a("s_mov_b32 s24, 2304")
    a("buffer_load_dwordx4 v[40:43], v6, s[16:19], 0 offen\nbuffer_load_dwordx4 v[44:47], v6, s[16:19], 0 offen offset:16")
    a("buffer_load_dwordx4 v[48:51], v7, s[16:19], 0 offen\nbuffer_load_dwordx4 v[52:55], v7, s[16:19], 0 offen offset:16")
    a("buffer_load_dwordx4 v[56:59], v6, s[16:19], s24 offen\nbuffer_load_dwordx4 v[60:63], v6, s[16:19], s24 offen offset:16")
    a("buffer_load_dwordx4 v[64:67], v7, s[16:19], s24 offen\nbuffer_load_dwordx4 v[68:71], v7, s[16:19], s24 offen offset:16")
    a("v_lshrrev_b32 v8, 5, v2\nv_mul_u32_u24 v8, 36864, v8\nv_and_b32 v9, 31, v2\nv_lshl_add_u32 v8, v9, 4, v8")
    a("v_lshl_add_u32 v8, v1, 9, v8")
    a("v_add_u32 v9, 32768, v8\nv_cndmask_b32 v9, v5, v9, vcc")
    a("s_waitcnt vmcnt(8)")
    unpack8(a, 10, 20); unpack8(a, 14, 28)
    a("v_add_f32 v36, v20, v21")
    for i in range(22, 36): a(f"v_add_f32 v36, v36, v{i}")
    wave_allsum(a, 36, 37)
    a("v_mul_f32 v36, 0x3ae38e39, v36")
    a("v_cndmask_b32 v38, 0, v36, vcc")
    a("v_mov_b32 v39, 0")
    for i in range(16):
        a(f"v_sub_f32 v37, v{20+i}, v{36 if i < 8 else 38}\nv_fmac_f32 v39, v37, v37")
    wave_allsum(a, 39, 37)
    a("v_mul_f32 v39, 0x3ae38e39, v39")
    round_bf16(a, 36); round_bf16(a, 39)
    a("v_add_f32 v39, 0x3727c5ac, v39")
    round_bf16(a, 39)
    a("v_sqrt_f32 v39, v39\ns_nop 0")
    round_bf16(a, 39)
    a("v_rcp_f32 v39, v39\ns_nop 0")
    for i in range(16): a(f"v_sub_f32 v{20+i}, v{20+i}, v36")
    round_pairs(a, 20, 16, 37)
    for i in range(16): a(f"v_mul_f32 v{20+i}, v{20+i}, v39")
    round_pairs(a, 20, 16, 37)
    a("s_waitcnt vmcnt(0)")
    for i in range(16): a(f"v_add_f32 v{56+i}, 1.0, v{56+i}")
    round_pairs(a, 56, 16, 37)
    for i in range(16): a(f"v_mul_f32 v{20+i}, v{20+i}, v{56+i}")
    round_pairs(a, 20, 16, 37)
    for i in range(16): a(f"v_add_f32 v{20+i}, v{20+i}, v{40+i}")
    for p in range(8): a(f"v_cvt_pk_bf16_f32 v{10+p}, v{20+2*p}, v{21+2*p}")
    a("buffer_store_dwordx4 v[10:13], v8, s[20:23], 0 offen")
    a("buffer_store_dwordx4 v[14:17], v9, s[20:23], 0 offen")
    a.label("Lh1_done")
    a("s_endpgm")
    return n, a, dict(grid=256, block=512, lds=0, vgpr=72)

def partial_sum(a, pname, srd, sws):
    make_ws_srd(a, srd, sws, pname)
    a("s_lshr_b32 s3, s2, 1\ns_mul_i32 s3, s3, 36864\ns_and_b32 s24, s2, 1\ns_lshl_b32 s24, s24, 9\ns_add_u32 s3, s3, s24")
    a("v_lshrrev_b32 v1, 4, v0\nv_lshlrev_b32 v1, 10, v1\nv_and_b32 v2, 15, v0\nv_lshl_add_u32 v1, v2, 4, v1")
    for s in range(4):
        a(f"buffer_load_dwordx4 {vr(16+8*s,4)}, v1, {sr(srd,4)}, s3 offen")
        a(f"buffer_load_dwordx4 {vr(20+8*s,4)}, v1, {sr(srd,4)}, s3 offen offset:256")
        if s < 3: a(f"s_add_u32 s3, s3, {128*36*1024}")

def ln_row(a, x, n, t0):
    m, v, t = t0, t0 + 1, t0 + 2
    a(f"v_add_f32 v{m}, v{x}, v{x+1}")
    for i in range(2, n): a(f"v_add_f32 v{m}, v{m}, v{x+i}")
    wave_allsum(a, m, t)
    a(f"v_mul_f32 v{m}, 0x3ae38e39, v{m}")
    a(f"v_mov_b32 v{v}, 0")
    for i in range(n): a(f"v_sub_f32 v{t}, v{x+i}, v{m}\nv_fmac_f32 v{v}, v{t}, v{t}")
    wave_allsum(a, v, t)
    a(f"v_mul_f32 v{v}, 0x3ae38e39, v{v}")
    round_bf16(a, m); round_bf16(a, v)
    a(f"v_add_f32 v{v}, 0x3727c5ac, v{v}")
    round_bf16(a, v)
    a(f"v_sqrt_f32 v{v}, v{v}\ns_nop 0")
    round_bf16(a, v)
    a(f"v_rcp_f32 v{v}, v{v}\ns_nop 0")
    for i in range(n): a(f"v_sub_f32 v{x+i}, v{x+i}, v{m}\nv_mul_f32 v{x+i}, v{x+i}, v{v}")

def k_ln2():
    a = Asm(); n = 'ln2_kernel'
    a("s_cmp_ge_u32 s2, 256\ns_cbranch_scc1 Lln_done")
    load_ptr(a, 4, 'x'); load_ptr(a, 8, 'ws')
    a("s_waitcnt lgkmcnt(0)")
    partial_sum(a, 'p3', 12, 8)
    make_srd(a, 16, 4, SIZES['x']); make_ws_srd(a, 20, 8, 'mod')
    a("s_mul_i32 s3, s2, 9216\nv_lshlrev_b32 v2, 1, v0\nv_lshlrev_b32 v3, 2, v0")
    for t in range(8):
        a(f"buffer_load_ushort v{48+t}, v2, s[16:19], s3 offen" + (f" offset:{1152*(t%3)}" if t % 3 else ""))
        if t % 3 == 2: a("s_add_u32 s3, s3, 3456")
    a(f"s_mov_b32 s3, {2*2304}\nbuffer_load_dword v56, v3, s[20:23], s3 offen")
    a("v_and_b32 v4, 63, v0\nv_lshlrev_b32 v4, 2, v4")
    a(f"s_mov_b32 s3, {3*2304}\ns_mov_b32 s24, {4*2304}")
    for i in range(9):
        a(f"buffer_load_dword v{60+i}, v4, s[20:23], s3 offen offset:{256*i}\nbuffer_load_dword v{70+i}, v4, s[20:23], s24 offen offset:{256*i}")
    make_ws_srd(a, 12 + 16, 8, 'x1'); make_ws_srd(a, 32, 8, 'h2')
    a("s_waitcnt vmcnt(18)")
    for t in range(8):
        a(f"v_add_f32 v{16+t}, v{16+t}, v{24+t}\nv_add_f32 v{32+t}, v{32+t}, v{40+t}")
        a(f"v_add_f32 v{16+t}, v{16+t}, v{32+t}\nv_lshlrev_b32 v{48+t}, 16, v{48+t}\nv_fmac_f32 v{48+t}, v56, v{16+t}")
    for p in range(4): a(f"v_cvt_pk_bf16_f32 v{16+p}, v{48+2*p}, v{49+2*p}")
    a("s_mul_i32 s3, s2, 9216\nv_lshlrev_b32 v5, 4, v0")
    a("buffer_store_dwordx4 v[16:19], v5, s[28:31], s3 offen")
    unpack8(a, 16, 48)
    for t in range(8): a(f"ds_write_b32 v3, v{48+t} offset:{2304*t}")
    a("s_waitcnt lgkmcnt(0)\ns_barrier")
    a("v_lshrrev_b32 v6, 6, v0\ns_nop 1\nv_readfirstlane_b32 s25, v6\ns_cmp_ge_u32 s25, 8\ns_cbranch_scc1 Lln_p3")
    a("s_mul_i32 s25, s25, 2304\nv_add_u32 v6, s25, v4")
    for i in range(9): a(f"ds_read_b32 v{24+i}, v6 offset:{256*i}")
    a("s_waitcnt vmcnt(1) lgkmcnt(0)")
    ln_row(a, 24, 9, 40)
    for i in range(9):
        a(f"v_add_f32 v{70+i}, 1.0, v{70+i}")
        round_bf16(a, 70 + i)
        a(f"v_fma_f32 v{24+i}, v{24+i}, v{70+i}, v{60+i}")
    ln_row(a, 24, 9, 40)
    for i in range(9): a(f"ds_write_b32 v6, v{24+i} offset:{256*i}")
    a.label("Lln_p3")
    a("s_waitcnt lgkmcnt(0)\ns_barrier")
    for t in range(8): a(f"ds_read_b32 v{48+t}, v3 offset:{2304*t}")
    a("v_lshrrev_b32 v5, 5, v0\nv_lshlrev_b32 v5, 17, v5\nv_and_b32 v6, 31, v0\nv_lshl_add_u32 v5, v6, 4, v5\ns_lshl_b32 s3, s2, 9")
    a("s_waitcnt lgkmcnt(0)")
    for p in range(4): a(f"v_cvt_pk_bf16_f32 v{20+p}, v{48+2*p}, v{49+2*p}")
    a("buffer_store_dwordx4 v[20:23], v5, s[32:35], s3 offen")
    a.label("Lln_done")
    a("s_endpgm")
    return n, a, dict(grid=256, block=576, lds=8*2304, vgpr=80)

def k_final():
    a = Asm(); n = 'final_kernel'
    a("s_cmp_ge_u32 s2, 256\ns_cbranch_scc1 Lfi_done")
    load_ptr(a, 4, 'b2'); load_ptr(a, 6, 'out'); load_ptr(a, 8, 'ws')
    a("s_waitcnt lgkmcnt(0)")
    a("s_lshl_b32 s3, s2, 4\ns_add_u32 s4, s4, s3\ns_addc_u32 s5, s5, 0\ns_load_dwordx4 s[36:39], s[4:5], 0")
    partial_sum(a, 'p6', 12, 8)
    make_ws_srd(a, 16, 8, 'x1'); make_ws_srd(a, 20, 8, 'mod'); make_srd(a, 28, 6, SIZES['out'])
    a("s_mul_i32 s3, s2, 9216\nv_lshlrev_b32 v5, 4, v0\nv_lshlrev_b32 v3, 2, v0\nv_lshlrev_b32 v2, 1, v0")
    a("buffer_load_dwordx4 v[48:51], v5, s[16:19], s3 offen")
    a(f"s_mov_b32 s24, {5*2304}\nbuffer_load_dword v56, v3, s[20:23], s24 offen")
    a("s_waitcnt lgkmcnt(0)")
    for p in range(4): a(f"s_lshl_b32 s{40+2*p}, s{36+p}, 16\ns_and_b32 s{41+2*p}, s{36+p}, 0xffff0000")
    a("s_waitcnt vmcnt(0)")
    unpack8(a, 48, 60)
    for t in range(8):
        a(f"v_add_f32 v{16+t}, v{16+t}, v{24+t}\nv_add_f32 v{32+t}, v{32+t}, v{40+t}")
        a(f"v_add_f32 v{16+t}, v{16+t}, v{32+t}\nv_add_f32 v{16+t}, s{40+t}, v{16+t}\nv_fmac_f32 v{60+t}, v56, v{16+t}")
    for p in range(4): a(f"v_cvt_pk_bf16_f32 v{16+p}, v{60+2*p}, v{61+2*p}")
    for t in range(8):
        op = "buffer_store_short" if t % 2 == 0 else "buffer_store_short_d16_hi"
        a(f"{op} v{16+t//2}, v2, s[28:31], s3 offen" + (f" offset:{1152*(t%3)}" if t % 3 else ""))
        if t % 3 == 2: a("s_add_u32 s3, s3, 3456")
    a.label("Lfi_done")
    a("s_endpgm")
    return n, a, dict(grid=256, block=576, lds=0, vgpr=72)
```

```python
import sys
from gen_common import *
import k_small, k_kv, k_attn, k_gemm

def build(kernels, path):
    hdr = open('cdna_kernels/' + NAME + '.s.ref').read().split('\n')
    top = [l for l in hdr if l.startswith(';') and '@launch' not in l and 'Override launch' not in l and 'grid=ceil' not in l]
    top = top[:18]
    out = '\n'.join(top) + '\n'
    for n, a, p in kernels:
        out += f"; @launch kernel={n} grid=({p['grid']},1,1) block=({p['block']},1,1) lds={p['lds']}\n"
    out += '.amdgcn_target "amdgcn-amd-amdhsa--gfx950"\n'
    seen = set()
    for n, a, p in kernels:
        if n in seen: continue
        seen.add(n)
        out += kernel_header(n) + a.text()
    seen = set()
    for n, a, p in kernels:
        if n in seen: continue
        seen.add(n)
        out += kernel_desc(n, p['vgpr'], p.get('sgpr', 102))
    open(path, 'w').write(out)

if __name__ == '__main__':
    ks = [k_small.k_mod(), k_small.k_h1(), k_kv.k_kv(), k_attn.k_attn(), k_gemm.gemm16('o'), k_small.k_ln2(), k_gemm.k_mlp1(), k_gemm.gemm16('y'), k_small.k_final()]
    build(ks, sys.argv[1] if len(sys.argv) > 1 else 'k.s')
```

```python
NAME = 'adaLN_cond__compressed_kv_cla__mixer_token_mlp__prompt'

class Asm:
    def __init__(self):
        self.lines = []
    def __call__(self, s=''):
        for l in s.split('\n'):
            t = l.strip()
            if not t: continue
            self.lines.append(t if t.endswith(':') else '    ' + t)
    def label(self, s): self.lines.append(s + ':')
    def text(self): return '\n'.join(self.lines) + '\n'

def kernel_header(name):
    return f".text\n.globl {name}\n.p2align 8\n.type {name},@function\n{name}:\n"

def kernel_desc(name, vgpr, sgpr=102, accum=None):
    if accum is None: accum = (vgpr + 3) // 4 * 4
    return f""".section .rodata,"a"
.p2align 6
.amdhsa_kernel {name}
  .amdhsa_next_free_vgpr {vgpr}
  .amdhsa_next_free_sgpr {sgpr}
  .amdhsa_accum_offset {accum}
  .amdhsa_group_segment_fixed_size 0
  .amdhsa_kernarg_size 128
  .amdhsa_user_sgpr_count 2
  .amdhsa_user_sgpr_kernarg_segment_ptr 1
  .amdhsa_system_sgpr_workgroup_id_x 1
.end_amdhsa_kernel
"""

KA = dict(x=0, ckv=8, wq=16, wuk=24, wuv=32, wo=40, bx=48, w1=56, b1=64, w2=72, b2=80, c=88, wmod=96, out=104, dbg=112, ws=120)
SIZES = dict(x=2048*576*2, ckv=2048*512*2, wq=576*4096*2, wuk=512*4096*2, wuv=512*4096*2, wo=4096*576*2,
             w1=2048*4608*2, b1=4608*2, w2=4608*2048*2, b2=2048*2, c=576*2, wmod=576*3456*2, out=2048*576*2, dbg=256)

MB = 1 << 20
WS = {}
def _ws():
    off = 0
    for n, sz in [('sync', 512*128), ('mod', 3456*4), ('h1', 2048*576*2), ('kf', 32*2048*128*2), ('vf', 32*2048*128*2), ('ctx', 2048*4096*2),
                  ('p3', 4*2048*576*2), ('x1', 2048*576*2), ('h2', 2048*576*2), ('u', 576*4608*2), ('p6', 4*2048*576*2)]:
        WS[n] = (off, sz)
        off += (sz + 0xffff) & ~0xffff
_ws()

def vr(b, n): return f"v[{b}:{b+n-1}]" if n > 1 else f"v{b}"
def sr(b, n): return f"s[{b}:{b+n-1}]" if n > 1 else f"s{b}"

def load_ptr(a, sdst, name):
    a(f"s_load_dwordx2 {sr(sdst,2)}, s[0:1], {KA[name]}")

def make_srd(a, srd, sptr, size, add=0):
    if add:
        a(f"s_add_u32 s{srd}, s{sptr}, {add}")
        a(f"s_addc_u32 s{srd+1}, s{sptr+1}, 0")
        a(f"s_and_b32 s{srd+1}, s{srd+1}, 0xffff")
    else:
        a(f"s_mov_b32 s{srd}, s{sptr}")
        a(f"s_and_b32 s{srd+1}, s{sptr+1}, 0xffff")
    a(f"s_mov_b32 s{srd+2}, {size}")
    a(f"s_mov_b32 s{srd+3}, 0x20000")

def make_ws_srd(a, srd, sws, name):
    make_srd(a, srd, sws, WS[name][1], WS[name][0])

def interleave(primary, secondary, start=0, every=1):
    out = []
    sec = list(secondary)
    for i, p in enumerate(primary):
        out.append(p)
        if i >= start and (i - start) % every == 0 and sec:
            out.append(sec.pop(0))
    out.extend(sec)
    return out

def spread(primary, secondary):
    n = len(primary); m = len(secondary)
    out = []; k = 0
    for i, p in enumerate(primary):
        out.append(p)
        tgt = (m * (i + 1) + n - 1) // n
        while k < tgt:
            out.append(secondary[k]); k += 1
    return out

def round_bf16(a, v, tmp=None):
    a(f"v_cvt_pk_bf16_f32 v{v}, v{v}, v{v}")
    a(f"v_and_b32 v{v}, 0xffff0000, v{v}")

def wave_allsum(a, v, t):
    for r in (8, 4, 2, 1):
        a("s_nop 1")
        a(f"v_add_f32_dpp v{v}, v{v}, v{v} row_ror:{r} row_mask:0xf bank_mask:0xf")
    a(f"v_mov_b32 v{t}, v{v}")
    a("s_nop 1")
    a(f"v_permlane16_swap_b32 v{v}, v{t}")
    a("s_nop 1")
    a(f"v_add_f32 v{v}, v{v}, v{t}")
    a(f"v_mov_b32 v{t}, v{v}")
    a("s_nop 1")
    a(f"v_permlane32_swap_b32 v{v}, v{t}")
    a("s_nop 1")
    a(f"v_add_f32 v{v}, v{v}, v{t}")

import os
STAMP = os.environ.get('STAMP', '') != ''
STAMP_WG = int(os.environ.get('STAMP_WG', '100'))
STAMP_LIST = os.environ.get('STAMP', '').split(',')
STAMP_WAVE = int(os.environ.get('STAMP_WAVE', '0'))
def stamp(a, name):
    if STAMP and name in STAMP_LIST:
        i = STAMP_LIST.index(name)
        assert i < 14
        a(f"s_memrealtime s[{64+2*i}:{65+2*i}]")
STAMP_WS = 200 << 20
def stamp_flush(a, n, lab, dword0=16):
    if not STAMP: return
    a("s_waitcnt vmcnt(0) lgkmcnt(0)")
    a(f"s_add_u32 s56, s4, {STAMP_WS}\ns_addc_u32 s57, s5, 0\ns_and_b32 s57, s57, 0xffff\ns_mov_b32 s58, 16384\ns_mov_b32 s59, 0x20000")
    a("s_lshl_b32 s60, s2, 6\nv_mov_b32 v1, s60")
    for i in range(n):
        a(f"v_mov_b32 v2, s{64+2*i}\nbuffer_store_dword v2, v1, s[56:59], 0 offen offset:{4*i}\ns_nop 1")
    a.label(lab)

import struct
def f32(x): return "0x%08x" % struct.unpack('<I', struct.pack('<f', x))[0]

def unpack8(a, src, dst):
    for d in range(4):
        a(f"v_lshlrev_b32 v{dst+2*d}, 16, v{src+d}\nv_and_b32 v{dst+2*d+1}, 0xffff0000, v{src+d}")

def round_pairs(a, base, n, tmp):
    for p in range(0, n, 2):
        a(f"v_cvt_pk_bf16_f32 v{tmp}, v{base+p}, v{base+p+1}")
        a(f"v_lshlrev_b32 v{base+p}, 16, v{tmp}\nv_and_b32 v{base+p+1}, 0xffff0000, v{tmp}")

class Ops(Asm):
    def ops(self): return [l.strip() for l in self.lines]

C_H1, C_KV, C_CTX, C_P3, C_U, C_P6, C_H2 = 0, 16, 48, 112, 128, 152, 168
SYNC = "s[96:99]"
_poll_id = [0]
def poll(a, voff, target, vtmp):
    i = _poll_id[0]; _poll_id[0] += 1
    a("s_mov_b32 s100, 0x8000")
    a.label(f"Lpoll{i}")
    a(f"buffer_load_dword v{vtmp}, v{voff}, {SYNC}, 0 offen sc1")
    a("s_waitcnt vmcnt(0)")
    a(f"v_cmp_gt_u32 vcc, {target}, v{vtmp}")
    a(f"s_sub_u32 s100, s100, 1\ns_cbranch_vccz Lpolld{i}")
    a(f"s_cmp_eq_u32 s100, 0\ns_cbranch_scc1 Lpolld{i}\ns_sleep 1\ns_branch Lpoll{i}")
    a.label(f"Lpolld{i}")
def signal(a, soff, vtmp):
    a(f"v_mov_b32 v{vtmp}, 1\ns_mov_b64 exec, 1")
    a(f"buffer_atomic_add v{vtmp}, off, {SYNC}, s{soff} sc1")
    a("s_mov_b64 exec, -1")
```

```python
from gen_common import *
import math, os


BIG = 2.0 ** 100
QSCALE = math.log2(math.e) / math.sqrt(128.0)
THRESH = 2.0 ** 30
SLOT = 32768
NSLOT = 5
WQ_BYTES = 8 * 1088

V_LANE16, V_RD, V_L, V_NEGM, V_Y, V_YD, V_T0 = 1, 2, 3, 5, 6, 7, 240
LU = [244, 245]
T = 8
CI = 16
S = [32, 48]
P = [64, 72]
FR = 80
Q, Q2 = 112, 144
O = 176
CR = [(r & 3) + 8 * (r >> 2) for r in range(16)]

def mf(d, a_, b_, c): return f"v_mfma_f32_32x32x16_bf16 {d}, {a_}, {b_}, {c}"

def qk_group(par):
    s = vr(S[par], 16)
    return [mf(s, vr(FR + 4*i, 4), vr(Q + 4*i, 4), vr(CI, 16) if i == 0 else s) for i in range(8)]
def pv_group(par):
    return [mf(vr(O + 16*(i & 3), 16), vr(FR + 4*i, 4), vr(P[par] + 4*(i >> 2), 4), vr(O + 16*(i & 3), 16)) for i in range(8)]
def rd(i, pos): return f"ds_read_b128 {vr(FR + 4*i, 4)}, v{V_RD} offset:{pos + 1024*i}"
KPOS = [0, 8192]; VPOS = [16384, 24576]
W4 = "s_waitcnt lgkmcnt(4)"

def sm_ops(par):
    e = lambda k: f"v_exp_f32 v{T + k % 8}, v{S[par] + k}"
    ad = lambda k: (f"v_add_f32 v{LU[par]}, v{T}, v{T+1}" if k == 1 else f"v_add_f32 v{LU[par]}, v{LU[par]}, v{T + k % 8}")
    cv = lambda k: f"v_cvt_pk_bf16_f32 v{P[par] + k // 2}, v{T + k % 8}, v{T + (k + 1) % 8}"
    return e, ad, cv

def build_ci():
    ops = []
    for r in range(16):
        if CR[r] == 0:
            ops.append(f"v_min_f32 v{CI+r}, v{V_Y}, v{V_NEGM}")
        else:
            ops.append(f"v_add_f32 v{CI+r}, {f32(-CR[r]*BIG)}, v{V_Y}")
            ops.append(f"v_min_f32 v{CI+r}, v{CI+r}, v{V_NEGM}")
    ops.append(f"v_add_f32 v{V_Y}, {f32(-32*BIG)}, v{V_Y}")
    return ops

ADV = [f"s_add_u32 s40, s40, {SLOT}\ns_cmp_eq_u32 s40, {SLOT*NSLOT}\ns_cselect_b32 s40, 0, s40", f"v_add_u32 v{V_RD}, s40, v{V_LANE16}"]

def period(a, par, site, next1, next2, qk=True, rebuild=False, adv=False, tail_ops=(), bar=None):
    e, ad, cv = sm_ops(par)
    lacc = f"v_add_f32 v{V_L}, v{V_L}, v{LU[1-par]}"
    cmp_ = f"v_cmp_nle_f32 vcc, v{LU[par]}, v{V_T0+1}"
    if qk:
        m = qk_group(1 - par) + pv_group(1 - par)
        R = [rd(i, next1) for i in range(8)] + [rd(i, next2) for i in range(8)]
        g = [[R[0], e(0), e(1)], [R[1], e(2), ad(1), cv(0)], [R[2], e(3), e(4)], [R[3], e(5), ad(2), cv(2)],
             [R[4], e(6), ad(3), ad(4)], [R[5], e(7), ad(5), cv(4)], [R[6], e(8), ad(6), lacc], [R[7], e(9), ad(7), cv(6)],
             [R[8], e(10), ad(8)], [R[9], e(11), ad(9), cv(8)], [R[10], e(12), ad(10)], [R[11], e(13), ad(11), cv(10)],
             [R[12], e(14), ad(12)], [R[13], e(15), ad(13), cv(12)], [R[14], ad(14), ad(15), cmp_, cv(14)], [R[15]]]
        if adv:
            g[6].insert(1, ADV[0]); g[8].insert(0, ADV[1])
        if rebuild:
            ci = build_ci()
            for i, o in enumerate(ci): g[8 + min(7, i * 8 // len(ci))].append(o)
        for o in tail_ops: g[15].append(o)
        if bar is not None: g[bar].insert(1, "s_barrier")
    else:
        m = pv_group(1 - par)
        R = [rd(i, next2) for i in range(8)]
        g = [[R[0], e(0), e(1), e(2), lacc], [R[1], e(3), ad(1), cv(0), ad(2), e(4)], [R[2], e(5), ad(3), cv(2), ad(4), e(6)],
             [R[3], e(7), ad(5), cv(4), ad(6), e(8)], [R[4], e(9), ad(7), cv(6), ad(8), e(10)], [R[5], e(11), ad(9), cv(8), ad(10), e(12)],
             [R[6], e(13), ad(11), cv(10), ad(12), e(14)], [R[7], e(15), ad(13), ad(14), cv(12), ad(15), cmp_, cv(14)]]
        if adv:
            g[0].insert(0, ADV[0] + "\n" + ADV[1])
    n = len(m)
    g[n - 1] += [f"s_cbranch_vccnz Lat_rs{site}", f"Lat_rb{site}:"]
    X = os.environ.get('XP', '')
    for i in range(n):
        if i % 4 == 3 and 'nowait' not in X: a(W4)
        a(m[i])
        for o in g[i]:
            if 'noadd' in X and o.startswith('v_add_f32 v24'): continue
            if 'samerd' in X and o.startswith('ds_read'): o = o.split(' offset')[0]
            if 'expt' in X and o.startswith('v_exp'): o = o.split(',')[0] + ', v250'
            if 'noexp' in X and o.startswith('v_exp'): continue
            if 'nocvt' in X and o.startswith('v_cvt'): continue
            if 'nord' in X and o.startswith('ds_read'): continue
            if 'nochk' in X and o.startswith('s_cbranch_vccnz'): continue
            a(o)
    return (site, par)

def rare_path(a, par):
    a.label(f"Lat_rare{par}")
    s = S[par]; s2 = S[1 - par]; t = V_T0 + 2; d = V_T0 + 3
    a("s_nop 15")
    a(f"v_max3_f32 v{d}, v{s}, v{s+1}, v{s+2}")
    for r in range(3, 15, 2): a(f"v_max3_f32 v{d}, v{d}, v{s+r}, v{s+r+1}")
    a(f"v_max_f32 v{d}, v{d}, v{s+15}")
    a(f"v_mov_b32 v{t}, v{d}\ns_nop 1\nv_permlane32_swap_b32 v{d}, v{t}\ns_nop 1")
    a(f"v_max3_f32 v{d}, v{d}, v{t}, 0")
    a(f"v_exp_f32 v{t}, -v{d}")
    a(f"v_sub_f32 v{V_NEGM}, v{V_NEGM}, v{d}")
    for r in range(16):
        a(f"v_sub_f32 v{CI+r}, v{CI+r}, v{d}\nv_sub_f32 v{s2+r}, v{s2+r}, v{d}\nv_sub_f32 v{s+r}, v{s+r}, v{d}")
    for r in range(64): a(f"v_mul_f32 v{O+r}, v{O+r}, v{t}")
    a(f"v_mul_f32 v{V_L}, v{V_L}, v{t}")
    e, ad, cv = sm_ops(par)
    for k in range(0, 16, 2):
        a(e(k)); a(e(k + 1)); a("s_nop 0")
        if k: a(ad(k))
        a(ad(k + 1)); a(cv(k))
    a("s_nop 1")
    a("s_setpc_b64 s[44:45]")

def k_attn():
    a = Asm(); n = 'attn_kernel'
    a("s_cmp_ge_u32 s2, 256\ns_cbranch_scc1 Lat_done")
    stamp(a, 0)
    load_ptr(a, 4, 'wq'); load_ptr(a, 6, 'ws')
    a("v_and_b32 v8, 63, v0\nv_lshrrev_b32 v9, 6, v0\ns_nop 1\nv_readfirstlane_b32 s3, v9")
    a("s_and_b32 s28, s2, 7\ns_lshr_b32 s29, s2, 3")
    a("s_and_b32 s30, s29, 3\ns_lshl_b32 s28, s28, 2\ns_add_u32 s28, s28, s30")
    a("s_lshr_b32 s31, s29, 2\ns_sub_u32 s30, 15, s31")
    a(f"v_lshlrev_b32 v{V_LANE16}, 4, v8")
    a("s_cmp_ge_u32 s3, 4\ns_cbranch_scc1 Lat_load")

    a("v_bfe_u32 v2, v8, 2, 2\nv_mul_u32_u24 v2, 1088, v2\nv_lshrrev_b32 v9, 5, v8\nv_lshl_add_u32 v2, v9, 9, v2")
    a("v_bfe_u32 v9, v8, 4, 1\nv_lshl_add_u32 v2, v9, 5, v2\nv_and_b32 v9, 3, v8\nv_lshl_add_u32 v2, v9, 3, v2")
    a(f"s_lshl_b32 s32, s3, 11\ns_add_u32 s32, s32, {WQ_BYTES}\nv_add_u32 v3, s32, v{V_LANE16}")
    a("v_mov_b32 v4, v2\nv_mov_b32 v5, v3")
    a("v_and_b32 v9, 31, v8\ns_lshl_b32 s32, s3, 5\nv_add_u32 v9, s32, v9\nv_lshrrev_b32 v10, 5, v8\nv_lshlrev_b32 v10, 2, v10")
    a(f"v_sub_u32 v9, v9, v10\nv_cvt_f32_i32 v9, v9\nv_add_f32 v9, 0.5, v9\nv_mul_f32 v{V_YD}, {f32(BIG)}, v9")
    a("v_bfe_u32 v9, v8, 4, 1\nv_lshlrev_b32 v9, 17, v9\nv_lshrrev_b32 v10, 5, v8\nv_lshl_add_u32 v9, v10, 8, v9")
    a("v_and_b32 v10, 15, v8\nv_lshl_add_u32 v6, v10, 4, v9")
    QACC = lambda qt, t: (16 + 16*t) if qt == 0 else (O + 16*t)
    QSET = [FR, FR + 24]
    for i in range(64): a(f"v_mov_b32 v{16+i}, 0\nv_mov_b32 v{O+i}, 0")
    a("s_waitcnt lgkmcnt(0)")
    make_ws_srd(a, 20, 6, 'ctx')
    a(f"s_mov_b32 s46, {f32(QSCALE)}\ns_mov_b32 s47, {f32(QSCALE)}")
    def qreads(ks, st):
        b = QSET[st]; r = []
        for qt in range(2): r.append(f"ds_read_b128 {vr(b+16+4*qt,4)}, v3 offset:{qt*8192 + ks*1024}")
        for t in range(4):
            for e in range(2):
                r.append(f"ds_read_b64_tr_b16 {vr(b+4*t+2*e,2)}, v2 offset:{ks*4352 + e*256 + t*64}")
        return r
    def qmf(st):
        b = QSET[st]
        return [mf(vr(QACC(qt, t), 16), vr(b+4*t, 4), vr(b+16+4*qt, 4), vr(QACC(qt, t), 16)) for t in range(4) for qt in range(2)]
    def front(m, r):
        out = []
        for i, x in enumerate(m):
            out.append(x); out += r[2*i:2*i+2]
        return out
    a("s_mov_b32 s40, 0\ns_mov_b32 s41, 18")
    stamp(a, 1)
    a("s_barrier")
    stamp(a, 2)
    for o in qreads(0, 0): a(o)
    a.label("Lat_qloop")
    a("s_waitcnt lgkmcnt(0)")
    for o in front(qmf(0), qreads(1, 1)): a(o)
    a(ADV[0])
    a("v_add_u32 v2, s40, v4\nv_add_u32 v3, s40, v5")
    a("s_waitcnt lgkmcnt(0)")
    for o in front(qmf(1), qreads(0, 0)): a(o)
    a("s_sub_u32 s41, s41, 1\ns_cmp_lg_u32 s41, 0\ns_barrier\ns_cbranch_scc1 Lat_qloop")
    a("s_waitcnt lgkmcnt(0)")
    a(ADV[1])
    a(f"v_mov_b32 v{V_T0}, v6\nv_mov_b32 v{V_T0+1}, {f32(THRESH)}")
    a("s_nop 7")
    for qt in (1, 0):
        for t in range(4):
            for e in range(2):
                for p in range(4):
                    s_ = QACC(qt, t) + 8*e + 2*p
                    a(f"v_pk_mul_f32 {vr(s_,2)}, {vr(s_,2)}, s[46:47]")
                for p in range(4):
                    s_ = QACC(qt, t) + 8*e + 2*p
                    a(f"v_cvt_pk_bf16_f32 v{(Q, Q2)[qt] + 4*(2*t+e) + p}, v{s_}, v{s_+1}")
        if qt == 1:
            for i in range(8): a(rd(i, KPOS[1]))
    a("s_mov_b32 s42, s30\ns_mov_b32 s43, 0")
    a.label("Lat_qk0")
    stamp(a, 3)
    a(f"s_lshl_b32 s32, s42, 7\nv_cvt_f32_u32 v{V_Y}, s32\nv_mul_f32 v{V_Y}, {f32(BIG)}, v{V_Y}\nv_add_f32 v{V_Y}, v{V_Y}, v{V_YD}")
    a(f"v_mov_b32 v{V_NEGM}, 0")
    for o in build_ci(): a(o)
    a(ADV[0]); a(ADV[1])
    z = [f"v_mov_b32 v{O+i}, 0" for i in range(64)] + [f"v_mov_b32 v{P[1]+i}, 0" for i in range(8)]
    m = qk_group(0)
    for i in range(8):
        if i == 0: a("s_waitcnt lgkmcnt(5)")
        if i % 4 == 3: a(W4)
        a(m[i]); a(rd(i, KPOS[0]))
        for o in z[9*i:9*i+9]: a(o)
    a(f"v_mov_b32 v{V_L}, 0\nv_mov_b32 v{LU[1]}, 0")
    a("s_nop 7\ns_nop 1")
    s = S[0]; t = V_T0 + 2; d = V_T0 + 3
    a(f"v_max3_f32 v{d}, v{s}, v{s+1}, v{s+2}")
    for r in range(3, 15, 2): a(f"v_max3_f32 v{d}, v{d}, v{s+r}, v{s+r+1}")
    a(f"v_max_f32 v{d}, v{d}, v{s+15}")
    a(f"v_mov_b32 v{t}, v{d}\ns_nop 1\nv_permlane32_swap_b32 v{d}, v{t}\ns_nop 1")
    a(f"v_max_f32 v{d}, v{d}, v{t}")
    a(f"v_sub_f32 v{V_NEGM}, 0, v{d}")
    for r in range(16): a(f"v_sub_f32 v{s+r}, v{s+r}, v{d}")
    for o in build_ci(): a(o)
    sites = []
    a(f"v_mov_b32 v{V_Y}, v{V_YD}")
    a("s_cmp_eq_u32 s42, 0\ns_cbranch_scc0 Lat_plain_pre")
    a(f"v_add_f32 v{V_Y}, {f32(-64*BIG)}, v{V_Y}\ns_mov_b32 s41, 1\ns_branch Lat_rebuild")
    a.label("Lat_plain_pre")
    a("s_lshl_b32 s41, s42, 1\ns_sub_u32 s41, s41, 1")
    stamp(a, 4)
    a.label("Lat_plain")
    a("s_barrier")
    sites.append(period(a, 0, 0, VPOS[0], KPOS[1]))
    sites.append(period(a, 1, 1, VPOS[1], KPOS[0], adv=True, tail_ops=["s_sub_u32 s41, s41, 1\ns_cmp_lg_u32 s41, 0"]))
    a("s_cbranch_scc1 Lat_plain")
    a("s_mov_b32 s41, 2")
    stamp(a, 5)
    a.label("Lat_rebuild")
    a("s_barrier")
    sites.append(period(a, 0, 2, VPOS[0], KPOS[1], rebuild=True))
    sites.append(period(a, 1, 3, VPOS[1], KPOS[0], rebuild=True, adv=True, tail_ops=["s_sub_u32 s41, s41, 1\ns_cmp_lg_u32 s41, 0"]))
    a("s_cbranch_scc1 Lat_rebuild")
    a("s_barrier")
    sites.append(period(a, 0, 4, VPOS[0], VPOS[1]))
    sites.append(period(a, 1, 5, None, VPOS[0], qk=False, adv=True))
    stamp(a, 6)
    a("s_barrier")
    m = pv_group(1)
    mv = [f"v_mov_b32 v{Q+i}, v{Q2+i}" for i in range(32)]
    for i in range(8):
        if i % 4 == 3: a(W4)
        a(m[i]); a(rd(i, KPOS[1]))
        for o in mv[4*i:4*i+4]: a(o)
    a(f"v_add_f32 v{V_L}, v{V_L}, v{LU[1]}")
    a(f"v_mov_b32 v{t}, v{V_L}\ns_nop 1\nv_permlane32_swap_b32 v{V_L}, v{t}\ns_nop 1\nv_add_f32 v{V_L}, v{V_L}, v{t}")
    a(f"v_rcp_f32 v{T}, v{V_L}\ns_nop 0\nv_mov_b32 v{T+1}, v{T}")
    a("s_lshl_b32 s32, s42, 20\ns_lshl_b32 s33, s3, 18\ns_add_u32 s32, s32, s33\ns_lshl_b32 s33, s28, 12\ns_add_u32 s32, s32, s33")
    a("s_nop 3")
    k = 0
    for tt in range(4):
        for e in range(2):
            src = O + 16*tt + 8*e; dst = S[0] + 4 * k; k += 1
            for p in range(4): a(f"v_pk_mul_f32 {vr(src+2*p,2)}, {vr(src+2*p,2)}, {vr(T,2)}")
            for p in range(4): a(f"v_cvt_pk_bf16_f32 v{dst+p}, v{src+2*p}, v{src+2*p+1}")
            a(f"buffer_store_dwordx4 {vr(dst,4)}, v{V_T0}, s[20:23], s32 offen offset:{tt*1024 + e*512}")
    a("s_cmp_lg_u32 s43, 0\ns_cbranch_scc1 Lat_cend")
    a("s_mov_b32 s43, 1\ns_mov_b32 s42, s31\ns_branch Lat_qk0")
    a.label("Lat_cend")
    if STAMP:
        stamp(a, 7)
        a("s_waitcnt vmcnt(0) lgkmcnt(0)")
        stamp_flush(a, 8, 250, "Lat_st")
    a("s_endpgm")
    for site, par in sites:
        a.label(f"Lat_rs{site}")
        a(f"s_call_b64 s[44:45], Lat_rare{par}\ns_branch Lat_rb{site}")
    rare_path(a, 0); rare_path(a, 1)

    a.label("Lat_load")
    a("s_sub_u32 s3, s3, 4")
    a("v_lshrrev_b32 v2, 4, v8\nv_lshlrev_b32 v2, 15, v2\nv_and_b32 v3, 15, v8\nv_lshl_add_u32 v2, v3, 4, v2")
    a("s_and_b32 s32, s3, 1\ns_lshl_b32 s32, s32, 14\ns_lshr_b32 s33, s3, 1\ns_lshl_b32 s33, s33, 17\ns_add_u32 s32, s32, s33")
    a("v_add_u32 v2, s32, v2")
    a(f"s_lshl_b32 s32, s3, 12\nv_add_u32 v3, s32, v{V_LANE16}")
    a("s_waitcnt lgkmcnt(0)")
    make_srd(a, 8, 4, SIZES['wq'])
    make_ws_srd(a, 12, 6, 'h1')
    a("s_lshl_b32 s32, s28, 19")
    a(f"s_add_u32 s33, s32, {WS['kf'][0] - 8192}\ns_add_u32 s16, s6, s33\ns_addc_u32 s17, s7, 0\ns_and_b32 s17, s17, 0xffff")
    a(f"s_mov_b32 s18, {576*1024}\ns_mov_b32 s19, 0x20000")
    a(f"s_add_u32 s33, s32, {WS['vf'][0] - 24576}\ns_add_u32 s20, s6, s33\ns_addc_u32 s21, s7, 0\ns_and_b32 s21, s21, 0xffff")
    a(f"s_mov_b32 s22, {576*1024}\ns_mov_b32 s23, 0x20000")
    a("s_lshl_b32 s34, s28, 8")
    a("s_lshl_b32 s35, s30, 2\ns_add_u32 s35, s35, s3\ns_mul_i32 s35, s35, 36864")
    a("s_lshl_b32 s36, s31, 2\ns_add_u32 s36, s36, s3\ns_mul_i32 s36, s36, 36864")
    a("s_mul_i32 s37, s3, 2176")
    a(f"s_lshl_b32 s38, s3, 11\ns_add_u32 s38, s38, {WQ_BYTES}")
    a("s_lshl_b32 s39, s3, 12")
    a("s_mov_b32 s40, 0")
    a("s_mov_b32 s46, 0\ns_mov_b32 s47, 0\ns_mov_b32 s48, 0")
    a("s_lshl_b32 s49, s30, 1\ns_add_u32 s49, s49, 3")
    def qload():
        a("s_add_u32 m0, s40, s37\ns_nop 0\nbuffer_load_dwordx4 v2, s[8:11], s34 offen lds")
        a("s_add_u32 s32, s40, s37\ns_add_u32 m0, s32, 1088\ns_add_u32 s33, s34, 8192\nbuffer_load_dwordx4 v2, s[8:11], s33 offen lds")
        a(f"s_add_u32 m0, s40, s38\ns_nop 0\nbuffer_load_dwordx4 v{V_LANE16}, s[12:15], s35 offen lds\nbuffer_load_dwordx4 v{V_LANE16}, s[12:15], s35 offen offset:1024 lds")
        a(f"s_add_u32 s32, s40, s38\ns_add_u32 m0, s32, 8192\ns_nop 0\nbuffer_load_dwordx4 v{V_LANE16}, s[12:15], s36 offen lds\nbuffer_load_dwordx4 v{V_LANE16}, s[12:15], s36 offen offset:1024 lds")
        a(f"s_add_u32 s34, s34, {32*8192}\ns_add_u32 s35, s35, 2048\ns_add_u32 s36, s36, 2048")
        a(ADV[0])
    def kvload():
        if 'nodma' in os.environ.get('XP', ''):
            return
        a("s_add_u32 m0, s40, s39\ns_nop 0")
        for j in range(4): a(f"buffer_load_dwordx4 v3, s[16:19], s46 offen offset:{1024*j} lds")
        a("s_add_u32 s32, s40, s39\ns_add_u32 m0, s32, 16384\ns_nop 0")
        for j in range(4): a(f"buffer_load_dwordx4 v3, s[20:23], s47 offen offset:{1024*j} lds")
        a("s_add_u32 s46, s46, 16384\ns_add_u32 s47, s47, 16384\ns_add_u32 s48, s48, 1")
        a("s_cmp_eq_u32 s48, s49\ns_cselect_b32 s46, 0, s46")
        a("s_add_u32 s32, s49, 1\ns_cmp_eq_u32 s48, s32\ns_cselect_b32 s47, 16384, s47")
        a(ADV[0])
    for i in range(3): qload()
    a("s_mov_b32 s41, 15")
    a.label("Lat_lq")
    a("s_waitcnt vmcnt(6)\ns_barrier")
    qload()
    a("s_sub_u32 s41, s41, 1\ns_cmp_lg_u32 s41, 0\ns_cbranch_scc1 Lat_lq")
    a("s_waitcnt vmcnt(6)\ns_barrier")
    kvload()
    a("s_mov_b32 s41, 36")
    a.label("Lat_lkv")
    a("s_waitcnt vmcnt(8)\ns_barrier")
    kvload()
    a("s_sub_u32 s41, s41, 1\ns_cmp_lg_u32 s41, 0\ns_cbranch_scc1 Lat_lkv")
    a("s_waitcnt vmcnt(8)\ns_barrier")
    a("s_waitcnt vmcnt(0)\ns_barrier")
    a("s_barrier")
    a.label("Lat_done")
    a("s_endpgm")
    return n, a, dict(grid=256, block=512, lds=SLOT*NSLOT, vgpr=256)
```

```python
import sys, math, os
from gen_common import *
import k_attn as AT
from k_attn import (period, rare_path, build_ci, qk_group, pv_group, rd, mf, ADV, W4, KPOS, VPOS, BIG, QSCALE, THRESH, WQ_BYTES,
                    V_LANE16, V_RD, V_L, V_NEGM, V_Y, V_YD, V_T0, LU, T, CI, S, P, FR, Q, Q2, O)

OOB = "0xffffff00"
KORDER = [0, 1, 2, 3, 8, 9, 10, 11, 12, 13, 14, 15, 4, 5, 6, 7]
KREG = {k: (240 + 4*k if k < 4 else 128 + 4*(k - 8) if k >= 8 else 160 + 4*(k - 4)) for k in range(16)}
def kstore(k):
    return f"s_add_u32 s55, s57, {(k >> 2) * 8192}\nbuffer_store_dwordx4 {vr(KREG[k],4)}, v6, s[16:19], s55 offen offset:{(k & 3) * 1024} sc1"
LDS_TOTAL = 163840

def srd_off(a, srd, sptr, soff, add, size):
    a(f"s_add_u32 s{srd+2}, s{soff}, {add}\ns_add_u32 s{srd}, s{sptr}, s{srd+2}\ns_addc_u32 s{srd+1}, s{sptr+1}, 0\ns_and_b32 s{srd+1}, s{srd+1}, 0xffff")
    a(f"s_mov_b32 s{srd+2}, {size}\ns_mov_b32 s{srd+3}, 0x20000")

def phase_kv(a):
    A_BYTES = 32 * 1040; W_BYTES = 16 * 1088; SLOT = A_BYTES + 2 * W_BYTES
    GL = 2 * SLOT
    HAND = 131072
    ACC = 64; SET = [16, 40]
    a("s_load_dwordx8 s[28:35], s[0:1], 0\ns_load_dwordx2 s[36:37], s[0:1], 32\ns_load_dwordx4 s[40:43], s[0:1], 88\ns_load_dwordx4 s[44:47], s[0:1], 112")
    a("v_and_b32 v1, 63, v0\nv_lshrrev_b32 v2, 6, v0\ns_nop 1\nv_readfirstlane_b32 s3, v2")
    a("s_and_b32 s48, s2, 7\ns_lshr_b32 s49, s2, 3")
    a("s_and_b32 s55, s49, 3\ns_lshl_b32 s48, s48, 2\ns_add_u32 s48, s48, s55\ns_lshr_b32 s49, s49, 2")
    a("v_lshrrev_b32 v3, 3, v1\nv_lshlrev_b32 v3, 13, v3\nv_and_b32 v4, 7, v1\nv_lshl_add_u32 v3, v4, 4, v3")
    a("s_and_b32 s55, s3, 1\ns_lshl_b32 s55, s55, 12\ns_lshr_b32 s56, s3, 1\ns_lshl_b32 s56, s56, 16\ns_add_u32 s55, s55, s56")
    a("v_add_u32 v3, s55, v3")
    a("v_lshrrev_b32 v4, 4, v1\nv_lshlrev_b32 v4, 15, v4\nv_and_b32 v5, 15, v1\nv_lshl_add_u32 v4, v5, 4, v4")
    a("s_and_b32 s55, s3, 3\ns_lshl_b32 s55, s55, 17\nv_add_u32 v4, s55, v4")
    a("s_lshl_b32 s50, s49, 18\ns_lshl_b32 s51, s48, 8\ns_mul_i32 s52, s3, 4160")
    a(f"s_mul_i32 s53, s3, 4352\ns_add_u32 s53, s53, {A_BYTES}")
    a("v_lshrrev_b32 v8, 1, v0\nv_mul_u32_u24 v245, 6912, v8\nv_and_b32 v2, 1, v0\nv_lshl_add_u32 v245, v2, 4, v245\ns_lshl_b32 s55, s2, 5\nv_add_u32 v245, s55, v245\nv_lshlrev_b32 v8, 1, v8")
    a("s_lshl_b32 s60, s2, 3\ns_add_u32 s60, s60, s3\ns_mul_i32 s55, s60, 1152\nv_lshlrev_b32 v10, 4, v1\nv_add_u32 v10, s55, v10")
    a(f"v_cmp_gt_u32 vcc, 8, v1\nv_mov_b32 v15, {OOB}\nv_add_u32 v11, 1024, v10\nv_cndmask_b32 v11, v15, v11, vcc")
    a("s_waitcnt lgkmcnt(0)")
    a("s_mov_b32 s4, s46\ns_mov_b32 s5, s47")
    make_srd(a, 8, 30, SIZES['ckv'])
    a("s_cmp_lt_u32 s3, 4\ns_cselect_b32 s34, s34, s36\ns_cselect_b32 s35, s35, s37")
    make_srd(a, 12, 34, SIZES['wuk'])
    def dma_ops(slot):
        ops = []
        for jj in range(4):
            ops.append(f"s_add_u32 m0, s52, {slot*SLOT + 16*jj}\ns_nop 0\nbuffer_load_dwordx4 v3, s[8:11], s50 offen offset:{1024*jj} lds")
        for jj in range(4):
            ops.append(f"s_add_u32 m0, s53, {slot*SLOT + 1088*jj}\ns_add_u32 s55, s51, {8192*jj}\nbuffer_load_dwordx4 v4, s[12:15], s55 offen lds")
        return ops
    ADVD = f"s_add_u32 s50, s50, 128\ns_add_u32 s51, s51, {64*8192}"
    for st in range(2):
        for o in dma_ops(st): a(o)
        a(ADVD)
    a("v_and_b32 v5, 7, v1\nv_mul_u32_u24 v5, 1040, v5\nv_bfe_u32 v6, v1, 3, 2\nv_lshl_add_u32 v5, v6, 7, v5")
    a("v_lshrrev_b32 v6, 5, v1\nv_lshl_add_u32 v5, v6, 4, v5")
    a("s_and_b32 s55, s3, 1\ns_mul_i32 s55, s55, 16640\nv_add_u32 v5, s55, v5")
    a("v_bfe_u32 v6, v1, 2, 2\nv_mul_u32_u24 v6, 1088, v6\nv_lshrrev_b32 v7, 5, v1\nv_lshl_add_u32 v6, v7, 9, v6")
    a("v_bfe_u32 v7, v1, 4, 1\nv_lshl_add_u32 v6, v7, 5, v6\nv_and_b32 v7, 3, v1\nv_lshl_add_u32 v6, v7, 3, v6")
    a(f"s_lshr_b32 s55, s3, 2\ns_mul_i32 s55, s55, {W_BYTES}\ns_bfe_u32 s56, s3, 0x10001\ns_lshl_b32 s56, s56, 7")
    a(f"s_add_u32 s55, s55, s56\ns_add_u32 s55, s55, {A_BYTES}\nv_add_u32 v6, s55, v6")
    a("v_cmp_gt_u32 vcc, 8, v1\nv_lshlrev_b32 v9, 5, v1\nv_add_u32 v12, 2048, v9\nv_cndmask_b32 v12, v15, v12, vcc")
    a("s_lshr_b32 s55, s60, 5\ns_mul_i32 s55, s55, 36864\ns_and_b32 s56, s60, 31\ns_lshl_b32 s56, s56, 4\ns_add_u32 s55, s55, s56")
    a("v_lshlrev_b32 v13, 9, v1\nv_add_u32 v13, s55, v13\nv_add_u32 v14, 32768, v13\nv_cndmask_b32 v14, v15, v14, vcc")
    a(f"s_lshl_b32 s55, s3, 6\ns_add_u32 s55, s55, {GL}\nv_and_b32 v7, 1, v1\nv_lshlrev_b32 v7, 5, v7\nv_add_u32 v7, s55, v7")
    for i in range(0, 128, 2): a(f"v_mov_b64 {vr(ACC+i,2)}, 0")
    a("s_mov_b32 s59, 0")

    l = Ops()
    make_srd(l, 16, 40, SIZES['c']); make_srd(l, 20, 42, SIZES['wmod']); make_srd(l, 24, 28, SIZES['x'])
    for i in range(3):
        l(f"s_mov_b32 s55, {i*256*6912}\nbuffer_load_dwordx4 {vr(192+4*i,4)}, v245, s[20:23], s55 offen")
        l(f"buffer_load_ushort v{204+i}, v8, s[16:19], 0 offen offset:{512*i}")
    l("buffer_load_dwordx4 v[224:227], v10, s[24:27], 0 offen\nbuffer_load_dwordx4 v[228:231], v11, s[24:27], 0 offen")
    make_ws_srd(l, 96, 4, 'sync')
    l(f"v_lshlrev_b32 v2, 2, v1\ns_lshl_b32 s55, s2, 8\nv_add_u32 v2, s55, v2\nv_mov_b32 v244, 0")
    l.lines.append("ZSTORE")
    make_srd(l, 16, 32, SIZES['wq'])
    l("s_mul_i32 s55, s60, 2304\nv_lshlrev_b32 v2, 4, v1")
    for i in range(3): l(f"buffer_load_dwordx4 {vr(232+4*i,4)}, v2, s[16:19], s55 offen offset:{1024*i}")
    make_srd(l, 36, 44, 256); make_ws_srd(l, 40, 4, 'mod')
    def sloads(role):
        return [(f"s_cmp_lg_u32 s3, 0\ns_cbranch_scc1 Lkv_nz\nbuffer_store_dword v244, v2, {SYNC}, 0 offen sc1\nLkv_nz:" if role == 0 else "s_nop 0")
                if o == "ZSTORE" else o for o in l.ops()]
    g = Ops()
    for k in range(8): g(f"v_mov_b32 v{208+k}, 0")
    for i in range(3):
        c = 204 + i
        g(f"v_lshlrev_b32 v{c}, 16, v{c}\nv_mul_f32 v216, 0xbfb8aa3b, v{c}\nv_exp_f32 v216, v216\ns_nop 0\nv_add_f32 v216, 1.0, v216\nv_rcp_f32 v216, v216\ns_nop 0\nv_mul_f32 v{c}, v{c}, v216")
        round_bf16(g, c)
        for d in range(4):
            w = 192 + 4*i + d
            g(f"v_lshlrev_b32 v216, 16, v{w}\nv_and_b32 v217, 0xffff0000, v{w}\nv_fmac_f32 v{208+2*d}, v{c}, v216\nv_fmac_f32 v{209+2*d}, v{c}, v217")
    g("s_nop 1")
    for r in (2, 4, 8):
        for k in range(8): g(f"v_add_f32_dpp v{208+k}, v{208+k}, v{208+k} row_ror:{r} row_mask:0xf bank_mask:0xf")
    for sw in ("v_permlane16_swap_b32", "v_permlane32_swap_b32"):
        for k in range(8): g(f"v_mov_b32 v{216+k}, v{208+k}")
        g("s_nop 0")
        for k in range(8): g(f"{sw} v{208+k}, v{216+k}")
        for k in range(8): g(f"v_add_f32 v{208+k}, v{208+k}, v{216+k}")
    gemv = g.ops() + ["s_mov_b64 exec, 3\nds_write_b128 v7, v[208:211]\nds_write_b128 v7, v[212:215] offset:16\ns_mov_b64 exec, -1"]
    x = Ops()
    unpack8(x, 224, 232); unpack8(x, 228, 240)
    x("v_add_f32 v216, v232, v233")
    for i in range(234, 248): x(f"v_add_f32 v216, v216, v{i}")
    wave_allsum(x, 216, 217)
    x("v_mul_f32 v216, 0x3ae38e39, v216\nv_cmp_gt_u32 vcc, 8, v1\nv_mov_b32 v219, 0\ns_nop 0\nv_cndmask_b32 v218, 0, v216, vcc")
    for i in range(16): x(f"v_sub_f32 v217, v{232+i}, v{216 if i < 8 else 218}\nv_fmac_f32 v219, v217, v217")
    wave_allsum(x, 219, 217)
    x("v_mul_f32 v219, 0x3ae38e39, v219")
    round_bf16(x, 216); round_bf16(x, 219)
    x("v_add_f32 v219, 0x3727c5ac, v219"); round_bf16(x, 219)
    x("v_sqrt_f32 v219, v219\ns_nop 0"); round_bf16(x, 219)
    x("v_rcp_f32 v219, v219\ns_nop 0")
    for i in range(16): x(f"v_sub_f32 v{232+i}, v{232+i}, v216")
    round_pairs(x, 232, 16, 217)
    for i in range(16): x(f"v_mul_f32 v{232+i}, v{232+i}, v219")
    for p in range(8): x(f"v_cvt_pk_bf16_f32 v{248+p}, v{232+2*p}, v{233+2*p}")
    xst = x.ops()
    h = Ops()
    unpack8(h, 248, 232); unpack8(h, 252, 240)
    h("s_waitcnt vmcnt(0)")
    for i in range(16): h(f"v_add_f32 v{208+i}, 1.0, v{208+i}")
    round_pairs(h, 208, 16, 2)
    for i in range(16): h(f"v_mul_f32 v{232+i}, v{232+i}, v{208+i}")
    round_pairs(h, 232, 16, 2)
    for i in range(16): h(f"v_add_f32 v{232+i}, v{232+i}, v{192+i}")
    for p in range(8): h(f"v_cvt_pk_bf16_f32 v{224+p}, v{232+2*p}, v{233+2*p}")
    h("buffer_store_dwordx4 v[224:227], v13, s[24:27], 0 offen sc1\nbuffer_store_dwordx4 v[228:231], v14, s[24:27], 0 offen sc1")
    h1fin = h.ops()
    def mod_loads():
        a("s_mov_b32 s55, 2304")
        for (dst, v, so) in ((192, 9, '0'), (200, 12, '0'), (208, 9, 's55'), (216, 12, 's55')):
            a(f"buffer_load_dwordx4 {vr(dst,4)}, v{v}, s[40:43], {so} offen sc1\nbuffer_load_dwordx4 {vr(dst+4,4)}, v{v}, s[40:43], {so} offen offset:16 sc1")

    def reads(ks, s):
        b = SET[s]; r = []
        for nn in range(2):
            for e in range(2): r.append(f"ds_read_b64_tr_b16 {vr(b+16+4*nn+2*e,2)}, v6 offset:{ks*4352 + e*256 + nn*64}")
        for m in range(4): r.append(f"ds_read_b128 {vr(b+4*m,4)}, v5 offset:{(m>>1)*8320 + (m&1)*512 + ks*32}")
        return r
    def mfmas(s, role):
        b = SET[s]; r = []
        for m in range(4):
            for nn in range(2):
                acc = vr(ACC + 16*(2*m+nn), 16); c = vr(b+4*m, 4); w = vr(b+16+4*nn, 4)
                r.append(mf(acc, w, c, acc) if role == 0 else mf(acc, c, w, acc))
        return r
    stamp(a, 'kv_pro')
    a("s_waitcnt vmcnt(8)\ns_barrier")
    stamp(a, 'kv_b0')
    for o in reads(0, 0): a(o)
    a("s_cmp_lt_u32 s3, 4\ns_cbranch_scc0 Lkv_r1")
    for role in range(2):
        a.label(f"Lkv_r{role}")
        for t in range(8):
            side = {0: sloads(role), 2: gemv, 3: xst, 7: h1fin}.get(t, [])
            per = (len(side) + 23) // 24
            if t == 3 and role == 0:
                a("s_cmp_lg_u32 s3, 0\ns_cbranch_scc1 Lkv_nofin")
                a(f"v_and_b32 v2, 15, v1\nv_lshlrev_b32 v2, 2, v2\nv_add_u32 v15, {GL}, v2")
                for w in range(8): a(f"ds_read_b32 v{216+w}, v15 offset:{64*w}")
                a(f"s_lshl_b32 s55, s2, 6\nv_add_u32 v2, s55, v2\nv_cmp_gt_u32 vcc, 16, v1\nv_mov_b32 v15, {OOB}\ns_waitcnt lgkmcnt(0)\nv_cndmask_b32 v2, v15, v2, vcc")
                for w in range(1, 8): a(f"v_add_f32 v216, v216, v{216+w}")
                round_bf16(a, 216)
                a("buffer_store_dword v216, v2, s[40:43], 0 offen sc1\ns_nop 1")
                a.label("Lkv_nofin")
            for ks in range(3):
                a("s_waitcnt lgkmcnt(0)")
                m = mfmas(ks & 1, role); r = reads(ks + 1, (ks + 1) & 1)
                for i in range(8):
                    a(m[i]); a(r[i])
                    k = (ks * 8 + i) * per
                    for o in side[k:k+per]: a(o)
            d = SLOT if t % 2 == 0 else -SLOT
            a(f"v_add_u32 v5, {d & 0xffffffff}, v5\nv_add_u32 v6, {d & 0xffffffff}, v6")
            a(f"s_waitcnt vmcnt({11 if t == 0 else 2 if t == 7 else 0}) lgkmcnt(0)")
            if t == 3 and role == 0:
                a("s_cmp_lg_u32 s3, 0\ns_cbranch_scc1 Lkv_nosig\nv_mov_b32 v2, 1\ns_and_b32 s55, s2, 3\ns_lshl_b32 s55, s55, 6\ns_mov_b64 exec, 1\nbuffer_atomic_add v2, off, s[36:39], s55 sc1\ns_mov_b64 exec, -1")
                a.label("Lkv_nosig")
            if t == 6:
                make_ws_srd(a, 24, 4, 'h1')
                a(f"s_mov_b32 s26, 0\nv_cmp_gt_u32 vcc, 64, v15\ns_nop 4\ns_cbranch_vccnz Lkv_nomod{role}")
                mod_loads()
                a(f"s_mov_b32 s59, 1\ns_mov_b32 s26, {WS['h1'][1]}")
                a.label(f"Lkv_nomod{role}")
            stamp(a, f'kw{t}')
            a("s_barrier")
            stamp(a, f'kv{t}')
            m = mfmas(1, role); r = reads(0, 0); dm = dma_ops(t & 1)
            for i in range(8):
                a(m[i])
                if t < 7: a(r[i])
                if t < 6: a(dm[i])
            if t < 6: a(ADVD)
            if t == 5: a("v_and_b32 v11, 3, v1\nv_lshlrev_b32 v11, 6, v11\nbuffer_load_dword v15, v11, s[36:39], 0 offen sc1")
        stamp(a, 'kv_end')
        a(f"s_cmp_lg_u32 s59, 0\ns_cbranch_scc1 Lkv_havemod{role}")
        a("s_mov_b32 s100, 0x8000")
        a.label(f"Lkv_mp{role}")
        a("buffer_load_dword v15, v11, s[36:39], 0 offen sc1\ns_waitcnt vmcnt(0)\nv_cmp_gt_u32 vcc, 64, v15\ns_sub_u32 s100, s100, 1")
        a(f"s_cbranch_vccz Lkv_mpd{role}\ns_cmp_eq_u32 s100, 0\ns_cbranch_scc1 Lkv_mpd{role}\ns_sleep 1\ns_branch Lkv_mp{role}")
        a.label(f"Lkv_mpd{role}")
        mod_loads()
        a(f"s_mov_b32 s26, {WS['h1'][1]}")
        for o in h1fin: a(o)
        a.label(f"Lkv_havemod{role}")
        a("v_lshlrev_b32 v7, 4, v1")
        a("s_lshl_b32 s55, s48, 19\ns_lshl_b32 s56, s49, 16\ns_add_u32 s55, s55, s56")
        a("s_and_b32 s56, s3, 1\ns_lshl_b32 s56, s56, 15\ns_add_u32 s57, s55, s56")
        def pack(k, dst):
            src = ACC + 8*k
            for p in range(4): a(f"v_cvt_pk_bf16_f32 v{dst+p}, v{src+2*p}, v{src+2*p+1}")
        if role == 1:
            a(f"s_sub_u32 s6, s3, 4\ns_and_b32 s55, s3, 1\ns_lshl_b32 s55, s55, 14\ns_add_u32 s55, s55, {HAND}\nv_add_u32 v2, s55, v7")
            a("s_cmp_ge_u32 s3, 6\ns_cbranch_scc1 Lkv_sw")
            for k in range(16):
                dst = 16 + 4 * (k % 8)
                pack(k, dst)
                a(f"ds_write_b128 v2, {vr(dst,4)} offset:{1024*k}")
            a("s_waitcnt vmcnt(0) lgkmcnt(0)\ns_barrier")
            a("s_branch Lat_load")
            a.label("Lkv_sw")
            for k in range(16): pack(k, ACC + 4*k)
            make_ws_srd(a, 20, 4, 'vf')
            a("s_waitcnt vmcnt(0)\ns_barrier")
            for k in range(16): a(f"ds_read_b128 {vr(128+4*k,4)}, v2 offset:{1024*k}")
            a("s_branch Lat_sw")
        else:
            for k in KORDER: pack(k, KREG[k])
            make_ws_srd(a, 16, 4, 'kf')
            a("s_lshr_b32 s56, s3, 1\ns_lshl_b32 s56, s56, 12\ns_add_u32 s57, s57, s56")
            a("v_mov_b32 v6, v7")
            a("s_waitcnt vmcnt(0)\ns_barrier")
            a("s_branch Lat_comp")

def attn_ids(a):
    a("s_and_b32 s28, s2, 7\ns_lshr_b32 s29, s2, 3")
    a("s_and_b32 s30, s29, 3\ns_lshl_b32 s28, s28, 2\ns_add_u32 s28, s28, s30")
    a("s_lshr_b32 s31, s29, 2\ns_sub_u32 s30, 15, s31")
    a(f"v_and_b32 v8, 63, v0\nv_lshlrev_b32 v{V_LANE16}, 4, v8")

def phase_attn_compute(a):
    a.label("Lat_comp")
    attn_ids(a)
    a("v_bfe_u32 v2, v8, 2, 2\nv_mul_u32_u24 v2, 1088, v2\nv_lshrrev_b32 v9, 5, v8\nv_lshl_add_u32 v2, v9, 9, v2")
    a("v_bfe_u32 v9, v8, 4, 1\nv_lshl_add_u32 v2, v9, 5, v2\nv_and_b32 v9, 3, v8\nv_lshl_add_u32 v2, v9, 3, v2")
    a(f"s_lshl_b32 s32, s3, 11\ns_add_u32 s32, s32, {WQ_BYTES}\nv_add_u32 v3, s32, v{V_LANE16}")
    a("v_and_b32 v9, 31, v8\ns_lshl_b32 s32, s3, 5\nv_add_u32 v9, s32, v9\nv_lshrrev_b32 v10, 5, v8\nv_lshlrev_b32 v10, 2, v10")
    a(f"v_sub_u32 v9, v9, v10\nv_cvt_f32_i32 v9, v9\nv_add_f32 v9, 0.5, v9\nv_mul_f32 v{V_YD}, {f32(BIG)}, v9")
    for k in range(4): a(kstore(k))
    QACC = lambda qt, t: (16 + 16*t) if qt == 0 else (O + 16*t)
    QSET = [FR, FR + 24]
    for i in range(0, 64, 2): a(f"v_mov_b64 {vr(16+i,2)}, 0\nv_mov_b64 {vr(O+i,2)}, 0")
    make_ws_srd(a, 20, 4, 'ctx')
    a(f"s_mov_b32 s46, {f32(QSCALE)}\ns_mov_b32 s47, {f32(QSCALE)}")
    def qreads(ks, st):
        b = QSET[st]; r = []
        for qt in range(2): r.append(f"ds_read_b128 {vr(b+16+4*qt,4)}, v3 offset:{qt*8192 + ks*1024}")
        for t in range(4):
            for e in range(2): r.append(f"ds_read_b64_tr_b16 {vr(b+4*t+2*e,2)}, v2 offset:{ks*4352 + e*256 + t*64}")
        return r
    def qmf(st):
        b = QSET[st]
        return [mf(vr(QACC(qt, t), 16), vr(b+4*t, 4), vr(b+16+4*qt, 4), vr(QACC(qt, t), 16)) for t in range(4) for qt in range(2)]
    def front(m, r):
        out = []
        for i, x in enumerate(m):
            out.append(x); out += r[2*i:2*i+2]
        return out
    a("s_mov_b32 s40, 0")
    stamp(a, 'q_pre')
    a("s_barrier\ns_barrier")
    stamp(a, 'q_b0')
    for o in qreads(0, 0): a(o)
    for c in range(18):
        a("s_waitcnt lgkmcnt(0)")
        ops = front(qmf(0), qreads(1, 1))
        if c < 6: ops.insert(20, kstore(4 + 2*c)); ops.insert(12, kstore(5 + 2*c))
        for o in ops: a(o)
        d = AT.SLOT if c % 4 != 3 else -3 * AT.SLOT
        a(f"v_add_u32 v2, {d & 0xffffffff}, v2\nv_add_u32 v3, {d & 0xffffffff}, v3")
        if c == 10: a("s_waitcnt vmcnt(0)")
        a("s_waitcnt lgkmcnt(0)")
        for o in front(qmf(1), qreads(0, 0) if c < 17 else []): a(o)
        a("s_barrier")
    a(f"s_mov_b32 s40, {2*AT.SLOT}")
    stamp(a, 'q_end')
    a("v_and_b32 v8, 63, v0\nv_bfe_u32 v9, v8, 4, 1\nv_lshlrev_b32 v9, 17, v9\nv_lshrrev_b32 v10, 5, v8\nv_lshl_add_u32 v9, v10, 8, v9")
    a(f"v_and_b32 v10, 15, v8\nv_lshl_add_u32 v{V_T0}, v10, 4, v9\nv_mov_b32 v{V_T0+1}, {f32(THRESH)}")
    a(ADV[1])
    a("s_nop 7")
    for qt in (1, 0):
        for t in range(4):
            for e in range(2):
                for p in range(4):
                    s_ = QACC(qt, t) + 8*e + 2*p
                    a(f"v_pk_mul_f32 {vr(s_,2)}, {vr(s_,2)}, s[46:47]")
                for p in range(4):
                    s_ = QACC(qt, t) + 8*e + 2*p
                    a(f"v_cvt_pk_bf16_f32 v{(Q, Q2)[qt] + 4*(2*t+e) + p}, v{s_}, v{s_+1}")
        if qt == 1:
            for i in range(8): a(rd(i, KPOS[1]))
    a("s_mov_b32 s42, s30\ns_mov_b32 s43, 0")
    a.label("Lat_qk0")
    a(f"s_lshl_b32 s32, s42, 7\nv_cvt_f32_u32 v{V_Y}, s32\nv_mul_f32 v{V_Y}, {f32(BIG)}, v{V_Y}\nv_add_f32 v{V_Y}, v{V_Y}, v{V_YD}")
    a(f"v_mov_b32 v{V_NEGM}, 0")
    for o in build_ci(): a(o)
    a(ADV[0]); a(ADV[1])
    z = [f"v_mov_b64 {vr(O+i,2)}, 0" for i in range(0, 64, 2)] + [f"v_mov_b64 {vr(P[1]+i,2)}, 0" for i in range(0, 8, 2)]
    z += [f"v_mov_b32 v{V_L}, 0", f"v_mov_b32 v{LU[1]}, 0"]
    m = qk_group(0)
    for i in range(8):
        if i == 0: a("s_waitcnt lgkmcnt(5)")
        if i % 4 == 3: a(W4)
        a(m[i]); a(rd(i, KPOS[0]))
        for o in z[5*i:5*i+5]: a(o)
    a("s_nop 7\ns_nop 1")
    s = S[0]; t = V_T0 + 2; d = V_T0 + 3
    a(f"v_max3_f32 v{d}, v{s}, v{s+1}, v{s+2}")
    for r in range(3, 15, 2): a(f"v_max3_f32 v{d}, v{d}, v{s+r}, v{s+r+1}")
    a(f"v_max_f32 v{d}, v{d}, v{s+15}")
    a(f"v_mov_b32 v{t}, v{d}\ns_nop 1\nv_permlane32_swap_b32 v{d}, v{t}\ns_nop 1")
    a(f"v_max_f32 v{d}, v{d}, v{t}")
    a(f"v_sub_f32 v{V_NEGM}, 0, v{d}")
    for r in range(16): a(f"v_sub_f32 v{s+r}, v{s+r}, v{d}")
    for o in build_ci(): a(o)
    sites = []
    a(f"v_mov_b32 v{V_Y}, v{V_YD}")
    a("s_cmp_eq_u32 s42, 0\ns_cbranch_scc0 Lat_plain_pre")
    a(f"v_add_f32 v{V_Y}, {f32(-64*BIG)}, v{V_Y}\ns_mov_b32 s41, 1\ns_branch Lat_rebuild")
    a.label("Lat_plain_pre")
    a("s_lshl_b32 s41, s42, 1\ns_sub_u32 s41, s41, 1")
    a.label("Lat_plain")
    a("s_barrier")
    sites.append(period(a, 0, 0, VPOS[0], KPOS[1]))
    sites.append(period(a, 1, 1, VPOS[1], KPOS[0], adv=True, tail_ops=["s_sub_u32 s41, s41, 1\ns_cmp_lg_u32 s41, 0"]))
    a("s_cbranch_scc1 Lat_plain")
    a("s_mov_b32 s41, 2")
    a.label("Lat_rebuild")
    a("s_barrier")
    sites.append(period(a, 0, 2, VPOS[0], KPOS[1], rebuild=True))
    sites.append(period(a, 1, 3, VPOS[1], KPOS[0], rebuild=True, adv=True, tail_ops=["s_sub_u32 s41, s41, 1\ns_cmp_lg_u32 s41, 0"]))
    a("s_cbranch_scc1 Lat_rebuild")
    a("s_barrier")
    sites.append(period(a, 0, 4, VPOS[0], VPOS[1]))
    sites.append(period(a, 1, 5, None, VPOS[0], qk=False, adv=True))
    a("s_barrier")
    m = pv_group(1)
    mv = [f"v_mov_b64 {vr(Q+i,2)}, {vr(Q2+i,2)}" for i in range(0, 32, 2)]
    for i in range(8):
        if i % 4 == 3: a(W4)
        a(m[i]); a(rd(i, KPOS[1]))
        for o in mv[2*i:2*i+2]: a(o)
    a("s_cmp_eq_u32 s43, 0\ns_cbranch_scc1 Lat_noE\ns_waitcnt lgkmcnt(0)\ns_barrier")
    a.label("Lat_noE")
    a(f"v_add_f32 v{V_L}, v{V_L}, v{LU[1]}")
    a(f"v_mov_b32 v{t}, v{V_L}\ns_nop 1\nv_permlane32_swap_b32 v{V_L}, v{t}\ns_nop 1\nv_add_f32 v{V_L}, v{V_L}, v{t}")
    a(f"v_rcp_f32 v{T}, v{V_L}\ns_nop 0\nv_mov_b32 v{T+1}, v{T}")
    a("s_lshl_b32 s32, s42, 20\ns_lshl_b32 s33, s3, 18\ns_add_u32 s32, s32, s33\ns_lshl_b32 s33, s28, 12\ns_add_u32 s32, s32, s33")
    a("s_nop 3")
    k = 0
    for tt in range(4):
        for e in range(2):
            src = O + 16*tt + 8*e; dst = S[0] + 4 * k; k += 1
            for p in range(4): a(f"v_pk_mul_f32 {vr(src+2*p,2)}, {vr(src+2*p,2)}, {vr(T,2)}")
            for p in range(4): a(f"v_cvt_pk_bf16_f32 v{dst+p}, v{src+2*p}, v{src+2*p+1}")
            a(f"buffer_store_dwordx4 {vr(dst,4)}, v{V_T0}, s[20:23], s32 offen offset:{tt*1024 + e*512} sc1")
    a("s_cmp_lg_u32 s43, 0\ns_cbranch_scc1 Lat_cend")
    a("s_mov_b32 s43, 1\ns_mov_b32 s42, s31\ns_branch Lat_qk0")
    for site, par in sites:
        a.label(f"Lat_rs{site}")
        a(f"s_call_b64 s[44:45], Lat_rare{par}\ns_branch Lat_rb{site}")
    rare_path(a, 0); rare_path(a, 1)
    a.label("Lat_cend")
    stamp(a, 'at_end')
    a(f"s_lshr_b32 s32, s28, 3\ns_add_u32 s32, s32, {C_CTX}\ns_lshl_b32 s33, s30, 2\ns_add_u32 s33, s33, s32\ns_lshl_b32 s33, s33, 7")
    a("s_lshl_b32 s34, s31, 2\ns_add_u32 s34, s34, s32\ns_lshl_b32 s34, s34, 7")

def phase_attn_loader(a):
    SLOT = AT.SLOT
    a.label("Lat_load")
    a("s_cmp_lg_u32 s6, 0\ns_cbranch_scc1 Lat_ns1")
    a(f"s_lshr_b32 s55, s2, 4\ns_lshl_b32 s55, s55, 7")
    signal(a, 55, 4)
    a.label("Lat_ns1")
    a("s_load_dwordx2 s[56:57], s[0:1], 40\ns_load_dwordx2 s[58:59], s[0:1], 56\ns_load_dwordx2 s[60:61], s[0:1], 72")
    make_srd(a, 8, 32, SIZES['wq'])
    attn_ids(a)
    a("v_lshrrev_b32 v2, 4, v8\nv_lshlrev_b32 v2, 15, v2\nv_and_b32 v3, 15, v8\nv_lshl_add_u32 v2, v3, 4, v2")
    a("s_lshl_b32 s32, s6, 17\nv_add_u32 v2, s32, v2")
    a("s_lshl_b32 s34, s28, 8\ns_mul_i32 s37, s6, 4352")
    def wq_part():
        a("s_add_u32 s32, s40, s37")
        for jj in range(4): a(f"s_add_u32 m0, s32, {1088*jj}\ns_add_u32 s33, s34, {8192*jj}\nbuffer_load_dwordx4 v2, s[8:11], s33 offen lds")
        a(f"s_add_u32 s34, s34, {32*8192}")
    def h_part():
        a("s_add_u32 s32, s40, s38")
        for qt in range(2):
            for b in range(2):
                a(f"s_add_u32 m0, s32, {qt*8192 + b*2048}\ns_add_u32 s33, s{35+qt}, {b*36864}")
                a(f"buffer_load_dwordx4 v{V_LANE16}, s[12:15], s33 offen sc1 lds\nbuffer_load_dwordx4 v{V_LANE16}, s[12:15], s33 offen offset:1024 sc1 lds")
        a("s_add_u32 s35, s35, 2048\ns_add_u32 s36, s36, 2048")
        a(ADV[0])
    for i in range(3):
        a(f"s_mov_b32 s40, {i*SLOT}"); wq_part()
    make_ws_srd(a, 12, 4, 'h1')
    a("s_lshl_b32 s32, s28, 19")
    srd_off(a, 16, 4, 32, WS['kf'][0], 512*1024); srd_off(a, 20, 4, 32, WS['vf'][0], 512*1024)
    a("s_lshl_b32 s35, s30, 1\ns_add_u32 s35, s35, s6\ns_mul_i32 s35, s35, 73728")
    a("s_lshl_b32 s36, s31, 1\ns_add_u32 s36, s36, s6\ns_mul_i32 s36, s36, 73728")
    a(f"s_lshl_b32 s38, s6, 12\ns_add_u32 s38, s38, {WQ_BYTES}\ns_lshl_b32 s39, s6, 13\ns_mov_b32 s40, 0")
    a("s_sub_u32 s44, s39, 8192\ns_sub_u32 s45, s39, 24576")
    a("s_mov_b32 s46, s44\ns_mov_b32 s47, s45\ns_mov_b32 s48, 0\ns_lshl_b32 s49, s30, 1\ns_add_u32 s49, s49, 3")
    a("s_cmp_lg_u32 s6, 0\ns_cbranch_scc1 Lat_np1")
    a(f"v_and_b32 v3, 1, v8\nv_mov_b32 v4, s30\nv_mov_b32 v5, s31\nv_cmp_eq_u32 vcc, 0, v3\ns_nop 1\nv_cndmask_b32 v3, v5, v4, vcc\nv_lshlrev_b32 v3, 7, v3")
    stamp(a, 'l_h1p0')
    poll(a, 3, 16, 4)
    stamp(a, 'l_h1p1')
    a.label("Lat_np1")
    a("s_barrier")
    for i in range(3): h_part()
    a("s_waitcnt vmcnt(8)\ns_barrier")
    wq_part(); h_part()
    a("s_mov_b32 s41, 14")
    a.label("Lat_lq")
    a("s_waitcnt vmcnt(12)\ns_barrier")
    wq_part(); h_part()
    a("s_sub_u32 s41, s41, 1\ns_cmp_lg_u32 s41, 0\ns_cbranch_scc1 Lat_lq")
    a("s_waitcnt vmcnt(12)\ns_barrier")
    def kvload():
        for (srd, so, lo) in ((16, 46, 0), (20, 47, 16384)):
            a(f"s_add_u32 s32, s40, s39\ns_add_u32 m0, s32, {lo}\ns_add_u32 s33, s{so}, 4096")
            for j in range(4): a(f"buffer_load_dwordx4 v{V_LANE16}, {sr(srd,4)}, s{so} offen offset:{1024*j} sc1 lds")
            a(f"s_add_u32 m0, s32, {lo + 4096}\ns_nop 0")
            for j in range(4): a(f"buffer_load_dwordx4 v{V_LANE16}, {sr(srd,4)}, s33 offen offset:{1024*j} sc1 lds")
        a("s_add_u32 s46, s46, 16384\ns_add_u32 s47, s47, 16384\ns_add_u32 s48, s48, 1")
        a("s_cmp_eq_u32 s48, s49\ns_cselect_b32 s46, s44, s46")
        a("s_add_u32 s32, s49, 1\ns_add_u32 s33, s45, 16384\ns_cmp_eq_u32 s48, s32\ns_cselect_b32 s47, s33, s47")
        a(ADV[0])
    kvload()
    a("s_mov_b32 s41, 36")
    a.label("Lat_lkv")
    a("s_waitcnt vmcnt(16)\ns_barrier")
    kvload()
    a("s_sub_u32 s41, s41, 1\ns_cmp_lg_u32 s41, 0\ns_cbranch_scc1 Lat_lkv")
    a("s_waitcnt vmcnt(16)\ns_barrier")
    a("s_waitcnt vmcnt(0) lgkmcnt(0)\ns_barrier")
    a("s_branch Lat_ldone")

    a.label("Lat_sw")
    a("s_mov_b32 s62, s57")
    a("s_load_dwordx2 s[56:57], s[0:1], 40\ns_load_dwordx2 s[58:59], s[0:1], 56\ns_load_dwordx2 s[60:61], s[0:1], 72")
    def vstore(n):
        k = n & 15; m_, nn, e = k >> 2, (k >> 1) & 1, k & 1
        reg = 64 + 4*k if n < 16 else 128 + 4*k
        a(f"s_add_u32 s55, s62, {m_*8192 + e*4096 + (2048 if n < 16 else 0)}\nbuffer_store_dwordx4 {vr(reg,4)}, v7, s[20:23], s55 offen offset:{nn*1024} sc1")
    for n in range(8): vstore(n)
    a("s_waitcnt lgkmcnt(0)\ns_barrier\ns_barrier")
    for c in range(6):
        for q in range(4): vstore(8 + 4*c + q)
        a("s_barrier")
    a("s_barrier\ns_barrier\ns_barrier\ns_barrier\ns_waitcnt vmcnt(0)\ns_barrier")
    a("s_cmp_lg_u32 s3, 6\ns_cbranch_scc1 Lat_swn")
    a(f"s_add_u32 s32, s48, {C_KV}\ns_lshl_b32 s32, s32, 7\nv_mov_b32 v3, s32")
    signal(a, 32, 4)
    a("s_barrier\ns_barrier\ns_barrier")
    stamp(a, 'l_kvp0')
    poll(a, 3, 8, 4)
    stamp(a, 'l_kvp1')
    a("s_branch Lat_swm")
    a.label("Lat_swn")
    a("s_barrier\ns_barrier\ns_barrier")
    a.label("Lat_swm")
    a("s_barrier")
    a("s_lshl_b32 s32, s2, 1\ns_and_b32 s33, s3, 1\ns_add_u32 s32, s32, s33")
    nb = 0
    for (ptr, name, per, lab) in ((56, 'wo', 9216, 'a'), (58, 'w1', 36864, 'b'), (60, 'w2', 36864, 'c')):
        make_srd(a, 24, ptr, 0 if 'nopf' in os.environ.get('XP', '') else SIZES[name])
        a(f"s_mul_i32 s50, s32, {per}\ns_mov_b32 s41, {per // 3072}")
        a.label(f"Lat_pf{lab}")
        a("s_barrier")
        for j in range(3): a(f"buffer_load_dwordx4 v[8:11], v7, s[24:27], s50 offen offset:{1024*j}")
        a(f"s_add_u32 s50, s50, 3072\ns_sub_u32 s41, s41, 1\ns_cmp_lg_u32 s41, 0\ns_cbranch_scc1 Lat_pf{lab}")
        nb += per // 3072
    a(f"s_mov_b32 s41, {53 - 15 - nb}")
    a.label("Lat_pfd")
    a("s_barrier\ns_sub_u32 s41, s41, 1\ns_cmp_lg_u32 s41, 0\ns_cbranch_scc1 Lat_pfd")
    a("s_waitcnt vmcnt(0)")
    a.label("Lat_ldone")

def adv_slot(slot, nslot):
    return f"s_add_u32 s40, s40, {slot}\ns_cmp_eq_u32 s40, {slot*nslot}\ns_cselect_b32 s40, 0, s40"

G16 = {'o': dict(F=16384, W=20480, NST=16, nF=4, nW=5), 'y': dict(F=20480, W=16896, NST=18, nF=5, nW=4)}

def g16_ids(a):
    a("s_bfe_u32 s28, s2, 0x20001")
    a("s_and_b32 s29, s2, 1\ns_lshl_b32 s29, s29, 3\ns_lshr_b32 s30, s2, 5\ns_add_u32 s29, s29, s30")
    a("s_bfe_u32 s30, s2, 0x20003")
    a("v_and_b32 v8, 63, v0\nv_lshlrev_b32 v1, 4, v8")

def g16_compute_setup(a, kind):
    p = G16[kind]
    g16_ids(a)
    a("v_bfe_u32 v2, v8, 4, 1\nv_lshlrev_b32 v2, 2, v2\nv_bfe_u32 v9, v8, 2, 2\nv_add_u32 v2, v2, v9")
    a("v_lshrrev_b32 v9, 5, v8\nv_and_b32 v10, 3, v8")
    if kind == 'o':
        a("v_lshl_add_u32 v2, v9, 4, v2\nv_mul_u32_u24 v2, 288, v2\nv_lshl_add_u32 v2, v10, 3, v2")
        a(f"v_add_u32 v4, {p['F']}, v2\ns_lshl_b32 s35, s3, 12\nv_add_u32 v5, s35, v1")
    else:
        a("v_mul_u32_u24 v2, 1056, v2\nv_lshl_add_u32 v2, v9, 9, v2\nv_lshl_add_u32 v2, v10, 3, v2")
        a(f"s_lshl_b32 s35, s3, 6\ns_add_u32 s35, s35, {p['F']}\nv_add_u32 v4, s35, v2\nv_mov_b32 v5, v1")
    a("v_mov_b32 v2, v4\nv_mov_b32 v3, v5")
    for i in range(0, 72, 2): a(f"v_mov_b64 {vr(16+i,2)}, 0")
    make_ws_srd(a, 20, 4, 'p3' if kind == 'o' else 'p6')
    a("v_bfe_u32 v6, v8, 4, 1\nv_lshlrev_b32 v6, 1, v6\nv_lshrrev_b32 v9, 5, v8\nv_add_u32 v6, v6, v9\nv_mul_u32_u24 v6, 9216, v6\nv_and_b32 v9, 15, v8\nv_lshl_add_u32 v6, v9, 4, v6")

def g16_compute(a, kind):
    p = G16[kind]; pre = 'Lg' + kind; SLOT = p['F'] + p['W']
    ACC = 16; SET = [96, 144]
    def reads(ks, st):
        b = SET[st]; r = []
        if kind == 'o':
            for t in range(2): r.append(f"ds_read_b128 {vr(b+4*t,4)}, v3 offset:{t*2048 + ks*1024}")
            for c in range(9):
                for e in range(2): r.append(f"ds_read_b64_tr_b16 {vr(b+8+4*c+2*e,2)}, v2 offset:{(32*ks + 8*e)*288 + c*32}")
        else:
            for t in range(2):
                for e in range(2): r.append(f"ds_read_b64_tr_b16 {vr(b+4*t+2*e,2)}, v2 offset:{8*ks*1056 + e*256 + t*32}")
            for c in range(9): r.append(f"ds_read_b128 {vr(b+8+4*c,4)}, v3 offset:{c*2048 + ks*1024}")
        return r
    def mfs(st):
        b = SET[st]
        return [f"v_mfma_f32_16x16x32_bf16 {vr(ACC+4*(9*t+c),4)}, {vr(b+4*t,4)}, {vr(b+8+4*c,4)}, {vr(ACC+4*(9*t+c),4)}"
                for c in range(9) for t in range(2)]
    def front(m, r):
        out = []
        for i, x in enumerate(m):
            out.append(x); out += r[2*i:2*i+2]
        return out
    a(f"s_mov_b32 s40, 0\ns_mov_b32 s41, {p['NST']}")
    if kind == 'y': a("s_barrier")
    a("s_barrier")
    stamp(a, kind + '_b0')
    for o in reads(0, 0): a(o)
    a.label(f"{pre}_cloop")
    a("s_waitcnt lgkmcnt(0)")
    for o in front(mfs(0), reads(1, 1)): a(o)
    a(adv_slot(SLOT, 4))
    a("v_add_u32 v2, s40, v4\nv_add_u32 v3, s40, v5")
    a("s_waitcnt lgkmcnt(0)")
    for o in front(mfs(1), reads(0, 0)): a(o)
    a(f"s_sub_u32 s41, s41, 1\ns_cmp_eq_u32 s41, 0\ns_cbranch_scc1 {pre}_cend\ns_barrier\ns_branch {pre}_cloop")
    a.label(f"{pre}_cend")
    stamp(a, kind + '_end')
    a("s_lshl_b32 s32, s28, 8\ns_lshl_b32 s33, s29, 4\ns_add_u32 s32, s32, s33\ns_lshl_b32 s33, s3, 2\ns_add_u32 s32, s32, s33")
    a("s_mul_i32 s32, s32, 9216\ns_mul_i32 s33, s30, 2304\ns_add_u32 s32, s32, s33")
    a("s_waitcnt lgkmcnt(0)")
    for c in range(9):
        A_ = ACC + 4*c; B_ = ACC + 4*(9 + c); dst = 96 + 4*c
        a(f"v_cvt_pk_bf16_f32 v{dst}, v{A_}, v{A_+1}\nv_cvt_pk_bf16_f32 v{dst+1}, v{A_+2}, v{A_+3}")
        a(f"v_cvt_pk_bf16_f32 v{dst+2}, v{B_}, v{B_+1}\nv_cvt_pk_bf16_f32 v{dst+3}, v{B_+2}, v{B_+3}")
    for c in range(9):
        dst = 96 + 4*c
        a(f"v_permlane16_swap_b32 v{dst}, v{dst+2}\nv_permlane16_swap_b32 v{dst+1}, v{dst+3}")
        a(f"buffer_store_dwordx4 {vr(dst,4)}, v6, s[20:23], s32 offen offset:{256*c} sc1")

def g16_loader_setup(a, kind):
    p = G16[kind]
    g16_ids(a)
    if kind == 'o':
        a("s_mul_i32 s32, s6, 320\ns_mov_b32 s33, 0xe38e38f")
        for jj in range(5):
            a(f"v_add_u32 v9, s32, v8\nv_add_u32 v9, {64*jj}, v9\nv_mul_hi_u32 v10, v9, s33")
            a(f"v_mul_u32_u24 v11, 18, v10\nv_sub_u32 v11, v9, v11\nv_mul_u32_u24 v10, 1152, v10\nv_lshl_add_u32 v{2+jj}, v11, 4, v10")
            a(f"v_cmp_gt_u32 vcc, 1152, v9\nv_mov_b32 v10, {OOB}\ns_nop 1\nv_cndmask_b32 v{2+jj}, v10, v{2+jj}, vcc")
        make_srd(a, 8, 56, SIZES['wo']); make_ws_srd(a, 12, 4, 'ctx')
        a(f"s_mul_i32 s34, s28, {1024*1152}\ns_mul_i32 s32, s30, 288\ns_add_u32 s34, s34, s32")
        a("s_lshl_b32 s35, s29, 3\ns_lshl_b32 s32, s6, 1\ns_add_u32 s35, s35, s32\ns_lshl_b32 s35, s35, 17\ns_lshl_b32 s32, s28, 15\ns_add_u32 s35, s35, s32")
        a(f"s_mul_i32 s37, s6, 5120\ns_add_u32 s37, s37, {p['F']}\ns_lshl_b32 s38, s6, 12")
        a(f"s_lshl_b32 s32, s29, 2\ns_add_u32 s32, s32, s28\ns_add_u32 s32, s32, {C_CTX}\ns_lshl_b32 s32, s32, 7\nv_mov_b32 v7, s32")
    else:
        a("v_lshrrev_b32 v2, 4, v8\nv_lshlrev_b32 v2, 15, v2\nv_and_b32 v9, 15, v8\nv_lshl_add_u32 v2, v9, 4, v2")
        a("s_and_b32 s32, s6, 1\ns_lshl_b32 s32, s32, 14\ns_lshr_b32 s33, s6, 1\ns_lshl_b32 s33, s33, 17\ns_add_u32 s32, s32, s33\nv_add_u32 v2, s32, v2")
        make_srd(a, 8, 60, SIZES['w2']); make_ws_srd(a, 12, 4, 'u')
        a(f"s_mul_i32 s34, s28, {1152*4096}\ns_lshl_b32 s32, s29, 8\ns_add_u32 s34, s34, s32")
        a(f"s_mul_i32 s35, s30, {9*147456}\ns_mul_i32 s32, s28, {36*1024}\ns_add_u32 s35, s35, s32")
        for jj in range(5):
            a(f"s_mul_i32 s32, s6, 5\ns_add_u32 s32, s32, {jj}\ns_lshr_b32 s33, s32, 1\ns_mul_i32 s33, s33, 147456")
            a(f"s_and_b32 s36, s32, 1\ns_lshl_b32 s36, s36, 10\ns_add_u32 s33, s33, s36\ns_add_u32 s33, s33, s35")
            a(f"s_cmp_lt_u32 s32, 18\ns_cselect_b32 s{46+jj}, s33, 0x7f000000")
        a(f"s_mul_i32 s37, s6, 4224\ns_add_u32 s37, s37, {p['F']}\ns_mul_i32 s38, s6, 5120")
        a(f"s_mul_i32 s32, s28, 6\ns_mul_i32 s33, s30, 3\ns_lshr_b32 s33, s33, 1\ns_add_u32 s32, s32, s33\ns_add_u32 s32, s32, {C_U}")
        a("v_and_b32 v7, 1, v8\nv_add_u32 v7, s32, v7\nv_lshlrev_b32 v7, 7, v7")

def g16_w(a, kind):
    if kind == 'o':
        a("s_add_u32 s32, s40, s37")
        for jj in range(5): a(f"s_add_u32 m0, s32, {1024*jj}\ns_nop 0\nbuffer_load_dwordx4 v{2+jj}, s[8:11], s34 offen lds")
        a(f"s_add_u32 s34, s34, {64*1152}")
    else:
        a("s_add_u32 s32, s40, s37")
        for jj in range(4): a(f"s_add_u32 m0, s32, {1056*jj}\ns_add_u32 s33, s34, {4096*jj}\nbuffer_load_dwordx4 v2, s[8:11], s33 offen lds")
        a(f"s_add_u32 s34, s34, {64*4096}")
def g16_f(a, kind):
    if kind == 'o':
        a("s_add_u32 m0, s40, s38\ns_add_u32 s33, s35, 0x20000")
        a("buffer_load_dwordx4 v1, s[12:15], s35 offen sc1 lds\nbuffer_load_dwordx4 v1, s[12:15], s35 offen offset:1024 sc1 lds")
        a("s_add_u32 s32, s40, s38\ns_add_u32 m0, s32, 2048\ns_nop 0")
        a("buffer_load_dwordx4 v1, s[12:15], s33 offen sc1 lds\nbuffer_load_dwordx4 v1, s[12:15], s33 offen offset:1024 sc1 lds")
        a("s_add_u32 s35, s35, 2048")
    else:
        a("s_add_u32 s32, s40, s38")
        for jj in range(5):
            a(f"s_add_u32 m0, s32, {1024*jj}\ns_nop 0\nbuffer_load_dwordx4 v1, s[12:15], s{46+jj} offen sc1 lds\ns_add_u32 s{46+jj}, s{46+jj}, 2048")

def g16_loader_wpro(a, kind):
    p = G16[kind]; SLOT = p['F'] + p['W']
    for i in range(3):
        a(f"s_mov_b32 s40, {i*SLOT}"); g16_w(a, kind)

def g16_loader_main(a, kind):
    p = G16[kind]; pre = 'Lg' + kind; SLOT = p['F'] + p['W']
    stamp(a, 'l_' + kind + 'p0')
    if kind == 'y': a(f"s_cmp_lg_u32 s6, 0\ns_cbranch_scc1 {pre}_np")
    poll(a, 7, 32 if kind == 'o' else 9, 9)
    if kind == 'y':
        a.label(f"{pre}_np"); a("s_barrier")
    stamp(a, 'l_' + kind + 'p1')
    for i in range(3):
        a(f"s_mov_b32 s40, {i*SLOT}"); g16_f(a, kind)
    a(f"s_mov_b32 s40, {3*SLOT}\ns_mov_b32 s41, {p['NST'] - 3}")
    a(f"s_waitcnt vmcnt({p['nF']})\ns_branch {pre}_lb")
    a.label(f"{pre}_lloop")
    a("s_waitcnt vmcnt(9)")
    a.label(f"{pre}_lb")
    a("s_barrier")
    g16_f(a, kind); g16_w(a, kind)
    a(adv_slot(SLOT, 4))
    a(f"s_sub_u32 s41, s41, 1\ns_cmp_lg_u32 s41, 0\ns_cbranch_scc1 {pre}_lloop")
    a("s_waitcnt vmcnt(9)\ns_barrier\ns_waitcnt vmcnt(0)\ns_barrier\ns_barrier")

def tok_ids(a):
    a("s_bfe_u32 s32, s2, 0x20001\ns_lshl_b32 s32, s32, 2\ns_bfe_u32 s33, s2, 0x20003\ns_add_u32 s32, s32, s33")
    a("s_and_b32 s43, s2, 1\ns_lshl_b32 s43, s43, 3\ns_lshr_b32 s33, s2, 5\ns_add_u32 s43, s43, s33")
    a("s_lshl_b32 s42, s43, 4\ns_add_u32 s42, s42, s32\ns_mul_i32 s44, s42, 9216")
    a(f"v_mov_b32 v200, v0\nv_add_u32 v201, 512, v0\nv_cmp_gt_u32 vcc, 64, v0\nv_mov_b32 v202, 0x0ffffff0\ns_nop 1\nv_cndmask_b32 v201, v202, v201, vcc")

def partial_loads(a, srd):
    a("v_lshlrev_b32 v204, 4, v200\nv_lshlrev_b32 v205, 4, v201\ns_mov_b32 s32, s44")
    for s in range(4):
        for u in range(2): a(f"buffer_load_dwordx4 {vr(208+16*u+4*s,4)}, v{204+u}, {sr(srd,4)}, s32 offen sc1")
        if s < 3: a(f"s_add_u32 s32, s32, {256*9216}")

def partial_sum(a, u, dst):
    b = 208 + 16*u
    unpack8(a, b, dst)
    for s in range(1, 4):
        for d in range(4):
            a(f"v_lshlrev_b32 v206, 16, v{b+4*s+d}\nv_and_b32 v207, 0xffff0000, v{b+4*s+d}")
            a(f"v_add_f32 v{dst+2*d}, v{dst+2*d}, v206\nv_add_f32 v{dst+2*d+1}, v{dst+2*d+1}, v207")

def ln_row(a, x, n, t0):
    m, v, t = t0, t0 + 1, t0 + 2
    a(f"v_add_f32 v{m}, v{x}, v{x+1}")
    for i in range(2, n): a(f"v_add_f32 v{m}, v{m}, v{x+i}")
    wave_allsum(a, m, t)
    a(f"v_mul_f32 v{m}, 0x3ae38e39, v{m}\nv_mov_b32 v{v}, 0")
    for i in range(n): a(f"v_sub_f32 v{t}, v{x+i}, v{m}\nv_fmac_f32 v{v}, v{t}, v{t}")
    wave_allsum(a, v, t)
    a(f"v_mul_f32 v{v}, 0x3ae38e39, v{v}")
    round_bf16(a, m); round_bf16(a, v)
    a(f"v_add_f32 v{v}, 0x3727c5ac, v{v}"); round_bf16(a, v)
    a(f"v_sqrt_f32 v{v}, v{v}\ns_nop 0"); round_bf16(a, v)
    a(f"v_rcp_f32 v{v}, v{v}\ns_nop 0")
    for i in range(n): a(f"v_sub_f32 v{x+i}, v{x+i}, v{m}\nv_mul_f32 v{x+i}, v{x+i}, v{v}")

LN_LDS = 4 * 29696

def ln2_pre(a):
    a("s_load_dwordx2 s[46:47], s[0:1], 0")
    tok_ids(a)
    make_ws_srd(a, 48, 4, 'mod')
    a("v_lshlrev_b32 v204, 1, v200\nv_lshlrev_b32 v205, 1, v201\nv_lshlrev_b32 v206, 2, v200\nv_lshlrev_b32 v207, 2, v201")
    a("v_and_b32 v203, 63, v0\nv_lshlrev_b32 v203, 2, v203")
    a(f"s_mov_b32 s32, {2*2304}\nbuffer_load_dword v160, v206, s[48:51], s32 offen sc1\nbuffer_load_dword v161, v207, s[48:51], s32 offen sc1")
    a(f"s_mov_b32 s32, {3*2304}\ns_mov_b32 s33, {4*2304}")
    for i in range(9):
        a(f"buffer_load_dword v{162+i}, v203, s[48:51], s32 offen offset:{256*i} sc1\nbuffer_load_dword v{172+i}, v203, s[48:51], s33 offen offset:{256*i} sc1")
    a("s_waitcnt lgkmcnt(0)")
    make_srd(a, 48, 46, SIZES['x'])
    a("s_mov_b32 s32, s44")
    for t in range(8):
        for u in range(2): a(f"buffer_load_ushort v{144+8*u+t}, v{204+u}, s[48:51], s32 offen" + (f" offset:{1152*(t%3)}" if t % 3 else ""))
        if t % 3 == 2: a("s_add_u32 s32, s32, 3456")

def ln2_body(a):
    make_ws_srd(a, 48, 4, 'p3')
    partial_loads(a, 48)
    make_ws_srd(a, 48, 4, 'x1'); make_ws_srd(a, 52, 4, 'h2')
    a(f"v_lshlrev_b32 v198, 2, v200\nv_add_u32 v198, {LN_LDS}, v198")
    a("s_waitcnt vmcnt(0)")
    stamp(a, 'ln_ld')
    for u in range(2):
        if u == 1: a("s_cmp_lg_u32 s3, 0\ns_cbranch_scc1 Lln_u1")
        partial_sum(a, u, 184)
        for t in range(8): a(f"v_lshlrev_b32 v{144+8*u+t}, 16, v{144+8*u+t}\nv_fmac_f32 v{144+8*u+t}, v{160+u}, v{184+t}")
        for p in range(4): a(f"v_cvt_pk_bf16_f32 v{192+p}, v{144+8*u+2*p}, v{145+8*u+2*p}")
        a(f"buffer_store_dwordx4 v[192:195], v{204+u}, s[48:51], s44 offen sc1")
        unpack8(a, 192, 184)
        for t in range(8): a(f"ds_write_b32 v198, v{184+t} offset:{2304*t + 2048*u}")
    a.label("Lln_u1")
    a("s_waitcnt lgkmcnt(0)\ns_barrier")
    a(f"s_mul_i32 s32, s3, 2304\ns_add_u32 s32, s32, {LN_LDS}\nv_add_u32 v199, s32, v203")
    for i in range(9): a(f"ds_read_b32 v{184+i}, v199 offset:{256*i}")
    for i in range(9):
        a(f"v_add_f32 v{172+i}, 1.0, v{172+i}"); round_bf16(a, 172 + i)
    a("s_waitcnt lgkmcnt(0)")
    ln_row(a, 184, 9, 194)
    for i in range(9): a(f"v_fma_f32 v{184+i}, v{184+i}, v{172+i}, v{162+i}")
    ln_row(a, 184, 9, 194)
    for i in range(9): a(f"ds_write_b32 v199, v{184+i} offset:{256*i}")
    a("s_waitcnt lgkmcnt(0)\ns_barrier")
    a("s_lshl_b32 s32, s42, 9")
    for u in range(2):
        if u == 1: a("s_cmp_lg_u32 s3, 0\ns_cbranch_scc1 Lln_u2")
        for t in range(8): a(f"ds_read_b32 v{184+t}, v198 offset:{2304*t + 2048*u}")
        a(f"v_lshrrev_b32 v206, 5, v{200+u}\nv_lshlrev_b32 v206, 17, v206\nv_and_b32 v207, 31, v{200+u}\nv_lshl_add_u32 v206, v207, 4, v206")
        a("s_waitcnt lgkmcnt(0)")
        for p in range(4): a(f"v_cvt_pk_bf16_f32 v{144+4*u+p}, v{184+2*p}, v{185+2*p}")
        a(f"buffer_store_dwordx4 {vr(144+4*u,4)}, v206, s[52:55], s32 offen sc1")
    a.label("Lln_u2")
    stamp(a, 'ln_st')
    a("s_waitcnt vmcnt(0)\ns_barrier")

def final_pre(a):
    a("s_load_dwordx2 s[46:47], s[0:1], 80\ns_load_dwordx2 s[52:53], s[0:1], 104")
    tok_ids(a)
    make_ws_srd(a, 48, 4, 'mod')
    a("v_lshlrev_b32 v206, 2, v200\nv_lshlrev_b32 v207, 2, v201\nv_lshlrev_b32 v204, 4, v200\nv_lshlrev_b32 v205, 4, v201")
    a(f"s_mov_b32 s32, {5*2304}\nbuffer_load_dword v160, v206, s[48:51], s32 offen sc1\nbuffer_load_dword v161, v207, s[48:51], s32 offen sc1")
    make_ws_srd(a, 48, 4, 'x1')
    for u in range(2): a(f"buffer_load_dwordx4 {vr(144+4*u,4)}, v{204+u}, s[48:51], s44 offen sc1")
    a("s_waitcnt lgkmcnt(0)")
    a("s_lshl_b32 s32, s42, 4\ns_add_u32 s46, s46, s32\ns_addc_u32 s47, s47, 0\ns_load_dwordx4 s[36:39], s[46:47], 0")
    make_srd(a, 24, 52, SIZES['out'])

def final_body(a):
    make_ws_srd(a, 48, 4, 'p6')
    partial_loads(a, 48)
    a("s_waitcnt lgkmcnt(0)")
    for p in range(4): a(f"s_lshl_b32 s{48+2*p}, s{36+p}, 16\ns_and_b32 s{49+2*p}, s{36+p}, 0xffff0000")
    a("v_lshlrev_b32 v198, 1, v200\nv_lshlrev_b32 v199, 1, v201")
    a("s_waitcnt vmcnt(0)")
    for u in range(2):
        if u == 1: a("s_cmp_lg_u32 s3, 0\ns_cbranch_scc1 Lfi_u1")
        partial_sum(a, u, 184)
        unpack8(a, 144 + 4*u, 164)
        for t in range(8): a(f"v_add_f32 v{184+t}, s{48+t}, v{184+t}\nv_fmac_f32 v{164+t}, v{160+u}, v{184+t}")
        for p in range(4): a(f"v_cvt_pk_bf16_f32 v{192+p}, v{164+2*p}, v{165+2*p}")
        a("s_mov_b32 s32, s44")
        for t in range(8):
            op = "buffer_store_short" if t % 2 == 0 else "buffer_store_short_d16_hi"
            a(f"{op} v{192+t//2}, v{198+u}, s[24:27], s32 offen" + (f" offset:{1152*(t%3)}" if t % 3 else ""))
            if t % 3 == 2: a("s_add_u32 s32, s32, 3456")
        a("s_nop 1")
    a.label("Lfi_u1")

M1_W = 17408; M1_SLOT = M1_W + 12288; M1_NST = 32; M1_X = 114688
def m1_ids(a):
    a("s_and_b32 s32, s2, 7\ns_mul_i32 s32, s32, 27\ns_lshr_b32 s33, s2, 3\ns_add_u32 s32, s32, s33")
    a("s_mul_hi_u32 s28, s32, 0x2aaaaaab\ns_mul_i32 s33, s28, 6\ns_sub_u32 s29, s32, s33")
    a("v_and_b32 v8, 63, v0\nv_lshlrev_b32 v1, 4, v8")

def m1_compute(a):
    pre = 'Lm1'
    ACC = 16; SET = [112, 132]
    a("s_load_dwordx2 s[24:25], s[0:1], 64")
    m1_ids(a)
    a("v_bfe_u32 v2, v8, 2, 2\nv_mul_u32_u24 v2, 1088, v2\nv_lshrrev_b32 v9, 5, v8\nv_lshl_add_u32 v2, v9, 9, v2")
    a("v_bfe_u32 v9, v8, 4, 1\nv_lshl_add_u32 v2, v9, 5, v2\nv_and_b32 v9, 3, v8\nv_lshl_add_u32 v2, v9, 3, v2")
    a("s_and_b32 s30, s3, 1\ns_lshr_b32 s31, s3, 1")
    a("s_lshl_b32 s32, s30, 7\ns_mul_i32 s33, s31, 8704\ns_add_u32 s32, s32, s33\nv_add_u32 v4, s32, v2")
    a(f"s_lshl_b32 s32, s31, 11\ns_add_u32 s32, s32, {M1_W}\nv_add_u32 v5, s32, v1")
    a("v_mov_b32 v2, v4\nv_mov_b32 v3, v5")
    for i in range(0, 96, 2): a(f"v_mov_b64 {vr(ACC+i,2)}, 0")
    a("s_waitcnt lgkmcnt(0)")
    make_ws_srd(a, 20, 4, 'u'); make_srd(a, 12, 24, SIZES['b1'])
    a("s_lshl_b32 s32, s28, 2\ns_lshl_b32 s33, s30, 1\ns_add_u32 s32, s32, s33\ns_add_u32 s34, s32, s31")
    a("s_lshl_b32 s32, s34, 6\nv_lshrrev_b32 v9, 5, v8\nv_lshlrev_b32 v9, 3, v9")
    for q in range(4): a(f"buffer_load_dwordx2 {vr(152+2*q,2)}, v9, s[12:15], s32 offen offset:{16*q}")
    def reads(ks, st):
        b = SET[st]; r = []
        for d in range(3): r.append(f"ds_read_b128 {vr(b+8+4*d,4)}, v3 offset:{d*4096 + ks*1024}")
        for t in range(2):
            for e in range(2): r.append(f"ds_read_b64_tr_b16 {vr(b+4*t+2*e,2)}, v2 offset:{ks*4352 + e*256 + t*64}")
        return r
    def mfs(st):
        b = SET[st]
        return [mf(vr(ACC+16*(3*t+d),16), vr(b+4*t,4), vr(b+8+4*d,4), vr(ACC+16*(3*t+d),16)) for t in range(2) for d in range(3)]
    def front(m, r):
        out = []
        for i, x in enumerate(m):
            out.append(x); out += r[2*i:2*i+2]
        return out
    a(f"s_mov_b32 s40, 0\ns_mov_b32 s41, {M1_NST}")
    a("s_barrier\ns_barrier")
    stamp(a, 'm1_b0')
    for o in reads(0, 0): a(o)
    a.label(f"{pre}_cloop")
    a("s_waitcnt lgkmcnt(0)")
    for o in front(mfs(0), reads(1, 1)): a(o)
    a(adv_slot(M1_SLOT, 5))
    a("v_add_u32 v2, s40, v4\nv_add_u32 v3, s40, v5")
    a("s_waitcnt lgkmcnt(0)")
    for o in front(mfs(1), reads(0, 0)): a(o)
    a(f"s_sub_u32 s41, s41, 1\ns_cmp_lg_u32 s41, 0\ns_waitcnt lgkmcnt(0)\ns_barrier\ns_cbranch_scc1 {pre}_cloop" if False else
      f"s_sub_u32 s41, s41, 1\ns_cmp_lg_u32 s41, 0\ns_barrier\ns_cbranch_scc1 {pre}_cloop")
    stamp(a, 'm1_end')
    a("s_waitcnt lgkmcnt(0)")
    a(f"s_mul_i32 s32, s3, 12288\ns_add_u32 s32, s32, {M1_X}\nv_add_u32 v2, s32, v1")
    a(f"s_xor_b32 s33, s3, 2\ns_mul_i32 s33, s33, 12288\ns_add_u32 s33, s33, {M1_X}\nv_add_u32 v3, s33, v1")
    a(f"s_cmp_eq_u32 s31, 0\ns_cbranch_scc1 {pre}_k0")
    for kh in (1, 0):
        if kh == 0: a.label(f"{pre}_k0")
        keep = ACC + 48 * kh; send = ACC + 48 * (1 - kh)
        a("s_nop 7")
        for i in range(12): a(f"ds_write_b128 v2, {vr(send+4*i,4)} offset:{1024*i}")
        a("s_waitcnt lgkmcnt(0)\ns_barrier")
        for i in range(12): a(f"ds_read_b128 {vr(send+4*i,4)}, v3 offset:{1024*i}")
        a("s_waitcnt vmcnt(0)")
        for q in range(4):
            for h in range(2):
                a(f"v_lshlrev_b32 v{160+4*q+2*h}, 16, v{152+2*q+h}\nv_and_b32 v{161+4*q+2*h}, 0xffff0000, v{152+2*q+h}")
        a("v_bfe_u32 v9, v8, 4, 1\nv_mul_u32_u24 v9, 147456, v9\nv_lshrrev_b32 v10, 5, v8\nv_lshl_add_u32 v9, v10, 8, v9")
        a("v_and_b32 v10, 15, v8\nv_lshl_add_u32 v6, v10, 4, v9")
        a(f"s_mul_i32 s32, s29, {6*147456}\ns_lshl_b32 s33, s34, 10\ns_add_u32 s32, s32, s33")
        c1 = -2 * math.sqrt(2 / math.pi) * math.log2(math.e); c2 = c1 * 0.044715
        a(f"v_mov_b32 v10, {f32(c1)}\ns_mov_b32 s37, {f32(c2)}")
        for d in range(3):
            a(f"s_waitcnt lgkmcnt({8 - 4*d})")
            for e in range(2):
                b = keep + 16*d + 8*e; o = send + 16*d + 8*e
                for r in range(8): a(f"v_add_f32 v{b+r}, v{b+r}, v{o+r}")
                for r in range(8): a(f"v_add_f32 v{b+r}, v{b+r}, v{160+8*e+r}")
                for r in range(8): a(f"v_mul_f32 v{o+r}, v{b+r}, v{b+r}")
                for r in range(8): a(f"v_fma_f32 v{o+r}, v{o+r}, s37, v10")
                for r in range(8): a(f"v_mul_f32 v{o+r}, v{o+r}, v{b+r}")
                for r in range(8): a(f"v_exp_f32 v{o+r}, v{o+r}")
                for r in range(8): a(f"v_add_f32 v{o+r}, 1.0, v{o+r}")
                for r in range(8): a(f"v_rcp_f32 v{o+r}, v{o+r}")
                for r in range(8): a(f"v_mul_f32 v{b+r}, v{b+r}, v{o+r}")
                for p in range(4): a(f"v_cvt_pk_bf16_f32 v{o+p}, v{b+2*p}, v{b+2*p+1}")
                a(f"buffer_store_dwordx4 {vr(o,4)}, v6, s[20:23], s32 offen offset:{e*512} sc1")
            a(f"s_add_u32 s32, s32, {2*147456}")
        if kh == 1: a(f"s_branch {pre}_cdone")
    a.label(f"{pre}_cdone")

def m1_loader_setup(a):
    m1_ids(a)
    a("v_lshrrev_b32 v2, 4, v8\nv_mul_u32_u24 v2, 36864, v2\nv_and_b32 v9, 15, v8\nv_lshl_add_u32 v2, v9, 4, v2")
    a(f"s_mul_i32 s32, s6, {16*9216}\nv_add_u32 v2, s32, v2")
    make_srd(a, 8, 58, SIZES['w1']); make_ws_srd(a, 12, 4, 'h2')
    a("s_lshl_b32 s34, s28, 8")
    a(f"s_mul_i32 s35, s29, {3*131072}\ns_lshl_b32 s32, s6, 10\ns_add_u32 s35, s35, s32")
    a(f"s_mul_i32 s37, s6, 4352\ns_lshl_b32 s38, s6, 10\ns_add_u32 s38, s38, {M1_W}")
    a(f"s_and_b32 s32, s2, 7\ns_lshl_b32 s32, s32, 4\ns_add_u32 s32, s32, {C_H2}\nv_and_b32 v7, 15, v8\nv_add_u32 v7, s32, v7\nv_lshlrev_b32 v7, 7, v7")
def m1_w(a):
    a("s_add_u32 s32, s40, s37")
    for jj in range(4): a(f"s_add_u32 m0, s32, {1088*jj}\ns_add_u32 s33, s34, {9216*jj}\nbuffer_load_dwordx4 v2, s[8:11], s33 offen lds")
    a(f"s_add_u32 s34, s34, {64*9216}")
def m1_f(a):
    a("s_add_u32 s32, s40, s38")
    for d in range(3): a(f"s_add_u32 m0, s32, {4096*d}\ns_add_u32 s33, s35, {131072*d}\nbuffer_load_dwordx4 v1, s[12:15], s33 offen sc1 lds")
    a("s_add_u32 s35, s35, 4096")
def m1_loader_main(a):
    stamp(a, 'l_h2p0')
    a("s_cmp_lg_u32 s6, 0\ns_cbranch_scc1 Lm1_np")
    poll(a, 7, 16, 9)
    a.label("Lm1_np"); a("s_barrier")
    stamp(a, 'l_h2p1')
    for i in range(4):
        a(f"s_mov_b32 s40, {i*M1_SLOT}"); m1_f(a)
    a(f"s_mov_b32 s40, {4*M1_SLOT}")
    for w in (6, 10):
        a(f"s_waitcnt vmcnt({w})\ns_barrier"); m1_f(a); m1_w(a); a(adv_slot(M1_SLOT, 5))
    a(f"s_mov_b32 s41, {M1_NST - 6}")
    a.label("Lm1_lloop")
    a("s_waitcnt vmcnt(14)\ns_barrier"); m1_f(a); m1_w(a); a(adv_slot(M1_SLOT, 5))
    a("s_sub_u32 s41, s41, 1\ns_cmp_lg_u32 s41, 0\ns_cbranch_scc1 Lm1_lloop")
    for w in (14, 7, 0, 0): a(f"s_waitcnt vmcnt({w})\ns_barrier")
    a("s_barrier")

def sig_wave4(a, soff_code, soff, lab, vtmp):
    a(f"s_cmp_lg_u32 s6, 0\ns_cbranch_scc1 {lab}")
    a(soff_code); signal(a, soff, vtmp)
    a.label(lab)

def mega():
    a = Asm(); n = NAME + '_kernel'
    a("s_cmp_ge_u32 s2, 256\ns_cbranch_scc1 Lend")
    stamp(a, 'start')
    phase_kv(a)
    phase_attn_compute(a)
    a("s_mov_b32 s60, s33\ns_mov_b32 s61, s34")
    g16_compute_setup(a, 'o')
    a("s_waitcnt vmcnt(0)")
    stamp(a, 'at_dr')
    signal(a, 60, 9); signal(a, 61, 9)
    g16_compute(a, 'o')
    ln2_pre(a)
    stamp(a, 'o_st')
    a("s_waitcnt vmcnt(0)")
    stamp(a, 'o_dr')
    a("s_barrier")
    stamp(a, 'S')
    a("s_barrier")
    a.label("Lln_shared")
    stamp(a, 'R')
    ln2_body(a)
    stamp(a, 'S2')
    a("s_cmp_ge_u32 s3, 4\ns_cbranch_scc1 Ll_after_ln")
    a("s_cmp_ge_u32 s2, 216\ns_cbranch_scc1 Lc_g2")
    m1_compute(a)
    stamp(a, 'm1_st')
    a("s_waitcnt vmcnt(0)")
    stamp(a, 'm1_dr')
    a("s_barrier")
    stamp(a, 'S3')
    a.label("Lc_g2")
    g16_compute_setup(a, 'y')
    g16_compute(a, 'y')
    final_pre(a)
    stamp(a, 'y_st')
    a("s_waitcnt vmcnt(0)")
    stamp(a, 'y_dr')
    a("s_barrier\ns_barrier")
    stamp(a, 'R4')
    a("s_branch Lfinal")
    phase_attn_loader(a)
    g16_loader_setup(a, 'o')
    a("s_barrier\ns_barrier")
    g16_loader_wpro(a, 'o')
    g16_loader_main(a, 'o')
    ln2_pre(a)
    m1_loader_setup(a)
    a("s_barrier")
    sig_wave4(a, f"s_add_u32 s32, s43, {C_P3}\ns_lshl_b32 s32, s32, 7", 32, "Ll_s1", 9)
    a("s_cmp_ge_u32 s2, 216\ns_cbranch_scc1 Ll_now1")
    for i in range(4):
        a(f"s_mov_b32 s40, {i*M1_SLOT}"); m1_w(a)
    a.label("Ll_now1")
    a("s_cmp_lg_u32 s6, 0\ns_cbranch_scc1 Ll_np1")
    a(f"s_add_u32 s32, s43, {C_P3}\ns_lshl_b32 s32, s32, 7\nv_mov_b32 v10, s32")
    poll(a, 10, 16, 9)
    a.label("Ll_np1")
    a("s_barrier")
    a("s_branch Lln_shared")
    a.label("Ll_after_ln")
    a("s_cmp_lg_u32 s6, 0\ns_cbranch_scc1 Ll_s2")
    a(f"s_add_u32 s32, s43, {C_H2}\ns_lshl_b32 s32, s32, 7\nv_lshlrev_b32 v10, 11, v8\nv_mov_b32 v9, 1\ns_mov_b64 exec, 0xff")
    a(f"buffer_atomic_add v9, v10, {SYNC}, s32 offen sc1\ns_mov_b64 exec, -1")
    a.label("Ll_s2")
    a("s_cmp_ge_u32 s2, 216\ns_cbranch_scc1 Ll_nom1")
    m1_loader_main(a)
    a(f"s_mul_hi_u32 s32, s28, 0x1c71c71d\ns_mul_i32 s32, s32, 6\ns_add_u32 s32, s32, s29\ns_add_u32 s32, s32, {C_U}\ns_lshl_b32 s63, s32, 7")
    g16_loader_setup(a, 'y')
    g16_loader_wpro(a, 'y')
    a("s_barrier\ns_barrier")
    sig_wave4(a, "", 63, "Ll_s3", 9)
    a("s_branch Ll_g2")
    a.label("Ll_nom1")
    g16_loader_setup(a, 'y')
    g16_loader_wpro(a, 'y')
    a.label("Ll_g2")
    g16_loader_main(a, 'y')
    final_pre(a)
    a("s_barrier")
    a("s_cmp_lg_u32 s6, 0\ns_cbranch_scc1 Ll_np2")
    a(f"s_add_u32 s32, s43, {C_P6}\ns_lshl_b32 s32, s32, 7\nv_mov_b32 v10, s32")
    signal(a, 32, 9)
    poll(a, 10, 16, 9)
    a.label("Ll_np2")
    a("s_barrier")
    a.label("Lfinal")
    final_body(a)
    if STAMP:
        a(f"s_cmp_lg_u32 s3, {STAMP_WAVE}\ns_cbranch_scc1 Lend\ns_waitcnt vmcnt(0)")
        a("s_memrealtime s[92:93]\ns_waitcnt lgkmcnt(0)")
        stamp_flush(a, 15, "Lstf")
    a.label("Lend")
    a("s_endpgm")
    return n, a

def build(path):
    n, a = mega()
    txt = a.text()
    hdr = open('cdna_kernels/' + NAME + '.s.ref').read().split('\n')
    top = [l for l in hdr if l.startswith(';') and '@launch' not in l][:19]
    out = '\n'.join(top) + '\n'
    if os.environ.get('LIST'):
        out += f"; @launch kernel={n} grid=(256,1,1) block=(512,1,1) lds={LDS_TOTAL}\n"
    else:
        out += f"; @launch grid=(256,1,1) block=(512,1,1) lds={LDS_TOTAL}\n"
    if STAMP: out += '; stamps: ' + ','.join(STAMP_LIST) + '\n'
    out += '.amdgcn_target "amdgcn-amd-amdhsa--gfx950"\n' + kernel_header(n) + txt + kernel_desc(n, 256, 102)
    open(path, 'w').write(out)

if __name__ == '__main__':
    build(sys.argv[1] if len(sys.argv) > 1 else 'm.s')
```

```python
NAME = 'adaLN_cond__compressed_kv_cla__mixer_token_mlp__prompt'

class Asm:
    def __init__(self):
        self.lines = []
    def __call__(self, s=''):
        for l in s.split('\n'):
            t = l.strip()
            if not t: continue
            self.lines.append(t if t.endswith(':') else '    ' + t)
    def label(self, s): self.lines.append(s + ':')
    def text(self): return '\n'.join(self.lines) + '\n'

def kernel_header(name):
    return f".text\n.globl {name}\n.p2align 8\n.type {name},@function\n{name}:\n"

def kernel_desc(name, vgpr, sgpr=102, accum=None):
    if accum is None: accum = (vgpr + 3) // 4 * 4
    return f""".section .rodata,"a"
.p2align 6
.amdhsa_kernel {name}
  .amdhsa_next_free_vgpr {vgpr}
  .amdhsa_next_free_sgpr {sgpr}
  .amdhsa_accum_offset {accum}
  .amdhsa_group_segment_fixed_size 0
  .amdhsa_kernarg_size 128
  .amdhsa_user_sgpr_count 2
  .amdhsa_user_sgpr_kernarg_segment_ptr 1
  .amdhsa_system_sgpr_workgroup_id_x 1
.end_amdhsa_kernel
"""

KA = dict(x=0, ckv=8, wq=16, wuk=24, wuv=32, wo=40, bx=48, w1=56, b1=64, w2=72, b2=80, c=88, wmod=96, out=104, dbg=112, ws=120)
SIZES = dict(x=2048*576*2, ckv=2048*512*2, wq=576*4096*2, wuk=512*4096*2, wuv=512*4096*2, wo=4096*576*2,
             w1=2048*4608*2, b1=4608*2, w2=4608*2048*2, b2=2048*2, c=576*2, wmod=576*3456*2, out=2048*576*2, dbg=256)

MB = 1 << 20
WS = {}
def _ws():
    off = 0
    for n, sz in [('sync', 512*128), ('mod', 3456*4), ('modp', 4*3456*4), ('h1', 2048*576*2), ('kf', 32*2048*128*2), ('vf', 32*2048*128*2), ('ctx', 2048*4096*2),
                  ('p3', 4*2048*576*2), ('x1', 2048*576*2), ('h2', 2048*576*2), ('u', 576*4608*2), ('p6', 4*2048*576*2)]:
        WS[n] = (off, sz)
        off += (sz + 0xffff) & ~0xffff
_ws()

def vr(b, n): return f"v[{b}:{b+n-1}]" if n > 1 else f"v{b}"
def sr(b, n): return f"s[{b}:{b+n-1}]" if n > 1 else f"s{b}"

def load_ptr(a, sdst, name):
    a(f"s_load_dwordx2 {sr(sdst,2)}, s[0:1], {KA[name]}")

def make_srd(a, srd, sptr, size, add=0):
    if add:
        a(f"s_add_u32 s{srd}, s{sptr}, {add}")
        a(f"s_addc_u32 s{srd+1}, s{sptr+1}, 0")
        a(f"s_and_b32 s{srd+1}, s{srd+1}, 0xffff")
    else:
        a(f"s_mov_b32 s{srd}, s{sptr}")
        a(f"s_and_b32 s{srd+1}, s{sptr+1}, 0xffff")
    a(f"s_mov_b32 s{srd+2}, {size}")
    a(f"s_mov_b32 s{srd+3}, 0x20000")

def make_ws_srd(a, srd, sws, name):
    make_srd(a, srd, sws, WS[name][1], WS[name][0])

def interleave(primary, secondary, start=0, every=1):
    out = []
    sec = list(secondary)
    for i, p in enumerate(primary):
        out.append(p)
        if i >= start and (i - start) % every == 0 and sec:
            out.append(sec.pop(0))
    out.extend(sec)
    return out

def spread(primary, secondary):
    n = len(primary); m = len(secondary)
    out = []; k = 0
    for i, p in enumerate(primary):
        out.append(p)
        tgt = (m * (i + 1) + n - 1) // n
        while k < tgt:
            out.append(secondary[k]); k += 1
    return out

def round_bf16(a, v, tmp=None):
    a(f"v_cvt_pk_bf16_f32 v{v}, v{v}, v{v}")
    a(f"v_and_b32 v{v}, 0xffff0000, v{v}")

def wave_allsum(a, v, t):
    for r in (8, 4, 2, 1):
        a("s_nop 1")
        a(f"v_add_f32_dpp v{v}, v{v}, v{v} row_ror:{r} row_mask:0xf bank_mask:0xf")
    a(f"v_mov_b32 v{t}, v{v}")
    a("s_nop 1")
    a(f"v_permlane16_swap_b32 v{v}, v{t}")
    a("s_nop 1")
    a(f"v_add_f32 v{v}, v{v}, v{t}")
    a(f"v_mov_b32 v{t}, v{v}")
    a("s_nop 1")
    a(f"v_permlane32_swap_b32 v{v}, v{t}")
    a("s_nop 1")
    a(f"v_add_f32 v{v}, v{v}, v{t}")

import os
STAMP = os.environ.get('STAMP', '') != ''
STAMP_WG = int(os.environ.get('STAMP_WG', '100'))
STAMP_LIST = os.environ.get('STAMP', '').split(',')
STAMP_WAVE = int(os.environ.get('STAMP_WAVE', '0'))
def stamp(a, name):
    if STAMP and name in STAMP_LIST:
        i = STAMP_LIST.index(name)
        assert i < 14
        a(f"{'s_memtime' if os.environ.get('STAMPC') and i else 's_memrealtime'} s[{64+2*i}:{65+2*i}]")
STAMP_WS = 200 << 20
def stamp_flush(a, n, lab, dword0=16):
    if not STAMP: return
    a("s_waitcnt vmcnt(0) lgkmcnt(0)")
    a(f"s_add_u32 s56, s4, {STAMP_WS}\ns_addc_u32 s57, s5, 0\ns_and_b32 s57, s57, 0xffff\ns_mov_b32 s58, 16384\ns_mov_b32 s59, 0x20000")
    a("s_lshl_b32 s60, s2, 6\nv_mov_b32 v1, s60")
    for i in range(n):
        a(f"v_mov_b32 v2, s{64+2*i}\nbuffer_store_dword v2, v1, s[56:59], 0 offen offset:{4*i}\ns_nop 1")
    a.label(lab)

import struct
def f32(x): return "0x%08x" % struct.unpack('<I', struct.pack('<f', x))[0]

def unpack8(a, src, dst):
    for d in range(4):
        a(f"v_lshlrev_b32 v{dst+2*d}, 16, v{src+d}\nv_and_b32 v{dst+2*d+1}, 0xffff0000, v{src+d}")

def round_pairs(a, base, n, tmp):
    for p in range(0, n, 2):
        a(f"v_cvt_pk_bf16_f32 v{tmp}, v{base+p}, v{base+p+1}")
        a(f"v_lshlrev_b32 v{base+p}, 16, v{tmp}\nv_and_b32 v{base+p+1}, 0xffff0000, v{tmp}")

class Ops(Asm):
    def ops(self): return [l.strip() for l in self.lines]

C_H1, C_KV, C_CTX, C_P3, C_U, C_P6, C_H2 = 0, 16, 48, 112, 128, 152, 168
C_KV2 = 296
C_KV3 = 328
SYNC = "s[96:99]"
_poll_id = [0]
def poll(a, voff, target, vtmp):
    i = _poll_id[0]; _poll_id[0] += 1
    ld = lambda k: f"buffer_load_dword v{vtmp+k}, v{voff}, {SYNC}, 0 offen sc1"
    if not os.environ.get('POLL3'):
        a("s_mov_b32 s100, 0x8000")
        a.label(f"Lpoll{i}")
        a(ld(0)); a("s_waitcnt vmcnt(0)")
        a(f"v_cmp_gt_u32 vcc, {target}, v{vtmp}")
        a(f"s_sub_u32 s100, s100, 1\ns_cbranch_vccz Lpolld{i}")
        a(f"s_cmp_eq_u32 s100, 0\ns_cbranch_scc1 Lpolld{i}\ns_sleep 1\ns_branch Lpoll{i}")
        a.label(f"Lpolld{i}")
        return
    a("s_mov_b32 s100, 0x4000")
    a(ld(0)); a("s_sleep 4"); a(ld(1)); a("s_sleep 4"); a(ld(2))
    a.label(f"Lpoll{i}")
    for k in range(3):
        a("s_waitcnt vmcnt(2)")
        a(f"v_cmp_gt_u32 vcc, {target}, v{vtmp+k}")
        a(f"s_nop 0\ns_cbranch_vccz Lpolld{i}")
        a(ld(k))
    a(f"s_sub_u32 s100, s100, 1\ns_cmp_lg_u32 s100, 0\ns_cbranch_scc1 Lpoll{i}")
    a.label(f"Lpolld{i}")
def signal(a, soff, vtmp):
    a(f"v_mov_b32 v{vtmp}, 1\ns_mov_b64 exec, 1")
    a(f"buffer_atomic_add v{vtmp}, off, {SYNC}, s{soff} sc1")
    a("s_mov_b64 exec, -1")
```

```python
import sys, math, os
from gen_common import *
import k_attn as AT
from k_attn import (period, rare_path, build_ci, qk_group, pv_group, rd, mf, ADV, W4, KPOS, VPOS, BIG, QSCALE, THRESH, WQ_BYTES,
                    V_LANE16, V_RD, V_L, V_NEGM, V_Y, V_YD, V_T0, LU, T, CI, S, P, FR, Q, Q2, O)

OOB = "0xffffff00"
KORDER = [0, 1, 2, 3, 8, 9, 10, 11, 12, 13, 14, 15, 4, 5, 6, 7]
KREG = {k: (240 + 4*k if k < 4 else 128 + 4*(k - 8) if k >= 8 else 160 + 4*(k - 4)) for k in range(16)}
def kstore(k):
    return f"s_add_u32 s55, s57, {(k >> 2) * 65536}\nbuffer_store_dwordx4 {vr(KREG[k],4)}, v6, s[16:19], s55 offen offset:{(k & 3) * 1024}" + ("" if 'wb' in os.environ.get('XP', '').split(',') else " sc1")
LDS_TOTAL = 163840

def srd_off(a, srd, sptr, soff, add, size):
    a(f"s_add_u32 s{srd+2}, s{soff}, {add}\ns_add_u32 s{srd}, s{sptr}, s{srd+2}\ns_addc_u32 s{srd+1}, s{sptr+1}, 0\ns_and_b32 s{srd+1}, s{srd+1}, 0xffff")
    a(f"s_mov_b32 s{srd+2}, {size}\ns_mov_b32 s{srd+3}, 0x20000")

def phase_kv(a):
    A_BYTES = 32 * 1040; W_BYTES = 16 * 1088; SLOT = A_BYTES + 2 * W_BYTES
    GL = 2 * SLOT
    ML = GL + 2048
    XL = ML + 8192
    HAND = 131072
    ACC = 64; SET = [16, 40]
    a("s_load_dwordx8 s[28:35], s[0:1], 0\ns_load_dwordx2 s[36:37], s[0:1], 32\ns_load_dwordx4 s[40:43], s[0:1], 88\ns_load_dwordx4 s[44:47], s[0:1], 112")
    a("v_and_b32 v1, 63, v0\nv_lshrrev_b32 v2, 6, v0\ns_nop 1\nv_readfirstlane_b32 s3, v2")
    a("s_and_b32 s48, s2, 7\ns_lshr_b32 s49, s2, 3")
    a("s_and_b32 s55, s49, 3\ns_lshl_b32 s48, s48, 2\ns_add_u32 s48, s48, s55\ns_lshr_b32 s49, s49, 2")
    a("v_bfe_u32 v3, v1, 3, 2\nv_lshlrev_b32 v3, 13, v3\nv_lshrrev_b32 v4, 5, v1\nv_lshl_add_u32 v3, v4, 18, v3\nv_and_b32 v4, 7, v1\nv_lshl_add_u32 v3, v4, 4, v3")
    a("s_and_b32 s55, s3, 1\ns_lshl_b32 s55, s55, 12\ns_lshr_b32 s56, s3, 1\ns_lshl_b32 s56, s56, 19\ns_add_u32 s55, s55, s56")
    a("v_add_u32 v3, s55, v3")
    a("v_lshrrev_b32 v4, 4, v1\nv_lshlrev_b32 v4, 15, v4\nv_and_b32 v5, 15, v1\nv_lshl_add_u32 v4, v5, 4, v4")
    a("s_and_b32 s55, s3, 3\ns_lshl_b32 s55, s55, 17\nv_add_u32 v4, s55, v4")
    a("s_lshl_b32 s50, s49, 15\ns_lshl_b32 s51, s48, 8\ns_mul_i32 s52, s3, 4160")
    a(f"s_mul_i32 s53, s3, 4352\ns_add_u32 s53, s53, {A_BYTES}")
    a("s_and_b32 s61, s2, 3\ns_mul_i32 s55, s61, 144\nv_lshrrev_b32 v8, 3, v0\nv_add_u32 v8, s55, v8\nv_mul_u32_u24 v245, 6912, v8\nv_and_b32 v2, 7, v0")
    a("v_lshl_add_u32 v245, v2, 4, v245\ns_lshr_b32 s55, s2, 2\ns_lshl_b32 s55, s55, 7\nv_add_u32 v245, s55, v245\nv_lshlrev_b32 v8, 1, v8")
    a("s_lshl_b32 s60, s2, 3\ns_add_u32 s60, s60, s3\ns_mul_i32 s55, s60, 1152\nv_lshlrev_b32 v10, 4, v1\nv_add_u32 v10, s55, v10")
    a(f"v_cmp_gt_u32 vcc, 8, v1\nv_mov_b32 v15, {OOB}\nv_add_u32 v11, 1024, v10\nv_cndmask_b32 v11, v15, v11, vcc")
    a("s_waitcnt lgkmcnt(0)")
    a("s_mov_b32 s4, s46\ns_mov_b32 s5, s47")
    make_srd(a, 8, 30, SIZES['ckv'])
    a("s_cmp_lt_u32 s3, 4\ns_cselect_b32 s34, s34, s36\ns_cselect_b32 s35, s35, s37")
    make_srd(a, 12, 34, SIZES['wuk'])
    def dma_ops(slot):
        ops = []
        for jj in range(4):
            ops.append(f"s_add_u32 m0, s52, {slot*SLOT + 16*jj}\ns_nop 0\nbuffer_load_dwordx4 v3, s[8:11], s50 offen offset:{1024*jj} lds")
        for jj in range(4):
            ops.append(f"s_add_u32 m0, s53, {slot*SLOT + 1088*jj}\ns_add_u32 s55, s51, {8192*jj}\nbuffer_load_dwordx4 v4, s[12:15], s55 offen lds")
        return ops
    ADVD = f"s_add_u32 s50, s50, 128\ns_add_u32 s51, s51, {64*8192}"
    for st in range(2):
        for o in dma_ops(st): a(o)
        a(ADVD)
    a("s_lshl_b32 s63, s49, 15\ns_and_b32 s55, s48, 3\ns_lshl_b32 s55, s55, 10\ns_add_u32 s63, s63, s55")
    a("s_and_b32 s7, s49, 3\ns_lshl_b32 s7, s7, 13\ns_lshl_b32 s55, s48, 8\ns_add_u32 s7, s7, s55")
    a("s_bfe_u32 s55, s3, 0x10001\ns_lshr_b32 s56, s49, 2\ns_cmp_eq_u32 s55, s56\ns_cselect_b32 s7, s7, 0x7f000000")
    if 'nol2' in os.environ.get('XP', ''): a("s_mov_b32 s7, 0x7f000000\ns_mov_b32 s63, 0x7f000000")
    def l2pf(t):
        return [f"buffer_load_dwordx4 v[220:223], v3, s[8:11], s63 offen offset:{128*t}",
                f"s_add_u32 s56, s7, {t*64*8192}\nbuffer_load_dwordx4 v[220:223], v4, s[12:15], s56 offen"]
    l = Ops()
    make_srd(l, 16, 40, SIZES['c']); make_srd(l, 20, 42, SIZES['wmod']); make_srd(l, 24, 28, SIZES['x'])
    l("s_cmp_lt_u32 s2, 216\ns_cselect_b32 s22, s22, 0")
    l(f"s_mov_b32 s59, 0x7f000000\ns_cmp_lt_u32 s3, 2\ns_cselect_b32 s58, {128*6912}, s59\ns_cselect_b32 s59, 256, s59\ns_mov_b32 s55, {64*6912}")
    for i, (so, sc) in enumerate((('0', '0 offen'), ('s55', '0 offen offset:128'), ('s58', 's59 offen'))):
        l(f"buffer_load_dwordx4 {vr(192+4*i,4)}, v245, s[20:23], {so} offen")
        l(f"buffer_load_ushort v{204+i}, v8, s[16:19], {sc}")
    l("buffer_load_dwordx4 v[224:227], v10, s[24:27], 0 offen\nbuffer_load_dwordx4 v[228:231], v11, s[24:27], 0 offen")
    make_ws_srd(l, 96, 4, 'sync')
    l(f"v_lshlrev_b32 v2, 2, v1\ns_lshl_b32 s55, s2, 8\nv_add_u32 v2, s55, v2\nv_mov_b32 v243, 0")
    l.lines.append("ZSTORE")
    make_srd(l, 36, 44, 256); make_ws_srd(l, 40, 4, 'modp'); make_srd(l, 16, 32, SIZES['wq']); make_ws_srd(l, 24, 4, 'h1'); make_ws_srd(l, 20, 4, 'mod')
    def sloads(role):
        return [(f"s_cmp_lg_u32 s3, 0\ns_cbranch_scc1 Lkv_nz\nbuffer_store_dword v243, v2, {SYNC}, 0 offen sc1\nLkv_nz:" if role == 0 else "s_nop 0")
                if o == "ZSTORE" else o for o in l.ops()]
    a("v_and_b32 v5, 7, v1\nv_mul_u32_u24 v5, 1040, v5\nv_bfe_u32 v6, v1, 3, 2\nv_lshl_add_u32 v5, v6, 7, v5")
    a("v_lshrrev_b32 v6, 5, v1\nv_lshl_add_u32 v5, v6, 4, v5")
    a("s_and_b32 s55, s3, 1\ns_mul_i32 s55, s55, 16640\nv_add_u32 v5, s55, v5")
    a("v_bfe_u32 v6, v1, 2, 2\nv_mul_u32_u24 v6, 1088, v6\nv_lshrrev_b32 v7, 5, v1\nv_lshl_add_u32 v6, v7, 9, v6")
    a("v_bfe_u32 v7, v1, 4, 1\nv_lshl_add_u32 v6, v7, 5, v6\nv_and_b32 v7, 3, v1\nv_lshl_add_u32 v6, v7, 3, v6")
    a(f"s_lshr_b32 s55, s3, 2\ns_mul_i32 s55, s55, {W_BYTES}\ns_bfe_u32 s56, s3, 0x10001\ns_lshl_b32 s56, s56, 7")
    a(f"s_add_u32 s55, s55, s56\ns_add_u32 s55, s55, {A_BYTES}\nv_add_u32 v6, s55, v6")
    a(f"v_lshrrev_b32 v9, 3, v0\nv_lshlrev_b32 v13, 9, v9\nv_lshlrev_b32 v9, 5, v9\nv_add_u32 v9, {ML}, v9\nv_lshlrev_b32 v12, 4, v0\nv_cmp_gt_u32 vcc, 288, v0\ns_nop 1\nv_cndmask_b32 v12, v15, v12, vcc")
    a("s_lshr_b32 s55, s2, 2\ns_mul_i32 s55, s55, 36864\ns_and_b32 s56, s2, 3\ns_lshl_b32 s56, s56, 7\ns_add_u32 s62, s55, s56")
    a(f"v_and_b32 v14, 7, v0\nv_lshl_add_u32 v13, v14, 4, v13\ns_lshl_b32 s55, s3, 4\ns_add_u32 s55, s55, {XL}\nv_lshlrev_b32 v14, 7, v1\nv_add_u32 v14, s55, v14")
    a(f"s_lshl_b32 s55, s3, 8\ns_add_u32 s55, s55, {GL}\nv_lshlrev_b32 v7, 5, v1\nv_add_u32 v7, s55, v7")
    for i in range(0, 128, 2): a(f"v_mov_b64 {vr(ACC+i,2)}, 0")

    pf = ["s_mul_i32 s55, s60, 2304\nv_lshlrev_b32 v2, 4, v1"] + [f"buffer_load_dwordx4 v[220:223], v2, s[16:19], s55 offen offset:{1024*i}" for i in range(3)]
    g = Ops()
    for i in range(3):
        c = 204 + i
        g(f"v_lshlrev_b32 v{c}, 16, v{c}\nv_mul_f32 v216, 0xbfb8aa3b, v{c}\nv_exp_f32 v216, v216\ns_nop 0\nv_add_f32 v216, 1.0, v216\nv_rcp_f32 v216, v216\ns_nop 0\nv_mul_f32 v{c}, v{c}, v216")
        round_bf16(g, c)
        for d in range(4):
            w = 192 + 4*i + d
            op = "v_mul_f32" if i == 0 else "v_fmac_f32"
            g(f"v_lshlrev_b32 v216, 16, v{w}\nv_and_b32 v217, 0xffff0000, v{w}\n{op} v{208+2*d}, v{c}, v216\n{op} v{209+2*d}, v{c}, v217")
    g("s_nop 1")
    for k in range(8): g(f"v_add_f32_dpp v{208+k}, v{208+k}, v{208+k} row_ror:8 row_mask:0xf bank_mask:0xf")
    for sw in ("v_permlane16_swap_b32", "v_permlane32_swap_b32"):
        for k in range(8): g(f"v_mov_b32 v{192+k}, v{208+k}")
        g("s_nop 0")
        for k in range(8): g(f"{sw} v{208+k}, v{192+k}")
        for k in range(8): g(f"v_add_f32 v{208+k}, v{208+k}, v{192+k}")
    gemv = g.ops() + ["s_mov_b64 exec, 0xff\nds_write_b128 v7, v[208:211]\nds_write_b128 v7, v[212:215] offset:16\ns_mov_b64 exec, -1"]
    mload = [f"v_lshlrev_b32 v10, 4, v0\nv_add_u32 v10, {ML}, v10"] + [f"s_mov_b32 s55, {13824*r}\nbuffer_load_dwordx4 {vr(192+4*r,4)}, v12, s[40:43], s55 offen sc1" for r in range(4)]
    q = Ops()
    for k in range(4): q(f"v_add_f32 v{192+k}, v{192+k}, v{196+k}\nv_add_f32 v{200+k}, v{200+k}, v{204+k}")
    for k in range(4): q(f"v_add_f32 v{192+k}, v{192+k}, v{200+k}")
    round_pairs(q, 192, 4, 2)
    q("v_cmp_lt_u32 vcc, 143, v0\ns_nop 1\nv_cndmask_b32 v196, 0, 1.0, vcc")
    for k in range(4): q(f"v_add_f32 v{192+k}, v{192+k}, v196")
    round_pairs(q, 192, 4, 2)
    q("ds_write_b128 v10, v[192:195]")
    msum = q.ops()
    x = Ops()
    unpack8(x, 224, 232); unpack8(x, 228, 240)
    x("v_add_f32 v216, v232, v233")
    for i in range(234, 248): x(f"v_add_f32 v216, v216, v{i}")
    wave_allsum(x, 216, 217)
    x("v_mul_f32 v216, 0x3ae38e39, v216\nv_cmp_gt_u32 vcc, 8, v1\nv_mov_b32 v219, 0\ns_nop 0\nv_cndmask_b32 v218, 0, v216, vcc")
    for i in range(16): x(f"v_sub_f32 v217, v{232+i}, v{216 if i < 8 else 218}\nv_fmac_f32 v219, v217, v217")
    wave_allsum(x, 219, 217)
    x("v_mul_f32 v219, 0x3ae38e39, v219")
    round_bf16(x, 216); round_bf16(x, 219)
    x("v_add_f32 v219, 0x3727c5ac, v219"); round_bf16(x, 219)
    x("v_sqrt_f32 v219, v219\ns_nop 0"); round_bf16(x, 219)
    x("v_rcp_f32 v219, v219\ns_nop 0")
    for i in range(16): x(f"v_sub_f32 v{232+i}, v{232+i}, v216")
    round_pairs(x, 232, 16, 217)
    for i in range(16): x(f"v_mul_f32 v{232+i}, v{232+i}, v219")
    for p in range(8): x(f"v_cvt_pk_bf16_f32 v{248+p}, v{232+2*p}, v{233+2*p}")
    x("ds_write_b128 v14, v[248:251]\nds_write_b128 v14, v[252:255] offset:8192")
    xst = x.ops()
    def h1fin(u):
        h = Ops()
        h(f"ds_read_b128 v[224:227], v10 offset:{XL - ML + 8192*u}")
        for k, off in enumerate((0, 16, 2304, 2320)): h(f"ds_read_b128 {vr(192+4*k,4)}, v9 offset:{off + 2048*u}")
        h("s_waitcnt lgkmcnt(0)")
        unpack8(h, 224, 232)
        for i in range(8): h(f"v_mul_f32 v{232+i}, v{232+i}, v{200+i}")
        round_pairs(h, 232, 8, 2)
        for i in range(8): h(f"v_add_f32 v{232+i}, v{232+i}, v{192+i}")
        for p in range(4): h(f"v_cvt_pk_bf16_f32 v{228+4*u+p}, v{232+2*p}, v{233+2*p}") if u == 0 else h(f"v_cvt_pk_bf16_f32 v{240+p}, v{232+2*p}, v{233+2*p}")
        h(f"s_add_u32 s55, s62, {32768*u}\nbuffer_store_dwordx4 {vr(228 if u == 0 else 240,4)}, v13, s[24:27], s55 offen sc1")
        return h.ops()

    def reads(ks, s):
        b = SET[s]; r = []
        for nn in range(2):
            for e in range(2): r.append(f"ds_read_b64_tr_b16 {vr(b+16+4*nn+2*e,2)}, v6 offset:{ks*4352 + e*256 + nn*64}")
        for m in range(4): r.append(f"ds_read_b128 {vr(b+4*m,4)}, v5 offset:{(m>>1)*8320 + (m&1)*512 + ks*32}")
        return r
    def mfmas(s, role):
        b = SET[s]; r = []
        for m in range(4):
            for nn in range(2):
                acc = vr(ACC + 16*(2*m+nn), 16); c = vr(b+4*m, 4); w = vr(b+16+4*nn, 4)
                r.append(mf(acc, w, c, acc) if role == 0 else mf(acc, c, w, acc))
        return r
    stamp(a, 'kv_pro')
    a("s_waitcnt vmcnt(8)\ns_barrier")
    stamp(a, 'kv_b0')
    for o in reads(0, 0): a(o)
    a("s_cmp_lt_u32 s3, 4\ns_cbranch_scc0 Lkv_r1")
    for role in range(2):
        a.label(f"Lkv_r{role}")
        hx = len(xst) // 2
        for t in range(8):
            pl = ['s_cmp_lg_u32 s3, 0\ns_cbranch_scc1 Lkv_npl\nbuffer_load_dword v15, v11, s[36:39], 0 offen sc1\nLkv_npl:'] if role == 0 else []
            side = {0: l2pf(2) + l2pf(3) + sloads(role), 1: gemv, 2: xst[:hx], 3: xst[hx:], 4: ['s_nop 0'] * 10 + pl + pf,
                    5: mload + ['s_nop 0'] * 40 + ['s_waitcnt vmcnt(0)'] + msum, 6: h1fin(0)}.get(t, [])
            if 'noval' in os.environ.get('XP', '') and t in (1, 2, 3): side = [o for o in side if 'buffer' in o or 'ds_' in o]
            if 'novm' in os.environ.get('XP', '') and t == 4: side = [o if 'buffer' not in o else o.replace('s55 offen', 's100 offen') for o in side]; a('s_mov_b32 s100, 0x7f000000')
            g0 = 8 * (int(os.environ.get('DKS', '0')) + 1) if (role == 1 and t in (4, 5, 6)) else 0
            if 1 <= t <= 4: side = side + l2pf(t + 3)
            per = (len(side) + 23 - g0) // (24 - g0)
            if t == 1: a(f"s_waitcnt vmcnt({8 if role == 0 else 0})")
            if t == 2 and role == 0:
                a("s_cmp_lg_u32 s3, 0\ns_cbranch_scc1 Lkv_nofin")
                a(f"v_lshlrev_b32 v2, 2, v1\nv_add_u32 v15, {GL}, v2")
                for w in range(8): a(f"ds_read_b32 v{192+w}, v15 offset:{256*w}")
                a("s_mul_i32 s55, s61, 13824\ns_lshr_b32 s56, s2, 2\ns_lshl_b32 s56, s56, 8\ns_add_u32 s55, s55, s56\ns_cmp_lt_u32 s2, 216\ns_cselect_b32 s55, s55, 0x7f000000\ns_waitcnt lgkmcnt(0)")
                for w in range(1, 8): a(f"v_add_f32 v192, v192, v{192+w}")
                a("buffer_store_dword v192, v2, s[40:43], s55 offen sc1\nv_mov_b32 v2, 1\ns_lshl_b32 s55, s61, 6\nv_and_b32 v11, 3, v1\nv_lshlrev_b32 v11, 6, v11")
                a("s_waitcnt vmcnt(0)\ns_mov_b64 exec, 1\nbuffer_atomic_add v2, off, s[36:39], s55 sc1\ns_mov_b64 exec, -1")
                a.label("Lkv_nofin")
            if t in (5, 6) and role == 1:
                a(f"s_cmp_lg_u32 s3, 7\ns_cbranch_scc1 Lkv_nofm{t}")
                if t == 5:
                    a(f"s_lshl_b32 s55, s2, 6\nv_lshlrev_b32 v15, 2, v1\nv_add_u32 v15, s55, v15\nv_cmp_gt_u32 vcc, 16, v1\nv_mov_b32 v2, {OOB}\ns_cmp_lt_u32 s2, 216\ns_cselect_b64 vcc, vcc, 0\ns_nop 1\nv_cndmask_b32 v15, v2, v15, vcc")
                    for r in range(4): a(f"s_mov_b32 s55, {13824*r}\nbuffer_load_dword v{216+r}, v15, s[40:43], s55 offen sc1")
                else:
                    a("v_add_f32 v216, v216, v217\nv_add_f32 v218, v218, v219\nv_add_f32 v216, v216, v218")
                    round_bf16(a, 216)
                    a("buffer_store_dword v216, v15, s[20:23], 0 offen sc1")
                a.label(f"Lkv_nofm{t}")
            for ks in range(3):
                a("s_waitcnt lgkmcnt(0)")
                m = mfmas(ks & 1, role); r = reads(ks + 1, (ks + 1) & 1)
                dm = dma_ops((t - 1) & 1) if (role == 1 and ks == int(os.environ.get('DKS', '0')) and 1 <= t <= 6) else None
                for i in range(8):
                    a(m[i])
                    for o in r[2*i:2*i+2]: a(o)
                    if dm: a(dm[i])
                    k = (ks * 8 + i - g0) * per
                    if k >= 0:
                        for o in side[k:k+per]:
                            if o != 's_nop 0' or t not in (4, 5): a(o)
                if dm: a(ADVD)
            if t == 6 and role == 0:
                a("s_cmp_lg_u32 s3, 0\ns_cbranch_scc1 Lkv_noh2")
                for o in h1fin(1): a(o)
                a.label("Lkv_noh2")
            d = SLOT if t % 2 == 0 else -SLOT
            a(f"v_add_u32 v5, {d & 0xffffffff}, v5\nv_add_u32 v6, {d & 0xffffffff}, v6")
            a(f"s_waitcnt vmcnt({ {0: 12, 1: 2, 2: 2, 3: 2, 4: 5, 6: 1}.get(t, 0) }) lgkmcnt(0)")
            if t == 4 and role == 0:
                a("s_cmp_lg_u32 s3, 0\ns_cbranch_scc1 Lkv_mpd\ns_mov_b32 s100, 0x8000")
                a.label("Lkv_mp")
                a("v_cmp_gt_u32 vcc, 64, v15\ns_sub_u32 s100, s100, 1\ns_cbranch_vccz Lkv_mpd\ns_cmp_eq_u32 s100, 0\ns_cbranch_scc1 Lkv_mpd")
                a("buffer_load_dword v15, v11, s[36:39], 0 offen sc1\ns_waitcnt vmcnt(0)\ns_branch Lkv_mp")
                a.label("Lkv_mpd")
            stamp(a, f'kw{t}')
            a("s_barrier")
            stamp(a, f'kv{t}')
            if t == 7 and role == 1:
                a("s_cmp_lg_u32 s3, 7\ns_cbranch_scc1 Lkv_ns1\ns_lshr_b32 s55, s2, 4\ns_lshl_b32 s55, s55, 7")
                signal(a, 55, 2)
                a.label("Lkv_ns1")
            m = mfmas(1, role); r = reads(0, 0) if t < 7 else []; dm = dma_ops(t & 1)
            for i in range(8):
                a(m[i])
                for o in r[2*i:2*i+2]: a(o)
                if t < 6 and role == 0: a(dm[i])
            if t < 6 and role == 0: a(ADVD)
        stamp(a, 'kv_end')
        a("v_lshlrev_b32 v7, 4, v1")
        a("s_lshl_b32 s55, s48, 19\ns_lshl_b32 s56, s49, 13\ns_add_u32 s55, s55, s56")
        a("s_and_b32 s56, s3, 1\ns_lshl_b32 s56, s56, 18\ns_add_u32 s57, s55, s56")
        def pack(k, dst):
            src = ACC + 8*k
            for p in range(4): a(f"v_cvt_pk_bf16_f32 v{dst+p}, v{src+2*p}, v{src+2*p+1}")
        if role == 1:
            a(f"s_sub_u32 s6, s3, 4\ns_and_b32 s55, s3, 1\ns_lshl_b32 s55, s55, 14\ns_add_u32 s55, s55, {HAND}\nv_add_u32 v2, s55, v7")
            a("s_cmp_ge_u32 s3, 6\ns_cbranch_scc1 Lkv_sw")
            a("v_mov_b32 v12, v2")
            attn_loader_setup(a)
            for k in range(16):
                dst = 16 + 4 * (k % 8)
                pack(k, dst)
                a(f"ds_write_b128 v12, {vr(dst,4)} offset:{1024*k}")
            a("s_waitcnt lgkmcnt(0)\ns_barrier")
            a("s_branch Lat_load")
            a.label("Lkv_sw")
            for k in range(16): pack(k, ACC + 4*k)
            make_ws_srd(a, 20, 4, 'vf')
            if 'nov' in os.environ.get('XP', ''): a("s_mov_b32 s22, 0")
            a("s_cmp_lg_u32 s3, 7\ns_cbranch_scc1 Lkv_np1\ns_lshr_b32 s31, s2, 5\ns_sub_u32 s30, 15, s31")
            a(f"v_and_b32 v3, 1, v1\nv_mov_b32 v4, s30\nv_mov_b32 v5, s31\nv_cmp_eq_u32 vcc, 0, v3\ns_nop 1\nv_cndmask_b32 v3, v5, v4, vcc\nv_lshlrev_b32 v3, 7, v3")
            stamp(a, 'l_h1p0')
            poll(a, 3, 16, 244)
            stamp(a, 'l_h1p1')
            a.label("Lkv_np1")
            a("s_barrier")
            for k in range(16): a(f"ds_read_b128 {vr(128+4*k,4)}, v2 offset:{1024*k}")
            a("s_branch Lat_sw")
        else:
            for k in KORDER: pack(k, KREG[k])
            make_ws_srd(a, 16, 4, 'kf')
            if 'nok' in os.environ.get('XP', ''): a("s_mov_b32 s18, 0")
            a("s_lshr_b32 s56, s3, 1\ns_lshl_b32 s56, s56, 12\ns_add_u32 s57, s57, s56")
            a("v_mov_b32 v6, v7")
            a("s_branch Lat_comp")

def attn_ids(a):
    a("s_and_b32 s28, s2, 7\ns_lshr_b32 s29, s2, 3")
    a("s_and_b32 s30, s29, 3\ns_lshl_b32 s28, s28, 2\ns_add_u32 s28, s28, s30")
    if 'longfirst' in os.environ.get('XP', ''): a("s_lshr_b32 s31, s29, 2\ns_sub_u32 s30, 15, s31")
    else: a("s_lshr_b32 s30, s29, 2\ns_sub_u32 s31, 15, s30")
    a(f"v_and_b32 v8, 63, v0\nv_lshlrev_b32 v{V_LANE16}, 4, v8")

def phase_attn_compute(a):
    a.label("Lat_comp")
    attn_ids(a)
    a("v_bfe_u32 v2, v8, 2, 2\nv_mul_u32_u24 v2, 1088, v2\nv_lshrrev_b32 v9, 5, v8\nv_lshl_add_u32 v2, v9, 9, v2")
    a("v_bfe_u32 v9, v8, 4, 1\nv_lshl_add_u32 v2, v9, 5, v2\nv_and_b32 v9, 3, v8\nv_lshl_add_u32 v2, v9, 3, v2")
    a(f"s_lshl_b32 s32, s3, 11\ns_add_u32 s32, s32, {WQ_BYTES}\nv_add_u32 v3, s32, v{V_LANE16}")
    a("v_and_b32 v9, 31, v8\ns_lshl_b32 s32, s3, 5\nv_add_u32 v9, s32, v9\nv_lshrrev_b32 v10, 5, v8\nv_lshlrev_b32 v10, 2, v10")
    a(f"v_sub_u32 v9, v9, v10\nv_cvt_f32_i32 v9, v9\nv_add_f32 v9, 0.5, v9\nv_mul_f32 v{V_YD}, {f32(BIG)}, v9")
    QACC = lambda qt, t: (16 + 16*t) if qt == 0 else (O + 16*t)
    QSET = [FR, FR + 24]
    for i in range(0, 64, 2): a(f"v_mov_b64 {vr(16+i,2)}, 0\nv_mov_b64 {vr(O+i,2)}, 0")
    make_ws_srd(a, 20, 4, 'ctx')
    a(f"s_mov_b32 s46, {f32(QSCALE)}\ns_mov_b32 s47, {f32(QSCALE)}")
    def qreads(ks, st):
        b = QSET[st]; r = []
        for qt in range(2): r.append(f"ds_read_b128 {vr(b+16+4*qt,4)}, v3 offset:{qt*8192 + ks*1024}")
        for t in range(4):
            for e in range(2): r.append(f"ds_read_b64_tr_b16 {vr(b+4*t+2*e,2)}, v2 offset:{ks*4352 + e*256 + t*64}")
        return r
    def qmf(st):
        b = QSET[st]
        return [mf(vr(QACC(qt, t), 16), vr(b+4*t, 4), vr(b+16+4*qt, 4), vr(QACC(qt, t), 16)) for t in range(4) for qt in range(2)]
    def front(m, r):
        out = []
        for i, x in enumerate(m):
            out.append(x); out += r[2*i:2*i+2]
        return out
    a("s_mov_b32 s40, 0")
    stamp(a, 'q_pre')
    a("s_barrier\ns_barrier")
    stamp(a, 'q_b0')
    for o in qreads(0, 0): a(o)
    for c in range(18):
        a("s_waitcnt lgkmcnt(0)")
        ops = front(qmf(0), qreads(1, 1))
        if c < 16: ops.insert(20, kstore(c))
        for o in ops: a(o)
        d = AT.SLOT if c % 5 != 4 else -4 * AT.SLOT
        a(f"v_add_u32 v2, {d & 0xffffffff}, v2\nv_add_u32 v3, {d & 0xffffffff}, v3")
        if c == 9: a("s_waitcnt vmcnt(2)")
        if c == 17: a("s_waitcnt vmcnt(0)")
        a("s_waitcnt lgkmcnt(0)")
        for o in front(qmf(1), qreads(0, 0) if c < 17 else []): a(o)
        a("s_barrier")
        stamp(a, f'q{c}')
    a(f"s_mov_b32 s40, {3*AT.SLOT}")
    stamp(a, 'q_end')
    a("v_and_b32 v8, 63, v0\nv_bfe_u32 v9, v8, 4, 1\nv_lshlrev_b32 v9, 17, v9\nv_lshrrev_b32 v10, 5, v8\nv_lshl_add_u32 v9, v10, 8, v9")
    a(f"v_and_b32 v10, 15, v8\nv_lshl_add_u32 v{V_T0}, v10, 4, v9\nv_mov_b32 v{V_T0+1}, {f32(THRESH)}")
    a(ADV[1])
    a("s_nop 7")
    for qt in (1, 0):
        for t in range(4):
            for e in range(2):
                for p in range(4):
                    s_ = QACC(qt, t) + 8*e + 2*p
                    a(f"v_pk_mul_f32 {vr(s_,2)}, {vr(s_,2)}, s[46:47]")
                for p in range(4):
                    s_ = QACC(qt, t) + 8*e + 2*p
                    a(f"v_cvt_pk_bf16_f32 v{(Q, Q2)[qt] + 4*(2*t+e) + p}, v{s_}, v{s_+1}")
        if qt == 1:
            for i in range(8): a(rd(i, KPOS[1]))
    a("s_mov_b32 s42, s30\ns_mov_b32 s43, 0")
    a.label("Lat_qk0")
    a(f"s_lshl_b32 s32, s42, 7\nv_cvt_f32_u32 v{V_Y}, s32\nv_mul_f32 v{V_Y}, {f32(BIG)}, v{V_Y}\nv_add_f32 v{V_Y}, v{V_Y}, v{V_YD}")
    a(f"v_mov_b32 v{V_NEGM}, 0")
    for o in build_ci(): a(o)
    a(ADV[0]); a(ADV[1])
    z = [f"v_mov_b64 {vr(O+i,2)}, 0" for i in range(0, 64, 2)] + [f"v_mov_b64 {vr(P[1]+i,2)}, 0" for i in range(0, 8, 2)]
    z += [f"v_mov_b32 v{V_L}, 0", f"v_mov_b32 v{LU[1]}, 0"]
    m = qk_group(0)
    for i in range(8):
        if i == 0: a("s_waitcnt lgkmcnt(5)")
        if i % 4 == 3: a(W4)
        a(m[i]); a(rd(i, KPOS[0]))
        for o in z[5*i:5*i+5]: a(o)
    a("s_nop 7\ns_nop 1")
    s = S[0]; t = V_T0 + 2; d = V_T0 + 3
    a(f"v_max3_f32 v{d}, v{s}, v{s+1}, v{s+2}")
    for r in range(3, 15, 2): a(f"v_max3_f32 v{d}, v{d}, v{s+r}, v{s+r+1}")
    a(f"v_max_f32 v{d}, v{d}, v{s+15}")
    a(f"v_mov_b32 v{t}, v{d}\ns_nop 1\nv_permlane32_swap_b32 v{d}, v{t}\ns_nop 1")
    a(f"v_max_f32 v{d}, v{d}, v{t}")
    a(f"v_sub_f32 v{V_NEGM}, 0, v{d}")
    for r in range(16): a(f"v_sub_f32 v{s+r}, v{s+r}, v{d}")
    for o in build_ci(): a(o)
    sites = []
    a(f"v_mov_b32 v{V_Y}, v{V_YD}")
    a("s_cmp_eq_u32 s42, 0\ns_cbranch_scc0 Lat_plain_pre")
    a(f"v_add_f32 v{V_Y}, {f32(-64*BIG)}, v{V_Y}\ns_mov_b32 s41, 1\ns_branch Lat_rebuild")
    a.label("Lat_plain_pre")
    a("s_lshl_b32 s41, s42, 1\ns_sub_u32 s41, s41, 1")
    a.label("Lat_plain")
    a("s_barrier")
    sites.append(period(a, 0, 0, VPOS[0], KPOS[1]))
    sites.append(period(a, 1, 1, VPOS[1], KPOS[0], adv=True, tail_ops=["s_sub_u32 s41, s41, 1\ns_cmp_lg_u32 s41, 0"]))
    a("s_cbranch_scc1 Lat_plain")
    a("s_mov_b32 s41, 2")
    a.label("Lat_rebuild")
    a("s_barrier")
    sites.append(period(a, 0, 2, VPOS[0], KPOS[1], rebuild=True))
    sites.append(period(a, 1, 3, VPOS[1], KPOS[0], rebuild=True, adv=True, tail_ops=["s_sub_u32 s41, s41, 1\ns_cmp_lg_u32 s41, 0"]))
    a("s_cbranch_scc1 Lat_rebuild")
    a("s_barrier")
    sites.append(period(a, 0, 4, VPOS[0], VPOS[1]))
    sites.append(period(a, 1, 5, None, VPOS[0], qk=False, adv=True))
    a("s_barrier")
    m = pv_group(1)
    mv = [f"v_mov_b64 {vr(Q+i,2)}, {vr(Q2+i,2)}" for i in range(0, 32, 2)]
    for i in range(8):
        if i % 4 == 3: a(W4)
        a(m[i]); a(rd(i, KPOS[1]))
        for o in mv[2*i:2*i+2]: a(o)
    a("s_cmp_eq_u32 s43, 0\ns_cbranch_scc1 Lat_noE\ns_waitcnt lgkmcnt(0)\ns_barrier")
    a.label("Lat_noE")
    a(f"v_add_f32 v{V_L}, v{V_L}, v{LU[1]}")
    a(f"v_mov_b32 v{t}, v{V_L}\ns_nop 1\nv_permlane32_swap_b32 v{V_L}, v{t}\ns_nop 1\nv_add_f32 v{V_L}, v{V_L}, v{t}")
    a(f"v_rcp_f32 v{T}, v{V_L}\ns_nop 0\nv_mov_b32 v{T+1}, v{T}")
    a("s_lshl_b32 s32, s42, 20\ns_lshl_b32 s33, s3, 18\ns_add_u32 s32, s32, s33\ns_lshl_b32 s33, s28, 12\ns_add_u32 s32, s32, s33")
    a("s_nop 3")
    k = 0
    for tt in range(4):
        for e in range(2):
            src = O + 16*tt + 8*e; dst = S[0] + 4 * k; k += 1
            for p in range(4): a(f"v_pk_mul_f32 {vr(src+2*p,2)}, {vr(src+2*p,2)}, {vr(T,2)}")
            for p in range(4): a(f"v_cvt_pk_bf16_f32 v{dst+p}, v{src+2*p}, v{src+2*p+1}")
            a(f"buffer_store_dwordx4 {vr(dst,4)}, v{V_T0}, s[20:23], s32 offen offset:{tt*1024 + e*512} sc1")
    a("s_cmp_lg_u32 s43, 0\ns_cbranch_scc1 Lat_cend")
    a("s_mov_b32 s43, 1\ns_mov_b32 s42, s31\ns_branch Lat_qk0")
    for site, par in sites:
        a.label(f"Lat_rs{site}")
        a(f"s_call_b64 s[44:45], Lat_rare{par}\ns_branch Lat_rb{site}")
    rare_path(a, 0); rare_path(a, 1)
    a.label("Lat_cend")
    stamp(a, 'at_end')
    a(f"s_lshr_b32 s32, s28, 3\ns_add_u32 s32, s32, {C_CTX}\ns_lshl_b32 s33, s30, 2\ns_add_u32 s33, s33, s32\ns_lshl_b32 s33, s33, 7")
    a("s_lshl_b32 s34, s31, 2\ns_add_u32 s34, s34, s32\ns_lshl_b32 s34, s34, 7")

def wq_part(a):
    a("s_add_u32 s32, s40, s37")
    for jj in range(4): a(f"s_add_u32 m0, s32, {1088*jj}\ns_add_u32 s33, s34, {8192*jj}\nbuffer_load_dwordx4 v2, s[8:11], s33 offen lds")
    a(f"s_add_u32 s34, s34, {32*8192}")

def attn_loader_setup(a):
    SLOT = AT.SLOT
    make_srd(a, 8, 32, SIZES['wq'])
    a("s_load_dwordx2 s[56:57], s[0:1], 40\ns_load_dwordx2 s[58:59], s[0:1], 56\ns_load_dwordx2 s[60:61], s[0:1], 72")
    attn_ids(a)
    a("v_lshrrev_b32 v2, 4, v8\nv_lshlrev_b32 v2, 15, v2\nv_and_b32 v3, 15, v8\nv_lshl_add_u32 v2, v3, 4, v2")
    a("s_lshl_b32 s32, s6, 17\nv_add_u32 v2, s32, v2")
    a("s_lshl_b32 s34, s28, 8\ns_mul_i32 s37, s6, 4352")
    for i in range(4):
        a(f"s_mov_b32 s40, {i*SLOT}"); wq_part(a)
    make_ws_srd(a, 12, 4, 'h1')
    a("s_lshl_b32 s32, s28, 19")
    srd_off(a, 16, 4, 32, WS['kf'][0], 512*1024); srd_off(a, 20, 4, 32, WS['vf'][0], 512*1024)
    a("s_lshl_b32 s35, s30, 1\ns_add_u32 s35, s35, s6\ns_mul_i32 s35, s35, 73728")
    a("s_lshl_b32 s36, s31, 1\ns_add_u32 s36, s36, s6\ns_mul_i32 s36, s36, 73728")
    a(f"s_lshl_b32 s38, s6, 12\ns_add_u32 s38, s38, {WQ_BYTES}\ns_lshl_b32 s39, s6, 13\ns_mov_b32 s40, 0")
    a("s_sub_u32 s44, s39, 8192\ns_sub_u32 s45, s39, 24576")
    a("s_mov_b32 s46, s44\ns_mov_b32 s47, s45\ns_mov_b32 s48, 0\ns_lshl_b32 s49, s30, 1\ns_add_u32 s49, s49, 3")

def phase_attn_loader(a):
    a.label("Lat_load")
    def h_part():
        a("s_add_u32 s32, s40, s38")
        for qt in range(2):
            for b in range(2):
                a(f"s_add_u32 m0, s32, {qt*8192 + b*2048}\ns_add_u32 s33, s{35+qt}, {b*36864}")
                a(f"buffer_load_dwordx4 v{V_LANE16}, s[12:15], s33 offen sc1 lds\nbuffer_load_dwordx4 v{V_LANE16}, s[12:15], s33 offen offset:1024 sc1 lds")
        a("s_add_u32 s35, s35, 2048\ns_add_u32 s36, s36, 2048")
        a(ADV[0])
    for i in range(4): h_part()
    for w in (16, 20):
        a(f"s_waitcnt vmcnt({w})\ns_barrier")
        wq_part(a); h_part()
    a("s_mov_b32 s41, 12")
    a.label("Lat_lq")
    a("s_waitcnt vmcnt(24)\ns_barrier")
    wq_part(a); h_part()
    a("s_sub_u32 s41, s41, 1\ns_cmp_lg_u32 s41, 0\ns_cbranch_scc1 Lat_lq")
    a("s_waitcnt vmcnt(24)\ns_barrier")
    def kvload():
        for (srd, so, lo) in ((16, 46, 0), (20, 47, 16384)):
            a(f"s_add_u32 s32, s40, s39\ns_add_u32 m0, s32, {lo}\ns_add_u32 s33, s{so}, 4096")
            for j in range(4): a(f"buffer_load_dwordx4 v{V_LANE16}, {sr(srd,4)}, s{so} offen offset:{1024*j} sc1 lds")
            a(f"s_add_u32 m0, s32, {lo + 4096}\ns_nop 0")
            for j in range(4): a(f"buffer_load_dwordx4 v{V_LANE16}, {sr(srd,4)}, s33 offen offset:{1024*j} sc1 lds")
        a("s_add_u32 s46, s46, 16384\ns_add_u32 s47, s47, 16384\ns_add_u32 s48, s48, 1")
        a("s_cmp_eq_u32 s48, s49\ns_cselect_b32 s46, s44, s46")
        a("s_add_u32 s32, s49, 1\ns_add_u32 s33, s45, 16384\ns_cmp_eq_u32 s48, s32\ns_cselect_b32 s47, s33, s47")
        a(ADV[0])
    kvload()
    a("s_waitcnt vmcnt(28)\ns_barrier")
    kvload()
    a("s_waitcnt lgkmcnt(0)\ns_lshl_b32 s52, s2, 1\ns_add_u32 s52, s52, s6\ns_mul_i32 s50, s52, 9216\ns_mul_i32 s52, s52, 36864\ns_mov_b32 s41, 0")
    make_srd(a, 24, 56, 0 if 'nopf' in os.environ.get('XP', '') else SIZES['wo'])
    a.label("Lat_lpf")
    a("s_waitcnt vmcnt(32)\ns_barrier")
    kvload()
    for g in range(3):
        for j in range(3): a(f"buffer_load_dwordx4 v[8:11], v{V_LANE16}, s[24:27], s50 offen offset:{1024*j}")
        a("s_add_u32 s50, s50, 3072")
    for r in range(2):
        a("s_waitcnt vmcnt(41)\ns_barrier")
        kvload()
    a("s_add_u32 s41, s41, 1")
    for (n, ptr) in ((1, 58), (5, 60)):
        a(f"s_and_b32 s33, s{ptr+1}, 0xffff\ns_cmp_eq_u32 s41, {n}\ns_cselect_b32 s24, s{ptr}, s24\ns_cselect_b32 s25, s33, s25\ns_cselect_b32 s50, s52, s50")
    if 'nopf' not in os.environ.get('XP', ''): a(f"s_mov_b32 s26, {SIZES['w1']}")
    a("s_cmp_lt_u32 s41, 9\ns_cbranch_scc1 Lat_lpf")
    a("s_mov_b32 s41, 8")
    a.label("Lat_lkv")
    a("s_waitcnt vmcnt(32)\ns_barrier")
    kvload()
    a("s_sub_u32 s41, s41, 1\ns_cmp_lg_u32 s41, 0\ns_cbranch_scc1 Lat_lkv")
    a("s_waitcnt vmcnt(32)\ns_barrier\ns_waitcnt vmcnt(16)\ns_barrier")
    a("s_waitcnt vmcnt(0) lgkmcnt(0)\ns_barrier")
    a("s_branch Lat_ldone")

    a.label("Lat_sw")
    a("s_mov_b32 s62, s57")
    a("s_load_dwordx2 s[56:57], s[0:1], 40\ns_load_dwordx2 s[58:59], s[0:1], 56\ns_load_dwordx2 s[60:61], s[0:1], 72")
    def vstore(n):
        k = n & 15; m_, nn, e = k >> 2, (k >> 1) & 1, k & 1
        reg = 64 + 4*k if n < 16 else 128 + 4*k
        a(f"s_add_u32 s55, s62, {m_*65536 + e*4096 + (2048 if n < 16 else 0)}\nbuffer_store_dwordx4 {vr(reg,4)}, v7, s[20:23], s55 offen offset:{nn*1024}" + ("" if 'wb' in os.environ.get('XP', '').split(',') else " sc1"))
    order = [n for m_ in range(4) for n in list(range(4*m_, 4*m_ + 4)) + list(range(16 + 4*m_, 16 + 4*m_ + 4))]
    a(f"s_add_u32 s32, s48, {C_KV}\ns_lshl_b32 s32, s32, 7\nv_mov_b32 v3, s32\ns_add_u32 s33, s32, {(C_KV2 - C_KV) * 128}\nv_mov_b32 v5, s33")
    a("s_waitcnt lgkmcnt(0)\ns_barrier")
    a("s_cmp_eq_u32 s3, 7\ns_cbranch_scc1 Lat_w7")
    for c in range(30):
        if c < 16 and c != 13: vstore(order[2*c]); vstore(order[2*c + 1])
        if c == 9: a("s_waitcnt vmcnt(4)")
        if c == 17: a("s_waitcnt vmcnt(0)")
        if c in (10, 18): signal(a, 32 if c == 10 else 33, 4)
        if c == 26:
            a("v_and_b32 v6, 15, v1\nv_lshlrev_b32 v6, 7, v6")
            poll(a, 6, 16, 244)
        if c in (13, 21, 29):
            if c == 29: a(f"v_add_u32 v5, {(C_KV3 - C_KV2) * 128}, v5")
            stamp(a, 'l_kvp0' if c == 13 else 'l_kvq0')
            poll(a, 3 if c == 13 else 5, 8, 244)
            stamp(a, 'l_kvp1' if c == 13 else 'l_kvq1')
            if c == 13: vstore(order[2*c]); vstore(order[2*c + 1])
        a("s_barrier")
    a("s_branch Lat_w67")
    a.label("Lat_w7")
    for c in range(30):
        if 18 <= c < 26:
            for q in range(4): vstore(order[4*(c - 18) + q])
        if c == 27:
            a(f"s_waitcnt vmcnt(0)\ns_add_u32 s33, s32, {(C_KV3 - C_KV) * 128}")
            signal(a, 33, 4)
        a("s_barrier")
    a.label("Lat_w67")
    a(f"s_mov_b32 s41, {51 - 30}")
    a.label("Lat_pfd")
    a("s_barrier\ns_sub_u32 s41, s41, 1\ns_cmp_lg_u32 s41, 0\ns_cbranch_scc1 Lat_pfd")
    if 'wpf' in os.environ.get('XP', ''):
        make_srd(a, 24, 56, SIZES['wo'])
        a(f"s_bfe_u32 s50, s2, 0x20001\ns_mul_i32 s50, s50, {1024*1152}\ns_lshr_b32 s32, s2, 3\ns_lshl_b32 s32, s32, 1\ns_and_b32 s33, s3, 1\ns_add_u32 s32, s32, s33")
        a("s_mul_i32 s32, s32, 18432\ns_add_u32 s50, s50, s32")
        for g in range(6):
            for j in range(3): a(f"buffer_load_dwordx4 v[8:11], v7, s[24:27], s50 offen offset:{1024*j}")
            a("s_add_u32 s50, s50, 3072")
    a("s_barrier\ns_barrier")
    a("s_waitcnt vmcnt(0)")
    a.label("Lat_ldone")

def adv_slot(slot, nslot):
    return f"s_add_u32 s40, s40, {slot}\ns_cmp_eq_u32 s40, {slot*nslot}\ns_cselect_b32 s40, 0, s40"

G16 = {'o': dict(F=16384, W=20480, NST=16, nF=4, nW=5), 'y': dict(F=20480, W=16896, NST=18, nF=5, nW=4)}

def g16_ids(a):
    a("s_bfe_u32 s28, s2, 0x20001")
    a("s_and_b32 s29, s2, 1\ns_lshl_b32 s29, s29, 3\ns_lshr_b32 s30, s2, 5\ns_add_u32 s29, s29, s30")
    a("s_bfe_u32 s30, s2, 0x20003")
    a("v_and_b32 v8, 63, v0\nv_lshlrev_b32 v1, 4, v8")

def g16_compute_setup(a, kind):
    p = G16[kind]
    g16_ids(a)
    a("v_bfe_u32 v2, v8, 4, 1\nv_lshlrev_b32 v2, 2, v2\nv_bfe_u32 v9, v8, 2, 2\nv_add_u32 v2, v2, v9")
    a("v_lshrrev_b32 v9, 5, v8\nv_and_b32 v10, 3, v8")
    if kind == 'o':
        a("v_lshl_add_u32 v2, v9, 4, v2\nv_mul_u32_u24 v2, 288, v2\nv_lshl_add_u32 v2, v10, 3, v2")
        a(f"v_add_u32 v4, {p['F']}, v2\ns_lshl_b32 s35, s3, 12\nv_add_u32 v5, s35, v1")
    else:
        a("v_mul_u32_u24 v2, 1056, v2\nv_lshl_add_u32 v2, v9, 9, v2\nv_lshl_add_u32 v2, v10, 3, v2")
        a(f"s_lshl_b32 s35, s3, 6\ns_add_u32 s35, s35, {p['F']}\nv_add_u32 v4, s35, v2\nv_mov_b32 v5, v1")
    a("v_mov_b32 v2, v4\nv_mov_b32 v3, v5")
    for i in range(0, 72, 2): a(f"v_mov_b64 {vr(16+i,2)}, 0")
    make_ws_srd(a, 20, 4, 'p3' if kind == 'o' else 'p6')
    a("v_bfe_u32 v6, v8, 4, 1\nv_lshlrev_b32 v6, 1, v6\nv_lshrrev_b32 v9, 5, v8\nv_add_u32 v6, v6, v9\nv_mul_u32_u24 v6, 9216, v6\nv_and_b32 v9, 15, v8\nv_lshl_add_u32 v6, v9, 4, v6")

def g16_compute(a, kind):
    p = G16[kind]; pre = 'Lg' + kind; SLOT = p['F'] + p['W']
    ACC = 16; SET = [96, 144]
    def reads(ks, st):
        b = SET[st]; r = []
        if kind == 'o':
            for t in range(2): r.append(f"ds_read_b128 {vr(b+4*t,4)}, v3 offset:{t*2048 + ks*1024}")
            for c in range(9):
                for e in range(2): r.append(f"ds_read_b64_tr_b16 {vr(b+8+4*c+2*e,2)}, v2 offset:{(32*ks + 8*e)*288 + c*32}")
        else:
            for t in range(2):
                for e in range(2): r.append(f"ds_read_b64_tr_b16 {vr(b+4*t+2*e,2)}, v2 offset:{8*ks*1056 + e*256 + t*32}")
            for c in range(9): r.append(f"ds_read_b128 {vr(b+8+4*c,4)}, v3 offset:{c*2048 + ks*1024}")
        return r
    def mfs(st):
        b = SET[st]
        return [f"v_mfma_f32_16x16x32_bf16 {vr(ACC+4*(9*t+c),4)}, {vr(b+4*t,4)}, {vr(b+8+4*c,4)}, {vr(ACC+4*(9*t+c),4)}"
                for c in range(9) for t in range(2)]
    def kstep(m, r, extra):
        n = len(r); NL = 6 if kind == 'o' else 3
        take = [(n * (i + 1)) // 16 - (n * i) // 16 if i < 16 else 0 for i in range(18)]
        k = 0
        a(f"s_waitcnt lgkmcnt({NL})")
        for i, x in enumerate(m):
            if i == 12: a(f"s_waitcnt lgkmcnt({min(15, k)})")
            a(x)
            for o in r[k:k+take[i]]: a(o)
            k += take[i]
            for o in extra.get(i, []): a(o)
    a(f"s_mov_b32 s40, 0\ns_mov_b32 s41, {p['NST']}")
    if kind == 'y': a("s_barrier")
    a("s_barrier")
    stamp(a, kind + '_b0')
    for o in reads(0, 0): a(o)
    a(f"s_branch {pre}_cin")
    a.label(f"{pre}_cloop")
    a("s_barrier")
    a.label(f"{pre}_cin")
    kstep(mfs(0), reads(1, 1), {14: [adv_slot(SLOT, 4)], 16: ["v_add_u32 v2, s40, v4"], 17: ["v_add_u32 v3, s40, v5"]})
    kstep(mfs(1), reads(0, 0), {16: ["s_sub_u32 s41, s41, 1"], 17: ["s_cmp_lg_u32 s41, 0"]})
    a(f"s_cbranch_scc1 {pre}_cloop")
    a.label(f"{pre}_cend")
    stamp(a, kind + '_end')
    a("s_lshl_b32 s32, s28, 8\ns_lshl_b32 s33, s29, 4\ns_add_u32 s32, s32, s33\ns_lshl_b32 s33, s3, 2\ns_add_u32 s32, s32, s33")
    a("s_mul_i32 s32, s32, 9216\ns_mul_i32 s33, s30, 2304\ns_add_u32 s32, s32, s33")
    a("s_waitcnt lgkmcnt(0)")
    for c in range(9):
        A_ = ACC + 4*c; B_ = ACC + 4*(9 + c); dst = 96 + 4*c
        a(f"v_cvt_pk_bf16_f32 v{dst}, v{A_}, v{A_+1}\nv_cvt_pk_bf16_f32 v{dst+1}, v{A_+2}, v{A_+3}")
        a(f"v_cvt_pk_bf16_f32 v{dst+2}, v{B_}, v{B_+1}\nv_cvt_pk_bf16_f32 v{dst+3}, v{B_+2}, v{B_+3}")
    for c in range(9):
        dst = 96 + 4*c
        a(f"v_permlane16_swap_b32 v{dst}, v{dst+2}\nv_permlane16_swap_b32 v{dst+1}, v{dst+3}")
        a(f"buffer_store_dwordx4 {vr(dst,4)}, v6, s[20:23], s32 offen offset:{256*c} sc1")

def g16_loader_setup(a, kind):
    p = G16[kind]
    g16_ids(a)
    if kind == 'o':
        a("s_mul_i32 s32, s6, 320\ns_mov_b32 s33, 0xe38e38f")
        for jj in range(5):
            a(f"v_add_u32 v9, s32, v8\nv_add_u32 v9, {64*jj}, v9\nv_mul_hi_u32 v10, v9, s33")
            a(f"v_mul_u32_u24 v11, 18, v10\nv_sub_u32 v11, v9, v11\nv_mul_u32_u24 v10, 1152, v10\nv_lshl_add_u32 v{2+jj}, v11, 4, v10")
            a(f"v_cmp_gt_u32 vcc, 1152, v9\nv_mov_b32 v10, {OOB}\ns_nop 1\nv_cndmask_b32 v{2+jj}, v10, v{2+jj}, vcc")
        make_srd(a, 8, 56, SIZES['wo']); make_ws_srd(a, 12, 4, 'ctx')
        a(f"s_mul_i32 s34, s28, {1024*1152}\ns_mul_i32 s32, s30, 288\ns_add_u32 s34, s34, s32")
        a("s_lshl_b32 s35, s29, 3\ns_lshl_b32 s32, s6, 1\ns_add_u32 s35, s35, s32\ns_lshl_b32 s35, s35, 17\ns_lshl_b32 s32, s28, 15\ns_add_u32 s35, s35, s32")
        a(f"s_mul_i32 s37, s6, 5120\ns_add_u32 s37, s37, {p['F']}\ns_lshl_b32 s38, s6, 12")
        a(f"s_lshl_b32 s32, s29, 2\ns_add_u32 s32, s32, s28\ns_add_u32 s32, s32, {C_CTX}\ns_lshl_b32 s32, s32, 7\nv_mov_b32 v7, s32")
    else:
        a("v_lshrrev_b32 v2, 4, v8\nv_lshlrev_b32 v2, 15, v2\nv_and_b32 v9, 15, v8\nv_lshl_add_u32 v2, v9, 4, v2")
        a("s_and_b32 s32, s6, 1\ns_lshl_b32 s32, s32, 14\ns_lshr_b32 s33, s6, 1\ns_lshl_b32 s33, s33, 17\ns_add_u32 s32, s32, s33\nv_add_u32 v2, s32, v2")
        make_srd(a, 8, 60, SIZES['w2']); make_ws_srd(a, 12, 4, 'u')
        a(f"s_mul_i32 s34, s28, {1152*4096}\ns_lshl_b32 s32, s29, 8\ns_add_u32 s34, s34, s32")
        a(f"s_mul_i32 s35, s30, {9*147456}\ns_mul_i32 s32, s28, {36*1024}\ns_add_u32 s35, s35, s32")
        for jj in range(5):
            a(f"s_mul_i32 s32, s6, 5\ns_add_u32 s32, s32, {jj}\ns_lshr_b32 s33, s32, 1\ns_mul_i32 s33, s33, 147456")
            a(f"s_and_b32 s36, s32, 1\ns_lshl_b32 s36, s36, 10\ns_add_u32 s33, s33, s36\ns_add_u32 s33, s33, s35")
            a(f"s_cmp_lt_u32 s32, 18\ns_cselect_b32 s{46+jj}, s33, 0x7f000000")
        a(f"s_mul_i32 s37, s6, 4224\ns_add_u32 s37, s37, {p['F']}\ns_mul_i32 s38, s6, 5120")
        a(f"s_mul_i32 s32, s28, 6\ns_mul_i32 s33, s30, 3\ns_lshr_b32 s33, s33, 1\ns_add_u32 s32, s32, s33\ns_add_u32 s32, s32, {C_U}")
        a("v_and_b32 v7, 1, v8\nv_add_u32 v7, s32, v7\nv_lshlrev_b32 v7, 7, v7")

def g16_w(a, kind):
    if kind == 'o':
        a("s_add_u32 s32, s40, s37")
        for jj in range(5): a(f"s_add_u32 m0, s32, {1024*jj}\ns_nop 0\nbuffer_load_dwordx4 v{2+jj}, s[8:11], s34 offen lds")
        a(f"s_add_u32 s34, s34, {64*1152}")
    else:
        a("s_add_u32 s32, s40, s37")
        for jj in range(4): a(f"s_add_u32 m0, s32, {1056*jj}\ns_add_u32 s33, s34, {4096*jj}\nbuffer_load_dwordx4 v2, s[8:11], s33 offen lds")
        a(f"s_add_u32 s34, s34, {64*4096}")
def g16_f(a, kind):
    if kind == 'o':
        a("s_add_u32 m0, s40, s38\ns_add_u32 s33, s35, 0x20000")
        a("buffer_load_dwordx4 v1, s[12:15], s35 offen sc1 lds\nbuffer_load_dwordx4 v1, s[12:15], s35 offen offset:1024 sc1 lds")
        a("s_add_u32 s32, s40, s38\ns_add_u32 m0, s32, 2048\ns_nop 0")
        a("buffer_load_dwordx4 v1, s[12:15], s33 offen sc1 lds\nbuffer_load_dwordx4 v1, s[12:15], s33 offen offset:1024 sc1 lds")
        a("s_add_u32 s35, s35, 2048")
    else:
        a("s_add_u32 s32, s40, s38")
        for jj in range(5):
            a(f"s_add_u32 m0, s32, {1024*jj}\ns_nop 0\nbuffer_load_dwordx4 v1, s[12:15], s{46+jj} offen sc1 lds\ns_add_u32 s{46+jj}, s{46+jj}, 2048")

def g16_loader_wpro(a, kind):
    p = G16[kind]; SLOT = p['F'] + p['W']
    for i in range(3):
        a(f"s_mov_b32 s40, {i*SLOT}"); g16_w(a, kind)

def g2_wpf(a):
    if 'wpf' not in os.environ.get('XP', ''): return
    a(f"s_mul_i32 s32, s30, {64*4096}\ns_add_u32 s32, s32, s34")
    for i in range(4):
        a(f"s_add_u32 s36, s30, {3 + 4*i}\ns_cmp_lt_u32 s36, 18\ns_cselect_b32 s36, s32, 0x7f000000")
        for jj in range(4): a(f"s_add_u32 s33, s36, {(4*i*64 + jj)*4096}\nbuffer_load_dwordx4 v[12:15], v2, s[8:11], s33 offen")

def g16_loader_main(a, kind):
    p = G16[kind]; pre = 'Lg' + kind; SLOT = p['F'] + p['W']
    if 'gnodma' in os.environ.get('XP', ''): a("s_mov_b32 s10, 0\ns_mov_b32 s14, 0")
    stamp(a, 'l_' + kind + 'p0')
    if kind == 'y': a(f"s_cmp_lg_u32 s6, 0\ns_cbranch_scc1 {pre}_np")
    poll(a, 7, 32 if kind == 'o' else 9, 244)
    if kind == 'y':
        a.label(f"{pre}_np"); a("s_barrier")
    stamp(a, 'l_' + kind + 'p1')
    for i in range(3):
        a(f"s_mov_b32 s40, {i*SLOT}"); g16_f(a, kind)
    a(f"s_mov_b32 s40, {3*SLOT}\ns_mov_b32 s41, {p['NST'] - 3}")
    a(f"s_waitcnt vmcnt({p['nF']})\ns_branch {pre}_lb")
    a.label(f"{pre}_lloop")
    a("s_waitcnt vmcnt(9)")
    a.label(f"{pre}_lb")
    a("s_barrier")
    g16_f(a, kind); g16_w(a, kind)
    a(adv_slot(SLOT, 4))
    a(f"s_sub_u32 s41, s41, 1\ns_cmp_lg_u32 s41, 0\ns_cbranch_scc1 {pre}_lloop")
    a("s_waitcnt vmcnt(9)\ns_barrier\ns_waitcnt vmcnt(0)\ns_barrier\ns_barrier")

def tok_ids(a):
    a("s_bfe_u32 s32, s2, 0x20001\ns_lshl_b32 s32, s32, 2\ns_bfe_u32 s33, s2, 0x20003\ns_add_u32 s32, s32, s33")
    a("s_and_b32 s43, s2, 1\ns_lshl_b32 s43, s43, 3\ns_lshr_b32 s33, s2, 5\ns_add_u32 s43, s43, s33")
    a("s_lshl_b32 s42, s43, 4\ns_add_u32 s42, s42, s32\ns_mul_i32 s44, s42, 9216")
    a(f"v_mov_b32 v232, v0\nv_add_u32 v233, 512, v0\nv_cmp_gt_u32 vcc, 64, v0\nv_mov_b32 v234, 0x0ffffff0\ns_nop 1\nv_cndmask_b32 v233, v234, v233, vcc")
    a("v_lshlrev_b32 v236, 4, v232\nv_lshlrev_b32 v237, 4, v233\nv_mov_b32 v240, 0x3f80\nv_mov_b32 v241, 0x3f800000")

def partial_loads(a, srd):
    a("s_mov_b32 s32, s44")
    for s in range(4):
        for u in range(2): a(f"buffer_load_dwordx4 {vr(96+16*u+4*s,4)}, v{236+u}, {sr(srd,4)}, s32 offen sc1")
        if s < 3: a(f"s_add_u32 s32, s32, {256*9216}")

def partial_sum(a, u, dst):
    b = 96 + 16*u
    unpack8(a, b, dst)
    for s in range(1, 4):
        for d in range(4):
            a(f"v_dot2c_f32_bf16 v{dst+2*d}, v{b+4*s+d}, v240\nv_dot2c_f32_bf16 v{dst+2*d+1}, v{b+4*s+d}, v241")
    a("s_nop 2")

def ln_row(a, x, n, t0):
    m, v, t = t0, t0 + 1, t0 + 2
    a(f"v_add_f32 v{m}, v{x}, v{x+1}")
    for i in range(2, n): a(f"v_add_f32 v{m}, v{m}, v{x+i}")
    wave_allsum(a, m, t)
    a(f"v_mul_f32 v{m}, 0x3ae38e39, v{m}\nv_mov_b32 v{v}, 0")
    for i in range(n): a(f"v_sub_f32 v{t}, v{x+i}, v{m}\nv_fmac_f32 v{v}, v{t}, v{t}")
    wave_allsum(a, v, t)
    a(f"v_mul_f32 v{v}, 0x3ae38e39, v{v}")
    round_bf16(a, m); round_bf16(a, v)
    a(f"v_add_f32 v{v}, 0x3727c5ac, v{v}"); round_bf16(a, v)
    a(f"v_sqrt_f32 v{v}, v{v}\ns_nop 0"); round_bf16(a, v)
    a(f"v_rcp_f32 v{v}, v{v}")
    for i in range(n): a(f"v_sub_f32 v{x+i}, v{x+i}, v{m}")
    for i in range(n): a(f"v_mul_f32 v{x+i}, v{x+i}, v{v}")

LN_LDS = 4 * 29696

def ln2_pre(a):
    a("s_load_dwordx2 s[46:47], s[0:1], 0")
    tok_ids(a)
    make_ws_srd(a, 48, 4, 'mod')
    a("v_lshlrev_b32 v238, 2, v232\nv_lshlrev_b32 v239, 2, v233\nv_and_b32 v235, 63, v0\nv_lshlrev_b32 v235, 2, v235")
    a(f"s_mov_b32 s32, {2*2304}\nbuffer_load_dword v208, v238, s[48:51], s32 offen sc1\nbuffer_load_dword v209, v239, s[48:51], s32 offen sc1")
    a(f"s_mov_b32 s32, {3*2304}\ns_mov_b32 s33, {4*2304}")
    for i in range(9):
        a(f"buffer_load_dword v{210+i}, v235, s[48:51], s32 offen offset:{256*i} sc1\nbuffer_load_dword v{220+i}, v235, s[48:51], s33 offen offset:{256*i} sc1")
    a("v_lshlrev_b32 v230, 1, v232\nv_lshlrev_b32 v231, 1, v233")
    a("s_waitcnt lgkmcnt(0)")
    make_srd(a, 48, 46, SIZES['x'])
    a("s_mov_b32 s32, s44")
    for t in range(8):
        for u in range(2): a(f"buffer_load_short_d16_hi v{192+8*u+t}, v{230+u}, s[48:51], s32 offen" + (f" offset:{1152*(t%3)}" if t % 3 else ""))
        if t % 3 == 2: a("s_add_u32 s32, s32, 3456")
    a(f"v_add_u32 v238, {LN_LDS}, v238\ns_mul_i32 s32, s3, 2304\ns_add_u32 s32, s32, {LN_LDS}\nv_add_u32 v239, s32, v235")

def ln2_mid(a):
    for i in range(16): a(f"v_and_b32 v{192+i}, 0xffff0000, v{192+i}")
    for i in range(9):
        a(f"v_add_f32 v{220+i}, 1.0, v{220+i}"); round_bf16(a, 220 + i)
    for u in range(2):
        a(f"v_lshrrev_b32 v{230+u}, 5, v{232+u}\nv_lshlrev_b32 v{230+u}, 17, v{230+u}\nv_and_b32 v234, 31, v{232+u}\nv_lshl_add_u32 v{230+u}, v234, 4, v{230+u}")

def ln2_body(a):
    make_ws_srd(a, 48, 4, 'p3')
    partial_loads(a, 48)
    make_ws_srd(a, 48, 4, 'x1'); make_ws_srd(a, 52, 4, 'h2')
    a("s_waitcnt vmcnt(0)")
    stamp(a, 'ln_ld')
    for u in range(2):
        if u == 1: a("s_cmp_lg_u32 s3, 0\ns_cbranch_scc1 Lln_u1")
        partial_sum(a, u, 128)
        for t in range(8): a(f"v_fmac_f32 v{192+8*u+t}, v{208+u}, v{128+t}")
        for p in range(4): a(f"v_cvt_pk_bf16_f32 v{136+4*u+p}, v{192+8*u+2*p}, v{193+8*u+2*p}")
        unpack8(a, 136 + 4*u, 128)
        for t in range(8): a(f"ds_write_b32 v238, v{128+t} offset:{2304*t + 2048*u}")
        a(f"buffer_store_dwordx4 {vr(136+4*u,4)}, v{236+u}, s[48:51], s44 offen sc1")
    a.label("Lln_u1")
    a("s_waitcnt lgkmcnt(0)\ns_barrier")
    for i in range(9): a(f"ds_read_b32 v{96+i}, v239 offset:{256*i}")
    a("s_waitcnt lgkmcnt(0)")
    ln_row(a, 96, 9, 108)
    for i in range(9): a(f"v_fma_f32 v{96+i}, v{96+i}, v{220+i}, v{210+i}")
    ln_row(a, 96, 9, 108)
    for i in range(9): a(f"ds_write_b32 v239, v{96+i} offset:{256*i}")
    a("s_lshl_b32 s32, s42, 9\ns_waitcnt lgkmcnt(0)\ns_barrier")
    for u in range(2):
        if u == 1: a("s_cmp_lg_u32 s3, 0\ns_cbranch_scc1 Lln_u2")
        for t in range(8): a(f"ds_read_b32 v{96+8*u+t}, v238 offset:{2304*t + 2048*u}")
        a("s_waitcnt lgkmcnt(0)")
        for p in range(4): a(f"v_cvt_pk_bf16_f32 v{112+4*u+p}, v{96+8*u+2*p}, v{97+8*u+2*p}")
        a(f"buffer_store_dwordx4 {vr(112+4*u,4)}, v{230+u}, s[52:55], s32 offen sc1")
    a.label("Lln_u2")
    stamp(a, 'ln_st')
    a("s_waitcnt vmcnt(0)\ns_barrier")

def final_pre(a):
    a("s_load_dwordx2 s[46:47], s[0:1], 80\ns_load_dwordx2 s[52:53], s[0:1], 104")
    tok_ids(a)
    make_ws_srd(a, 48, 4, 'mod')
    a("v_lshlrev_b32 v238, 2, v232\nv_lshlrev_b32 v239, 2, v233")
    a(f"s_mov_b32 s32, {5*2304}\nbuffer_load_dword v208, v238, s[48:51], s32 offen sc1\nbuffer_load_dword v209, v239, s[48:51], s32 offen sc1")
    make_ws_srd(a, 48, 4, 'x1')
    for u in range(2): a(f"buffer_load_dwordx4 {vr(192+4*u,4)}, v{236+u}, s[48:51], s44 offen sc1")
    a("v_lshlrev_b32 v230, 1, v232\nv_lshlrev_b32 v231, 1, v233")
    a("s_waitcnt lgkmcnt(0)")
    a("s_lshl_b32 s32, s42, 4\ns_add_u32 s46, s46, s32\ns_addc_u32 s47, s47, 0\ns_load_dwordx4 s[36:39], s[46:47], 0")
    make_srd(a, 24, 52, SIZES['out'])
    a("s_waitcnt lgkmcnt(0)")

def final_mid(a):
    for p in range(4): a(f"s_lshl_b32 s{48+2*p}, s{36+p}, 16\ns_and_b32 s{49+2*p}, s{36+p}, 0xffff0000")
    for u in range(2):
        unpack8(a, 192 + 4*u, 210 + 8*u)
        for t in range(8): a(f"v_fmac_f32 v{210+8*u+t}, s{48+t}, v{208+u}")

def final_body(a):
    make_ws_srd(a, 48, 4, 'p6')
    partial_loads(a, 48)
    a("s_waitcnt vmcnt(0)")
    for u in range(2):
        if u == 1: a("s_cmp_lg_u32 s3, 0\ns_cbranch_scc1 Lfi_u1")
        partial_sum(a, u, 128)
        for t in range(8): a(f"v_fmac_f32 v{210+8*u+t}, v{208+u}, v{128+t}")
        for p in range(4): a(f"v_cvt_pk_bf16_f32 v{136+4*u+p}, v{210+8*u+2*p}, v{211+8*u+2*p}")
        a("s_mov_b32 s32, s44")
        for t in range(8):
            op = "buffer_store_short" if t % 2 == 0 else "buffer_store_short_d16_hi"
            a(f"{op} v{136+4*u+t//2}, v{230+u}, s[24:27], s32 offen" + (f" offset:{1152*(t%3)}" if t % 3 else ""))
            if t % 3 == 2: a("s_add_u32 s32, s32, 3456")
    a.label("Lfi_u1")

M1_W = 17408; M1_SLOT = M1_W + 12288; M1_NST = 32; M1_X = 114688
def m1_ids(a):
    a("s_and_b32 s32, s2, 7\ns_mul_i32 s32, s32, 27\ns_lshr_b32 s33, s2, 3\ns_add_u32 s32, s32, s33")
    a("s_mul_hi_u32 s28, s32, 0x2aaaaaab\ns_mul_i32 s33, s28, 6\ns_sub_u32 s29, s32, s33")
    a("v_and_b32 v8, 63, v0\nv_lshlrev_b32 v1, 4, v8")

def m1_compute(a):
    pre = 'Lm1'
    ACC = 16; SET = [112, 132]
    a("s_load_dwordx2 s[24:25], s[0:1], 64")
    m1_ids(a)
    a("v_bfe_u32 v2, v8, 2, 2\nv_mul_u32_u24 v2, 1088, v2\nv_lshrrev_b32 v9, 5, v8\nv_lshl_add_u32 v2, v9, 9, v2")
    a("v_bfe_u32 v9, v8, 4, 1\nv_lshl_add_u32 v2, v9, 5, v2\nv_and_b32 v9, 3, v8\nv_lshl_add_u32 v2, v9, 3, v2")
    a("s_and_b32 s30, s3, 1\ns_lshr_b32 s31, s3, 1")
    a("s_lshl_b32 s32, s30, 7\ns_mul_i32 s33, s31, 8704\ns_add_u32 s32, s32, s33\nv_add_u32 v4, s32, v2")
    a(f"s_lshl_b32 s32, s31, 11\ns_add_u32 s32, s32, {M1_W}\nv_add_u32 v5, s32, v1")
    a("v_mov_b32 v2, v4\nv_mov_b32 v3, v5")
    for i in range(0, 96, 2): a(f"v_mov_b64 {vr(ACC+i,2)}, 0")
    a("s_waitcnt lgkmcnt(0)")
    m1_bias(a, 3)
    def reads(ks, st):
        b = SET[st]; r = []
        for d in range(3): r.append(f"ds_read_b128 {vr(b+8+4*d,4)}, v3 offset:{d*4096 + ks*1024}")
        for t in range(2):
            for e in range(2): r.append(f"ds_read_b64_tr_b16 {vr(b+4*t+2*e,2)}, v2 offset:{ks*4352 + e*256 + t*64}")
        return r
    def mfs(st):
        b = SET[st]
        return [mf(vr(ACC+16*(3*t+d),16), vr(b+4*t,4), vr(b+8+4*d,4), vr(ACC+16*(3*t+d),16)) for t in range(2) for d in range(3)]
    def front(m, r):
        out = []
        if 'gnocomp' in os.environ.get('XP', ''): return out
        if 'gnord' in os.environ.get('XP', ''): return m
        for i, x in enumerate(m):
            out.append(x); out += r[2*i:2*i+2]
        return out
    a(f"s_mov_b32 s40, 0\ns_mov_b32 s41, {M1_NST}")
    a("s_barrier\ns_barrier")
    stamp(a, 'm1_b0')
    for o in reads(0, 0): a(o)
    a.label(f"{pre}_cloop")
    a("s_waitcnt lgkmcnt(0)")
    for o in front(mfs(0), reads(1, 1)): a(o)
    a(adv_slot(M1_SLOT, 5))
    a("v_add_u32 v2, s40, v4\nv_add_u32 v3, s40, v5")
    a("s_waitcnt lgkmcnt(0)")
    for o in front(mfs(1), reads(0, 0)): a(o)
    a(f"s_sub_u32 s41, s41, 1\ns_cmp_lg_u32 s41, 0\ns_waitcnt lgkmcnt(0)\ns_barrier\ns_cbranch_scc1 {pre}_cloop" if False else
      f"s_sub_u32 s41, s41, 1\ns_cmp_lg_u32 s41, 0\ns_barrier\ns_cbranch_scc1 {pre}_cloop")
    stamp(a, 'm1_end')
    a("s_waitcnt lgkmcnt(0)")
    m1_xaddr(a, 3)
    a(f"s_cmp_eq_u32 s31, 0\ns_cbranch_scc1 {pre}_k0")
    for kh in (1, 0):
        if kh == 0: a.label(f"{pre}_k0")
        keep = ACC + 48 * kh; send = ACC + 48 * (1 - kh)
        a("s_nop 7")
        for i in range(12): a(f"ds_write_b128 v2, {vr(send+4*i,4)} offset:{1024*i}")
        for i in range(6): a(f"ds_write_b128 v4, {vr(keep+24+4*i,4)} offset:{1024*i}")
        a("s_waitcnt lgkmcnt(0)\ns_barrier")
        for i in range(6): a(f"ds_read_b128 {vr(send+4*i,4)}, v3 offset:{1024*i}")
        m1_gelu(a, keep, send, 0)
        if kh == 1: a(f"s_branch {pre}_cdone")
    a.label(f"{pre}_cdone")

def m1_xaddr(a, sw):
    a(f"s_mul_i32 s32, s{sw}, 12288\ns_add_u32 s32, s32, {M1_X}\nv_add_u32 v2, s32, v1")
    a(f"s_xor_b32 s33, s{sw}, 2\ns_mul_i32 s33, s33, 12288\ns_add_u32 s33, s33, {M1_X}\nv_add_u32 v3, s33, v1")
    a(f"s_and_b32 s32, s{sw}, 1\ns_mul_i32 s32, s32, 6144\ns_lshr_b32 s33, s{sw}, 1\ns_mul_i32 s33, s33, 37376\ns_add_u32 s32, s32, s33\nv_add_u32 v4, s32, v1")

def m1_bias(a, sw):
    make_srd(a, 16, 24, SIZES['b1'])
    a(f"s_lshl_b32 s32, s28, 2\ns_and_b32 s33, s{sw}, 1\ns_lshl_b32 s33, s33, 1\ns_add_u32 s32, s32, s33\ns_lshr_b32 s33, s{sw}, 1\ns_add_u32 s45, s32, s33")
    a("s_lshl_b32 s32, s45, 6\nv_lshrrev_b32 v9, 5, v8\nv_lshlrev_b32 v9, 3, v9")
    for q in range(4): a(f"buffer_load_dwordx2 {vr(152+2*q,2)}, v9, s[16:19], s32 offen offset:{16*q}")
    make_ws_srd(a, 20, 4, 'u')
    a("v_bfe_u32 v9, v8, 4, 1\nv_mul_u32_u24 v9, 147456, v9\nv_lshrrev_b32 v10, 5, v8\nv_lshl_add_u32 v9, v10, 8, v9")
    a("v_and_b32 v10, 15, v8\nv_lshl_add_u32 v6, v10, 4, v9")
    a(f"s_mul_i32 s39, s29, {6*147456}\ns_lshl_b32 s33, s45, 10\ns_add_u32 s39, s39, s33")

def m1_gelu(a, keep, oth, h0):
    a("s_waitcnt vmcnt(0)" if h0 == 0 else "")
    for q in range(4):
        for h in range(2):
            a(f"v_lshlrev_b32 v{160+4*q+2*h}, 16, v{152+2*q+h}\nv_and_b32 v{161+4*q+2*h}, 0xffff0000, v{152+2*q+h}")
    c1 = -2 * math.sqrt(2 / math.pi) * math.log2(math.e); c2 = c1 * 0.044715
    a(f"v_mov_b32 v10, {f32(c1)}\nv_mov_b32 v11, {f32(c2)}")
    for i in range(3):
        d, e = (h0 + i) >> 1, (h0 + i) & 1
        a(f"s_waitcnt lgkmcnt({4 - 2*i})")
        b = keep + 8*i; o = oth + 8*i
        for r in range(8): a(f"v_add_f32 v{b+r}, v{b+r}, v{o+r}")
        for r in range(8): a(f"v_add_f32 v{b+r}, v{b+r}, v{160+8*e+r}")
        for r in range(8): a(f"v_mul_f32 v{o+r}, v{b+r}, v{b+r}")
        for r in range(8): a(f"v_fma_f32 v{o+r}, v{o+r}, v11, v10")
        for r in range(8): a(f"v_mul_f32 v{o+r}, v{o+r}, v{b+r}")
        for r in range(8): a(f"v_exp_f32 v{o+r}, v{o+r}")
        for r in range(8): a(f"v_add_f32 v{o+r}, 1.0, v{o+r}")
        for r in range(8): a(f"v_rcp_f32 v{o+r}, v{o+r}")
        for r in range(8): a(f"v_mul_f32 v{b+r}, v{b+r}, v{o+r}")
        for p in range(4): a(f"v_cvt_pk_bf16_f32 v{o+p}, v{b+2*p}, v{b+2*p+1}")
        a(f"s_add_u32 s32, s39, {d*2*147456}\nbuffer_store_dwordx4 {vr(o,4)}, v6, s[20:23], s32 offen offset:{e*512} sc1")

def m1_loader_setup(a):
    m1_ids(a)
    a("v_lshrrev_b32 v2, 4, v8\nv_mul_u32_u24 v2, 36864, v2\nv_and_b32 v9, 15, v8\nv_lshl_add_u32 v2, v9, 4, v2")
    a(f"s_mul_i32 s32, s6, {16*9216}\nv_add_u32 v2, s32, v2")
    make_srd(a, 8, 58, SIZES['w1']); make_ws_srd(a, 12, 4, 'h2')
    a("s_lshl_b32 s34, s28, 8")
    a(f"s_mul_i32 s35, s29, {3*131072}\ns_lshl_b32 s32, s6, 10\ns_add_u32 s35, s35, s32")
    a(f"s_mul_i32 s37, s6, 4352\ns_lshl_b32 s38, s6, 10\ns_add_u32 s38, s38, {M1_W}")
    a(f"s_and_b32 s32, s2, 7\ns_lshl_b32 s32, s32, 4\ns_add_u32 s32, s32, {C_H2}\nv_and_b32 v7, 15, v8\nv_add_u32 v7, s32, v7\nv_lshlrev_b32 v7, 7, v7")
def m1_w(a):
    a("s_add_u32 s32, s40, s37")
    for jj in range(4): a(f"s_add_u32 m0, s32, {1088*jj}\ns_add_u32 s33, s34, {9216*jj}\nbuffer_load_dwordx4 v2, s[8:11], s33 offen lds")
    a(f"s_add_u32 s34, s34, {64*9216}")
def m1_f(a):
    a("s_add_u32 s32, s40, s38")
    for d in range(3): a(f"s_add_u32 m0, s32, {4096*d}\ns_add_u32 s33, s35, {131072*d}\nbuffer_load_dwordx4 v1, s[12:15], s33 offen sc1 lds")
    a("s_add_u32 s35, s35, 4096")
def m1_loader_main(a):
    if 'gnodma' in os.environ.get('XP', ''): a("s_mov_b32 s10, 0\ns_mov_b32 s14, 0")
    stamp(a, 'l_h2p0')
    a("s_cmp_lg_u32 s6, 0\ns_cbranch_scc1 Lm1_np")
    poll(a, 7, 16, 244)
    a.label("Lm1_np"); a("s_barrier")
    stamp(a, 'l_h2p1')
    for i in range(4):
        a(f"s_mov_b32 s40, {i*M1_SLOT}"); m1_f(a)
    a(f"s_mov_b32 s40, {4*M1_SLOT}")
    for w in (6, 10):
        a(f"s_waitcnt vmcnt({w})\ns_barrier"); m1_f(a); m1_w(a); a(adv_slot(M1_SLOT, 5))
    a(f"s_mov_b32 s41, {M1_NST - 6}")
    a.label("Lm1_lloop")
    a("s_waitcnt vmcnt(14)\ns_barrier"); m1_f(a); m1_w(a); a(adv_slot(M1_SLOT, 5))
    a("s_sub_u32 s41, s41, 1\ns_cmp_lg_u32 s41, 0\ns_cbranch_scc1 Lm1_lloop")
    for w in (14, 7, 0, 0): a(f"s_waitcnt vmcnt({w})\ns_barrier")
    a("s_barrier")

def sig_wave4(a, soff_code, soff, lab, vtmp):
    a(f"s_cmp_lg_u32 s6, 0\ns_cbranch_scc1 {lab}")
    a(soff_code); signal(a, soff, vtmp)
    a.label(lab)

def mega():
    a = Asm(); n = NAME + '_kernel'
    a("s_cmp_ge_u32 s2, 256\ns_cbranch_scc1 Lend")
    stamp(a, 'start')
    phase_kv(a)
    phase_attn_compute(a)
    a("s_mov_b32 s60, s33\ns_mov_b32 s61, s34")
    g16_compute_setup(a, 'o')
    a("s_waitcnt vmcnt(0)")
    stamp(a, 'at_dr')
    signal(a, 60, 9); signal(a, 61, 9)
    ln2_pre(a)
    g16_compute(a, 'o')
    stamp(a, 'o_st')
    a("s_waitcnt vmcnt(9)")
    ln2_mid(a)
    a("s_waitcnt vmcnt(0)")
    stamp(a, 'o_dr')
    a("s_barrier")
    stamp(a, 'S')
    a("s_barrier")
    a.label("Lln_shared")
    stamp(a, 'R')
    ln2_body(a)
    stamp(a, 'S2')
    a("s_cmp_ge_u32 s3, 4\ns_cbranch_scc1 Ll_after_ln")
    a("s_cmp_ge_u32 s2, 216\ns_cbranch_scc1 Lc_g2")
    m1_compute(a)
    stamp(a, 'm1_st')
    a("s_waitcnt vmcnt(0)")
    stamp(a, 'm1_dr')
    a("s_barrier")
    stamp(a, 'S3')
    a.label("Lc_g2")
    g16_compute_setup(a, 'y')
    final_pre(a)
    g16_compute(a, 'y')
    stamp(a, 'y_st')
    a("s_waitcnt vmcnt(9)")
    final_mid(a)
    a("s_waitcnt vmcnt(0)")
    stamp(a, 'y_dr')
    a("s_barrier\ns_barrier")
    stamp(a, 'R4')
    a("s_branch Lfinal")
    phase_attn_loader(a)
    g16_loader_setup(a, 'o')
    a("s_barrier\ns_barrier")
    g16_loader_wpro(a, 'o')
    g16_loader_main(a, 'o')
    ln2_pre(a)
    m1_loader_setup(a)
    a("s_waitcnt vmcnt(0)")
    ln2_mid(a)
    a("s_barrier")
    sig_wave4(a, f"s_add_u32 s32, s43, {C_P3}\ns_lshl_b32 s32, s32, 7", 32, "Ll_s1", 9)
    a("s_cmp_ge_u32 s2, 216\ns_cbranch_scc1 Ll_now1")
    for i in range(4):
        a(f"s_mov_b32 s40, {i*M1_SLOT}"); m1_w(a)
    a.label("Ll_now1")
    a("s_cmp_lg_u32 s6, 0\ns_cbranch_scc1 Ll_np1")
    a(f"s_add_u32 s32, s43, {C_P3}\ns_lshl_b32 s32, s32, 7\nv_mov_b32 v10, s32")
    poll(a, 10, 16, 244)
    a.label("Ll_np1")
    a("s_barrier")
    a("s_branch Lln_shared")
    a.label("Ll_after_ln")
    a("s_cmp_lg_u32 s6, 0\ns_cbranch_scc1 Ll_s2")
    a(f"s_add_u32 s32, s43, {C_H2}\ns_lshl_b32 s32, s32, 7\nv_lshlrev_b32 v10, 11, v8\nv_mov_b32 v9, 1\ns_mov_b64 exec, 0xff")
    a(f"buffer_atomic_add v9, v10, {SYNC}, s32 offen sc1\ns_mov_b64 exec, -1")
    a.label("Ll_s2")
    a("s_cmp_ge_u32 s2, 216\ns_cbranch_scc1 Ll_nom1")
    a("s_load_dwordx2 s[24:25], s[0:1], 64\ns_waitcnt lgkmcnt(0)")
    m1_bias(a, 6)
    m1_loader_main(a)
    a(f"s_mul_hi_u32 s32, s28, 0x1c71c71d\ns_mul_i32 s32, s32, 6\ns_add_u32 s32, s32, s29\ns_add_u32 s32, s32, {C_U}\ns_lshl_b32 s63, s32, 7")
    g16_loader_setup(a, 'y')
    g16_loader_wpro(a, 'y')
    g2_wpf(a)
    a("v_mov_b32 v12, v2")
    m1_xaddr(a, 6)
    a("v_mov_b32 v2, v12\ns_barrier")
    for i in range(3):
        a(f"ds_read_b128 {vr(16+8*i,4)}, v4 offset:{2048*i}\nds_read_b128 {vr(20+8*i,4)}, v4 offset:{2048*i + 1024}")
    a("s_waitcnt lgkmcnt(0)")
    for i in range(6): a(f"ds_read_b128 {vr(40+4*i,4)}, v3 offset:{6144 + 1024*i}")
    m1_gelu(a, 16, 40, 3)
    a("s_waitcnt vmcnt(0)\ns_barrier")
    sig_wave4(a, "", 63, "Ll_s3", 9)
    a("s_branch Ll_g2")
    a.label("Ll_nom1")
    g16_loader_setup(a, 'y')
    g16_loader_wpro(a, 'y')
    g2_wpf(a)
    a.label("Ll_g2")
    g16_loader_main(a, 'y')
    final_pre(a)
    a("s_waitcnt vmcnt(0)")
    final_mid(a)
    a("s_barrier")
    a("s_cmp_lg_u32 s6, 0\ns_cbranch_scc1 Ll_np2")
    a(f"s_add_u32 s32, s43, {C_P6}\ns_lshl_b32 s32, s32, 7\nv_mov_b32 v10, s32")
    signal(a, 32, 9)
    poll(a, 10, 16, 244)
    a.label("Ll_np2")
    a("s_barrier")
    a.label("Lfinal")
    final_body(a)
    if STAMP:
        a(f"s_cmp_lg_u32 s3, {STAMP_WAVE}\ns_cbranch_scc1 Lend\ns_waitcnt vmcnt(0)")
        a("s_memrealtime s[92:93]\ns_waitcnt lgkmcnt(0)")
        stamp_flush(a, 15, "Lstf")
    a.label("Lend")
    a("s_endpgm")
    return n, a

def build(path):
    n, a = mega()
    txt = a.text()
    hdr = open('cdna_kernels/' + NAME + '.s.ref').read().split('\n')
    top = [l for l in hdr if l.startswith(';') and '@launch' not in l][:19]
    out = '\n'.join(top) + '\n'
    if os.environ.get('LIST'):
        out += f"; @launch kernel={n} grid=(256,1,1) block=(512,1,1) lds={LDS_TOTAL}\n"
    else:
        out += f"; @launch grid=(256,1,1) block=(512,1,1) lds={LDS_TOTAL}\n"
    if STAMP: out += '; stamps: ' + ','.join(STAMP_LIST) + '\n'
    out += '.amdgcn_target "amdgcn-amd-amdhsa--gfx950"\n' + kernel_header(n) + txt + kernel_desc(n, 256, 102)
    open(path, 'w').write(out)

if __name__ == '__main__':
    build(sys.argv[1] if len(sys.argv) > 1 else 'm.s')
```

```python
import sys, math, os
from gen_common import *
import k_attn as AT
from k_attn import (period, rare_path, build_ci, qk_group, pv_group, rd, mf, ADV, W4, KPOS, VPOS, BIG, QSCALE, THRESH, WQ_BYTES,
                    V_LANE16, V_RD, V_L, V_NEGM, V_Y, V_YD, V_T0, LU, T, CI, S, P, FR, Q, Q2, O)

OOB = "0xffffff00"
KORDER = [0, 1, 2, 3, 8, 9, 10, 11, 12, 13, 14, 15, 4, 5, 6, 7]
KREG = {k: (240 + 4*k if k < 4 else 128 + 4*(k - 8) if k >= 8 else 160 + 4*(k - 4)) for k in range(16)}
def kstore(k):
    return f"s_add_u32 s55, s57, {(k >> 2) * 65536}\nbuffer_store_dwordx4 {vr(KREG[k],4)}, v6, s[16:19], s55 offen offset:{(k & 3) * 1024}" + ("" if 'wb' in os.environ.get('XP', '').split(',') else " sc1")
LDS_TOTAL = 163840

def srd_off(a, srd, sptr, soff, add, size):
    a(f"s_add_u32 s{srd+2}, s{soff}, {add}\ns_add_u32 s{srd}, s{sptr}, s{srd+2}\ns_addc_u32 s{srd+1}, s{sptr+1}, 0\ns_and_b32 s{srd+1}, s{srd+1}, 0xffff")
    a(f"s_mov_b32 s{srd+2}, {size}\ns_mov_b32 s{srd+3}, 0x20000")

def phase_kv(a):
    A_BYTES = 32 * 1040; W_BYTES = 16 * 1088; SLOT = A_BYTES + 2 * W_BYTES
    GL = 2 * SLOT
    ML = GL + 2048
    XL = ML + 8192
    HAND = 131072
    ACC = 64; SET = [16, 40]
    a("s_load_dwordx8 s[28:35], s[0:1], 0\ns_load_dwordx2 s[36:37], s[0:1], 32\ns_load_dwordx4 s[40:43], s[0:1], 88\ns_load_dwordx4 s[44:47], s[0:1], 112")
    a("v_and_b32 v1, 63, v0\nv_lshrrev_b32 v2, 6, v0\ns_nop 1\nv_readfirstlane_b32 s3, v2")
    a("s_and_b32 s48, s2, 7\ns_lshr_b32 s49, s2, 3")
    a("s_and_b32 s55, s49, 3\ns_lshl_b32 s48, s48, 2\ns_add_u32 s48, s48, s55\ns_lshr_b32 s49, s49, 2")
    a("v_bfe_u32 v3, v1, 3, 2\nv_lshlrev_b32 v3, 13, v3\nv_lshrrev_b32 v4, 5, v1\nv_lshl_add_u32 v3, v4, 18, v3\nv_and_b32 v4, 7, v1\nv_lshl_add_u32 v3, v4, 4, v3")
    a("s_and_b32 s55, s3, 1\ns_lshl_b32 s55, s55, 12\ns_lshr_b32 s56, s3, 1\ns_lshl_b32 s56, s56, 19\ns_add_u32 s55, s55, s56")
    a("v_add_u32 v3, s55, v3")
    a("v_lshrrev_b32 v4, 4, v1\nv_lshlrev_b32 v4, 15, v4\nv_and_b32 v5, 15, v1\nv_lshl_add_u32 v4, v5, 4, v4")
    a("s_and_b32 s55, s3, 3\ns_lshl_b32 s55, s55, 17\nv_add_u32 v4, s55, v4")
    a("s_lshl_b32 s50, s49, 15\ns_lshl_b32 s51, s48, 8\ns_mul_i32 s52, s3, 4160")
    a(f"s_mul_i32 s53, s3, 4352\ns_add_u32 s53, s53, {A_BYTES}")
    a("s_and_b32 s61, s2, 3\ns_mul_i32 s55, s61, 144\nv_lshrrev_b32 v8, 3, v0\nv_add_u32 v8, s55, v8\nv_mul_u32_u24 v245, 6912, v8\nv_and_b32 v2, 7, v0")
    a("v_lshl_add_u32 v245, v2, 4, v245\ns_lshr_b32 s55, s2, 2\ns_lshl_b32 s55, s55, 7\nv_add_u32 v245, s55, v245\nv_lshlrev_b32 v8, 1, v8")
    a("s_lshl_b32 s60, s2, 3\ns_add_u32 s60, s60, s3\ns_mul_i32 s55, s60, 1152\nv_lshlrev_b32 v10, 4, v1\nv_add_u32 v10, s55, v10")
    a(f"v_cmp_gt_u32 vcc, 8, v1\nv_mov_b32 v15, {OOB}\nv_add_u32 v11, 1024, v10\nv_cndmask_b32 v11, v15, v11, vcc")
    a("s_waitcnt lgkmcnt(0)")
    a("s_mov_b32 s4, s46\ns_mov_b32 s5, s47")
    make_srd(a, 8, 30, SIZES['ckv'])
    a("s_cmp_lt_u32 s3, 4\ns_cselect_b32 s34, s34, s36\ns_cselect_b32 s35, s35, s37")
    make_srd(a, 12, 34, SIZES['wuk'])
    def dma_ops(slot):
        ops = []
        for jj in range(4):
            ops.append(f"s_add_u32 m0, s52, {slot*SLOT + 16*jj}\ns_nop 0\nbuffer_load_dwordx4 v3, s[8:11], s50 offen offset:{1024*jj} lds")
        for jj in range(4):
            ops.append(f"s_add_u32 m0, s53, {slot*SLOT + 1088*jj}\ns_add_u32 s55, s51, {8192*jj}\nbuffer_load_dwordx4 v4, s[12:15], s55 offen lds")
        return ops
    ADVD = f"s_add_u32 s50, s50, 128\ns_add_u32 s51, s51, {64*8192}"
    for st in range(2):
        for o in dma_ops(st): a(o)
        a(ADVD)
    CPF = 0 if 'nocpf' in os.environ.get('XP', '') else 1
    if CPF:
        a("s_getpc_b64 s[16:17]")
        a.label("Lpc")
        a("s_and_b32 s17, s17, 0xffff\ns_mov_b32 s18, Lend-Lpc\ns_mov_b32 s19, 0x20000")
        a("s_lshr_b32 s55, s2, 3\ns_lshl_b32 s55, s55, 3\ns_add_u32 s55, s55, s3\ns_lshl_b32 s55, s55, 9\nv_lshlrev_b32 v2, 3, v1")
        a("buffer_load_dwordx2 v[220:221], v2, s[16:19], s55 offen")
    a("s_lshl_b32 s63, s49, 15\ns_and_b32 s55, s48, 3\ns_lshl_b32 s55, s55, 10\ns_add_u32 s63, s63, s55")
    a("s_and_b32 s7, s49, 3\ns_lshl_b32 s7, s7, 13\ns_lshl_b32 s55, s48, 8\ns_add_u32 s7, s7, s55")
    a("s_bfe_u32 s55, s3, 0x10001\ns_lshr_b32 s56, s49, 2\ns_cmp_eq_u32 s55, s56\ns_cselect_b32 s7, s7, 0x7f000000")
    if 'nol2' in os.environ.get('XP', ''): a("s_mov_b32 s7, 0x7f000000\ns_mov_b32 s63, 0x7f000000")
    def l2pf(t):
        return [f"buffer_load_dwordx4 v[220:223], v3, s[8:11], s63 offen offset:{128*t}",
                f"s_add_u32 s56, s7, {t*64*8192}\nbuffer_load_dwordx4 v[220:223], v4, s[12:15], s56 offen"]
    l = Ops()
    make_srd(l, 16, 40, SIZES['c']); make_srd(l, 20, 42, SIZES['wmod']); make_srd(l, 24, 28, SIZES['x'])
    l("s_cmp_lt_u32 s2, 216\ns_cselect_b32 s22, s22, 0")
    l(f"s_mov_b32 s59, 0x7f000000\ns_cmp_lt_u32 s3, 2\ns_cselect_b32 s58, {128*6912}, s59\ns_cselect_b32 s59, 256, s59\ns_mov_b32 s55, {64*6912}")
    for i, (so, sc) in enumerate((('0', '0 offen'), ('s55', '0 offen offset:128'), ('s58', 's59 offen'))):
        l(f"buffer_load_dwordx4 {vr(192+4*i,4)}, v245, s[20:23], {so} offen")
        l(f"buffer_load_ushort v{204+i}, v8, s[16:19], {sc}")
    l("buffer_load_dwordx4 v[224:227], v10, s[24:27], 0 offen\nbuffer_load_dwordx4 v[228:231], v11, s[24:27], 0 offen")
    make_ws_srd(l, 96, 4, 'sync')
    l(f"v_lshlrev_b32 v2, 2, v1\ns_lshl_b32 s55, s2, 8\nv_add_u32 v2, s55, v2\nv_mov_b32 v243, 0")
    l.lines.append("ZSTORE")
    make_srd(l, 36, 44, 256); make_ws_srd(l, 40, 4, 'modp'); make_srd(l, 16, 32, SIZES['wq']); make_ws_srd(l, 24, 4, 'h1'); make_ws_srd(l, 20, 4, 'mod')
    def sloads(role):
        return [(f"s_cmp_lg_u32 s3, 0\ns_cbranch_scc1 Lkv_nz\nbuffer_store_dword v243, v2, {SYNC}, 0 offen sc1\nLkv_nz:" if role == 0 else "s_nop 0")
                if o == "ZSTORE" else o for o in l.ops()]
    a("v_and_b32 v5, 7, v1\nv_mul_u32_u24 v5, 1040, v5\nv_bfe_u32 v6, v1, 3, 2\nv_lshl_add_u32 v5, v6, 7, v5")
    a("v_lshrrev_b32 v6, 5, v1\nv_lshl_add_u32 v5, v6, 4, v5")
    a("s_and_b32 s55, s3, 1\ns_mul_i32 s55, s55, 16640\nv_add_u32 v5, s55, v5")
    a("v_bfe_u32 v6, v1, 2, 2\nv_mul_u32_u24 v6, 1088, v6\nv_lshrrev_b32 v7, 5, v1\nv_lshl_add_u32 v6, v7, 9, v6")
    a("v_bfe_u32 v7, v1, 4, 1\nv_lshl_add_u32 v6, v7, 5, v6\nv_and_b32 v7, 3, v1\nv_lshl_add_u32 v6, v7, 3, v6")
    a(f"s_lshr_b32 s55, s3, 2\ns_mul_i32 s55, s55, {W_BYTES}\ns_bfe_u32 s56, s3, 0x10001\ns_lshl_b32 s56, s56, 7")
    a(f"s_add_u32 s55, s55, s56\ns_add_u32 s55, s55, {A_BYTES}\nv_add_u32 v6, s55, v6")
    a(f"v_lshrrev_b32 v9, 3, v0\nv_lshlrev_b32 v13, 9, v9\nv_lshlrev_b32 v9, 5, v9\nv_add_u32 v9, {ML}, v9\nv_lshlrev_b32 v12, 4, v0\nv_cmp_gt_u32 vcc, 288, v0\ns_nop 1\nv_cndmask_b32 v12, v15, v12, vcc")
    a("s_lshr_b32 s55, s2, 2\ns_mul_i32 s55, s55, 36864\ns_and_b32 s56, s2, 3\ns_lshl_b32 s56, s56, 7\ns_add_u32 s62, s55, s56")
    a(f"v_and_b32 v14, 7, v0\nv_lshl_add_u32 v13, v14, 4, v13\ns_lshl_b32 s55, s3, 4\ns_add_u32 s55, s55, {XL}\nv_lshlrev_b32 v14, 7, v1\nv_add_u32 v14, s55, v14")
    a(f"s_lshl_b32 s55, s3, 8\ns_add_u32 s55, s55, {GL}\nv_lshlrev_b32 v7, 5, v1\nv_add_u32 v7, s55, v7")
    for i in range(0, 128, 2): a(f"v_mov_b64 {vr(ACC+i,2)}, 0")

    pf = ["s_mul_i32 s55, s60, 2304\nv_lshlrev_b32 v2, 4, v1"] + [f"buffer_load_dwordx4 v[220:223], v2, s[16:19], s55 offen offset:{1024*i}" for i in range(3)]
    g = Ops()
    for i in range(3):
        c = 204 + i
        g(f"v_lshlrev_b32 v{c}, 16, v{c}\nv_mul_f32 v216, 0xbfb8aa3b, v{c}\nv_exp_f32 v216, v216\ns_nop 0\nv_add_f32 v216, 1.0, v216\nv_rcp_f32 v216, v216\ns_nop 0\nv_mul_f32 v{c}, v{c}, v216")
        round_bf16(g, c)
        for d in range(4):
            w = 192 + 4*i + d
            op = "v_mul_f32" if i == 0 else "v_fmac_f32"
            g(f"v_lshlrev_b32 v216, 16, v{w}\nv_and_b32 v217, 0xffff0000, v{w}\n{op} v{208+2*d}, v{c}, v216\n{op} v{209+2*d}, v{c}, v217")
    g("s_nop 1")
    for k in range(8): g(f"v_add_f32_dpp v{208+k}, v{208+k}, v{208+k} row_ror:8 row_mask:0xf bank_mask:0xf")
    for sw in ("v_permlane16_swap_b32", "v_permlane32_swap_b32"):
        for k in range(8): g(f"v_mov_b32 v{192+k}, v{208+k}")
        g("s_nop 0")
        for k in range(8): g(f"{sw} v{208+k}, v{192+k}")
        for k in range(8): g(f"v_add_f32 v{208+k}, v{208+k}, v{192+k}")
    gemv = g.ops() + ["s_mov_b64 exec, 0xff\nds_write_b128 v7, v[208:211]\nds_write_b128 v7, v[212:215] offset:16\ns_mov_b64 exec, -1"]
    mload = [f"v_lshlrev_b32 v10, 4, v0\nv_add_u32 v10, {ML}, v10"] + [f"s_mov_b32 s55, {13824*r}\nbuffer_load_dwordx4 {vr(192+4*r,4)}, v12, s[40:43], s55 offen sc1" for r in range(4)]
    q = Ops()
    for k in range(4): q(f"v_add_f32 v{192+k}, v{192+k}, v{196+k}\nv_add_f32 v{200+k}, v{200+k}, v{204+k}")
    for k in range(4): q(f"v_add_f32 v{192+k}, v{192+k}, v{200+k}")
    round_pairs(q, 192, 4, 2)
    q("v_cmp_lt_u32 vcc, 143, v0\ns_nop 1\nv_cndmask_b32 v196, 0, 1.0, vcc")
    for k in range(4): q(f"v_add_f32 v{192+k}, v{192+k}, v196")
    round_pairs(q, 192, 4, 2)
    q("ds_write_b128 v10, v[192:195]")
    msum = q.ops()
    x = Ops()
    unpack8(x, 224, 232); unpack8(x, 228, 240)
    x("v_add_f32 v216, v232, v233")
    for i in range(234, 248): x(f"v_add_f32 v216, v216, v{i}")
    wave_allsum(x, 216, 217)
    x("v_mul_f32 v216, 0x3ae38e39, v216\nv_cmp_gt_u32 vcc, 8, v1\nv_mov_b32 v219, 0\ns_nop 0\nv_cndmask_b32 v218, 0, v216, vcc")
    for i in range(16): x(f"v_sub_f32 v217, v{232+i}, v{216 if i < 8 else 218}\nv_fmac_f32 v219, v217, v217")
    wave_allsum(x, 219, 217)
    x("v_mul_f32 v219, 0x3ae38e39, v219")
    round_bf16(x, 216); round_bf16(x, 219)
    x("v_add_f32 v219, 0x3727c5ac, v219"); round_bf16(x, 219)
    x("v_sqrt_f32 v219, v219\ns_nop 0"); round_bf16(x, 219)
    x("v_rcp_f32 v219, v219\ns_nop 0")
    for i in range(16): x(f"v_sub_f32 v{232+i}, v{232+i}, v216")
    round_pairs(x, 232, 16, 217)
    for i in range(16): x(f"v_mul_f32 v{232+i}, v{232+i}, v219")
    for p in range(8): x(f"v_cvt_pk_bf16_f32 v{248+p}, v{232+2*p}, v{233+2*p}")
    x("ds_write_b128 v14, v[248:251]\nds_write_b128 v14, v[252:255] offset:8192")
    xst = x.ops()
    def h1fin(u):
        h = Ops()
        h(f"ds_read_b128 v[224:227], v10 offset:{XL - ML + 8192*u}")
        for k, off in enumerate((0, 16, 2304, 2320)): h(f"ds_read_b128 {vr(192+4*k,4)}, v9 offset:{off + 2048*u}")
        h("s_waitcnt lgkmcnt(0)")
        unpack8(h, 224, 232)
        for i in range(8): h(f"v_mul_f32 v{232+i}, v{232+i}, v{200+i}")
        round_pairs(h, 232, 8, 2)
        for i in range(8): h(f"v_add_f32 v{232+i}, v{232+i}, v{192+i}")
        for p in range(4): h(f"v_cvt_pk_bf16_f32 v{228+4*u+p}, v{232+2*p}, v{233+2*p}") if u == 0 else h(f"v_cvt_pk_bf16_f32 v{240+p}, v{232+2*p}, v{233+2*p}")
        h(f"s_add_u32 s55, s62, {32768*u}\nbuffer_store_dwordx4 {vr(228 if u == 0 else 240,4)}, v13, s[24:27], s55 offen sc1")
        return h.ops()

    def reads(ks, s):
        b = SET[s]; r = []
        for nn in range(2):
            for e in range(2): r.append(f"ds_read_b64_tr_b16 {vr(b+16+4*nn+2*e,2)}, v6 offset:{ks*4352 + e*256 + nn*64}")
        for m in range(4): r.append(f"ds_read_b128 {vr(b+4*m,4)}, v5 offset:{(m>>1)*8320 + (m&1)*512 + ks*32}")
        return r
    def mfmas(s, role):
        b = SET[s]; r = []
        for m in range(4):
            for nn in range(2):
                acc = vr(ACC + 16*(2*m+nn), 16); c = vr(b+4*m, 4); w = vr(b+16+4*nn, 4)
                r.append(mf(acc, w, c, acc) if role == 0 else mf(acc, c, w, acc))
        return r
    stamp(a, 'kv_pro')
    a(f"s_waitcnt vmcnt({8 + CPF})\ns_barrier")
    stamp(a, 'kv_b0')
    for o in reads(0, 0): a(o)
    a("s_cmp_lt_u32 s3, 4\ns_cbranch_scc0 Lkv_r1")
    for role in range(2):
        a.label(f"Lkv_r{role}")
        hx = len(xst) // 2
        for t in range(8):
            pl = ['s_cmp_lg_u32 s3, 0\ns_cbranch_scc1 Lkv_npl\nbuffer_load_dword v15, v11, s[36:39], 0 offen sc1\nLkv_npl:'] if role == 0 else []
            side = {0: l2pf(2) + l2pf(3) + sloads(role), 1: gemv, 2: xst[:hx], 3: xst[hx:], 4: ['s_nop 0'] * 10 + pl + pf,
                    5: mload + ['s_nop 0'] * 40 + ['s_waitcnt vmcnt(0)'] + msum, 6: h1fin(0)}.get(t, [])
            if 'noval' in os.environ.get('XP', '') and t in (1, 2, 3): side = [o for o in side if 'buffer' in o or 'ds_' in o]
            if 'novm' in os.environ.get('XP', '') and t == 4: side = [o if 'buffer' not in o else o.replace('s55 offen', 's100 offen') for o in side]; a('s_mov_b32 s100, 0x7f000000')
            g0 = 8 * (int(os.environ.get('DKS', '0')) + 1) if (role == 1 and t in (4, 5, 6)) else 0
            if 1 <= t <= 4: side = side + l2pf(t + 3)
            per = (len(side) + 23 - g0) // (24 - g0)
            if t == 1: a(f"s_waitcnt vmcnt({8 if role == 0 else 0})")
            if t == 2 and role == 0:
                a("s_cmp_lg_u32 s3, 0\ns_cbranch_scc1 Lkv_nofin")
                a(f"v_lshlrev_b32 v2, 2, v1\nv_add_u32 v15, {GL}, v2")
                for w in range(8): a(f"ds_read_b32 v{192+w}, v15 offset:{256*w}")
                a("s_mul_i32 s55, s61, 13824\ns_lshr_b32 s56, s2, 2\ns_lshl_b32 s56, s56, 8\ns_add_u32 s55, s55, s56\ns_cmp_lt_u32 s2, 216\ns_cselect_b32 s55, s55, 0x7f000000\ns_waitcnt lgkmcnt(0)")
                for w in range(1, 8): a(f"v_add_f32 v192, v192, v{192+w}")
                a("buffer_store_dword v192, v2, s[40:43], s55 offen sc1\nv_mov_b32 v2, 1\ns_lshl_b32 s55, s61, 6\nv_and_b32 v11, 3, v1\nv_lshlrev_b32 v11, 6, v11")
                a("s_waitcnt vmcnt(0)\ns_mov_b64 exec, 1\nbuffer_atomic_add v2, off, s[36:39], s55 sc1\ns_mov_b64 exec, -1")
                a.label("Lkv_nofin")
            if t in (5, 6) and role == 1:
                a(f"s_cmp_lg_u32 s3, 7\ns_cbranch_scc1 Lkv_nofm{t}")
                if t == 5:
                    a(f"s_lshl_b32 s55, s2, 6\nv_lshlrev_b32 v15, 2, v1\nv_add_u32 v15, s55, v15\nv_cmp_gt_u32 vcc, 16, v1\nv_mov_b32 v2, {OOB}\ns_cmp_lt_u32 s2, 216\ns_cselect_b64 vcc, vcc, 0\ns_nop 1\nv_cndmask_b32 v15, v2, v15, vcc")
                    for r in range(4): a(f"s_mov_b32 s55, {13824*r}\nbuffer_load_dword v{216+r}, v15, s[40:43], s55 offen sc1")
                else:
                    a("v_add_f32 v216, v216, v217\nv_add_f32 v218, v218, v219\nv_add_f32 v216, v216, v218")
                    round_bf16(a, 216)
                    a("buffer_store_dword v216, v15, s[20:23], 0 offen sc1")
                a.label(f"Lkv_nofm{t}")
            for ks in range(3):
                a("s_waitcnt lgkmcnt(0)")
                m = mfmas(ks & 1, role); r = reads(ks + 1, (ks + 1) & 1)
                dm = dma_ops((t - 1) & 1) if (role == 1 and ks == int(os.environ.get('DKS', '0')) and 1 <= t <= 6) else None
                for i in range(8):
                    a(m[i])
                    for o in r[2*i:2*i+2]: a(o)
                    if dm: a(dm[i])
                    k = (ks * 8 + i - g0) * per
                    if k >= 0:
                        for o in side[k:k+per]:
                            if o != 's_nop 0' or t not in (4, 5): a(o)
                if dm: a(ADVD)
            if t == 6 and role == 0:
                a("s_cmp_lg_u32 s3, 0\ns_cbranch_scc1 Lkv_noh2")
                for o in h1fin(1): a(o)
                a.label("Lkv_noh2")
            d = SLOT if t % 2 == 0 else -SLOT
            a(f"v_add_u32 v5, {d & 0xffffffff}, v5\nv_add_u32 v6, {d & 0xffffffff}, v6")
            a(f"s_waitcnt vmcnt({ {0: 12 + CPF, 1: 2, 2: 2, 3: 2, 4: 5, 6: 1}.get(t, 0) }) lgkmcnt(0)")
            if t == 4 and role == 0:
                a("s_cmp_lg_u32 s3, 0\ns_cbranch_scc1 Lkv_mpd\ns_mov_b32 s100, 0x8000")
                a.label("Lkv_mp")
                a("v_cmp_gt_u32 vcc, 64, v15\ns_sub_u32 s100, s100, 1\ns_cbranch_vccz Lkv_mpd\ns_cmp_eq_u32 s100, 0\ns_cbranch_scc1 Lkv_mpd")
                a("buffer_load_dword v15, v11, s[36:39], 0 offen sc1\ns_waitcnt vmcnt(0)\ns_branch Lkv_mp")
                a.label("Lkv_mpd")
            stamp(a, f'kw{t}')
            a("s_barrier")
            stamp(a, f'kv{t}')
            if t == 7 and role == 1:
                a("s_cmp_lg_u32 s3, 7\ns_cbranch_scc1 Lkv_ns1\ns_lshr_b32 s55, s2, 4\ns_lshl_b32 s55, s55, 7")
                signal(a, 55, 2)
                a.label("Lkv_ns1")
            m = mfmas(1, role); r = reads(0, 0) if t < 7 else []; dm = dma_ops(t & 1)
            for i in range(8):
                a(m[i])
                for o in r[2*i:2*i+2]: a(o)
                if t < 6 and role == 0: a(dm[i])
            if t < 6 and role == 0: a(ADVD)
        stamp(a, 'kv_end')
        a("v_lshlrev_b32 v7, 4, v1")
        a("s_lshl_b32 s55, s48, 19\ns_lshl_b32 s56, s49, 13\ns_add_u32 s55, s55, s56")
        a("s_and_b32 s56, s3, 1\ns_lshl_b32 s56, s56, 18\ns_add_u32 s57, s55, s56")
        def pack(k, dst):
            src = ACC + 8*k
            for p in range(4): a(f"v_cvt_pk_bf16_f32 v{dst+p}, v{src+2*p}, v{src+2*p+1}")
        if role == 1:
            a(f"s_sub_u32 s6, s3, 4\ns_and_b32 s55, s3, 1\ns_lshl_b32 s55, s55, 14\ns_add_u32 s55, s55, {HAND}\nv_add_u32 v2, s55, v7")
            a("s_cmp_ge_u32 s3, 6\ns_cbranch_scc1 Lkv_sw")
            a("v_mov_b32 v12, v2")
            attn_loader_setup(a)
            for k in range(16):
                dst = 16 + 4 * (k % 8)
                pack(k, dst)
                a(f"ds_write_b128 v12, {vr(dst,4)} offset:{1024*k}")
            a("s_waitcnt lgkmcnt(0)\ns_barrier")
            a("s_branch Lat_load")
            a.label("Lkv_sw")
            for k in range(16): pack(k, ACC + 4*k)
            make_ws_srd(a, 20, 4, 'vf')
            if 'nov' in os.environ.get('XP', ''): a("s_mov_b32 s22, 0")
            a("s_cmp_lg_u32 s3, 7\ns_cbranch_scc1 Lkv_np1\ns_lshr_b32 s31, s2, 5\ns_sub_u32 s30, 15, s31")
            a(f"v_and_b32 v3, 1, v1\nv_mov_b32 v4, s30\nv_mov_b32 v5, s31\nv_cmp_eq_u32 vcc, 0, v3\ns_nop 1\nv_cndmask_b32 v3, v5, v4, vcc\nv_lshlrev_b32 v3, 7, v3")
            stamp(a, 'l_h1p0')
            poll(a, 3, 16, 244)
            stamp(a, 'l_h1p1')
            a.label("Lkv_np1")
            a("s_barrier")
            for k in range(16): a(f"ds_read_b128 {vr(128+4*k,4)}, v2 offset:{1024*k}")
            a("s_branch Lat_sw")
        else:
            for k in KORDER: pack(k, KREG[k])
            make_ws_srd(a, 16, 4, 'kf')
            if 'nok' in os.environ.get('XP', ''): a("s_mov_b32 s18, 0")
            a("s_lshr_b32 s56, s3, 1\ns_lshl_b32 s56, s56, 12\ns_add_u32 s57, s57, s56")
            a("v_mov_b32 v6, v7")
            a("s_branch Lat_comp")

def attn_ids(a):
    a("s_and_b32 s28, s2, 7\ns_lshr_b32 s29, s2, 3")
    a("s_and_b32 s30, s29, 3\ns_lshl_b32 s28, s28, 2\ns_add_u32 s28, s28, s30")
    if 'longfirst' in os.environ.get('XP', ''): a("s_lshr_b32 s31, s29, 2\ns_sub_u32 s30, 15, s31")
    else: a("s_lshr_b32 s30, s29, 2\ns_sub_u32 s31, 15, s30")
    a(f"v_and_b32 v8, 63, v0\nv_lshlrev_b32 v{V_LANE16}, 4, v8")

def phase_attn_compute(a):
    a.label("Lat_comp")
    attn_ids(a)
    a("v_bfe_u32 v2, v8, 2, 2\nv_mul_u32_u24 v2, 1088, v2\nv_lshrrev_b32 v9, 5, v8\nv_lshl_add_u32 v2, v9, 9, v2")
    a("v_bfe_u32 v9, v8, 4, 1\nv_lshl_add_u32 v2, v9, 5, v2\nv_and_b32 v9, 3, v8\nv_lshl_add_u32 v2, v9, 3, v2")
    a(f"s_lshl_b32 s32, s3, 11\ns_add_u32 s32, s32, {WQ_BYTES}\nv_add_u32 v3, s32, v{V_LANE16}")
    a("v_and_b32 v9, 31, v8\ns_lshl_b32 s32, s3, 5\nv_add_u32 v9, s32, v9\nv_lshrrev_b32 v10, 5, v8\nv_lshlrev_b32 v10, 2, v10")
    a(f"v_sub_u32 v9, v9, v10\nv_cvt_f32_i32 v9, v9\nv_add_f32 v9, 0.5, v9\nv_mul_f32 v{V_YD}, {f32(BIG)}, v9")
    QACC = lambda qt, t: (16 + 16*t) if qt == 0 else (O + 16*t)
    QSET = [FR, FR + 24]
    for i in range(0, 64, 2): a(f"v_mov_b64 {vr(16+i,2)}, 0\nv_mov_b64 {vr(O+i,2)}, 0")
    make_ws_srd(a, 20, 4, 'ctx')
    a(f"s_mov_b32 s46, {f32(QSCALE)}\ns_mov_b32 s47, {f32(QSCALE)}")
    def qreads(ks, st):
        b = QSET[st]; r = []
        for qt in range(2): r.append(f"ds_read_b128 {vr(b+16+4*qt,4)}, v3 offset:{qt*8192 + ks*1024}")
        for t in range(4):
            for e in range(2): r.append(f"ds_read_b64_tr_b16 {vr(b+4*t+2*e,2)}, v2 offset:{ks*4352 + e*256 + t*64}")
        return r
    def qmf(st):
        b = QSET[st]
        return [mf(vr(QACC(qt, t), 16), vr(b+4*t, 4), vr(b+16+4*qt, 4), vr(QACC(qt, t), 16)) for t in range(4) for qt in range(2)]
    def front(m, r):
        out = []
        for i, x in enumerate(m):
            out.append(x); out += r[2*i:2*i+2]
        return out
    a("s_mov_b32 s40, 0")
    stamp(a, 'q_pre')
    a("s_barrier\ns_barrier")
    stamp(a, 'q_b0')
    for o in qreads(0, 0): a(o)
    for c in range(18):
        a("s_waitcnt lgkmcnt(0)")
        ops = front(qmf(0), qreads(1, 1))
        if c < 16: ops.insert(20, kstore(c))
        for o in ops: a(o)
        d = AT.SLOT if c % 5 != 4 else -4 * AT.SLOT
        a(f"v_add_u32 v2, {d & 0xffffffff}, v2\nv_add_u32 v3, {d & 0xffffffff}, v3")
        if c == 9: a("s_waitcnt vmcnt(2)")
        if c == 17: a("s_waitcnt vmcnt(0)")
        a("s_waitcnt lgkmcnt(0)")
        for o in front(qmf(1), qreads(0, 0) if c < 17 else []): a(o)
        a("s_barrier")
        stamp(a, f'q{c}')
    a(f"s_mov_b32 s40, {3*AT.SLOT}")
    stamp(a, 'q_end')
    a("v_and_b32 v8, 63, v0\nv_bfe_u32 v9, v8, 4, 1\nv_lshlrev_b32 v9, 17, v9\nv_lshrrev_b32 v10, 5, v8\nv_lshl_add_u32 v9, v10, 8, v9")
    a(f"v_and_b32 v10, 15, v8\nv_lshl_add_u32 v{V_T0}, v10, 4, v9\nv_mov_b32 v{V_T0+1}, {f32(THRESH)}")
    a(ADV[1])
    a("s_nop 7")
    for qt in (1, 0):
        for t in range(4):
            for e in range(2):
                for p in range(4):
                    s_ = QACC(qt, t) + 8*e + 2*p
                    a(f"v_pk_mul_f32 {vr(s_,2)}, {vr(s_,2)}, s[46:47]")
                for p in range(4):
                    s_ = QACC(qt, t) + 8*e + 2*p
                    a(f"v_cvt_pk_bf16_f32 v{(Q, Q2)[qt] + 4*(2*t+e) + p}, v{s_}, v{s_+1}")
        if qt == 1:
            for i in range(8): a(rd(i, KPOS[1]))
    a("s_mov_b32 s42, s30\ns_mov_b32 s43, 0")
    a.label("Lat_qk0")
    a(f"s_lshl_b32 s32, s42, 7\nv_cvt_f32_u32 v{V_Y}, s32\nv_mul_f32 v{V_Y}, {f32(BIG)}, v{V_Y}\nv_add_f32 v{V_Y}, v{V_Y}, v{V_YD}")
    a(f"v_mov_b32 v{V_NEGM}, 0")
    for o in build_ci(): a(o)
    a(ADV[0]); a(ADV[1])
    z = [f"v_mov_b64 {vr(O+i,2)}, 0" for i in range(0, 64, 2)] + [f"v_mov_b64 {vr(P[1]+i,2)}, 0" for i in range(0, 8, 2)]
    z += [f"v_mov_b32 v{V_L}, 0", f"v_mov_b32 v{LU[1]}, 0"]
    m = qk_group(0)
    for i in range(8):
        if i == 0: a("s_waitcnt lgkmcnt(5)")
        if i % 4 == 3: a(W4)
        a(m[i]); a(rd(i, KPOS[0]))
        for o in z[5*i:5*i+5]: a(o)
    a("s_nop 7\ns_nop 1")
    s = S[0]; t = V_T0 + 2; d = V_T0 + 3
    a(f"v_max3_f32 v{d}, v{s}, v{s+1}, v{s+2}")
    for r in range(3, 15, 2): a(f"v_max3_f32 v{d}, v{d}, v{s+r}, v{s+r+1}")
    a(f"v_max_f32 v{d}, v{d}, v{s+15}")
    a(f"v_mov_b32 v{t}, v{d}\ns_nop 1\nv_permlane32_swap_b32 v{d}, v{t}\ns_nop 1")
    a(f"v_max_f32 v{d}, v{d}, v{t}")
    a(f"v_sub_f32 v{V_NEGM}, 0, v{d}")
    for r in range(16): a(f"v_sub_f32 v{s+r}, v{s+r}, v{d}")
    for o in build_ci(): a(o)
    sites = []
    a(f"v_mov_b32 v{V_Y}, v{V_YD}")
    a("s_cmp_eq_u32 s42, 0\ns_cbranch_scc0 Lat_plain_pre")
    a(f"v_add_f32 v{V_Y}, {f32(-64*BIG)}, v{V_Y}\ns_mov_b32 s41, 1\ns_branch Lat_rebuild")
    a.label("Lat_plain_pre")
    a("s_lshl_b32 s41, s42, 1\ns_sub_u32 s41, s41, 1")
    a.label("Lat_plain")
    a("s_barrier")
    sites.append(period(a, 0, 0, VPOS[0], KPOS[1]))
    sites.append(period(a, 1, 1, VPOS[1], KPOS[0], adv=True, tail_ops=["s_sub_u32 s41, s41, 1\ns_cmp_lg_u32 s41, 0"]))
    a("s_cbranch_scc1 Lat_plain")
    a("s_mov_b32 s41, 2")
    a.label("Lat_rebuild")
    a("s_barrier")
    sites.append(period(a, 0, 2, VPOS[0], KPOS[1], rebuild=True))
    sites.append(period(a, 1, 3, VPOS[1], KPOS[0], rebuild=True, adv=True, tail_ops=["s_sub_u32 s41, s41, 1\ns_cmp_lg_u32 s41, 0"]))
    a("s_cbranch_scc1 Lat_rebuild")
    a("s_barrier")
    sites.append(period(a, 0, 4, VPOS[0], VPOS[1]))
    sites.append(period(a, 1, 5, None, VPOS[0], qk=False, adv=True))
    a("s_barrier")
    m = pv_group(1)
    mv = [f"v_mov_b64 {vr(Q+i,2)}, {vr(Q2+i,2)}" for i in range(0, 32, 2)]
    for i in range(8):
        if i % 4 == 3: a(W4)
        a(m[i]); a(rd(i, KPOS[1]))
        for o in mv[2*i:2*i+2]: a(o)
    a("s_cmp_eq_u32 s43, 0\ns_cbranch_scc1 Lat_noE\ns_waitcnt lgkmcnt(0)\ns_barrier")
    a.label("Lat_noE")
    a(f"v_add_f32 v{V_L}, v{V_L}, v{LU[1]}")
    a(f"v_mov_b32 v{t}, v{V_L}\ns_nop 1\nv_permlane32_swap_b32 v{V_L}, v{t}\ns_nop 1\nv_add_f32 v{V_L}, v{V_L}, v{t}")
    a(f"v_rcp_f32 v{T}, v{V_L}\ns_nop 0\nv_mov_b32 v{T+1}, v{T}")
    a("s_lshl_b32 s32, s42, 20\ns_lshl_b32 s33, s3, 18\ns_add_u32 s32, s32, s33\ns_lshl_b32 s33, s28, 12\ns_add_u32 s32, s32, s33")
    a("s_nop 3")
    k = 0
    for tt in range(4):
        for e in range(2):
            src = O + 16*tt + 8*e; dst = S[0] + 4 * k; k += 1
            for p in range(4): a(f"v_pk_mul_f32 {vr(src+2*p,2)}, {vr(src+2*p,2)}, {vr(T,2)}")
            for p in range(4): a(f"v_cvt_pk_bf16_f32 v{dst+p}, v{src+2*p}, v{src+2*p+1}")
            a(f"buffer_store_dwordx4 {vr(dst,4)}, v{V_T0}, s[20:23], s32 offen offset:{tt*1024 + e*512} sc1")
    a("s_cmp_lg_u32 s43, 0\ns_cbranch_scc1 Lat_cend")
    a("s_mov_b32 s43, 1\ns_mov_b32 s42, s31\ns_branch Lat_qk0")
    for site, par in sites:
        a.label(f"Lat_rs{site}")
        a(f"s_call_b64 s[44:45], Lat_rare{par}\ns_branch Lat_rb{site}")
    rare_path(a, 0); rare_path(a, 1)
    a.label("Lat_cend")
    stamp(a, 'at_end')
    a(f"s_lshr_b32 s32, s28, 3\ns_add_u32 s32, s32, {C_CTX}\ns_lshl_b32 s33, s30, 2\ns_add_u32 s33, s33, s32\ns_lshl_b32 s33, s33, 7")
    a("s_lshl_b32 s34, s31, 2\ns_add_u32 s34, s34, s32\ns_lshl_b32 s34, s34, 7")

def wq_part(a):
    a("s_add_u32 s32, s40, s37")
    for jj in range(4): a(f"s_add_u32 m0, s32, {1088*jj}\ns_add_u32 s33, s34, {8192*jj}\nbuffer_load_dwordx4 v2, s[8:11], s33 offen lds")
    a(f"s_add_u32 s34, s34, {32*8192}")

def attn_loader_setup(a):
    SLOT = AT.SLOT
    make_srd(a, 8, 32, SIZES['wq'])
    a("s_load_dwordx2 s[56:57], s[0:1], 40\ns_load_dwordx2 s[58:59], s[0:1], 56\ns_load_dwordx2 s[60:61], s[0:1], 72")
    attn_ids(a)
    a("v_lshrrev_b32 v2, 4, v8\nv_lshlrev_b32 v2, 15, v2\nv_and_b32 v3, 15, v8\nv_lshl_add_u32 v2, v3, 4, v2")
    a("s_lshl_b32 s32, s6, 17\nv_add_u32 v2, s32, v2")
    a("s_lshl_b32 s34, s28, 8\ns_mul_i32 s37, s6, 4352")
    for i in range(4):
        a(f"s_mov_b32 s40, {i*SLOT}"); wq_part(a)
    make_ws_srd(a, 12, 4, 'h1')
    a("s_lshl_b32 s32, s28, 19")
    srd_off(a, 16, 4, 32, WS['kf'][0], 512*1024); srd_off(a, 20, 4, 32, WS['vf'][0], 512*1024)
    a("s_lshl_b32 s35, s30, 1\ns_add_u32 s35, s35, s6\ns_mul_i32 s35, s35, 73728")
    a("s_lshl_b32 s36, s31, 1\ns_add_u32 s36, s36, s6\ns_mul_i32 s36, s36, 73728")
    a(f"s_lshl_b32 s38, s6, 12\ns_add_u32 s38, s38, {WQ_BYTES}\ns_lshl_b32 s39, s6, 13\ns_mov_b32 s40, 0")
    a("s_sub_u32 s44, s39, 8192\ns_sub_u32 s45, s39, 24576")
    a("s_mov_b32 s46, s44\ns_mov_b32 s47, s45\ns_mov_b32 s48, 0\ns_lshl_b32 s49, s30, 1\ns_add_u32 s49, s49, 3")

def phase_attn_loader(a):
    a.label("Lat_load")
    def h_part():
        a("s_add_u32 s32, s40, s38")
        for qt in range(2):
            for b in range(2):
                a(f"s_add_u32 m0, s32, {qt*8192 + b*2048}\ns_add_u32 s33, s{35+qt}, {b*36864}")
                a(f"buffer_load_dwordx4 v{V_LANE16}, s[12:15], s33 offen sc1 lds\nbuffer_load_dwordx4 v{V_LANE16}, s[12:15], s33 offen offset:1024 sc1 lds")
        a("s_add_u32 s35, s35, 2048\ns_add_u32 s36, s36, 2048")
        a(ADV[0])
    for i in range(4): h_part()
    for w in (16, 20):
        a(f"s_waitcnt vmcnt({w})\ns_barrier")
        wq_part(a); h_part()
    a("s_mov_b32 s41, 12")
    a.label("Lat_lq")
    a("s_waitcnt vmcnt(24)\ns_barrier")
    wq_part(a); h_part()
    a("s_sub_u32 s41, s41, 1\ns_cmp_lg_u32 s41, 0\ns_cbranch_scc1 Lat_lq")
    a("s_waitcnt vmcnt(24)\ns_barrier")
    def kvload():
        for (srd, so, lo) in ((16, 46, 0), (20, 47, 16384)):
            a(f"s_add_u32 s32, s40, s39\ns_add_u32 m0, s32, {lo}\ns_add_u32 s33, s{so}, 4096")
            for j in range(4): a(f"buffer_load_dwordx4 v{V_LANE16}, {sr(srd,4)}, s{so} offen offset:{1024*j} sc1 lds")
            a(f"s_add_u32 m0, s32, {lo + 4096}\ns_nop 0")
            for j in range(4): a(f"buffer_load_dwordx4 v{V_LANE16}, {sr(srd,4)}, s33 offen offset:{1024*j} sc1 lds")
        a("s_add_u32 s46, s46, 16384\ns_add_u32 s47, s47, 16384\ns_add_u32 s48, s48, 1")
        a("s_cmp_eq_u32 s48, s49\ns_cselect_b32 s46, s44, s46")
        a("s_add_u32 s32, s49, 1\ns_add_u32 s33, s45, 16384\ns_cmp_eq_u32 s48, s32\ns_cselect_b32 s47, s33, s47")
        a(ADV[0])
    kvload()
    a("s_waitcnt vmcnt(28)\ns_barrier")
    kvload()
    a("s_waitcnt lgkmcnt(0)\ns_lshl_b32 s52, s2, 1\ns_add_u32 s52, s52, s6\ns_mul_i32 s50, s52, 9216\ns_mul_i32 s52, s52, 36864\ns_mov_b32 s41, 0")
    make_srd(a, 24, 56, 0 if 'nopf' in os.environ.get('XP', '') else SIZES['wo'])
    a.label("Lat_lpf")
    a("s_waitcnt vmcnt(32)\ns_barrier")
    kvload()
    for g in range(3):
        for j in range(3): a(f"buffer_load_dwordx4 v[8:11], v{V_LANE16}, s[24:27], s50 offen offset:{1024*j}")
        a("s_add_u32 s50, s50, 3072")
    for r in range(2):
        a("s_waitcnt vmcnt(41)\ns_barrier")
        kvload()
    a("s_add_u32 s41, s41, 1")
    for (n, ptr) in ((1, 58), (5, 60)):
        a(f"s_and_b32 s33, s{ptr+1}, 0xffff\ns_cmp_eq_u32 s41, {n}\ns_cselect_b32 s24, s{ptr}, s24\ns_cselect_b32 s25, s33, s25\ns_cselect_b32 s50, s52, s50")
    if 'nopf' not in os.environ.get('XP', ''): a(f"s_mov_b32 s26, {SIZES['w1']}")
    a("s_cmp_lt_u32 s41, 9\ns_cbranch_scc1 Lat_lpf")
    a("s_mov_b32 s41, 8")
    a.label("Lat_lkv")
    a("s_waitcnt vmcnt(32)\ns_barrier")
    kvload()
    a("s_sub_u32 s41, s41, 1\ns_cmp_lg_u32 s41, 0\ns_cbranch_scc1 Lat_lkv")
    a("s_waitcnt vmcnt(32)\ns_barrier\ns_waitcnt vmcnt(16)\ns_barrier")
    a("s_waitcnt vmcnt(0) lgkmcnt(0)\ns_barrier")
    a("s_branch Lat_ldone")

    a.label("Lat_sw")
    a("s_mov_b32 s62, s57")
    a("s_load_dwordx2 s[56:57], s[0:1], 40\ns_load_dwordx2 s[58:59], s[0:1], 56\ns_load_dwordx2 s[60:61], s[0:1], 72")
    def vstore(n):
        k = n & 15; m_, nn, e = k >> 2, (k >> 1) & 1, k & 1
        reg = 64 + 4*k if n < 16 else 128 + 4*k
        a(f"s_add_u32 s55, s62, {m_*65536 + e*4096 + (2048 if n < 16 else 0)}\nbuffer_store_dwordx4 {vr(reg,4)}, v7, s[20:23], s55 offen offset:{nn*1024}" + ("" if 'wb' in os.environ.get('XP', '').split(',') else " sc1"))
    order = [n for m_ in range(4) for n in list(range(4*m_, 4*m_ + 4)) + list(range(16 + 4*m_, 16 + 4*m_ + 4))]
    a(f"s_add_u32 s32, s48, {C_KV}\ns_lshl_b32 s32, s32, 7\nv_mov_b32 v3, s32\ns_add_u32 s33, s32, {(C_KV2 - C_KV) * 128}\nv_mov_b32 v5, s33")
    a("s_waitcnt lgkmcnt(0)\ns_barrier")
    a("s_cmp_eq_u32 s3, 7\ns_cbranch_scc1 Lat_w7")
    for c in range(30):
        if c < 16 and c != 13: vstore(order[2*c]); vstore(order[2*c + 1])
        if c == 9: a("s_waitcnt vmcnt(4)")
        if c == 17: a("s_waitcnt vmcnt(0)")
        if c in (10, 18): signal(a, 32 if c == 10 else 33, 4)
        if c == 26:
            a("v_and_b32 v6, 15, v1\nv_lshlrev_b32 v6, 7, v6")
            poll(a, 6, 16, 244)
        if c in (13, 21, 29):
            if c == 29: a(f"v_add_u32 v5, {(C_KV3 - C_KV2) * 128}, v5")
            stamp(a, 'l_kvp0' if c == 13 else 'l_kvq0')
            poll(a, 3 if c == 13 else 5, 8, 244)
            stamp(a, 'l_kvp1' if c == 13 else 'l_kvq1')
            if c == 13: vstore(order[2*c]); vstore(order[2*c + 1])
        a("s_barrier")
    a("s_branch Lat_w67")
    a.label("Lat_w7")
    for c in range(30):
        if 18 <= c < 26:
            for q in range(4): vstore(order[4*(c - 18) + q])
        if c == 27:
            a(f"s_waitcnt vmcnt(0)\ns_add_u32 s33, s32, {(C_KV3 - C_KV) * 128}")
            signal(a, 33, 4)
        a("s_barrier")
    a.label("Lat_w67")
    a(f"s_mov_b32 s41, {51 - 30}")
    a.label("Lat_pfd")
    a("s_barrier\ns_sub_u32 s41, s41, 1\ns_cmp_lg_u32 s41, 0\ns_cbranch_scc1 Lat_pfd")
    if 'wpf' in os.environ.get('XP', ''):
        make_srd(a, 24, 56, SIZES['wo'])
        a(f"s_bfe_u32 s50, s2, 0x20001\ns_mul_i32 s50, s50, {1024*1152}\ns_lshr_b32 s32, s2, 3\ns_lshl_b32 s32, s32, 1\ns_and_b32 s33, s3, 1\ns_add_u32 s32, s32, s33")
        a("s_mul_i32 s32, s32, 18432\ns_add_u32 s50, s50, s32")
        for g in range(6):
            for j in range(3): a(f"buffer_load_dwordx4 v[8:11], v7, s[24:27], s50 offen offset:{1024*j}")
            a("s_add_u32 s50, s50, 3072")
    a("s_barrier\ns_barrier")
    a("s_waitcnt vmcnt(0)")
    a.label("Lat_ldone")

def adv_slot(slot, nslot):
    return f"s_add_u32 s40, s40, {slot}\ns_cmp_eq_u32 s40, {slot*nslot}\ns_cselect_b32 s40, 0, s40"

G16 = {'o': dict(F=16384, W=20480, NST=16, nF=4, nW=5), 'y': dict(F=20480, W=16896, NST=18, nF=5, nW=4)}

def g16_ids(a):
    a("s_bfe_u32 s28, s2, 0x20001")
    a("s_and_b32 s29, s2, 1\ns_lshl_b32 s29, s29, 3\ns_lshr_b32 s30, s2, 5\ns_add_u32 s29, s29, s30")
    a("s_bfe_u32 s30, s2, 0x20003")
    a("v_and_b32 v8, 63, v0\nv_lshlrev_b32 v1, 4, v8")

def g16_compute_setup(a, kind):
    p = G16[kind]
    g16_ids(a)
    a("v_bfe_u32 v2, v8, 4, 1\nv_lshlrev_b32 v2, 2, v2\nv_bfe_u32 v9, v8, 2, 2\nv_add_u32 v2, v2, v9")
    a("v_lshrrev_b32 v9, 5, v8\nv_and_b32 v10, 3, v8")
    if kind == 'o':
        a("v_lshl_add_u32 v2, v9, 4, v2\nv_mul_u32_u24 v2, 288, v2\nv_lshl_add_u32 v2, v10, 3, v2")
        a(f"v_add_u32 v4, {p['F']}, v2\ns_lshl_b32 s35, s3, 12\nv_add_u32 v5, s35, v1")
    else:
        a("v_mul_u32_u24 v2, 1056, v2\nv_lshl_add_u32 v2, v9, 9, v2\nv_lshl_add_u32 v2, v10, 3, v2")
        a(f"s_lshl_b32 s35, s3, 6\ns_add_u32 s35, s35, {p['F']}\nv_add_u32 v4, s35, v2\nv_mov_b32 v5, v1")
    a("v_mov_b32 v2, v4\nv_mov_b32 v3, v5")
    for i in range(0, 72, 2): a(f"v_mov_b64 {vr(16+i,2)}, 0")
    make_ws_srd(a, 20, 4, 'p3' if kind == 'o' else 'p6')
    a("v_bfe_u32 v6, v8, 4, 1\nv_lshlrev_b32 v6, 1, v6\nv_lshrrev_b32 v9, 5, v8\nv_add_u32 v6, v6, v9\nv_mul_u32_u24 v6, 9216, v6\nv_and_b32 v9, 15, v8\nv_lshl_add_u32 v6, v9, 4, v6")

def g16_compute(a, kind):
    p = G16[kind]; pre = 'Lg' + kind; SLOT = p['F'] + p['W']
    ACC = 16; SET = [96, 144]
    def reads(ks, st):
        b = SET[st]; r = []
        if kind == 'o':
            for t in range(2): r.append(f"ds_read_b128 {vr(b+4*t,4)}, v3 offset:{t*2048 + ks*1024}")
            for c in range(9):
                for e in range(2): r.append(f"ds_read_b64_tr_b16 {vr(b+8+4*c+2*e,2)}, v2 offset:{(32*ks + 8*e)*288 + c*32}")
        else:
            for t in range(2):
                for e in range(2): r.append(f"ds_read_b64_tr_b16 {vr(b+4*t+2*e,2)}, v2 offset:{8*ks*1056 + e*256 + t*32}")
            for c in range(9): r.append(f"ds_read_b128 {vr(b+8+4*c,4)}, v3 offset:{c*2048 + ks*1024}")
        return r
    def mfs(st):
        b = SET[st]
        return [f"v_mfma_f32_16x16x32_bf16 {vr(ACC+4*(9*t+c),4)}, {vr(b+4*t,4)}, {vr(b+8+4*c,4)}, {vr(ACC+4*(9*t+c),4)}"
                for c in range(9) for t in range(2)]
    def kstep(m, r, extra):
        n = len(r); NL = 6 if kind == 'o' else 3
        take = [(n * (i + 1)) // 16 - (n * i) // 16 if i < 16 else 0 for i in range(18)]
        k = 0
        a(f"s_waitcnt lgkmcnt({NL})")
        for i, x in enumerate(m):
            if i == 12: a(f"s_waitcnt lgkmcnt({min(15, k)})")
            a(x)
            for o in r[k:k+take[i]]: a(o)
            k += take[i]
            for o in extra.get(i, []): a(o)
    a(f"s_mov_b32 s40, 0\ns_mov_b32 s41, {p['NST']}")
    if kind == 'y': a("s_barrier")
    a("s_barrier")
    stamp(a, kind + '_b0')
    for o in reads(0, 0): a(o)
    a(f"s_branch {pre}_cin")
    a.label(f"{pre}_cloop")
    a("s_barrier")
    a.label(f"{pre}_cin")
    kstep(mfs(0), reads(1, 1), {14: [adv_slot(SLOT, 4)], 16: ["v_add_u32 v2, s40, v4"], 17: ["v_add_u32 v3, s40, v5"]})
    kstep(mfs(1), reads(0, 0), {16: ["s_sub_u32 s41, s41, 1"], 17: ["s_cmp_lg_u32 s41, 0"]})
    a(f"s_cbranch_scc1 {pre}_cloop")
    a.label(f"{pre}_cend")
    stamp(a, kind + '_end')
    a("s_lshl_b32 s32, s28, 8\ns_lshl_b32 s33, s29, 4\ns_add_u32 s32, s32, s33\ns_lshl_b32 s33, s3, 2\ns_add_u32 s32, s32, s33")
    a("s_mul_i32 s32, s32, 9216\ns_mul_i32 s33, s30, 2304\ns_add_u32 s32, s32, s33")
    a("s_waitcnt lgkmcnt(0)")
    for c in range(9):
        A_ = ACC + 4*c; B_ = ACC + 4*(9 + c); dst = 96 + 4*c
        a(f"v_cvt_pk_bf16_f32 v{dst}, v{A_}, v{A_+1}\nv_cvt_pk_bf16_f32 v{dst+1}, v{A_+2}, v{A_+3}")
        a(f"v_cvt_pk_bf16_f32 v{dst+2}, v{B_}, v{B_+1}\nv_cvt_pk_bf16_f32 v{dst+3}, v{B_+2}, v{B_+3}")
    for c in range(9):
        dst = 96 + 4*c
        a(f"v_permlane16_swap_b32 v{dst}, v{dst+2}\nv_permlane16_swap_b32 v{dst+1}, v{dst+3}")
        a(f"buffer_store_dwordx4 {vr(dst,4)}, v6, s[20:23], s32 offen offset:{256*c} sc1")

def g16_loader_setup(a, kind):
    p = G16[kind]
    g16_ids(a)
    if kind == 'o':
        a("s_mul_i32 s32, s6, 320\ns_mov_b32 s33, 0xe38e38f")
        for jj in range(5):
            a(f"v_add_u32 v9, s32, v8\nv_add_u32 v9, {64*jj}, v9\nv_mul_hi_u32 v10, v9, s33")
            a(f"v_mul_u32_u24 v11, 18, v10\nv_sub_u32 v11, v9, v11\nv_mul_u32_u24 v10, 1152, v10\nv_lshl_add_u32 v{2+jj}, v11, 4, v10")
            a(f"v_cmp_gt_u32 vcc, 1152, v9\nv_mov_b32 v10, {OOB}\ns_nop 1\nv_cndmask_b32 v{2+jj}, v10, v{2+jj}, vcc")
        make_srd(a, 8, 56, SIZES['wo']); make_ws_srd(a, 12, 4, 'ctx')
        a(f"s_mul_i32 s34, s28, {1024*1152}\ns_mul_i32 s32, s30, 288\ns_add_u32 s34, s34, s32")
        a("s_lshl_b32 s35, s29, 3\ns_lshl_b32 s32, s6, 1\ns_add_u32 s35, s35, s32\ns_lshl_b32 s35, s35, 17\ns_lshl_b32 s32, s28, 15\ns_add_u32 s35, s35, s32")
        a(f"s_mul_i32 s37, s6, 5120\ns_add_u32 s37, s37, {p['F']}\ns_lshl_b32 s38, s6, 12")
        a(f"s_lshl_b32 s32, s29, 2\ns_add_u32 s32, s32, s28\ns_add_u32 s32, s32, {C_CTX}\ns_lshl_b32 s32, s32, 7\nv_mov_b32 v7, s32")
    else:
        a("v_lshrrev_b32 v2, 4, v8\nv_lshlrev_b32 v2, 15, v2\nv_and_b32 v9, 15, v8\nv_lshl_add_u32 v2, v9, 4, v2")
        a("s_and_b32 s32, s6, 1\ns_lshl_b32 s32, s32, 14\ns_lshr_b32 s33, s6, 1\ns_lshl_b32 s33, s33, 17\ns_add_u32 s32, s32, s33\nv_add_u32 v2, s32, v2")
        make_srd(a, 8, 60, SIZES['w2']); make_ws_srd(a, 12, 4, 'u')
        a(f"s_mul_i32 s34, s28, {1152*4096}\ns_lshl_b32 s32, s29, 8\ns_add_u32 s34, s34, s32")
        a(f"s_mul_i32 s35, s30, {9*147456}\ns_mul_i32 s32, s28, {36*1024}\ns_add_u32 s35, s35, s32")
        for jj in range(5):
            a(f"s_mul_i32 s32, s6, 5\ns_add_u32 s32, s32, {jj}\ns_lshr_b32 s33, s32, 1\ns_mul_i32 s33, s33, 147456")
            a(f"s_and_b32 s36, s32, 1\ns_lshl_b32 s36, s36, 10\ns_add_u32 s33, s33, s36\ns_add_u32 s33, s33, s35")
            a(f"s_cmp_lt_u32 s32, 18\ns_cselect_b32 s{46+jj}, s33, 0x7f000000")
        a(f"s_mul_i32 s37, s6, 4224\ns_add_u32 s37, s37, {p['F']}\ns_mul_i32 s38, s6, 5120")
        a(f"s_mul_i32 s32, s28, 6\ns_mul_i32 s33, s30, 3\ns_lshr_b32 s33, s33, 1\ns_add_u32 s32, s32, s33\ns_add_u32 s32, s32, {C_U}")
        a("v_and_b32 v7, 1, v8\nv_add_u32 v7, s32, v7\nv_lshlrev_b32 v7, 7, v7")

def g16_w(a, kind):
    if kind == 'o':
        a("s_add_u32 s32, s40, s37")
        for jj in range(5): a(f"s_add_u32 m0, s32, {1024*jj}\ns_nop 0\nbuffer_load_dwordx4 v{2+jj}, s[8:11], s34 offen lds")
        a(f"s_add_u32 s34, s34, {64*1152}")
    else:
        a("s_add_u32 s32, s40, s37")
        for jj in range(4): a(f"s_add_u32 m0, s32, {1056*jj}\ns_add_u32 s33, s34, {4096*jj}\nbuffer_load_dwordx4 v2, s[8:11], s33 offen lds")
        a(f"s_add_u32 s34, s34, {64*4096}")
def g16_f(a, kind):
    if kind == 'o':
        a("s_add_u32 m0, s40, s38\ns_add_u32 s33, s35, 0x20000")
        a("buffer_load_dwordx4 v1, s[12:15], s35 offen sc1 lds\nbuffer_load_dwordx4 v1, s[12:15], s35 offen offset:1024 sc1 lds")
        a("s_add_u32 s32, s40, s38\ns_add_u32 m0, s32, 2048\ns_nop 0")
        a("buffer_load_dwordx4 v1, s[12:15], s33 offen sc1 lds\nbuffer_load_dwordx4 v1, s[12:15], s33 offen offset:1024 sc1 lds")
        a("s_add_u32 s35, s35, 2048")
    else:
        a("s_add_u32 s32, s40, s38")
        for jj in range(5):
            a(f"s_add_u32 m0, s32, {1024*jj}\ns_nop 0\nbuffer_load_dwordx4 v1, s[12:15], s{46+jj} offen sc1 lds\ns_add_u32 s{46+jj}, s{46+jj}, 2048")

def g16_loader_wpro(a, kind):
    p = G16[kind]; SLOT = p['F'] + p['W']
    for i in range(3):
        a(f"s_mov_b32 s40, {i*SLOT}"); g16_w(a, kind)

def g2_wpf(a):
    if 'wpf' not in os.environ.get('XP', ''): return
    a(f"s_mul_i32 s32, s30, {64*4096}\ns_add_u32 s32, s32, s34")
    for i in range(4):
        a(f"s_add_u32 s36, s30, {3 + 4*i}\ns_cmp_lt_u32 s36, 18\ns_cselect_b32 s36, s32, 0x7f000000")
        for jj in range(4): a(f"s_add_u32 s33, s36, {(4*i*64 + jj)*4096}\nbuffer_load_dwordx4 v[12:15], v2, s[8:11], s33 offen")

def g16_loader_main(a, kind):
    p = G16[kind]; pre = 'Lg' + kind; SLOT = p['F'] + p['W']
    if 'gnodma' in os.environ.get('XP', ''): a("s_mov_b32 s10, 0\ns_mov_b32 s14, 0")
    stamp(a, 'l_' + kind + 'p0')
    if kind == 'y': a(f"s_cmp_lg_u32 s6, 0\ns_cbranch_scc1 {pre}_np")
    poll(a, 7, 32 if kind == 'o' else 9, 244)
    if kind == 'y':
        a.label(f"{pre}_np"); a("s_barrier")
    stamp(a, 'l_' + kind + 'p1')
    for i in range(3):
        a(f"s_mov_b32 s40, {i*SLOT}"); g16_f(a, kind)
    a(f"s_mov_b32 s40, {3*SLOT}\ns_mov_b32 s41, {p['NST'] - 3}")
    a(f"s_waitcnt vmcnt({p['nF']})\ns_branch {pre}_lb")
    a.label(f"{pre}_lloop")
    a("s_waitcnt vmcnt(9)")
    a.label(f"{pre}_lb")
    a("s_barrier")
    g16_f(a, kind); g16_w(a, kind)
    a(adv_slot(SLOT, 4))
    a(f"s_sub_u32 s41, s41, 1\ns_cmp_lg_u32 s41, 0\ns_cbranch_scc1 {pre}_lloop")
    a("s_waitcnt vmcnt(9)\ns_barrier\ns_waitcnt vmcnt(0)\ns_barrier\ns_barrier")

def tok_ids(a):
    a("s_bfe_u32 s32, s2, 0x20001\ns_lshl_b32 s32, s32, 2\ns_bfe_u32 s33, s2, 0x20003\ns_add_u32 s32, s32, s33")
    a("s_and_b32 s43, s2, 1\ns_lshl_b32 s43, s43, 3\ns_lshr_b32 s33, s2, 5\ns_add_u32 s43, s43, s33")
    a("s_lshl_b32 s42, s43, 4\ns_add_u32 s42, s42, s32\ns_mul_i32 s44, s42, 9216")
    a(f"v_mov_b32 v232, v0\nv_add_u32 v233, 512, v0\nv_cmp_gt_u32 vcc, 64, v0\nv_mov_b32 v234, 0x0ffffff0\ns_nop 1\nv_cndmask_b32 v233, v234, v233, vcc")
    a("v_lshlrev_b32 v236, 4, v232\nv_lshlrev_b32 v237, 4, v233\nv_mov_b32 v240, 0x3f80\nv_mov_b32 v241, 0x3f800000")

def partial_loads(a, srd):
    a("s_mov_b32 s32, s44")
    for s in range(4):
        for u in range(2): a(f"buffer_load_dwordx4 {vr(96+16*u+4*s,4)}, v{236+u}, {sr(srd,4)}, s32 offen sc1")
        if s < 3: a(f"s_add_u32 s32, s32, {256*9216}")

def partial_sum(a, u, dst):
    b = 96 + 16*u
    unpack8(a, b, dst)
    for s in range(1, 4):
        for d in range(4):
            a(f"v_dot2c_f32_bf16 v{dst+2*d}, v{b+4*s+d}, v240\nv_dot2c_f32_bf16 v{dst+2*d+1}, v{b+4*s+d}, v241")
    a("s_nop 2")

def ln_row(a, x, n, t0):
    m, v, t = t0, t0 + 1, t0 + 2
    a(f"v_add_f32 v{m}, v{x}, v{x+1}")
    for i in range(2, n): a(f"v_add_f32 v{m}, v{m}, v{x+i}")
    wave_allsum(a, m, t)
    a(f"v_mul_f32 v{m}, 0x3ae38e39, v{m}\nv_mov_b32 v{v}, 0")
    for i in range(n): a(f"v_sub_f32 v{t}, v{x+i}, v{m}\nv_fmac_f32 v{v}, v{t}, v{t}")
    wave_allsum(a, v, t)
    a(f"v_mul_f32 v{v}, 0x3ae38e39, v{v}")
    round_bf16(a, m); round_bf16(a, v)
    a(f"v_add_f32 v{v}, 0x3727c5ac, v{v}"); round_bf16(a, v)
    a(f"v_sqrt_f32 v{v}, v{v}\ns_nop 0"); round_bf16(a, v)
    a(f"v_rcp_f32 v{v}, v{v}")
    for i in range(n): a(f"v_sub_f32 v{x+i}, v{x+i}, v{m}")
    for i in range(n): a(f"v_mul_f32 v{x+i}, v{x+i}, v{v}")

LN_LDS = 4 * 29696

def ln2_pre(a):
    a("s_load_dwordx2 s[46:47], s[0:1], 0")
    tok_ids(a)
    make_ws_srd(a, 48, 4, 'mod')
    a("v_lshlrev_b32 v238, 2, v232\nv_lshlrev_b32 v239, 2, v233\nv_and_b32 v235, 63, v0\nv_lshlrev_b32 v235, 2, v235")
    a(f"s_mov_b32 s32, {2*2304}\nbuffer_load_dword v208, v238, s[48:51], s32 offen sc1\nbuffer_load_dword v209, v239, s[48:51], s32 offen sc1")
    a(f"s_mov_b32 s32, {3*2304}\ns_mov_b32 s33, {4*2304}")
    for i in range(9):
        a(f"buffer_load_dword v{210+i}, v235, s[48:51], s32 offen offset:{256*i} sc1\nbuffer_load_dword v{220+i}, v235, s[48:51], s33 offen offset:{256*i} sc1")
    a("v_lshlrev_b32 v230, 1, v232\nv_lshlrev_b32 v231, 1, v233")
    a("s_waitcnt lgkmcnt(0)")
    make_srd(a, 48, 46, SIZES['x'])
    a("s_mov_b32 s32, s44")
    for t in range(8):
        for u in range(2): a(f"buffer_load_short_d16_hi v{192+8*u+t}, v{230+u}, s[48:51], s32 offen" + (f" offset:{1152*(t%3)}" if t % 3 else ""))
        if t % 3 == 2: a("s_add_u32 s32, s32, 3456")
    a(f"v_add_u32 v238, {LN_LDS}, v238\ns_mul_i32 s32, s3, 2304\ns_add_u32 s32, s32, {LN_LDS}\nv_add_u32 v239, s32, v235")

def ln2_mid(a):
    for i in range(16): a(f"v_and_b32 v{192+i}, 0xffff0000, v{192+i}")
    for i in range(9):
        a(f"v_add_f32 v{220+i}, 1.0, v{220+i}"); round_bf16(a, 220 + i)
    for u in range(2):
        a(f"v_lshrrev_b32 v{230+u}, 5, v{232+u}\nv_lshlrev_b32 v{230+u}, 17, v{230+u}\nv_and_b32 v234, 31, v{232+u}\nv_lshl_add_u32 v{230+u}, v234, 4, v{230+u}")

def ln2_body(a):
    make_ws_srd(a, 48, 4, 'p3')
    partial_loads(a, 48)
    make_ws_srd(a, 48, 4, 'x1'); make_ws_srd(a, 52, 4, 'h2')
    a("s_waitcnt vmcnt(0)")
    stamp(a, 'ln_ld')
    for u in range(2):
        if u == 1: a("s_cmp_lg_u32 s3, 0\ns_cbranch_scc1 Lln_u1")
        partial_sum(a, u, 128)
        for t in range(8): a(f"v_fmac_f32 v{192+8*u+t}, v{208+u}, v{128+t}")
        for p in range(4): a(f"v_cvt_pk_bf16_f32 v{136+4*u+p}, v{192+8*u+2*p}, v{193+8*u+2*p}")
        unpack8(a, 136 + 4*u, 128)
        for t in range(8): a(f"ds_write_b32 v238, v{128+t} offset:{2304*t + 2048*u}")
        a(f"buffer_store_dwordx4 {vr(136+4*u,4)}, v{236+u}, s[48:51], s44 offen sc1")
    a.label("Lln_u1")
    a("s_waitcnt lgkmcnt(0)\ns_barrier")
    for i in range(9): a(f"ds_read_b32 v{96+i}, v239 offset:{256*i}")
    a("s_waitcnt lgkmcnt(0)")
    ln_row(a, 96, 9, 108)
    for i in range(9): a(f"v_fma_f32 v{96+i}, v{96+i}, v{220+i}, v{210+i}")
    ln_row(a, 96, 9, 108)
    for i in range(9): a(f"ds_write_b32 v239, v{96+i} offset:{256*i}")
    a("s_lshl_b32 s32, s42, 9\ns_waitcnt lgkmcnt(0)\ns_barrier")
    for u in range(2):
        if u == 1: a("s_cmp_lg_u32 s3, 0\ns_cbranch_scc1 Lln_u2")
        for t in range(8): a(f"ds_read_b32 v{96+8*u+t}, v238 offset:{2304*t + 2048*u}")
        a("s_waitcnt lgkmcnt(0)")
        for p in range(4): a(f"v_cvt_pk_bf16_f32 v{112+4*u+p}, v{96+8*u+2*p}, v{97+8*u+2*p}")
        a(f"buffer_store_dwordx4 {vr(112+4*u,4)}, v{230+u}, s[52:55], s32 offen sc1")
    a.label("Lln_u2")
    stamp(a, 'ln_st')
    a("s_waitcnt vmcnt(0)\ns_barrier")

def final_pre(a):
    a("s_load_dwordx2 s[46:47], s[0:1], 80\ns_load_dwordx2 s[52:53], s[0:1], 104")
    tok_ids(a)
    make_ws_srd(a, 48, 4, 'mod')
    a("v_lshlrev_b32 v238, 2, v232\nv_lshlrev_b32 v239, 2, v233")
    a(f"s_mov_b32 s32, {5*2304}\nbuffer_load_dword v208, v238, s[48:51], s32 offen sc1\nbuffer_load_dword v209, v239, s[48:51], s32 offen sc1")
    make_ws_srd(a, 48, 4, 'x1')
    for u in range(2): a(f"buffer_load_dwordx4 {vr(192+4*u,4)}, v{236+u}, s[48:51], s44 offen sc1")
    a("v_lshlrev_b32 v230, 1, v232\nv_lshlrev_b32 v231, 1, v233")
    a("s_waitcnt lgkmcnt(0)")
    a("s_lshl_b32 s32, s42, 4\ns_add_u32 s46, s46, s32\ns_addc_u32 s47, s47, 0\ns_load_dwordx4 s[36:39], s[46:47], 0")
    make_srd(a, 24, 52, SIZES['out'])
    a("s_waitcnt lgkmcnt(0)")

def final_mid(a):
    for p in range(4): a(f"s_lshl_b32 s{48+2*p}, s{36+p}, 16\ns_and_b32 s{49+2*p}, s{36+p}, 0xffff0000")
    for u in range(2):
        unpack8(a, 192 + 4*u, 210 + 8*u)
        for t in range(8): a(f"v_fmac_f32 v{210+8*u+t}, s{48+t}, v{208+u}")

def final_body(a):
    make_ws_srd(a, 48, 4, 'p6')
    partial_loads(a, 48)
    a("s_waitcnt vmcnt(0)")
    for u in range(2):
        if u == 1: a("s_cmp_lg_u32 s3, 0\ns_cbranch_scc1 Lfi_u1")
        partial_sum(a, u, 128)
        for t in range(8): a(f"v_fmac_f32 v{210+8*u+t}, v{208+u}, v{128+t}")
        for p in range(4): a(f"v_cvt_pk_bf16_f32 v{136+4*u+p}, v{210+8*u+2*p}, v{211+8*u+2*p}")
        a("s_mov_b32 s32, s44")
        for t in range(8):
            op = "buffer_store_short" if t % 2 == 0 else "buffer_store_short_d16_hi"
            a(f"{op} v{136+4*u+t//2}, v{230+u}, s[24:27], s32 offen" + (f" offset:{1152*(t%3)}" if t % 3 else ""))
            if t % 3 == 2: a("s_add_u32 s32, s32, 3456")
    a.label("Lfi_u1")

M1_W = 17408; M1_SLOT = M1_W + 12288; M1_NST = 32; M1_X = 114688
def m1_ids(a):
    a("s_and_b32 s32, s2, 7\ns_mul_i32 s32, s32, 27\ns_lshr_b32 s33, s2, 3\ns_add_u32 s32, s32, s33")
    a("s_mul_hi_u32 s28, s32, 0x2aaaaaab\ns_mul_i32 s33, s28, 6\ns_sub_u32 s29, s32, s33")
    a("v_and_b32 v8, 63, v0\nv_lshlrev_b32 v1, 4, v8")

def m1_compute(a):
    pre = 'Lm1'
    ACC = 16; SET = [112, 132]
    a("s_load_dwordx2 s[24:25], s[0:1], 64")
    m1_ids(a)
    a("v_bfe_u32 v2, v8, 2, 2\nv_mul_u32_u24 v2, 1088, v2\nv_lshrrev_b32 v9, 5, v8\nv_lshl_add_u32 v2, v9, 9, v2")
    a("v_bfe_u32 v9, v8, 4, 1\nv_lshl_add_u32 v2, v9, 5, v2\nv_and_b32 v9, 3, v8\nv_lshl_add_u32 v2, v9, 3, v2")
    a("s_and_b32 s30, s3, 1\ns_lshr_b32 s31, s3, 1")
    a("s_lshl_b32 s32, s30, 7\ns_mul_i32 s33, s31, 8704\ns_add_u32 s32, s32, s33\nv_add_u32 v4, s32, v2")
    a(f"s_lshl_b32 s32, s31, 11\ns_add_u32 s32, s32, {M1_W}\nv_add_u32 v5, s32, v1")
    a("v_mov_b32 v2, v4\nv_mov_b32 v3, v5")
    for i in range(0, 96, 2): a(f"v_mov_b64 {vr(ACC+i,2)}, 0")
    a("s_waitcnt lgkmcnt(0)")
    m1_bias(a, 3)
    def reads(ks, st):
        b = SET[st]; r = []
        for d in range(3): r.append(f"ds_read_b128 {vr(b+8+4*d,4)}, v3 offset:{d*4096 + ks*1024}")
        for t in range(2):
            for e in range(2): r.append(f"ds_read_b64_tr_b16 {vr(b+4*t+2*e,2)}, v2 offset:{ks*4352 + e*256 + t*64}")
        return r
    def mfs(st):
        b = SET[st]
        return [mf(vr(ACC+16*(3*t+d),16), vr(b+4*t,4), vr(b+8+4*d,4), vr(ACC+16*(3*t+d),16)) for t in range(2) for d in range(3)]
    def front(m, r):
        out = []
        if 'gnocomp' in os.environ.get('XP', ''): return out
        if 'gnord' in os.environ.get('XP', ''): return m
        for i, x in enumerate(m):
            out.append(x); out += r[2*i:2*i+2]
        return out
    a(f"s_mov_b32 s40, 0\ns_mov_b32 s41, {M1_NST}")
    a("s_barrier\ns_barrier")
    stamp(a, 'm1_b0')
    for o in reads(0, 0): a(o)
    a.label(f"{pre}_cloop")
    a("s_waitcnt lgkmcnt(0)")
    for o in front(mfs(0), reads(1, 1)): a(o)
    a(adv_slot(M1_SLOT, 5))
    a("v_add_u32 v2, s40, v4\nv_add_u32 v3, s40, v5")
    a("s_waitcnt lgkmcnt(0)")
    for o in front(mfs(1), reads(0, 0)): a(o)
    a(f"s_sub_u32 s41, s41, 1\ns_cmp_lg_u32 s41, 0\ns_waitcnt lgkmcnt(0)\ns_barrier\ns_cbranch_scc1 {pre}_cloop" if False else
      f"s_sub_u32 s41, s41, 1\ns_cmp_lg_u32 s41, 0\ns_barrier\ns_cbranch_scc1 {pre}_cloop")
    stamp(a, 'm1_end')
    a("s_waitcnt lgkmcnt(0)")
    m1_xaddr(a, 3)
    a(f"s_cmp_eq_u32 s31, 0\ns_cbranch_scc1 {pre}_k0")
    for kh in (1, 0):
        if kh == 0: a.label(f"{pre}_k0")
        keep = ACC + 48 * kh; send = ACC + 48 * (1 - kh)
        a("s_nop 7")
        for i in range(12): a(f"ds_write_b128 v2, {vr(send+4*i,4)} offset:{1024*i}")
        for i in range(6): a(f"ds_write_b128 v4, {vr(keep+24+4*i,4)} offset:{1024*i}")
        a("s_waitcnt lgkmcnt(0)\ns_barrier")
        for i in range(6): a(f"ds_read_b128 {vr(send+4*i,4)}, v3 offset:{1024*i}")
        m1_gelu(a, keep, send, 0)
        if kh == 1: a(f"s_branch {pre}_cdone")
    a.label(f"{pre}_cdone")

def m1_xaddr(a, sw):
    a(f"s_mul_i32 s32, s{sw}, 12288\ns_add_u32 s32, s32, {M1_X}\nv_add_u32 v2, s32, v1")
    a(f"s_xor_b32 s33, s{sw}, 2\ns_mul_i32 s33, s33, 12288\ns_add_u32 s33, s33, {M1_X}\nv_add_u32 v3, s33, v1")
    a(f"s_and_b32 s32, s{sw}, 1\ns_mul_i32 s32, s32, 6144\ns_lshr_b32 s33, s{sw}, 1\ns_mul_i32 s33, s33, 37376\ns_add_u32 s32, s32, s33\nv_add_u32 v4, s32, v1")

def m1_bias(a, sw):
    make_srd(a, 16, 24, SIZES['b1'])
    a(f"s_lshl_b32 s32, s28, 2\ns_and_b32 s33, s{sw}, 1\ns_lshl_b32 s33, s33, 1\ns_add_u32 s32, s32, s33\ns_lshr_b32 s33, s{sw}, 1\ns_add_u32 s45, s32, s33")
    a("s_lshl_b32 s32, s45, 6\nv_lshrrev_b32 v9, 5, v8\nv_lshlrev_b32 v9, 3, v9")
    for q in range(4): a(f"buffer_load_dwordx2 {vr(152+2*q,2)}, v9, s[16:19], s32 offen offset:{16*q}")
    make_ws_srd(a, 20, 4, 'u')
    a("v_bfe_u32 v9, v8, 4, 1\nv_mul_u32_u24 v9, 147456, v9\nv_lshrrev_b32 v10, 5, v8\nv_lshl_add_u32 v9, v10, 8, v9")
    a("v_and_b32 v10, 15, v8\nv_lshl_add_u32 v6, v10, 4, v9")
    a(f"s_mul_i32 s39, s29, {6*147456}\ns_lshl_b32 s33, s45, 10\ns_add_u32 s39, s39, s33")

def m1_gelu(a, keep, oth, h0):
    a("s_waitcnt vmcnt(0)" if h0 == 0 else "")
    for q in range(4):
        for h in range(2):
            a(f"v_lshlrev_b32 v{160+4*q+2*h}, 16, v{152+2*q+h}\nv_and_b32 v{161+4*q+2*h}, 0xffff0000, v{152+2*q+h}")
    c1 = -2 * math.sqrt(2 / math.pi) * math.log2(math.e); c2 = c1 * 0.044715
    a(f"v_mov_b32 v10, {f32(c1)}\nv_mov_b32 v11, {f32(c2)}")
    for i in range(3):
        d, e = (h0 + i) >> 1, (h0 + i) & 1
        a(f"s_waitcnt lgkmcnt({4 - 2*i})")
        b = keep + 8*i; o = oth + 8*i
        for r in range(8): a(f"v_add_f32 v{b+r}, v{b+r}, v{o+r}")
        for r in range(8): a(f"v_add_f32 v{b+r}, v{b+r}, v{160+8*e+r}")
        for r in range(8): a(f"v_mul_f32 v{o+r}, v{b+r}, v{b+r}")
        for r in range(8): a(f"v_fma_f32 v{o+r}, v{o+r}, v11, v10")
        for r in range(8): a(f"v_mul_f32 v{o+r}, v{o+r}, v{b+r}")
        for r in range(8): a(f"v_exp_f32 v{o+r}, v{o+r}")
        for r in range(8): a(f"v_add_f32 v{o+r}, 1.0, v{o+r}")
        for r in range(8): a(f"v_rcp_f32 v{o+r}, v{o+r}")
        for r in range(8): a(f"v_mul_f32 v{b+r}, v{b+r}, v{o+r}")
        for p in range(4): a(f"v_cvt_pk_bf16_f32 v{o+p}, v{b+2*p}, v{b+2*p+1}")
        a(f"s_add_u32 s32, s39, {d*2*147456}\nbuffer_store_dwordx4 {vr(o,4)}, v6, s[20:23], s32 offen offset:{e*512} sc1")

def m1_loader_setup(a):
    m1_ids(a)
    a("v_lshrrev_b32 v2, 4, v8\nv_mul_u32_u24 v2, 36864, v2\nv_and_b32 v9, 15, v8\nv_lshl_add_u32 v2, v9, 4, v2")
    a(f"s_mul_i32 s32, s6, {16*9216}\nv_add_u32 v2, s32, v2")
    make_srd(a, 8, 58, SIZES['w1']); make_ws_srd(a, 12, 4, 'h2')
    a("s_lshl_b32 s34, s28, 8")
    a(f"s_mul_i32 s35, s29, {3*131072}\ns_lshl_b32 s32, s6, 10\ns_add_u32 s35, s35, s32")
    a(f"s_mul_i32 s37, s6, 4352\ns_lshl_b32 s38, s6, 10\ns_add_u32 s38, s38, {M1_W}")
    a(f"s_and_b32 s32, s2, 7\ns_lshl_b32 s32, s32, 4\ns_add_u32 s32, s32, {C_H2}\nv_and_b32 v7, 15, v8\nv_add_u32 v7, s32, v7\nv_lshlrev_b32 v7, 7, v7")
def m1_w(a):
    a("s_add_u32 s32, s40, s37")
    for jj in range(4): a(f"s_add_u32 m0, s32, {1088*jj}\ns_add_u32 s33, s34, {9216*jj}\nbuffer_load_dwordx4 v2, s[8:11], s33 offen lds")
    a(f"s_add_u32 s34, s34, {64*9216}")
def m1_f(a):
    a("s_add_u32 s32, s40, s38")
    for d in range(3): a(f"s_add_u32 m0, s32, {4096*d}\ns_add_u32 s33, s35, {131072*d}\nbuffer_load_dwordx4 v1, s[12:15], s33 offen sc1 lds")
    a("s_add_u32 s35, s35, 4096")
def m1_loader_main(a):
    if 'gnodma' in os.environ.get('XP', ''): a("s_mov_b32 s10, 0\ns_mov_b32 s14, 0")
    stamp(a, 'l_h2p0')
    a("s_cmp_lg_u32 s6, 0\ns_cbranch_scc1 Lm1_np")
    poll(a, 7, 16, 244)
    a.label("Lm1_np"); a("s_barrier")
    stamp(a, 'l_h2p1')
    for i in range(4):
        a(f"s_mov_b32 s40, {i*M1_SLOT}"); m1_f(a)
    a(f"s_mov_b32 s40, {4*M1_SLOT}")
    for w in (6, 10):
        a(f"s_waitcnt vmcnt({w})\ns_barrier"); m1_f(a); m1_w(a); a(adv_slot(M1_SLOT, 5))
    a(f"s_mov_b32 s41, {M1_NST - 6}")
    a.label("Lm1_lloop")
    a("s_waitcnt vmcnt(14)\ns_barrier"); m1_f(a); m1_w(a); a(adv_slot(M1_SLOT, 5))
    a("s_sub_u32 s41, s41, 1\ns_cmp_lg_u32 s41, 0\ns_cbranch_scc1 Lm1_lloop")
    for w in (14, 7, 0, 0): a(f"s_waitcnt vmcnt({w})\ns_barrier")
    a("s_barrier")

def sig_wave4(a, soff_code, soff, lab, vtmp):
    a(f"s_cmp_lg_u32 s6, 0\ns_cbranch_scc1 {lab}")
    a(soff_code); signal(a, soff, vtmp)
    a.label(lab)

def mega():
    a = Asm(); n = NAME + '_kernel'
    a("s_cmp_ge_u32 s2, 256\ns_cbranch_scc1 Lend")
    stamp(a, 'start')
    phase_kv(a)
    phase_attn_compute(a)
    a("s_mov_b32 s60, s33\ns_mov_b32 s61, s34")
    g16_compute_setup(a, 'o')
    a("s_waitcnt vmcnt(0)")
    stamp(a, 'at_dr')
    signal(a, 60, 9); signal(a, 61, 9)
    ln2_pre(a)
    g16_compute(a, 'o')
    stamp(a, 'o_st')
    a("s_waitcnt vmcnt(9)")
    ln2_mid(a)
    a("s_waitcnt vmcnt(0)")
    stamp(a, 'o_dr')
    a("s_barrier")
    stamp(a, 'S')
    a("s_barrier")
    a.label("Lln_shared")
    stamp(a, 'R')
    ln2_body(a)
    stamp(a, 'S2')
    a("s_cmp_ge_u32 s3, 4\ns_cbranch_scc1 Ll_after_ln")
    a("s_cmp_ge_u32 s2, 216\ns_cbranch_scc1 Lc_g2")
    m1_compute(a)
    stamp(a, 'm1_st')
    a("s_waitcnt vmcnt(0)")
    stamp(a, 'm1_dr')
    a("s_barrier")
    stamp(a, 'S3')
    a.label("Lc_g2")
    g16_compute_setup(a, 'y')
    final_pre(a)
    g16_compute(a, 'y')
    stamp(a, 'y_st')
    a("s_waitcnt vmcnt(9)")
    final_mid(a)
    a("s_waitcnt vmcnt(0)")
    stamp(a, 'y_dr')
    a("s_barrier\ns_barrier")
    stamp(a, 'R4')
    a("s_branch Lfinal")
    phase_attn_loader(a)
    g16_loader_setup(a, 'o')
    a("s_barrier\ns_barrier")
    g16_loader_wpro(a, 'o')
    g16_loader_main(a, 'o')
    ln2_pre(a)
    m1_loader_setup(a)
    a("s_waitcnt vmcnt(0)")
    ln2_mid(a)
    a("s_barrier")
    sig_wave4(a, f"s_add_u32 s32, s43, {C_P3}\ns_lshl_b32 s32, s32, 7", 32, "Ll_s1", 9)
    a("s_cmp_ge_u32 s2, 216\ns_cbranch_scc1 Ll_now1")
    for i in range(4):
        a(f"s_mov_b32 s40, {i*M1_SLOT}"); m1_w(a)
    a.label("Ll_now1")
    a("s_cmp_lg_u32 s6, 0\ns_cbranch_scc1 Ll_np1")
    a(f"s_add_u32 s32, s43, {C_P3}\ns_lshl_b32 s32, s32, 7\nv_mov_b32 v10, s32")
    poll(a, 10, 16, 244)
    a.label("Ll_np1")
    a("s_barrier")
    a("s_branch Lln_shared")
    a.label("Ll_after_ln")
    a("s_cmp_lg_u32 s6, 0\ns_cbranch_scc1 Ll_s2")
    a(f"s_add_u32 s32, s43, {C_H2}\ns_lshl_b32 s32, s32, 7\nv_lshlrev_b32 v10, 11, v8\nv_mov_b32 v9, 1\ns_mov_b64 exec, 0xff")
    a(f"buffer_atomic_add v9, v10, {SYNC}, s32 offen sc1\ns_mov_b64 exec, -1")
    a.label("Ll_s2")
    a("s_cmp_ge_u32 s2, 216\ns_cbranch_scc1 Ll_nom1")
    a("s_load_dwordx2 s[24:25], s[0:1], 64\ns_waitcnt lgkmcnt(0)")
    m1_bias(a, 6)
    m1_loader_main(a)
    a(f"s_mul_hi_u32 s32, s28, 0x1c71c71d\ns_mul_i32 s32, s32, 6\ns_add_u32 s32, s32, s29\ns_add_u32 s32, s32, {C_U}\ns_lshl_b32 s63, s32, 7")
    g16_loader_setup(a, 'y')
    g16_loader_wpro(a, 'y')
    g2_wpf(a)
    a("v_mov_b32 v12, v2")
    m1_xaddr(a, 6)
    a("v_mov_b32 v2, v12\ns_barrier")
    for i in range(3):
        a(f"ds_read_b128 {vr(16+8*i,4)}, v4 offset:{2048*i}\nds_read_b128 {vr(20+8*i,4)}, v4 offset:{2048*i + 1024}")
    a("s_waitcnt lgkmcnt(0)")
    for i in range(6): a(f"ds_read_b128 {vr(40+4*i,4)}, v3 offset:{6144 + 1024*i}")
    m1_gelu(a, 16, 40, 3)
    a("s_waitcnt vmcnt(0)\ns_barrier")
    sig_wave4(a, "", 63, "Ll_s3", 9)
    a("s_branch Ll_g2")
    a.label("Ll_nom1")
    g16_loader_setup(a, 'y')
    g16_loader_wpro(a, 'y')
    g2_wpf(a)
    a.label("Ll_g2")
    g16_loader_main(a, 'y')
    final_pre(a)
    a("s_waitcnt vmcnt(0)")
    final_mid(a)
    a("s_barrier")
    a("s_cmp_lg_u32 s6, 0\ns_cbranch_scc1 Ll_np2")
    a(f"s_add_u32 s32, s43, {C_P6}\ns_lshl_b32 s32, s32, 7\nv_mov_b32 v10, s32")
    signal(a, 32, 9)
    poll(a, 10, 16, 244)
    a.label("Ll_np2")
    a("s_barrier")
    a.label("Lfinal")
    final_body(a)
    if STAMP:
        a(f"s_cmp_lg_u32 s3, {STAMP_WAVE}\ns_cbranch_scc1 Lend\ns_waitcnt vmcnt(0)")
        a("s_memrealtime s[92:93]\ns_waitcnt lgkmcnt(0)")
        stamp_flush(a, 15, "Lstf")
    a.label("Lend")
    a("s_endpgm")
    return n, a

def build(path):
    n, a = mega()
    txt = a.text()
    hdr = open('cdna_kernels/' + NAME + '.s.ref').read().split('\n')
    top = [l for l in hdr if l.startswith(';') and '@launch' not in l][:19]
    out = '\n'.join(top) + '\n'
    if os.environ.get('LIST'):
        out += f"; @launch kernel={n} grid=(256,1,1) block=(512,1,1) lds={LDS_TOTAL}\n"
    else:
        out += f"; @launch grid=(256,1,1) block=(512,1,1) lds={LDS_TOTAL}\n"
    if STAMP: out += '; stamps: ' + ','.join(STAMP_LIST) + '\n'
    out += '.amdgcn_target "amdgcn-amd-amdhsa--gfx950"\n' + kernel_header(n) + txt + kernel_desc(n, 256, 102)
    open(path, 'w').write(out)

if __name__ == '__main__':
    build(sys.argv[1] if len(sys.argv) > 1 else 'm.s')
```

```python
NAME = 'adaLN_cond__compressed_kv_cla__mixer_token_mlp__prompt'

class Asm:
    def __init__(self):
        self.lines = []
    def __call__(self, s=''):
        for l in s.split('\n'):
            t = l.strip()
            if not t: continue
            self.lines.append(t if t.endswith(':') else '    ' + t)
    def label(self, s): self.lines.append(s + ':')
    def text(self): return '\n'.join(self.lines) + '\n'

def kernel_header(name):
    return f".text\n.globl {name}\n.p2align 8\n.type {name},@function\n{name}:\n"

def kernel_desc(name, vgpr, sgpr=102, accum=None):
    if accum is None: accum = (vgpr + 3) // 4 * 4
    return f""".section .rodata,"a"
.p2align 6
.amdhsa_kernel {name}
  .amdhsa_next_free_vgpr {vgpr}
  .amdhsa_next_free_sgpr {sgpr}
  .amdhsa_accum_offset {accum}
  .amdhsa_group_segment_fixed_size 0
  .amdhsa_kernarg_size 128
  .amdhsa_user_sgpr_count 2
  .amdhsa_user_sgpr_kernarg_segment_ptr 1
  .amdhsa_system_sgpr_workgroup_id_x 1
.end_amdhsa_kernel
"""

KA = dict(x=0, ckv=8, wq=16, wuk=24, wuv=32, wo=40, bx=48, w1=56, b1=64, w2=72, b2=80, c=88, wmod=96, out=104, dbg=112, ws=120)
SIZES = dict(x=2048*576*2, ckv=2048*512*2, wq=576*4096*2, wuk=512*4096*2, wuv=512*4096*2, wo=4096*576*2,
             w1=2048*4608*2, b1=4608*2, w2=4608*2048*2, b2=2048*2, c=576*2, wmod=576*3456*2, out=2048*576*2, dbg=256)

MB = 1 << 20
WS = {}
def _ws():
    off = 0
    for n, sz in [('sync', 512*128), ('mod', 3456*4), ('modp', 4*3456*4), ('h1', 2048*576*2), ('kf', 32*2048*128*2), ('vf', 32*2048*128*2), ('ctx', 2048*4096*2),
                  ('p3', 4*2048*576*2), ('x1', 2048*576*2), ('h2', 2048*576*2), ('u', 576*4608*2), ('p6', 4*2048*576*2)]:
        WS[n] = (off, sz)
        off += (sz + 0xffff) & ~0xffff
_ws()

def vr(b, n): return f"v[{b}:{b+n-1}]" if n > 1 else f"v{b}"
def sr(b, n): return f"s[{b}:{b+n-1}]" if n > 1 else f"s{b}"

def load_ptr(a, sdst, name):
    a(f"s_load_dwordx2 {sr(sdst,2)}, s[0:1], {KA[name]}")

def make_srd(a, srd, sptr, size, add=0):
    if add:
        a(f"s_add_u32 s{srd}, s{sptr}, {add}")
        a(f"s_addc_u32 s{srd+1}, s{sptr+1}, 0")
        a(f"s_and_b32 s{srd+1}, s{srd+1}, 0xffff")
    else:
        a(f"s_mov_b32 s{srd}, s{sptr}")
        a(f"s_and_b32 s{srd+1}, s{sptr+1}, 0xffff")
    a(f"s_mov_b32 s{srd+2}, {size}")
    a(f"s_mov_b32 s{srd+3}, 0x20000")

def make_ws_srd(a, srd, sws, name):
    make_srd(a, srd, sws, WS[name][1], WS[name][0])

def interleave(primary, secondary, start=0, every=1):
    out = []
    sec = list(secondary)
    for i, p in enumerate(primary):
        out.append(p)
        if i >= start and (i - start) % every == 0 and sec:
            out.append(sec.pop(0))
    out.extend(sec)
    return out

def spread(primary, secondary):
    n = len(primary); m = len(secondary)
    out = []; k = 0
    for i, p in enumerate(primary):
        out.append(p)
        tgt = (m * (i + 1) + n - 1) // n
        while k < tgt:
            out.append(secondary[k]); k += 1
    return out

def round_bf16(a, v, tmp=None):
    a(f"v_cvt_pk_bf16_f32 v{v}, v{v}, v{v}")
    a(f"v_and_b32 v{v}, 0xffff0000, v{v}")

def wave_allsum(a, v, t):
    for r in (8, 4, 2, 1):
        a("s_nop 1")
        a(f"v_add_f32_dpp v{v}, v{v}, v{v} row_ror:{r} row_mask:0xf bank_mask:0xf")
    a(f"v_mov_b32 v{t}, v{v}")
    a("s_nop 1")
    a(f"v_permlane16_swap_b32 v{v}, v{t}")
    a("s_nop 1")
    a(f"v_add_f32 v{v}, v{v}, v{t}")
    a(f"v_mov_b32 v{t}, v{v}")
    a("s_nop 1")
    a(f"v_permlane32_swap_b32 v{v}, v{t}")
    a("s_nop 1")
    a(f"v_add_f32 v{v}, v{v}, v{t}")

import os
STAMP = os.environ.get('STAMP', '') != ''
STAMP_WG = int(os.environ.get('STAMP_WG', '100'))
STAMP_LIST = os.environ.get('STAMP', '').split(',')
STAMP_WAVE = int(os.environ.get('STAMP_WAVE', '0'))
def stamp(a, name):
    if STAMP and name in STAMP_LIST:
        i = STAMP_LIST.index(name)
        assert i < 14
        a(f"{'s_memtime' if os.environ.get('STAMPC') and i else 's_memrealtime'} s[{64+2*i}:{65+2*i}]")
STAMP_WS = 200 << 20
def stamp_flush(a, n, lab, dword0=16):
    if not STAMP: return
    a("s_waitcnt vmcnt(0) lgkmcnt(0)")
    a(f"s_add_u32 s56, s4, {STAMP_WS}\ns_addc_u32 s57, s5, 0\ns_and_b32 s57, s57, 0xffff\ns_mov_b32 s58, 16384\ns_mov_b32 s59, 0x20000")
    a("s_lshl_b32 s60, s2, 6\nv_mov_b32 v1, s60")
    for i in range(n):
        a(f"v_mov_b32 v2, s{64+2*i}\nbuffer_store_dword v2, v1, s[56:59], 0 offen offset:{4*i}\ns_nop 1")
    if os.environ.get('STAMP_DBG'):
        a(f"s_cmp_lg_u32 s2, {STAMP_WG}\ns_cbranch_scc1 {lab}")
        a("s_load_dwordx2 s[60:61], s[0:1], 112\ns_waitcnt lgkmcnt(0)")
        a("s_mov_b32 s56, s60\ns_and_b32 s57, s61, 0xffff\ns_mov_b32 s58, 256\ns_mov_b32 s59, 0x20000\nv_mov_b32 v1, 0")
        for i in range(1, n):
            a(f"s_sub_u32 s62, s{64+2*i}, s64\nv_mov_b32 v2, s62\nbuffer_store_dword v2, v1, s[56:59], 0 offen offset:{4*i}\ns_nop 1")
    a.label(lab)

import struct
def f32(x): return "0x%08x" % struct.unpack('<I', struct.pack('<f', x))[0]

def unpack8(a, src, dst):
    for d in range(4):
        a(f"v_lshlrev_b32 v{dst+2*d}, 16, v{src+d}\nv_and_b32 v{dst+2*d+1}, 0xffff0000, v{src+d}")

def round_pairs(a, base, n, tmp):
    for p in range(0, n, 2):
        a(f"v_cvt_pk_bf16_f32 v{tmp}, v{base+p}, v{base+p+1}")
        a(f"v_lshlrev_b32 v{base+p}, 16, v{tmp}\nv_and_b32 v{base+p+1}, 0xffff0000, v{tmp}")

class Ops(Asm):
    def ops(self): return [l.strip() for l in self.lines]

C_H1, C_KV, C_CTX, C_P3, C_U, C_P6, C_H2 = 0, 16, 48, 112, 128, 152, 168
C_KV2 = 296
C_KV3 = 328
C_PZ = 360
SYNC = "s[96:99]"
_poll_id = [0]
def poll(a, voff, target, vtmp):
    i = _poll_id[0]; _poll_id[0] += 1
    ld = lambda k: f"buffer_load_dword v{vtmp+k}, v{voff}, {SYNC}, 0 offen sc1"
    if not os.environ.get('POLL3'):
        a("s_mov_b32 s100, 0x8000")
        a.label(f"Lpoll{i}")
        a(ld(0)); a("s_waitcnt vmcnt(0)")
        a(f"v_cmp_gt_u32 vcc, {target}, v{vtmp}")
        a(f"s_sub_u32 s100, s100, 1\ns_cbranch_vccz Lpolld{i}")
        a(f"s_cmp_eq_u32 s100, 0\ns_cbranch_scc1 Lpolld{i}\ns_sleep 1\ns_branch Lpoll{i}")
        a.label(f"Lpolld{i}")
        return
    a("s_mov_b32 s100, 0x4000")
    a(ld(0)); a("s_sleep 4"); a(ld(1)); a("s_sleep 4"); a(ld(2))
    a.label(f"Lpoll{i}")
    for k in range(3):
        a("s_waitcnt vmcnt(2)")
        a(f"v_cmp_gt_u32 vcc, {target}, v{vtmp+k}")
        a(f"s_nop 0\ns_cbranch_vccz Lpolld{i}")
        a(ld(k))
    a(f"s_sub_u32 s100, s100, 1\ns_cmp_lg_u32 s100, 0\ns_cbranch_scc1 Lpoll{i}")
    a.label(f"Lpolld{i}")
def signal(a, soff, vtmp):
    a(f"v_mov_b32 v{vtmp}, 1\ns_mov_b64 exec, 1")
    a(f"buffer_atomic_add v{vtmp}, off, {SYNC}, s{soff} sc1")
    a("s_mov_b64 exec, -1")
```

```python
import sys, math, os
from gen_common import *
import k_attn as AT
from k_attn import (period, rare_path, build_ci, qk_group, pv_group, rd, mf, ADV, W4, KPOS, VPOS, BIG, QSCALE, THRESH, WQ_BYTES,
                    V_LANE16, V_RD, V_L, V_NEGM, V_Y, V_YD, V_T0, LU, T, CI, S, P, FR, Q, Q2, O)

OOB = "0xffffff00"
KORDER = [0, 1, 2, 3, 8, 9, 10, 11, 12, 13, 14, 15, 4, 5, 6, 7]
KREG = {k: (240 + 4*k if k < 4 else 128 + 4*(k - 8) if k >= 8 else 160 + 4*(k - 4)) for k in range(16)}
def kstore(k):
    return f"s_add_u32 s55, s57, {(k >> 2) * 65536}\nbuffer_store_dwordx4 {vr(KREG[k],4)}, v6, s[16:19], s55 offen offset:{(k & 3) * 1024}" + ("" if 'wb' in os.environ.get('XP', '').split(',') else " sc1")
LDS_TOTAL = 163840

def srd_off(a, srd, sptr, soff, add, size):
    a(f"s_add_u32 s{srd+2}, s{soff}, {add}\ns_add_u32 s{srd}, s{sptr}, s{srd+2}\ns_addc_u32 s{srd+1}, s{sptr+1}, 0\ns_and_b32 s{srd+1}, s{srd+1}, 0xffff")
    a(f"s_mov_b32 s{srd+2}, {size}\ns_mov_b32 s{srd+3}, 0x20000")

def phase_kv(a):
    A_BYTES = 32 * 1040; W_BYTES = 16 * 1088; SLOT = A_BYTES + 2 * W_BYTES
    GL = 2 * SLOT
    ML = GL + 2048
    XL = ML + 8192
    HAND = 131072
    ACC = 64; SET = [16, 40]
    a("s_load_dwordx8 s[28:35], s[0:1], 0\ns_load_dwordx2 s[36:37], s[0:1], 32\ns_load_dwordx4 s[40:43], s[0:1], 88\ns_load_dwordx4 s[44:47], s[0:1], 112")
    a("v_and_b32 v1, 63, v0\nv_lshrrev_b32 v2, 6, v0\ns_nop 1\nv_readfirstlane_b32 s3, v2")
    a("s_and_b32 s48, s2, 7\ns_lshr_b32 s49, s2, 3")
    a("s_and_b32 s55, s49, 3\ns_lshl_b32 s48, s48, 2\ns_add_u32 s48, s48, s55\ns_lshr_b32 s49, s49, 2")
    a("v_bfe_u32 v3, v1, 3, 2\nv_lshlrev_b32 v3, 13, v3\nv_lshrrev_b32 v4, 5, v1\nv_lshl_add_u32 v3, v4, 18, v3\nv_and_b32 v4, 7, v1\nv_lshl_add_u32 v3, v4, 4, v3")
    a("s_and_b32 s55, s3, 1\ns_lshl_b32 s55, s55, 12\ns_lshr_b32 s56, s3, 1\ns_lshl_b32 s56, s56, 19\ns_add_u32 s55, s55, s56")
    a("v_add_u32 v3, s55, v3")
    a("v_lshrrev_b32 v4, 4, v1\nv_lshlrev_b32 v4, 15, v4\nv_and_b32 v5, 15, v1\nv_lshl_add_u32 v4, v5, 4, v4")
    a("s_and_b32 s55, s3, 3\ns_lshl_b32 s55, s55, 17\nv_add_u32 v4, s55, v4")
    a("s_lshl_b32 s50, s49, 15\ns_lshl_b32 s51, s48, 8\ns_mul_i32 s52, s3, 4160")
    a(f"s_mul_i32 s53, s3, 4352\ns_add_u32 s53, s53, {A_BYTES}")
    a("s_and_b32 s61, s2, 3\ns_mul_i32 s55, s61, 144\nv_lshrrev_b32 v8, 3, v0\nv_add_u32 v8, s55, v8\nv_mul_u32_u24 v245, 6912, v8\nv_and_b32 v2, 7, v0")
    a("v_lshl_add_u32 v245, v2, 4, v245\ns_lshr_b32 s55, s2, 2\ns_lshl_b32 s55, s55, 7\nv_add_u32 v245, s55, v245\nv_lshlrev_b32 v8, 1, v8")
    a("s_lshl_b32 s60, s2, 3\ns_add_u32 s60, s60, s3\ns_mul_i32 s55, s60, 1152\nv_lshlrev_b32 v10, 4, v1\nv_add_u32 v10, s55, v10")
    a(f"v_cmp_gt_u32 vcc, 8, v1\nv_mov_b32 v15, {OOB}\nv_add_u32 v11, 1024, v10\nv_cndmask_b32 v11, v15, v11, vcc")
    a("s_waitcnt lgkmcnt(0)")
    a("s_mov_b32 s4, s46\ns_mov_b32 s5, s47")
    make_srd(a, 8, 30, SIZES['ckv'])
    a("s_cmp_lt_u32 s3, 4\ns_cselect_b32 s34, s34, s36\ns_cselect_b32 s35, s35, s37")
    make_srd(a, 12, 34, SIZES['wuk'])
    def dma_ops(slot):
        ops = []
        for jj in range(4):
            ops.append(f"s_add_u32 m0, s52, {slot*SLOT + 16*jj}\ns_nop 0\nbuffer_load_dwordx4 v3, s[8:11], s50 offen offset:{1024*jj} lds")
        for jj in range(4):
            ops.append(f"s_add_u32 m0, s53, {slot*SLOT + 1088*jj}\ns_add_u32 s55, s51, {8192*jj}\nbuffer_load_dwordx4 v4, s[12:15], s55 offen lds")
        return ops
    ADVD = f"s_add_u32 s50, s50, 128\ns_add_u32 s51, s51, {64*8192}"
    for st in range(2):
        for o in dma_ops(st): a(o)
        a(ADVD)
    CPF = 0 if 'nocpf' in os.environ.get('XP', '') else 1
    if CPF:
        a("s_getpc_b64 s[16:17]")
        a.label("Lpc")
        a("s_and_b32 s17, s17, 0xffff\ns_mov_b32 s18, Lend-Lpc\ns_mov_b32 s19, 0x20000")
        a("s_lshr_b32 s55, s2, 3\ns_lshl_b32 s55, s55, 3\ns_add_u32 s55, s55, s3\ns_lshl_b32 s55, s55, 9\nv_lshlrev_b32 v2, 3, v1")
        a("buffer_load_dwordx2 v[220:221], v2, s[16:19], s55 offen")
    a("s_lshl_b32 s63, s49, 15\ns_and_b32 s55, s48, 3\ns_lshl_b32 s55, s55, 10\ns_add_u32 s63, s63, s55")
    a("s_and_b32 s7, s49, 3\ns_lshl_b32 s7, s7, 13\ns_lshl_b32 s55, s48, 8\ns_add_u32 s7, s7, s55")
    a("s_bfe_u32 s55, s3, 0x10001\ns_lshr_b32 s56, s49, 2\ns_cmp_eq_u32 s55, s56\ns_cselect_b32 s7, s7, 0x7f000000")
    if 'nol2' in os.environ.get('XP', ''): a("s_mov_b32 s7, 0x7f000000\ns_mov_b32 s63, 0x7f000000")
    def l2pf(t):
        return [f"buffer_load_dwordx4 v[220:223], v3, s[8:11], s63 offen offset:{128*t}",
                f"s_add_u32 s56, s7, {t*64*8192}\nbuffer_load_dwordx4 v[220:223], v4, s[12:15], s56 offen"]
    l = Ops()
    make_srd(l, 16, 40, SIZES['c']); make_srd(l, 20, 42, SIZES['wmod']); make_srd(l, 24, 28, SIZES['x'])
    l("s_cmp_lt_u32 s2, 216\ns_cselect_b32 s22, s22, 0")
    l(f"s_mov_b32 s59, 0x7f000000\ns_cmp_lt_u32 s3, 2\ns_cselect_b32 s58, {128*6912}, s59\ns_cselect_b32 s59, 256, s59\ns_mov_b32 s55, {64*6912}")
    for i, (so, sc) in enumerate((('0', '0 offen'), ('s55', '0 offen offset:128'), ('s58', 's59 offen'))):
        l(f"buffer_load_dwordx4 {vr(192+4*i,4)}, v245, s[20:23], {so} offen")
        l(f"buffer_load_ushort v{204+i}, v8, s[16:19], {sc}")
    l("buffer_load_dwordx4 v[224:227], v10, s[24:27], 0 offen\nbuffer_load_dwordx4 v[228:231], v11, s[24:27], 0 offen")
    make_ws_srd(l, 96, 4, 'sync')
    l(f"v_lshlrev_b32 v2, 2, v1\ns_lshl_b32 s55, s2, 8\nv_add_u32 v2, s55, v2\nv_mov_b32 v243, 0")
    l.lines.append("ZSTORE")
    make_srd(l, 36, 44, 256); make_ws_srd(l, 40, 4, 'modp'); make_srd(l, 16, 32, SIZES['wq']); make_ws_srd(l, 24, 4, 'h1'); make_ws_srd(l, 20, 4, 'mod')
    def sloads(role):
        return [(f"s_cmp_lg_u32 s3, 0\ns_cbranch_scc1 Lkv_nz\nbuffer_store_dword v243, v2, {SYNC}, 0 offen sc1\nLkv_nz:" if role == 0 else "s_nop 0")
                if o == "ZSTORE" else o for o in l.ops()]
    a("v_and_b32 v5, 7, v1\nv_mul_u32_u24 v5, 1040, v5\nv_bfe_u32 v6, v1, 3, 2\nv_lshl_add_u32 v5, v6, 7, v5")
    a("v_lshrrev_b32 v6, 5, v1\nv_lshl_add_u32 v5, v6, 4, v5")
    a("s_and_b32 s55, s3, 1\ns_mul_i32 s55, s55, 16640\nv_add_u32 v5, s55, v5")
    a("v_bfe_u32 v6, v1, 2, 2\nv_mul_u32_u24 v6, 1088, v6\nv_lshrrev_b32 v7, 5, v1\nv_lshl_add_u32 v6, v7, 9, v6")
    a("v_bfe_u32 v7, v1, 4, 1\nv_lshl_add_u32 v6, v7, 5, v6\nv_and_b32 v7, 3, v1\nv_lshl_add_u32 v6, v7, 3, v6")
    a(f"s_lshr_b32 s55, s3, 2\ns_mul_i32 s55, s55, {W_BYTES}\ns_bfe_u32 s56, s3, 0x10001\ns_lshl_b32 s56, s56, 7")
    a(f"s_add_u32 s55, s55, s56\ns_add_u32 s55, s55, {A_BYTES}\nv_add_u32 v6, s55, v6")
    a(f"v_lshrrev_b32 v9, 3, v0\nv_lshlrev_b32 v13, 9, v9\nv_lshlrev_b32 v9, 5, v9\nv_add_u32 v9, {ML}, v9\nv_lshlrev_b32 v12, 4, v0\nv_cmp_gt_u32 vcc, 288, v0\ns_nop 1\nv_cndmask_b32 v12, v15, v12, vcc")
    a("s_lshr_b32 s55, s2, 2\ns_mul_i32 s55, s55, 36864\ns_and_b32 s56, s2, 3\ns_lshl_b32 s56, s56, 7\ns_add_u32 s62, s55, s56")
    a(f"v_and_b32 v14, 7, v0\nv_lshl_add_u32 v13, v14, 4, v13\ns_lshl_b32 s55, s3, 4\ns_add_u32 s55, s55, {XL}\nv_lshlrev_b32 v14, 7, v1\nv_add_u32 v14, s55, v14")
    a(f"s_lshl_b32 s55, s3, 8\ns_add_u32 s55, s55, {GL}\nv_lshlrev_b32 v7, 5, v1\nv_add_u32 v7, s55, v7")
    for i in range(0, 128, 2): a(f"v_mov_b64 {vr(ACC+i,2)}, 0")

    pf = ["s_mul_i32 s55, s60, 2304\nv_lshlrev_b32 v2, 4, v1"] + [f"buffer_load_dwordx4 v[220:223], v2, s[16:19], s55 offen offset:{1024*i}" for i in range(3)]
    g = Ops()
    for i in range(3):
        c = 204 + i
        g(f"v_lshlrev_b32 v{c}, 16, v{c}\nv_mul_f32 v216, 0xbfb8aa3b, v{c}\nv_exp_f32 v216, v216\ns_nop 0\nv_add_f32 v216, 1.0, v216\nv_rcp_f32 v216, v216\ns_nop 0\nv_mul_f32 v{c}, v{c}, v216")
        round_bf16(g, c)
        for d in range(4):
            w = 192 + 4*i + d
            op = "v_mul_f32" if i == 0 else "v_fmac_f32"
            g(f"v_lshlrev_b32 v216, 16, v{w}\nv_and_b32 v217, 0xffff0000, v{w}\n{op} v{208+2*d}, v{c}, v216\n{op} v{209+2*d}, v{c}, v217")
    g("s_nop 1")
    for k in range(8): g(f"v_add_f32_dpp v{208+k}, v{208+k}, v{208+k} row_ror:8 row_mask:0xf bank_mask:0xf")
    for sw in ("v_permlane16_swap_b32", "v_permlane32_swap_b32"):
        for k in range(8): g(f"v_mov_b32 v{192+k}, v{208+k}")
        g("s_nop 0")
        for k in range(8): g(f"{sw} v{208+k}, v{192+k}")
        for k in range(8): g(f"v_add_f32 v{208+k}, v{208+k}, v{192+k}")
    gemv = g.ops() + ["s_mov_b64 exec, 0xff\nds_write_b128 v7, v[208:211]\nds_write_b128 v7, v[212:215] offset:16\ns_mov_b64 exec, -1"]
    mload = [f"v_lshlrev_b32 v10, 4, v0\nv_add_u32 v10, {ML}, v10"] + [f"s_mov_b32 s55, {13824*r}\nbuffer_load_dwordx4 {vr(192+4*r,4)}, v12, s[40:43], s55 offen sc1" for r in range(4)]
    q = Ops()
    for k in range(4): q(f"v_add_f32 v{192+k}, v{192+k}, v{196+k}\nv_add_f32 v{200+k}, v{200+k}, v{204+k}")
    for k in range(4): q(f"v_add_f32 v{192+k}, v{192+k}, v{200+k}")
    round_pairs(q, 192, 4, 2)
    q("v_cmp_lt_u32 vcc, 143, v0\ns_nop 1\nv_cndmask_b32 v196, 0, 1.0, vcc")
    for k in range(4): q(f"v_add_f32 v{192+k}, v{192+k}, v196")
    round_pairs(q, 192, 4, 2)
    q("ds_write_b128 v10, v[192:195]")
    msum = q.ops()
    x = Ops()
    unpack8(x, 224, 232); unpack8(x, 228, 240)
    x("v_add_f32 v216, v232, v233")
    for i in range(234, 248): x(f"v_add_f32 v216, v216, v{i}")
    wave_allsum(x, 216, 217)
    x("v_mul_f32 v216, 0x3ae38e39, v216\nv_cmp_gt_u32 vcc, 8, v1\nv_mov_b32 v219, 0\ns_nop 0\nv_cndmask_b32 v218, 0, v216, vcc")
    for i in range(16): x(f"v_sub_f32 v217, v{232+i}, v{216 if i < 8 else 218}\nv_fmac_f32 v219, v217, v217")
    wave_allsum(x, 219, 217)
    x("v_mul_f32 v219, 0x3ae38e39, v219")
    round_bf16(x, 216); round_bf16(x, 219)
    x("v_add_f32 v219, 0x3727c5ac, v219"); round_bf16(x, 219)
    x("v_sqrt_f32 v219, v219\ns_nop 0"); round_bf16(x, 219)
    x("v_rcp_f32 v219, v219\ns_nop 0")
    for i in range(16): x(f"v_sub_f32 v{232+i}, v{232+i}, v216")
    round_pairs(x, 232, 16, 217)
    for i in range(16): x(f"v_mul_f32 v{232+i}, v{232+i}, v219")
    for p in range(8): x(f"v_cvt_pk_bf16_f32 v{248+p}, v{232+2*p}, v{233+2*p}")
    x("ds_write_b128 v14, v[248:251]\nds_write_b128 v14, v[252:255] offset:8192")
    xst = x.ops()
    def h1fin(u):
        h = Ops()
        h(f"ds_read_b128 v[224:227], v10 offset:{XL - ML + 8192*u}")
        for k, off in enumerate((0, 16, 2304, 2320)): h(f"ds_read_b128 {vr(192+4*k,4)}, v9 offset:{off + 2048*u}")
        h("s_waitcnt lgkmcnt(0)")
        unpack8(h, 224, 232)
        for i in range(8): h(f"v_mul_f32 v{232+i}, v{232+i}, v{200+i}")
        round_pairs(h, 232, 8, 2)
        for i in range(8): h(f"v_add_f32 v{232+i}, v{232+i}, v{192+i}")
        for p in range(4): h(f"v_cvt_pk_bf16_f32 v{228+4*u+p}, v{232+2*p}, v{233+2*p}") if u == 0 else h(f"v_cvt_pk_bf16_f32 v{240+p}, v{232+2*p}, v{233+2*p}")
        h(f"s_add_u32 s55, s62, {32768*u}\nbuffer_store_dwordx4 {vr(228 if u == 0 else 240,4)}, v13, s[24:27], s55 offen sc1")
        return h.ops()

    def reads(ks, s):
        b = SET[s]; r = []
        for nn in range(2):
            for e in range(2): r.append(f"ds_read_b64_tr_b16 {vr(b+16+4*nn+2*e,2)}, v6 offset:{ks*4352 + e*256 + nn*64}")
        for m in range(4): r.append(f"ds_read_b128 {vr(b+4*m,4)}, v5 offset:{(m>>1)*8320 + (m&1)*512 + ks*32}")
        return r
    def mfmas(s, role):
        b = SET[s]; r = []
        for m in range(4):
            for nn in range(2):
                acc = vr(ACC + 16*(2*m+nn), 16); c = vr(b+4*m, 4); w = vr(b+16+4*nn, 4)
                r.append(mf(acc, w, c, acc) if role == 0 else mf(acc, c, w, acc))
        return r
    stamp(a, 'kv_pro')
    a(f"s_waitcnt vmcnt({8 + CPF})\ns_barrier")
    stamp(a, 'kv_b0')
    for o in reads(0, 0): a(o)
    a("s_cmp_lt_u32 s3, 4\ns_cbranch_scc0 Lkv_r1")
    for role in range(2):
        a.label(f"Lkv_r{role}")
        if role == 1 and 'p1' in os.environ.get('PR', ''): a("s_setprio 1")
        if role == 0 and 'p0' in os.environ.get('PR', ''): a("s_setprio 1")
        hx = len(xst) // 2
        for t in range(8):
            pl = ['s_cmp_lg_u32 s3, 0\ns_cbranch_scc1 Lkv_npl\nbuffer_load_dword v15, v11, s[36:39], 0 offen sc1\nLkv_npl:'] if role == 0 else []
            side = {0: l2pf(2) + l2pf(3) + sloads(role), 1: gemv, 2: xst[:hx], 3: xst[hx:], 4: ['s_nop 0'] * 10 + pl + pf,
                    5: mload + ['s_nop 0'] * 40 + ['s_waitcnt vmcnt(0)'] + msum, 6: h1fin(0)}.get(t, [])
            if 'noval' in os.environ.get('XP', '') and t in (1, 2, 3): side = [o for o in side if 'buffer' in o or 'ds_' in o]
            if 'novm' in os.environ.get('XP', '') and t == 4: side = [o if 'buffer' not in o else o.replace('s55 offen', 's100 offen') for o in side]; a('s_mov_b32 s100, 0x7f000000')
            g0 = 8 * (int(os.environ.get('DKS', '0')) + 1) if (role == 1 and t in (4, 5, 6)) else 0
            if 1 <= t <= 4: side = side + l2pf(t + 3)
            per = (len(side) + 23 - g0) // (24 - g0)
            if t == 1: a(f"s_waitcnt vmcnt({8 if role == 0 else 0})")
            if t == 2 and role == 0:
                a("s_cmp_lg_u32 s3, 0\ns_cbranch_scc1 Lkv_nofin")
                a(f"v_lshlrev_b32 v2, 2, v1\nv_add_u32 v15, {GL}, v2")
                for w in range(8): a(f"ds_read_b32 v{192+w}, v15 offset:{256*w}")
                a("s_mul_i32 s55, s61, 13824\ns_lshr_b32 s56, s2, 2\ns_lshl_b32 s56, s56, 8\ns_add_u32 s55, s55, s56\ns_cmp_lt_u32 s2, 216\ns_cselect_b32 s55, s55, 0x7f000000\ns_waitcnt lgkmcnt(0)")
                for w in range(1, 8): a(f"v_add_f32 v192, v192, v{192+w}")
                a("buffer_store_dword v192, v2, s[40:43], s55 offen sc1\nv_mov_b32 v2, 1\ns_lshl_b32 s55, s61, 6\nv_and_b32 v11, 3, v1\nv_lshlrev_b32 v11, 6, v11")
                a("s_waitcnt vmcnt(0)\ns_mov_b64 exec, 1\nbuffer_atomic_add v2, off, s[36:39], s55 sc1\ns_mov_b64 exec, -1")
                a.label("Lkv_nofin")
            if t in (5, 6) and role == 1:
                a(f"s_cmp_lg_u32 s3, 7\ns_cbranch_scc1 Lkv_nofm{t}")
                if t == 5:
                    a(f"s_lshl_b32 s55, s2, 6\nv_lshlrev_b32 v15, 2, v1\nv_add_u32 v15, s55, v15\nv_cmp_gt_u32 vcc, 16, v1\nv_mov_b32 v2, {OOB}\ns_cmp_lt_u32 s2, 216\ns_cselect_b64 vcc, vcc, 0\ns_nop 1\nv_cndmask_b32 v15, v2, v15, vcc")
                    for r in range(4): a(f"s_mov_b32 s55, {13824*r}\nbuffer_load_dword v{216+r}, v15, s[40:43], s55 offen sc1")
                else:
                    a("v_add_f32 v216, v216, v217\nv_add_f32 v218, v218, v219\nv_add_f32 v216, v216, v218")
                    round_bf16(a, 216)
                    a("buffer_store_dword v216, v15, s[20:23], 0 offen sc1")
                a.label(f"Lkv_nofm{t}")
            for ks in range(3):
                a("s_waitcnt lgkmcnt(0)")
                m = mfmas(ks & 1, role); r = reads(ks + 1, (ks + 1) & 1)
                dm = dma_ops((t - 1) & 1) if (role == 1 and ks == int(os.environ.get('DKS', '0')) and 1 <= t <= 6) else None
                for i in range(8):
                    a(m[i])
                    for o in r[2*i:2*i+2]: a(o)
                    if dm: a(dm[i])
                    k = (ks * 8 + i - g0) * per
                    if k >= 0:
                        for o in side[k:k+per]:
                            if o != 's_nop 0' or t not in (4, 5): a(o)
                if dm: a(ADVD)
            if t == 6 and role == 0:
                a("s_cmp_lg_u32 s3, 0\ns_cbranch_scc1 Lkv_noh2")
                for o in h1fin(1): a(o)
                a.label("Lkv_noh2")
            d = SLOT if t % 2 == 0 else -SLOT
            a(f"v_add_u32 v5, {d & 0xffffffff}, v5\nv_add_u32 v6, {d & 0xffffffff}, v6")
            a(f"s_waitcnt vmcnt({ {0: 12 + CPF, 1: 2, 2: 2, 3: 2, 4: 5, 6: 1}.get(t, 0) }) lgkmcnt(0)")
            if t == 4 and role == 0:
                a("s_cmp_lg_u32 s3, 0\ns_cbranch_scc1 Lkv_mpd\ns_mov_b32 s100, 0x8000")
                a.label("Lkv_mp")
                a("v_cmp_gt_u32 vcc, 64, v15\ns_sub_u32 s100, s100, 1\ns_cbranch_vccz Lkv_mpd\ns_cmp_eq_u32 s100, 0\ns_cbranch_scc1 Lkv_mpd")
                a("buffer_load_dword v15, v11, s[36:39], 0 offen sc1\ns_waitcnt vmcnt(0)\ns_branch Lkv_mp")
                a.label("Lkv_mpd")
            stamp(a, f'kw{t}')
            a("s_barrier")
            stamp(a, f'kv{t}')
            if t == 7 and role == 1:
                a("s_cmp_lg_u32 s3, 7\ns_cbranch_scc1 Lkv_ns1\ns_lshr_b32 s55, s2, 4\ns_lshl_b32 s55, s55, 7")
                signal(a, 55, 2)
                a.label("Lkv_ns1")
            m = mfmas(1, role); r = reads(0, 0) if t < 7 else []; dm = dma_ops(t & 1)
            for i in range(8):
                a(m[i])
                for o in r[2*i:2*i+2]: a(o)
                if t < 6 and role == 0: a(dm[i])
            if t < 6 and role == 0: a(ADVD)
        stamp(a, 'kv_end')
        a("v_lshlrev_b32 v7, 4, v1")
        a("s_lshl_b32 s55, s48, 19\ns_lshl_b32 s56, s49, 13\ns_add_u32 s55, s55, s56")
        a("s_and_b32 s56, s3, 1\ns_lshl_b32 s56, s56, 18\ns_add_u32 s57, s55, s56")
        def pack(k, dst):
            src = ACC + 8*k
            for p in range(4): a(f"v_cvt_pk_bf16_f32 v{dst+p}, v{src+2*p}, v{src+2*p+1}")
        if role == 1:
            a(f"s_sub_u32 s6, s3, 4\ns_and_b32 s55, s3, 1\ns_lshl_b32 s55, s55, 14\ns_add_u32 s55, s55, {HAND}\nv_add_u32 v2, s55, v7")
            a("s_cmp_ge_u32 s3, 6\ns_cbranch_scc1 Lkv_sw")
            a("v_mov_b32 v12, v2")
            attn_loader_setup(a)
            for k in range(16):
                dst = 16 + 4 * (k % 8)
                pack(k, dst)
                a(f"ds_write_b128 v12, {vr(dst,4)} offset:{1024*k}")
            a("s_waitcnt lgkmcnt(0)\ns_barrier")
            a("s_branch Lat_load")
            a.label("Lkv_sw")
            for k in range(16): pack(k, ACC + 4*k)
            make_ws_srd(a, 20, 4, 'vf')
            if 'nov' in os.environ.get('XP', ''): a("s_mov_b32 s22, 0")
            a("s_cmp_lg_u32 s3, 7\ns_cbranch_scc1 Lkv_np1\ns_lshr_b32 s31, s2, 5\ns_sub_u32 s30, 15, s31")
            a(f"v_and_b32 v3, 1, v1\nv_mov_b32 v4, s30\nv_mov_b32 v5, s31\nv_cmp_eq_u32 vcc, 0, v3\ns_nop 1\nv_cndmask_b32 v3, v5, v4, vcc\nv_lshlrev_b32 v3, 7, v3")
            stamp(a, 'l_h1p0')
            poll(a, 3, 16, 244)
            stamp(a, 'l_h1p1')
            a.label("Lkv_np1")
            a("s_barrier")
            for k in range(16): a(f"ds_read_b128 {vr(128+4*k,4)}, v2 offset:{1024*k}")
            a("s_branch Lat_sw")
        else:
            for k in KORDER: pack(k, KREG[k])
            make_ws_srd(a, 16, 4, 'kf')
            if 'nok' in os.environ.get('XP', ''): a("s_mov_b32 s18, 0")
            a("s_lshr_b32 s56, s3, 1\ns_lshl_b32 s56, s56, 12\ns_add_u32 s57, s57, s56")
            a("v_mov_b32 v6, v7")
            a("s_branch Lat_comp")

def attn_ids(a):
    a("s_and_b32 s28, s2, 7\ns_lshr_b32 s29, s2, 3")
    a("s_and_b32 s30, s29, 3\ns_lshl_b32 s28, s28, 2\ns_add_u32 s28, s28, s30")
    if 'longfirst' in os.environ.get('XP', ''): a("s_lshr_b32 s31, s29, 2\ns_sub_u32 s30, 15, s31")
    else: a("s_lshr_b32 s30, s29, 2\ns_sub_u32 s31, 15, s30")
    a(f"v_and_b32 v8, 63, v0\nv_lshlrev_b32 v{V_LANE16}, 4, v8")

def phase_attn_compute(a):
    a.label("Lat_comp")
    a("s_setprio 1" if 'pc' in os.environ.get('PR', '') else "s_setprio 0" if os.environ.get('PR') else "")
    attn_ids(a)
    a("v_bfe_u32 v2, v8, 2, 2\nv_mul_u32_u24 v2, 1088, v2\nv_lshrrev_b32 v9, 5, v8\nv_lshl_add_u32 v2, v9, 9, v2")
    a("v_bfe_u32 v9, v8, 4, 1\nv_lshl_add_u32 v2, v9, 5, v2\nv_and_b32 v9, 3, v8\nv_lshl_add_u32 v2, v9, 3, v2")
    a(f"s_lshl_b32 s32, s3, 11\ns_add_u32 s32, s32, {WQ_BYTES}\nv_add_u32 v3, s32, v{V_LANE16}")
    a("v_and_b32 v9, 31, v8\ns_lshl_b32 s32, s3, 5\nv_add_u32 v9, s32, v9\nv_lshrrev_b32 v10, 5, v8\nv_lshlrev_b32 v10, 2, v10")
    a(f"v_sub_u32 v9, v9, v10\nv_cvt_f32_i32 v9, v9\nv_add_f32 v9, 0.5, v9\nv_mul_f32 v{V_YD}, {f32(BIG)}, v9")
    QACC = lambda qt, t: (16 + 16*t) if qt == 0 else (O + 16*t)
    QSET = [FR, FR + 24]
    for i in range(0, 64, 2): a(f"v_mov_b64 {vr(16+i,2)}, 0\nv_mov_b64 {vr(O+i,2)}, 0")
    make_ws_srd(a, 20, 4, 'ctx')
    a(f"s_mov_b32 s46, {f32(QSCALE)}\ns_mov_b32 s47, {f32(QSCALE)}")
    def qreads(ks, st):
        b = QSET[st]; r = []
        for qt in range(2): r.append(f"ds_read_b128 {vr(b+16+4*qt,4)}, v3 offset:{qt*8192 + ks*1024}")
        for t in range(4):
            for e in range(2): r.append(f"ds_read_b64_tr_b16 {vr(b+4*t+2*e,2)}, v2 offset:{ks*4352 + e*256 + t*64}")
        return r
    def qmf(st):
        b = QSET[st]
        return [mf(vr(QACC(qt, t), 16), vr(b+4*t, 4), vr(b+16+4*qt, 4), vr(QACC(qt, t), 16)) for t in range(4) for qt in range(2)]
    def front(m, r):
        out = []
        for i, x in enumerate(m):
            out.append(x); out += r[2*i:2*i+2]
        return out
    a("s_mov_b32 s40, 0")
    stamp(a, 'q_pre')
    a("s_barrier\ns_barrier")
    stamp(a, 'q_b0')
    for o in qreads(0, 0): a(o)
    for c in range(18):
        a("s_waitcnt lgkmcnt(0)")
        ops = front(qmf(0), qreads(1, 1))
        if c < 16: ops.insert(20, kstore(c))
        for o in ops: a(o)
        d = AT.SLOT if c % 5 != 4 else -4 * AT.SLOT
        a(f"v_add_u32 v2, {d & 0xffffffff}, v2\nv_add_u32 v3, {d & 0xffffffff}, v3")
        if c == 9: a("s_waitcnt vmcnt(2)")
        if c == 17: a("s_waitcnt vmcnt(0)")
        a("s_waitcnt lgkmcnt(0)")
        for o in front(qmf(1), qreads(0, 0) if c < 17 else []): a(o)
        a("s_barrier")
        stamp(a, f'q{c}')
    a(f"s_mov_b32 s40, {3*AT.SLOT}")
    stamp(a, 'q_end')
    a("v_and_b32 v8, 63, v0\nv_bfe_u32 v9, v8, 4, 1\nv_lshlrev_b32 v9, 17, v9\nv_lshrrev_b32 v10, 5, v8\nv_lshl_add_u32 v9, v10, 8, v9")
    a(f"v_and_b32 v10, 15, v8\nv_lshl_add_u32 v{V_T0}, v10, 4, v9\nv_mov_b32 v{V_T0+1}, {f32(THRESH)}")
    a(ADV[1])
    a("s_nop 7")
    for qt in (1, 0):
        for t in range(4):
            for e in range(2):
                for p in range(4):
                    s_ = QACC(qt, t) + 8*e + 2*p
                    a(f"v_pk_mul_f32 {vr(s_,2)}, {vr(s_,2)}, s[46:47]")
                for p in range(4):
                    s_ = QACC(qt, t) + 8*e + 2*p
                    a(f"v_cvt_pk_bf16_f32 v{(Q, Q2)[qt] + 4*(2*t+e) + p}, v{s_}, v{s_+1}")
        if qt == 1:
            for i in range(8): a(rd(i, KPOS[1]))
    a("s_mov_b32 s42, s30\ns_mov_b32 s43, 0")
    a.label("Lat_qk0")
    a(f"s_lshl_b32 s32, s42, 7\nv_cvt_f32_u32 v{V_Y}, s32\nv_mul_f32 v{V_Y}, {f32(BIG)}, v{V_Y}\nv_add_f32 v{V_Y}, v{V_Y}, v{V_YD}")
    a(f"v_mov_b32 v{V_NEGM}, 0")
    for o in build_ci(): a(o)
    a(ADV[0]); a(ADV[1])
    z = [f"v_mov_b64 {vr(O+i,2)}, 0" for i in range(0, 64, 2)] + [f"v_mov_b64 {vr(P[1]+i,2)}, 0" for i in range(0, 8, 2)]
    z += [f"v_mov_b32 v{V_L}, 0", f"v_mov_b32 v{LU[1]}, 0"]
    m = qk_group(0)
    for i in range(8):
        if i == 0: a("s_waitcnt lgkmcnt(5)")
        if i % 4 == 3: a(W4)
        a(m[i]); a(rd(i, KPOS[0]))
        for o in z[5*i:5*i+5]: a(o)
    a("s_nop 7\ns_nop 1")
    s = S[0]; t = V_T0 + 2; d = V_T0 + 3
    a(f"v_max3_f32 v{d}, v{s}, v{s+1}, v{s+2}")
    for r in range(3, 15, 2): a(f"v_max3_f32 v{d}, v{d}, v{s+r}, v{s+r+1}")
    a(f"v_max_f32 v{d}, v{d}, v{s+15}")
    a(f"v_mov_b32 v{t}, v{d}\ns_nop 1\nv_permlane32_swap_b32 v{d}, v{t}\ns_nop 1")
    a(f"v_max_f32 v{d}, v{d}, v{t}")
    a(f"v_sub_f32 v{V_NEGM}, 0, v{d}")
    for r in range(16): a(f"v_sub_f32 v{s+r}, v{s+r}, v{d}")
    for o in build_ci(): a(o)
    sites = []
    a(f"v_mov_b32 v{V_Y}, v{V_YD}")
    a("s_cmp_eq_u32 s42, 0\ns_cbranch_scc0 Lat_plain_pre")
    a(f"v_add_f32 v{V_Y}, {f32(-64*BIG)}, v{V_Y}\ns_mov_b32 s41, 1\ns_branch Lat_rebuild")
    a.label("Lat_plain_pre")
    a("s_lshl_b32 s41, s42, 1\ns_sub_u32 s41, s41, 1")
    a.label("Lat_plain")
    a("s_barrier")
    sites.append(period(a, 0, 0, VPOS[0], KPOS[1]))
    sites.append(period(a, 1, 1, VPOS[1], KPOS[0], adv=True, tail_ops=["s_sub_u32 s41, s41, 1\ns_cmp_lg_u32 s41, 0"]))
    a("s_cbranch_scc1 Lat_plain")
    a("s_mov_b32 s41, 2")
    a.label("Lat_rebuild")
    a("s_barrier")
    sites.append(period(a, 0, 2, VPOS[0], KPOS[1], rebuild=True))
    sites.append(period(a, 1, 3, VPOS[1], KPOS[0], rebuild=True, adv=True, tail_ops=["s_sub_u32 s41, s41, 1\ns_cmp_lg_u32 s41, 0"]))
    a("s_cbranch_scc1 Lat_rebuild")
    a("s_barrier")
    sites.append(period(a, 0, 4, VPOS[0], VPOS[1]))
    sites.append(period(a, 1, 5, None, VPOS[0], qk=False, adv=True))
    a("s_barrier")
    m = pv_group(1)
    mv = [f"v_mov_b64 {vr(Q+i,2)}, {vr(Q2+i,2)}" for i in range(0, 32, 2)]
    for i in range(8):
        if i % 4 == 3: a(W4)
        a(m[i]); a(rd(i, KPOS[1]))
        for o in mv[2*i:2*i+2]: a(o)
    a("s_cmp_eq_u32 s43, 0\ns_cbranch_scc1 Lat_noE\ns_waitcnt lgkmcnt(0)\ns_barrier")
    a.label("Lat_noE")
    a(f"v_add_f32 v{V_L}, v{V_L}, v{LU[1]}")
    a(f"v_mov_b32 v{t}, v{V_L}\ns_nop 1\nv_permlane32_swap_b32 v{V_L}, v{t}\ns_nop 1\nv_add_f32 v{V_L}, v{V_L}, v{t}")
    a(f"v_rcp_f32 v{T}, v{V_L}\ns_nop 0\nv_mov_b32 v{T+1}, v{T}")
    a("s_lshl_b32 s32, s42, 20\ns_lshl_b32 s33, s3, 18\ns_add_u32 s32, s32, s33\ns_lshl_b32 s33, s28, 12\ns_add_u32 s32, s32, s33")
    a("s_nop 3")
    k = 0
    for tt in range(4):
        for e in range(2):
            src = O + 16*tt + 8*e; dst = S[0] + 4 * k; k += 1
            for p in range(4): a(f"v_pk_mul_f32 {vr(src+2*p,2)}, {vr(src+2*p,2)}, {vr(T,2)}")
            for p in range(4): a(f"v_cvt_pk_bf16_f32 v{dst+p}, v{src+2*p}, v{src+2*p+1}")
            a(f"buffer_store_dwordx4 {vr(dst,4)}, v{V_T0}, s[20:23], s32 offen offset:{tt*1024 + e*512} sc1")
    a("s_cmp_lg_u32 s43, 0\ns_cbranch_scc1 Lat_cend")
    a("s_mov_b32 s43, 1\ns_mov_b32 s42, s31\ns_branch Lat_qk0")
    for site, par in sites:
        a.label(f"Lat_rs{site}")
        a(f"s_call_b64 s[44:45], Lat_rare{par}\ns_branch Lat_rb{site}")
    rare_path(a, 0); rare_path(a, 1)
    a.label("Lat_cend")
    stamp(a, 'at_end')
    a(f"s_lshr_b32 s32, s28, 3\ns_add_u32 s32, s32, {C_CTX}\ns_lshl_b32 s33, s30, 2\ns_add_u32 s33, s33, s32\ns_lshl_b32 s33, s33, 7")
    a("s_lshl_b32 s34, s31, 2\ns_add_u32 s34, s34, s32\ns_lshl_b32 s34, s34, 7")

def wq_part(a):
    a("s_add_u32 s32, s40, s37")
    for jj in range(4): a(f"s_add_u32 m0, s32, {1088*jj}\ns_add_u32 s33, s34, {8192*jj}\nbuffer_load_dwordx4 v2, s[8:11], s33 offen lds")
    a(f"s_add_u32 s34, s34, {32*8192}")

def attn_loader_setup(a):
    SLOT = AT.SLOT
    make_srd(a, 8, 32, SIZES['wq'])
    a("s_load_dwordx2 s[56:57], s[0:1], 40\ns_load_dwordx2 s[58:59], s[0:1], 56\ns_load_dwordx2 s[60:61], s[0:1], 72")
    attn_ids(a)
    a("v_lshrrev_b32 v2, 4, v8\nv_lshlrev_b32 v2, 15, v2\nv_and_b32 v3, 15, v8\nv_lshl_add_u32 v2, v3, 4, v2")
    a("s_lshl_b32 s32, s6, 17\nv_add_u32 v2, s32, v2")
    a("s_lshl_b32 s34, s28, 8\ns_mul_i32 s37, s6, 4352")
    for i in range(4):
        a(f"s_mov_b32 s40, {i*SLOT}"); wq_part(a)
    make_ws_srd(a, 12, 4, 'h1')
    a("s_lshl_b32 s32, s28, 19")
    srd_off(a, 16, 4, 32, WS['kf'][0], 512*1024); srd_off(a, 20, 4, 32, WS['vf'][0], 512*1024)
    a("s_lshl_b32 s35, s30, 1\ns_add_u32 s35, s35, s6\ns_mul_i32 s35, s35, 73728")
    a("s_lshl_b32 s36, s31, 1\ns_add_u32 s36, s36, s6\ns_mul_i32 s36, s36, 73728")
    a(f"s_lshl_b32 s38, s6, 12\ns_add_u32 s38, s38, {WQ_BYTES}\ns_lshl_b32 s39, s6, 13\ns_mov_b32 s40, 0")
    a("s_sub_u32 s44, s39, 8192\ns_sub_u32 s45, s39, 24576")
    a("s_mov_b32 s46, s44\ns_mov_b32 s47, s45\ns_mov_b32 s48, 0\ns_lshl_b32 s49, s30, 1\ns_add_u32 s49, s49, 3")

def phase_attn_loader(a):
    a.label("Lat_load")
    a("s_setprio 1" if 'pl' in os.environ.get('PR', '') else "s_setprio 0" if os.environ.get('PR') else "")
    def h_part():
        a("s_add_u32 s32, s40, s38")
        for qt in range(2):
            for b in range(2):
                a(f"s_add_u32 m0, s32, {qt*8192 + b*2048}\ns_add_u32 s33, s{35+qt}, {b*36864}")
                a(f"buffer_load_dwordx4 v{V_LANE16}, s[12:15], s33 offen sc1 lds\nbuffer_load_dwordx4 v{V_LANE16}, s[12:15], s33 offen offset:1024 sc1 lds")
        a("s_add_u32 s35, s35, 2048\ns_add_u32 s36, s36, 2048")
        a(ADV[0])
    for i in range(4): h_part()
    for w in (16, 20):
        a(f"s_waitcnt vmcnt({w})\ns_barrier")
        wq_part(a); h_part()
    a("s_mov_b32 s41, 12")
    a.label("Lat_lq")
    a("s_waitcnt vmcnt(24)\ns_barrier")
    wq_part(a); h_part()
    a("s_sub_u32 s41, s41, 1\ns_cmp_lg_u32 s41, 0\ns_cbranch_scc1 Lat_lq")
    a("s_waitcnt vmcnt(24)\ns_barrier")
    def kvload():
        for (srd, so, lo) in ((16, 46, 0), (20, 47, 16384)):
            a(f"s_add_u32 s32, s40, s39\ns_add_u32 m0, s32, {lo}\ns_add_u32 s33, s{so}, 4096")
            for j in range(4): a(f"buffer_load_dwordx4 v{V_LANE16}, {sr(srd,4)}, s{so} offen offset:{1024*j} sc1 lds")
            a(f"s_add_u32 m0, s32, {lo + 4096}\ns_nop 0")
            for j in range(4): a(f"buffer_load_dwordx4 v{V_LANE16}, {sr(srd,4)}, s33 offen offset:{1024*j} sc1 lds")
        a("s_add_u32 s46, s46, 16384\ns_add_u32 s47, s47, 16384\ns_add_u32 s48, s48, 1")
        a("s_cmp_eq_u32 s48, s49\ns_cselect_b32 s46, s44, s46")
        a("s_add_u32 s32, s49, 1\ns_add_u32 s33, s45, 16384\ns_cmp_eq_u32 s48, s32\ns_cselect_b32 s47, s33, s47")
        a(ADV[0])
    kvload()
    a("s_waitcnt vmcnt(28)\ns_barrier")
    kvload()
    a("s_waitcnt lgkmcnt(0)\ns_lshl_b32 s52, s2, 1\ns_add_u32 s52, s52, s6\ns_mul_i32 s50, s52, 9216\ns_mul_i32 s52, s52, 36864\ns_mov_b32 s41, 0")
    make_srd(a, 24, 56, 0 if 'nopf' in os.environ.get('XP', '') else SIZES['wo'])
    a.label("Lat_lpf")
    a("s_waitcnt vmcnt(32)\ns_barrier")
    kvload()
    for g in range(3):
        for j in range(3): a(f"buffer_load_dwordx4 v[8:11], v{V_LANE16}, s[24:27], s50 offen offset:{1024*j}")
        a("s_add_u32 s50, s50, 3072")
    for r in range(2):
        a("s_waitcnt vmcnt(41)\ns_barrier")
        kvload()
    a("s_add_u32 s41, s41, 1")
    for (n, ptr) in ((1, 58), (5, 60)):
        a(f"s_and_b32 s33, s{ptr+1}, 0xffff\ns_cmp_eq_u32 s41, {n}\ns_cselect_b32 s24, s{ptr}, s24\ns_cselect_b32 s25, s33, s25\ns_cselect_b32 s50, s52, s50")
    if 'nopf' not in os.environ.get('XP', ''): a(f"s_mov_b32 s26, {SIZES['w1']}")
    a("s_cmp_lt_u32 s41, 9\ns_cbranch_scc1 Lat_lpf")
    a("s_mov_b32 s41, 8")
    a.label("Lat_lkv")
    a("s_waitcnt vmcnt(32)\ns_barrier")
    kvload()
    a("s_sub_u32 s41, s41, 1\ns_cmp_lg_u32 s41, 0\ns_cbranch_scc1 Lat_lkv")
    a("s_waitcnt vmcnt(32)\ns_barrier\ns_waitcnt vmcnt(16)\ns_barrier")
    a("s_waitcnt vmcnt(0) lgkmcnt(0)\ns_barrier")
    a("s_branch Lat_ldone")

    a.label("Lat_sw")
    a("s_setprio 1" if 'pl' in os.environ.get('PR', '') else "s_setprio 0" if os.environ.get('PR') else "")
    a("s_mov_b32 s62, s57")
    a("s_load_dwordx2 s[56:57], s[0:1], 40\ns_load_dwordx2 s[58:59], s[0:1], 56\ns_load_dwordx2 s[60:61], s[0:1], 72")
    def vstore(n):
        k = n & 15; m_, nn, e = k >> 2, (k >> 1) & 1, k & 1
        reg = 64 + 4*k if n < 16 else 128 + 4*k
        a(f"s_add_u32 s55, s62, {m_*65536 + e*4096 + (2048 if n < 16 else 0)}\nbuffer_store_dwordx4 {vr(reg,4)}, v7, s[20:23], s55 offen offset:{nn*1024}" + ("" if 'wb' in os.environ.get('XP', '').split(',') else " sc1"))
    order = [n for m_ in range(4) for n in list(range(4*m_, 4*m_ + 4)) + list(range(16 + 4*m_, 16 + 4*m_ + 4))]
    a(f"s_add_u32 s32, s48, {C_KV}\ns_lshl_b32 s32, s32, 7\nv_mov_b32 v3, s32\ns_add_u32 s33, s32, {(C_KV2 - C_KV) * 128}\nv_mov_b32 v5, s33")
    a("s_waitcnt lgkmcnt(0)\ns_barrier")
    a("s_cmp_eq_u32 s3, 7\ns_cbranch_scc1 Lat_w7")
    for c in range(30):
        if c < 16 and c != 13: vstore(order[2*c]); vstore(order[2*c + 1])
        if c == 9: a("s_waitcnt vmcnt(4)")
        if c == 17: a("s_waitcnt vmcnt(0)")
        if c in (10, 18): signal(a, 32 if c == 10 else 33, 4)
        if c == 26:
            a("v_and_b32 v6, 15, v1\nv_lshlrev_b32 v6, 7, v6")
            poll(a, 6, 16, 244)
        if c in (13, 21, 29):
            if c == 29: a(f"v_add_u32 v5, {(C_KV3 - C_KV2) * 128}, v5")
            stamp(a, 'l_kvp0' if c == 13 else 'l_kvq0')
            poll(a, 3 if c == 13 else 5, 8, 244)
            stamp(a, 'l_kvp1' if c == 13 else 'l_kvq1')
            if c == 13: vstore(order[2*c]); vstore(order[2*c + 1])
        a("s_barrier")
    a("s_branch Lat_w67")
    a.label("Lat_w7")
    for c in range(30):
        if 18 <= c < 26:
            for q in range(4): vstore(order[4*(c - 18) + q])
        if c == 27:
            a(f"s_waitcnt vmcnt(0)\ns_add_u32 s33, s32, {(C_KV3 - C_KV) * 128}")
            signal(a, 33, 4)
        a("s_barrier")
    a.label("Lat_w67")
    a(f"s_mov_b32 s41, {51 - 30}")
    a.label("Lat_pfd")
    a("s_barrier\ns_sub_u32 s41, s41, 1\ns_cmp_lg_u32 s41, 0\ns_cbranch_scc1 Lat_pfd")
    if 'wpf' in os.environ.get('XP', ''):
        make_srd(a, 24, 56, SIZES['wo'])
        a(f"s_bfe_u32 s50, s2, 0x20001\ns_mul_i32 s50, s50, {1024*1152}\ns_lshr_b32 s32, s2, 3\ns_lshl_b32 s32, s32, 1\ns_and_b32 s33, s3, 1\ns_add_u32 s32, s32, s33")
        a("s_mul_i32 s32, s32, 18432\ns_add_u32 s50, s50, s32")
        for g in range(6):
            for j in range(3): a(f"buffer_load_dwordx4 v[8:11], v7, s[24:27], s50 offen offset:{1024*j}")
            a("s_add_u32 s50, s50, 3072")
    a("s_barrier\ns_barrier")
    a("s_waitcnt vmcnt(0)")
    a.label("Lat_ldone")

def adv_slot(slot, nslot):
    return f"s_add_u32 s40, s40, {slot}\ns_cmp_eq_u32 s40, {slot*nslot}\ns_cselect_b32 s40, 0, s40"

G16 = {'o': dict(F=16384, W=20480, NST=16, nF=4, nW=5), 'y': dict(F=20480, W=16896, NST=18, nF=5, nW=4)}

def g16_ids(a):
    a("s_bfe_u32 s28, s2, 0x20001")
    a("s_and_b32 s29, s2, 1\ns_lshl_b32 s29, s29, 3\ns_lshr_b32 s30, s2, 5\ns_add_u32 s29, s29, s30")
    a("s_bfe_u32 s30, s2, 0x20003")
    a("v_and_b32 v8, 63, v0\nv_lshlrev_b32 v1, 4, v8")

def g16_compute_setup(a, kind):
    p = G16[kind]
    g16_ids(a)
    a("v_bfe_u32 v2, v8, 4, 1\nv_lshlrev_b32 v2, 2, v2\nv_bfe_u32 v9, v8, 2, 2\nv_add_u32 v2, v2, v9")
    a("v_lshrrev_b32 v9, 5, v8\nv_and_b32 v10, 3, v8")
    if kind == 'o':
        a("v_lshl_add_u32 v2, v9, 4, v2\nv_mul_u32_u24 v2, 288, v2\nv_lshl_add_u32 v2, v10, 3, v2")
        a(f"v_add_u32 v4, {p['F']}, v2\ns_lshl_b32 s35, s3, 12\nv_add_u32 v5, s35, v1")
    else:
        a("v_mul_u32_u24 v2, 1056, v2\nv_lshl_add_u32 v2, v9, 9, v2\nv_lshl_add_u32 v2, v10, 3, v2")
        a(f"s_lshl_b32 s35, s3, 6\ns_add_u32 s35, s35, {p['F']}\nv_add_u32 v4, s35, v2\nv_mov_b32 v5, v1")
    a("v_mov_b32 v2, v4\nv_mov_b32 v3, v5")
    for i in range(0, 72, 2): a(f"v_mov_b64 {vr(16+i,2)}, 0")
    make_ws_srd(a, 20, 4, 'p3' if kind == 'o' else 'p6')
    a("v_bfe_u32 v6, v8, 4, 1\nv_lshlrev_b32 v6, 1, v6\nv_lshrrev_b32 v9, 5, v8\nv_add_u32 v6, v6, v9\nv_mul_u32_u24 v6, 9216, v6\nv_and_b32 v9, 15, v8\nv_lshl_add_u32 v6, v9, 4, v6")

def g16_compute(a, kind):
    p = G16[kind]; pre = 'Lg' + kind; SLOT = p['F'] + p['W']
    ACC = 16; SET = [96, 144]
    def reads(ks, st):
        b = SET[st]; r = []
        if kind == 'o':
            for t in range(2): r.append(f"ds_read_b128 {vr(b+4*t,4)}, v3 offset:{t*2048 + ks*1024}")
            for c in range(9):
                for e in range(2): r.append(f"ds_read_b64_tr_b16 {vr(b+8+4*c+2*e,2)}, v2 offset:{(32*ks + 8*e)*288 + c*32}")
        else:
            for t in range(2):
                for e in range(2): r.append(f"ds_read_b64_tr_b16 {vr(b+4*t+2*e,2)}, v2 offset:{8*ks*1056 + e*256 + t*32}")
            for c in range(9): r.append(f"ds_read_b128 {vr(b+8+4*c,4)}, v3 offset:{c*2048 + ks*1024}")
        return r
    def mfs(st):
        b = SET[st]
        return [f"v_mfma_f32_16x16x32_bf16 {vr(ACC+4*(9*t+c),4)}, {vr(b+4*t,4)}, {vr(b+8+4*c,4)}, {vr(ACC+4*(9*t+c),4)}"
                for c in range(9) for t in range(2)]
    def kstep(m, r, extra):
        n = len(r); NL = 6 if kind == 'o' else 3
        take = [(n * (i + 1)) // 16 - (n * i) // 16 if i < 16 else 0 for i in range(18)]
        k = 0
        a(f"s_waitcnt lgkmcnt({NL})")
        for i, x in enumerate(m):
            if i == 12: a(f"s_waitcnt lgkmcnt({min(15, k)})")
            a(x)
            for o in r[k:k+take[i]]: a(o)
            k += take[i]
            for o in extra.get(i, []): a(o)
    a(f"s_mov_b32 s40, 0\ns_mov_b32 s41, {p['NST']}")
    if kind == 'y': a("s_barrier")
    a("s_barrier")
    stamp(a, kind + '_b0')
    for o in reads(0, 0): a(o)
    a(f"s_branch {pre}_cin")
    a.label(f"{pre}_cloop")
    a("s_barrier")
    a.label(f"{pre}_cin")
    kstep(mfs(0), reads(1, 1), {14: [adv_slot(SLOT, 4)], 16: ["v_add_u32 v2, s40, v4"], 17: ["v_add_u32 v3, s40, v5"]})
    kstep(mfs(1), reads(0, 0), {16: ["s_sub_u32 s41, s41, 1"], 17: ["s_cmp_lg_u32 s41, 0"]})
    a(f"s_cbranch_scc1 {pre}_cloop")
    a.label(f"{pre}_cend")
    stamp(a, kind + '_end')
    a("s_lshl_b32 s32, s28, 8\ns_lshl_b32 s33, s29, 4\ns_add_u32 s32, s32, s33\ns_lshl_b32 s33, s3, 2\ns_add_u32 s32, s32, s33")
    a("s_mul_i32 s32, s32, 9216\ns_mul_i32 s33, s30, 2304\ns_add_u32 s32, s32, s33")
    a("s_waitcnt lgkmcnt(0)")
    for c in range(9):
        A_ = ACC + 4*c; B_ = ACC + 4*(9 + c); dst = 96 + 4*c
        a(f"v_cvt_pk_bf16_f32 v{dst}, v{A_}, v{A_+1}\nv_cvt_pk_bf16_f32 v{dst+1}, v{A_+2}, v{A_+3}")
        a(f"v_cvt_pk_bf16_f32 v{dst+2}, v{B_}, v{B_+1}\nv_cvt_pk_bf16_f32 v{dst+3}, v{B_+2}, v{B_+3}")
    for c in range(9):
        dst = 96 + 4*c
        a(f"v_permlane16_swap_b32 v{dst}, v{dst+2}\nv_permlane16_swap_b32 v{dst+1}, v{dst+3}")
        a(f"buffer_store_dwordx4 {vr(dst,4)}, v6, s[20:23], s32 offen offset:{256*c} sc1")

def g16_loader_setup(a, kind):
    p = G16[kind]
    g16_ids(a)
    if kind == 'o':
        a("s_mul_i32 s32, s6, 320\ns_mov_b32 s33, 0xe38e38f")
        for jj in range(5):
            a(f"v_add_u32 v9, s32, v8\nv_add_u32 v9, {64*jj}, v9\nv_mul_hi_u32 v10, v9, s33")
            a(f"v_mul_u32_u24 v11, 18, v10\nv_sub_u32 v11, v9, v11\nv_mul_u32_u24 v10, 1152, v10\nv_lshl_add_u32 v{2+jj}, v11, 4, v10")
            a(f"v_cmp_gt_u32 vcc, 1152, v9\nv_mov_b32 v10, {OOB}\ns_nop 1\nv_cndmask_b32 v{2+jj}, v10, v{2+jj}, vcc")
        make_srd(a, 8, 56, SIZES['wo']); make_ws_srd(a, 12, 4, 'ctx')
        a(f"s_mul_i32 s34, s28, {1024*1152}\ns_mul_i32 s32, s30, 288\ns_add_u32 s34, s34, s32")
        a("s_lshl_b32 s35, s29, 3\ns_lshl_b32 s32, s6, 1\ns_add_u32 s35, s35, s32\ns_lshl_b32 s35, s35, 17\ns_lshl_b32 s32, s28, 15\ns_add_u32 s35, s35, s32")
        a(f"s_mul_i32 s37, s6, 5120\ns_add_u32 s37, s37, {p['F']}\ns_lshl_b32 s38, s6, 12")
        a(f"s_lshl_b32 s32, s29, 2\ns_add_u32 s32, s32, s28\ns_add_u32 s32, s32, {C_CTX}\ns_lshl_b32 s32, s32, 7\nv_mov_b32 v7, s32")
    else:
        a("v_lshrrev_b32 v2, 4, v8\nv_lshlrev_b32 v2, 15, v2\nv_and_b32 v9, 15, v8\nv_lshl_add_u32 v2, v9, 4, v2")
        a("s_and_b32 s32, s6, 1\ns_lshl_b32 s32, s32, 14\ns_lshr_b32 s33, s6, 1\ns_lshl_b32 s33, s33, 17\ns_add_u32 s32, s32, s33\nv_add_u32 v2, s32, v2")
        make_srd(a, 8, 60, SIZES['w2']); make_ws_srd(a, 12, 4, 'u')
        a(f"s_mul_i32 s34, s28, {1152*4096}\ns_lshl_b32 s32, s29, 8\ns_add_u32 s34, s34, s32")
        a(f"s_mul_i32 s35, s30, {9*147456}\ns_mul_i32 s32, s28, {36*1024}\ns_add_u32 s35, s35, s32")
        for jj in range(5):
            a(f"s_mul_i32 s32, s6, 5\ns_add_u32 s32, s32, {jj}\ns_lshr_b32 s33, s32, 1\ns_mul_i32 s33, s33, 147456")
            a(f"s_and_b32 s36, s32, 1\ns_lshl_b32 s36, s36, 10\ns_add_u32 s33, s33, s36\ns_add_u32 s33, s33, s35")
            a(f"s_cmp_lt_u32 s32, 18\ns_cselect_b32 s{46+jj}, s33, 0x7f000000")
        a(f"s_mul_i32 s37, s6, 4224\ns_add_u32 s37, s37, {p['F']}\ns_mul_i32 s38, s6, 5120")
        a(f"s_mul_i32 s32, s28, 6\ns_mul_i32 s33, s30, 3\ns_lshr_b32 s33, s33, 1\ns_add_u32 s32, s32, s33\ns_add_u32 s32, s32, {C_U}")
        a("v_and_b32 v7, 1, v8\nv_add_u32 v7, s32, v7\nv_lshlrev_b32 v7, 7, v7")

def g16_w(a, kind):
    if kind == 'o':
        a("s_add_u32 s32, s40, s37")
        for jj in range(5): a(f"s_add_u32 m0, s32, {1024*jj}\ns_nop 0\nbuffer_load_dwordx4 v{2+jj}, s[8:11], s34 offen lds")
        a(f"s_add_u32 s34, s34, {64*1152}")
    else:
        a("s_add_u32 s32, s40, s37")
        for jj in range(4): a(f"s_add_u32 m0, s32, {1056*jj}\ns_add_u32 s33, s34, {4096*jj}\nbuffer_load_dwordx4 v2, s[8:11], s33 offen lds")
        a(f"s_add_u32 s34, s34, {64*4096}")
def g16_f(a, kind):
    if kind == 'o':
        a("s_add_u32 m0, s40, s38\ns_add_u32 s33, s35, 0x20000")
        a("buffer_load_dwordx4 v1, s[12:15], s35 offen sc1 lds\nbuffer_load_dwordx4 v1, s[12:15], s35 offen offset:1024 sc1 lds")
        a("s_add_u32 s32, s40, s38\ns_add_u32 m0, s32, 2048\ns_nop 0")
        a("buffer_load_dwordx4 v1, s[12:15], s33 offen sc1 lds\nbuffer_load_dwordx4 v1, s[12:15], s33 offen offset:1024 sc1 lds")
        a("s_add_u32 s35, s35, 2048")
    else:
        a("s_add_u32 s32, s40, s38")
        for jj in range(5):
            a(f"s_add_u32 m0, s32, {1024*jj}\ns_nop 0\nbuffer_load_dwordx4 v1, s[12:15], s{46+jj} offen sc1 lds\ns_add_u32 s{46+jj}, s{46+jj}, 2048")

def g16_loader_wpro(a, kind):
    p = G16[kind]; SLOT = p['F'] + p['W']
    for i in range(3):
        a(f"s_mov_b32 s40, {i*SLOT}"); g16_w(a, kind)

def g2_wpf(a):
    if 'wpf' not in os.environ.get('XP', ''): return
    a(f"s_mul_i32 s32, s30, {64*4096}\ns_add_u32 s32, s32, s34")
    for i in range(4):
        a(f"s_add_u32 s36, s30, {3 + 4*i}\ns_cmp_lt_u32 s36, 18\ns_cselect_b32 s36, s32, 0x7f000000")
        for jj in range(4): a(f"s_add_u32 s33, s36, {(4*i*64 + jj)*4096}\nbuffer_load_dwordx4 v[12:15], v2, s[8:11], s33 offen")

def g16_loader_main(a, kind):
    p = G16[kind]; pre = 'Lg' + kind; SLOT = p['F'] + p['W']
    if 'gnodma' in os.environ.get('XP', ''): a("s_mov_b32 s10, 0\ns_mov_b32 s14, 0")
    stamp(a, 'l_' + kind + 'p0')
    if kind == 'y': a(f"s_cmp_lg_u32 s6, 0\ns_cbranch_scc1 {pre}_np")
    poll(a, 7, 32 if kind == 'o' else 9, 244)
    if kind == 'y':
        a.label(f"{pre}_np"); a("s_barrier")
    stamp(a, 'l_' + kind + 'p1')
    for i in range(3):
        a(f"s_mov_b32 s40, {i*SLOT}"); g16_f(a, kind)
    a(f"s_mov_b32 s40, {3*SLOT}\ns_mov_b32 s41, {p['NST'] - 3}")
    a(f"s_waitcnt vmcnt({p['nF']})\ns_branch {pre}_lb")
    a.label(f"{pre}_lloop")
    a("s_waitcnt vmcnt(9)")
    a.label(f"{pre}_lb")
    a("s_barrier")
    g16_f(a, kind); g16_w(a, kind)
    a(adv_slot(SLOT, 4))
    a(f"s_sub_u32 s41, s41, 1\ns_cmp_lg_u32 s41, 0\ns_cbranch_scc1 {pre}_lloop")
    a("s_waitcnt vmcnt(9)\ns_barrier\ns_waitcnt vmcnt(0)\ns_barrier\ns_barrier")

def tok_ids(a):
    a("s_bfe_u32 s32, s2, 0x20001\ns_lshl_b32 s32, s32, 2\ns_bfe_u32 s33, s2, 0x20003\ns_add_u32 s32, s32, s33")
    a("s_and_b32 s43, s2, 1\ns_lshl_b32 s43, s43, 3\ns_lshr_b32 s33, s2, 5\ns_add_u32 s43, s43, s33")
    a("s_lshl_b32 s42, s43, 4\ns_add_u32 s42, s42, s32\ns_mul_i32 s44, s42, 9216")
    a(f"v_mov_b32 v232, v0\nv_add_u32 v233, 512, v0\nv_cmp_gt_u32 vcc, 64, v0\nv_mov_b32 v234, 0x0ffffff0\ns_nop 1\nv_cndmask_b32 v233, v234, v233, vcc")
    a("v_lshlrev_b32 v236, 4, v232\nv_lshlrev_b32 v237, 4, v233\nv_mov_b32 v240, 0x3f80\nv_mov_b32 v241, 0x3f800000")

def partial_loads(a, srd):
    a("s_mov_b32 s32, s44")
    for s in range(4):
        for u in range(2): a(f"buffer_load_dwordx4 {vr(96+16*u+4*s,4)}, v{236+u}, {sr(srd,4)}, s32 offen sc1")
        if s < 3: a(f"s_add_u32 s32, s32, {256*9216}")

def partial_sum(a, u, dst):
    b = 96 + 16*u
    unpack8(a, b, dst)
    for s in range(1, 4):
        for d in range(4):
            a(f"v_dot2c_f32_bf16 v{dst+2*d}, v{b+4*s+d}, v240\nv_dot2c_f32_bf16 v{dst+2*d+1}, v{b+4*s+d}, v241")
    a("s_nop 2")

def ln_row(a, x, n, t0):
    m, v, t = t0, t0 + 1, t0 + 2
    a(f"v_add_f32 v{m}, v{x}, v{x+1}")
    for i in range(2, n): a(f"v_add_f32 v{m}, v{m}, v{x+i}")
    wave_allsum(a, m, t)
    a(f"v_mul_f32 v{m}, 0x3ae38e39, v{m}\nv_mov_b32 v{v}, 0")
    for i in range(n): a(f"v_sub_f32 v{t}, v{x+i}, v{m}\nv_fmac_f32 v{v}, v{t}, v{t}")
    wave_allsum(a, v, t)
    a(f"v_mul_f32 v{v}, 0x3ae38e39, v{v}")
    round_bf16(a, m); round_bf16(a, v)
    a(f"v_add_f32 v{v}, 0x3727c5ac, v{v}"); round_bf16(a, v)
    a(f"v_sqrt_f32 v{v}, v{v}\ns_nop 0"); round_bf16(a, v)
    a(f"v_rcp_f32 v{v}, v{v}")
    for i in range(n): a(f"v_sub_f32 v{x+i}, v{x+i}, v{m}")
    for i in range(n): a(f"v_mul_f32 v{x+i}, v{x+i}, v{v}")

LN_LDS = 4 * 29696

def ln2_pre(a):
    a("s_load_dwordx2 s[46:47], s[0:1], 0")
    tok_ids(a)
    make_ws_srd(a, 48, 4, 'mod')
    a("v_lshlrev_b32 v238, 2, v232\nv_lshlrev_b32 v239, 2, v233\nv_and_b32 v235, 63, v0\nv_lshlrev_b32 v235, 2, v235")
    a(f"s_mov_b32 s32, {2*2304}\nbuffer_load_dword v208, v238, s[48:51], s32 offen sc1\nbuffer_load_dword v209, v239, s[48:51], s32 offen sc1")
    a(f"s_mov_b32 s32, {3*2304}\ns_mov_b32 s33, {4*2304}")
    for i in range(9):
        a(f"buffer_load_dword v{210+i}, v235, s[48:51], s32 offen offset:{256*i} sc1\nbuffer_load_dword v{220+i}, v235, s[48:51], s33 offen offset:{256*i} sc1")
    a("v_lshlrev_b32 v230, 1, v232\nv_lshlrev_b32 v231, 1, v233")
    a("s_waitcnt lgkmcnt(0)")
    make_srd(a, 48, 46, SIZES['x'])
    a("s_mov_b32 s32, s44")
    for t in range(8):
        for u in range(2): a(f"buffer_load_short_d16_hi v{192+8*u+t}, v{230+u}, s[48:51], s32 offen" + (f" offset:{1152*(t%3)}" if t % 3 else ""))
        if t % 3 == 2: a("s_add_u32 s32, s32, 3456")
    a(f"v_add_u32 v238, {LN_LDS}, v238\ns_mul_i32 s32, s3, 2304\ns_add_u32 s32, s32, {LN_LDS}\nv_add_u32 v239, s32, v235")

def ln2_mid(a):
    for i in range(16): a(f"v_and_b32 v{192+i}, 0xffff0000, v{192+i}")
    for i in range(9):
        a(f"v_add_f32 v{220+i}, 1.0, v{220+i}"); round_bf16(a, 220 + i)
    for u in range(2):
        a(f"v_lshrrev_b32 v{230+u}, 5, v{232+u}\nv_lshlrev_b32 v{230+u}, 17, v{230+u}\nv_and_b32 v234, 31, v{232+u}\nv_lshl_add_u32 v{230+u}, v234, 4, v{230+u}")

def ln2_body(a):
    make_ws_srd(a, 48, 4, 'p3')
    partial_loads(a, 48)
    make_ws_srd(a, 48, 4, 'x1'); make_ws_srd(a, 52, 4, 'h2')
    a("s_waitcnt vmcnt(0)")
    stamp(a, 'ln_ld')
    for u in range(2):
        if u == 1: a("s_cmp_lg_u32 s3, 0\ns_cbranch_scc1 Lln_u1")
        partial_sum(a, u, 128)
        for t in range(8): a(f"v_fmac_f32 v{192+8*u+t}, v{208+u}, v{128+t}")
        for p in range(4): a(f"v_cvt_pk_bf16_f32 v{136+4*u+p}, v{192+8*u+2*p}, v{193+8*u+2*p}")
        unpack8(a, 136 + 4*u, 128)
        for t in range(8): a(f"ds_write_b32 v238, v{128+t} offset:{2304*t + 2048*u}")
        a(f"buffer_store_dwordx4 {vr(136+4*u,4)}, v{236+u}, s[48:51], s44 offen sc1")
    a.label("Lln_u1")
    a("s_waitcnt lgkmcnt(0)\ns_barrier")
    for i in range(9): a(f"ds_read_b32 v{96+i}, v239 offset:{256*i}")
    a("s_waitcnt lgkmcnt(0)")
    ln_row(a, 96, 9, 108)
    for i in range(9): a(f"v_fma_f32 v{96+i}, v{96+i}, v{220+i}, v{210+i}")
    ln_row(a, 96, 9, 108)
    for i in range(9): a(f"ds_write_b32 v239, v{96+i} offset:{256*i}")
    a("s_lshl_b32 s32, s42, 9\ns_waitcnt lgkmcnt(0)\ns_barrier")
    for u in range(2):
        if u == 1: a("s_cmp_lg_u32 s3, 0\ns_cbranch_scc1 Lln_u2")
        for t in range(8): a(f"ds_read_b32 v{96+8*u+t}, v238 offset:{2304*t + 2048*u}")
        a("s_waitcnt lgkmcnt(0)")
        for p in range(4): a(f"v_cvt_pk_bf16_f32 v{112+4*u+p}, v{96+8*u+2*p}, v{97+8*u+2*p}")
        a(f"buffer_store_dwordx4 {vr(112+4*u,4)}, v{230+u}, s[52:55], s32 offen sc1")
    a.label("Lln_u2")
    stamp(a, 'ln_st')
    a("s_waitcnt vmcnt(0)\ns_barrier")

def final_pre(a):
    a("s_load_dwordx2 s[46:47], s[0:1], 80\ns_load_dwordx2 s[52:53], s[0:1], 104")
    tok_ids(a)
    make_ws_srd(a, 48, 4, 'mod')
    a("v_lshlrev_b32 v238, 2, v232\nv_lshlrev_b32 v239, 2, v233")
    a(f"s_mov_b32 s32, {5*2304}\nbuffer_load_dword v208, v238, s[48:51], s32 offen sc1\nbuffer_load_dword v209, v239, s[48:51], s32 offen sc1")
    make_ws_srd(a, 48, 4, 'x1')
    for u in range(2): a(f"buffer_load_dwordx4 {vr(192+4*u,4)}, v{236+u}, s[48:51], s44 offen sc1")
    a("v_lshlrev_b32 v230, 1, v232\nv_lshlrev_b32 v231, 1, v233")
    a("s_waitcnt lgkmcnt(0)")
    a("s_lshl_b32 s32, s42, 4\ns_add_u32 s46, s46, s32\ns_addc_u32 s47, s47, 0\ns_load_dwordx4 s[36:39], s[46:47], 0")
    make_srd(a, 24, 52, SIZES['out'])
    a("s_waitcnt lgkmcnt(0)")

def final_mid(a):
    for p in range(4): a(f"s_lshl_b32 s{48+2*p}, s{36+p}, 16\ns_and_b32 s{49+2*p}, s{36+p}, 0xffff0000")
    for u in range(2):
        unpack8(a, 192 + 4*u, 210 + 8*u)
        for t in range(8): a(f"v_fmac_f32 v{210+8*u+t}, s{48+t}, v{208+u}")

def final_body(a):
    make_ws_srd(a, 48, 4, 'p6')
    partial_loads(a, 48)
    a("s_waitcnt vmcnt(0)")
    for u in range(2):
        if u == 1: a("s_cmp_lg_u32 s3, 0\ns_cbranch_scc1 Lfi_u1")
        partial_sum(a, u, 128)
        for t in range(8): a(f"v_fmac_f32 v{210+8*u+t}, v{208+u}, v{128+t}")
        for p in range(4): a(f"v_cvt_pk_bf16_f32 v{136+4*u+p}, v{210+8*u+2*p}, v{211+8*u+2*p}")
        a("s_mov_b32 s32, s44")
        for t in range(8):
            op = "buffer_store_short" if t % 2 == 0 else "buffer_store_short_d16_hi"
            a(f"{op} v{136+4*u+t//2}, v{230+u}, s[24:27], s32 offen" + (f" offset:{1152*(t%3)}" if t % 3 else ""))
            if t % 3 == 2: a("s_add_u32 s32, s32, 3456")
    a.label("Lfi_u1")

M1_W = 17408; M1_SLOT = M1_W + 12288; M1_NST = 32; M1_X = 114688
def m1_ids(a):
    a("s_and_b32 s32, s2, 7\ns_mul_i32 s32, s32, 27\ns_lshr_b32 s33, s2, 3\ns_add_u32 s32, s32, s33")
    a("s_mul_hi_u32 s28, s32, 0x2aaaaaab\ns_mul_i32 s33, s28, 6\ns_sub_u32 s29, s32, s33")
    a("v_and_b32 v8, 63, v0\nv_lshlrev_b32 v1, 4, v8")

def m1_compute(a):
    pre = 'Lm1'
    ACC = 16; SET = [112, 132]
    a("s_load_dwordx2 s[24:25], s[0:1], 64")
    m1_ids(a)
    a("v_bfe_u32 v2, v8, 2, 2\nv_mul_u32_u24 v2, 1088, v2\nv_lshrrev_b32 v9, 5, v8\nv_lshl_add_u32 v2, v9, 9, v2")
    a("v_bfe_u32 v9, v8, 4, 1\nv_lshl_add_u32 v2, v9, 5, v2\nv_and_b32 v9, 3, v8\nv_lshl_add_u32 v2, v9, 3, v2")
    a("s_and_b32 s30, s3, 1\ns_lshr_b32 s31, s3, 1")
    a("s_lshl_b32 s32, s30, 7\ns_mul_i32 s33, s31, 8704\ns_add_u32 s32, s32, s33\nv_add_u32 v4, s32, v2")
    a(f"s_lshl_b32 s32, s31, 11\ns_add_u32 s32, s32, {M1_W}\nv_add_u32 v5, s32, v1")
    a("v_mov_b32 v2, v4\nv_mov_b32 v3, v5")
    for i in range(0, 96, 2): a(f"v_mov_b64 {vr(ACC+i,2)}, 0")
    a("s_waitcnt lgkmcnt(0)")
    m1_bias(a, 3)
    def reads(ks, st):
        b = SET[st]; r = []
        for d in range(3): r.append(f"ds_read_b128 {vr(b+8+4*d,4)}, v3 offset:{d*4096 + ks*1024}")
        for t in range(2):
            for e in range(2): r.append(f"ds_read_b64_tr_b16 {vr(b+4*t+2*e,2)}, v2 offset:{ks*4352 + e*256 + t*64}")
        return r
    def mfs(st):
        b = SET[st]
        return [mf(vr(ACC+16*(3*t+d),16), vr(b+4*t,4), vr(b+8+4*d,4), vr(ACC+16*(3*t+d),16)) for t in range(2) for d in range(3)]
    def front(m, r):
        out = []
        if 'gnocomp' in os.environ.get('XP', ''): return out
        if 'gnord' in os.environ.get('XP', ''): return m
        for i, x in enumerate(m):
            out.append(x); out += r[2*i:2*i+2]
        return out
    a(f"s_mov_b32 s40, 0\ns_mov_b32 s41, {M1_NST}")
    a("s_barrier\ns_barrier")
    stamp(a, 'm1_b0')
    for o in reads(0, 0): a(o)
    a.label(f"{pre}_cloop")
    a("s_waitcnt lgkmcnt(0)")
    for o in front(mfs(0), reads(1, 1)): a(o)
    a(adv_slot(M1_SLOT, 5))
    a("v_add_u32 v2, s40, v4\nv_add_u32 v3, s40, v5")
    a("s_waitcnt lgkmcnt(0)")
    for o in front(mfs(1), reads(0, 0)): a(o)
    a(f"s_sub_u32 s41, s41, 1\ns_cmp_lg_u32 s41, 0\ns_waitcnt lgkmcnt(0)\ns_barrier\ns_cbranch_scc1 {pre}_cloop" if False else
      f"s_sub_u32 s41, s41, 1\ns_cmp_lg_u32 s41, 0\ns_barrier\ns_cbranch_scc1 {pre}_cloop")
    stamp(a, 'm1_end')
    a("s_waitcnt lgkmcnt(0)")
    m1_xaddr(a, 3)
    a(f"s_cmp_eq_u32 s31, 0\ns_cbranch_scc1 {pre}_k0")
    for kh in (1, 0):
        if kh == 0: a.label(f"{pre}_k0")
        keep = ACC + 48 * kh; send = ACC + 48 * (1 - kh)
        a("s_nop 7")
        for i in range(12): a(f"ds_write_b128 v2, {vr(send+4*i,4)} offset:{1024*i}")
        for i in range(6): a(f"ds_write_b128 v4, {vr(keep+24+4*i,4)} offset:{1024*i}")
        a("s_waitcnt lgkmcnt(0)\ns_barrier")
        for i in range(6): a(f"ds_read_b128 {vr(send+4*i,4)}, v3 offset:{1024*i}")
        m1_gelu(a, keep, send, 0)
        if kh == 1: a(f"s_branch {pre}_cdone")
    a.label(f"{pre}_cdone")

def m1_xaddr(a, sw):
    a(f"s_mul_i32 s32, s{sw}, 12288\ns_add_u32 s32, s32, {M1_X}\nv_add_u32 v2, s32, v1")
    a(f"s_xor_b32 s33, s{sw}, 2\ns_mul_i32 s33, s33, 12288\ns_add_u32 s33, s33, {M1_X}\nv_add_u32 v3, s33, v1")
    a(f"s_and_b32 s32, s{sw}, 1\ns_mul_i32 s32, s32, 6144\ns_lshr_b32 s33, s{sw}, 1\ns_mul_i32 s33, s33, 37376\ns_add_u32 s32, s32, s33\nv_add_u32 v4, s32, v1")

def m1_bias(a, sw):
    make_srd(a, 16, 24, SIZES['b1'])
    a(f"s_lshl_b32 s32, s28, 2\ns_and_b32 s33, s{sw}, 1\ns_lshl_b32 s33, s33, 1\ns_add_u32 s32, s32, s33\ns_lshr_b32 s33, s{sw}, 1\ns_add_u32 s45, s32, s33")
    a("s_lshl_b32 s32, s45, 6\nv_lshrrev_b32 v9, 5, v8\nv_lshlrev_b32 v9, 3, v9")
    for q in range(4): a(f"buffer_load_dwordx2 {vr(152+2*q,2)}, v9, s[16:19], s32 offen offset:{16*q}")
    make_ws_srd(a, 20, 4, 'u')
    a("v_bfe_u32 v9, v8, 4, 1\nv_mul_u32_u24 v9, 147456, v9\nv_lshrrev_b32 v10, 5, v8\nv_lshl_add_u32 v9, v10, 8, v9")
    a("v_and_b32 v10, 15, v8\nv_lshl_add_u32 v6, v10, 4, v9")
    a(f"s_mul_i32 s39, s29, {6*147456}\ns_lshl_b32 s33, s45, 10\ns_add_u32 s39, s39, s33")

def m1_gelu(a, keep, oth, h0):
    a("s_waitcnt vmcnt(0)" if h0 == 0 else "")
    for q in range(4):
        for h in range(2):
            a(f"v_lshlrev_b32 v{160+4*q+2*h}, 16, v{152+2*q+h}\nv_and_b32 v{161+4*q+2*h}, 0xffff0000, v{152+2*q+h}")
    c1 = -2 * math.sqrt(2 / math.pi) * math.log2(math.e); c2 = c1 * 0.044715
    a(f"v_mov_b32 v10, {f32(c1)}\nv_mov_b32 v11, {f32(c2)}")
    for i in range(3):
        d, e = (h0 + i) >> 1, (h0 + i) & 1
        a(f"s_waitcnt lgkmcnt({4 - 2*i})")
        b = keep + 8*i; o = oth + 8*i
        for r in range(8): a(f"v_add_f32 v{b+r}, v{b+r}, v{o+r}")
        for r in range(8): a(f"v_add_f32 v{b+r}, v{b+r}, v{160+8*e+r}")
        for r in range(8): a(f"v_mul_f32 v{o+r}, v{b+r}, v{b+r}")
        for r in range(8): a(f"v_fma_f32 v{o+r}, v{o+r}, v11, v10")
        for r in range(8): a(f"v_mul_f32 v{o+r}, v{o+r}, v{b+r}")
        for r in range(8): a(f"v_exp_f32 v{o+r}, v{o+r}")
        for r in range(8): a(f"v_add_f32 v{o+r}, 1.0, v{o+r}")
        for r in range(8): a(f"v_rcp_f32 v{o+r}, v{o+r}")
        for r in range(8): a(f"v_mul_f32 v{b+r}, v{b+r}, v{o+r}")
        for p in range(4): a(f"v_cvt_pk_bf16_f32 v{o+p}, v{b+2*p}, v{b+2*p+1}")
        a(f"s_add_u32 s32, s39, {d*2*147456}\nbuffer_store_dwordx4 {vr(o,4)}, v6, s[20:23], s32 offen offset:{e*512} sc1")

def m1_loader_setup(a):
    m1_ids(a)
    a("v_lshrrev_b32 v2, 4, v8\nv_mul_u32_u24 v2, 36864, v2\nv_and_b32 v9, 15, v8\nv_lshl_add_u32 v2, v9, 4, v2")
    a(f"s_mul_i32 s32, s6, {16*9216}\nv_add_u32 v2, s32, v2")
    make_srd(a, 8, 58, SIZES['w1']); make_ws_srd(a, 12, 4, 'h2')
    a("s_lshl_b32 s34, s28, 8")
    a(f"s_mul_i32 s35, s29, {3*131072}\ns_lshl_b32 s32, s6, 10\ns_add_u32 s35, s35, s32")
    a(f"s_mul_i32 s37, s6, 4352\ns_lshl_b32 s38, s6, 10\ns_add_u32 s38, s38, {M1_W}")
    a(f"s_and_b32 s32, s2, 7\ns_lshl_b32 s32, s32, 4\ns_add_u32 s32, s32, {C_H2}\nv_and_b32 v7, 15, v8\nv_add_u32 v7, s32, v7\nv_lshlrev_b32 v7, 7, v7")
def m1_w(a):
    a("s_add_u32 s32, s40, s37")
    for jj in range(4): a(f"s_add_u32 m0, s32, {1088*jj}\ns_add_u32 s33, s34, {9216*jj}\nbuffer_load_dwordx4 v2, s[8:11], s33 offen lds")
    a(f"s_add_u32 s34, s34, {64*9216}")
def m1_f(a):
    a("s_add_u32 s32, s40, s38")
    for d in range(3): a(f"s_add_u32 m0, s32, {4096*d}\ns_add_u32 s33, s35, {131072*d}\nbuffer_load_dwordx4 v1, s[12:15], s33 offen sc1 lds")
    a("s_add_u32 s35, s35, 4096")
def m1_loader_main(a):
    if 'gnodma' in os.environ.get('XP', ''): a("s_mov_b32 s10, 0\ns_mov_b32 s14, 0")
    stamp(a, 'l_h2p0')
    a("s_cmp_lg_u32 s6, 0\ns_cbranch_scc1 Lm1_np")
    poll(a, 7, 16, 244)
    a.label("Lm1_np"); a("s_barrier")
    stamp(a, 'l_h2p1')
    for i in range(4):
        a(f"s_mov_b32 s40, {i*M1_SLOT}"); m1_f(a)
    a(f"s_mov_b32 s40, {4*M1_SLOT}")
    for w in (6, 10):
        a(f"s_waitcnt vmcnt({w})\ns_barrier"); m1_f(a); m1_w(a); a(adv_slot(M1_SLOT, 5))
    a(f"s_mov_b32 s41, {M1_NST - 6}")
    a.label("Lm1_lloop")
    a("s_waitcnt vmcnt(14)\ns_barrier"); m1_f(a); m1_w(a); a(adv_slot(M1_SLOT, 5))
    a("s_sub_u32 s41, s41, 1\ns_cmp_lg_u32 s41, 0\ns_cbranch_scc1 Lm1_lloop")
    for w in (14, 7, 0, 0): a(f"s_waitcnt vmcnt({w})\ns_barrier")
    a("s_barrier")

def sig_wave4(a, soff_code, soff, lab, vtmp):
    a(f"s_cmp_lg_u32 s6, 0\ns_cbranch_scc1 {lab}")
    a(soff_code); signal(a, soff, vtmp)
    a.label(lab)

def mega():
    a = Asm(); n = NAME + '_kernel'
    a("s_cmp_ge_u32 s2, 256\ns_cbranch_scc1 Lend")
    stamp(a, 'start')
    phase_kv(a)
    phase_attn_compute(a)
    a("s_mov_b32 s60, s33\ns_mov_b32 s61, s34")
    g16_compute_setup(a, 'o')
    a("s_waitcnt vmcnt(0)")
    stamp(a, 'at_dr')
    signal(a, 60, 9); signal(a, 61, 9)
    ln2_pre(a)
    g16_compute(a, 'o')
    stamp(a, 'o_st')
    a("s_waitcnt vmcnt(9)")
    ln2_mid(a)
    a("s_waitcnt vmcnt(0)")
    stamp(a, 'o_dr')
    a("s_barrier")
    stamp(a, 'S')
    a("s_barrier")
    a.label("Lln_shared")
    stamp(a, 'R')
    ln2_body(a)
    stamp(a, 'S2')
    a("s_cmp_ge_u32 s3, 4\ns_cbranch_scc1 Ll_after_ln")
    a("s_cmp_ge_u32 s2, 216\ns_cbranch_scc1 Lc_g2")
    m1_compute(a)
    stamp(a, 'm1_st')
    a("s_waitcnt vmcnt(0)")
    stamp(a, 'm1_dr')
    a("s_barrier")
    stamp(a, 'S3')
    a.label("Lc_g2")
    g16_compute_setup(a, 'y')
    final_pre(a)
    g16_compute(a, 'y')
    stamp(a, 'y_st')
    a("s_waitcnt vmcnt(9)")
    final_mid(a)
    a("s_waitcnt vmcnt(0)")
    stamp(a, 'y_dr')
    a("s_barrier\ns_barrier")
    stamp(a, 'R4')
    a("s_branch Lfinal")
    phase_attn_loader(a)
    g16_loader_setup(a, 'o')
    a("s_barrier\ns_barrier")
    g16_loader_wpro(a, 'o')
    g16_loader_main(a, 'o')
    ln2_pre(a)
    m1_loader_setup(a)
    a("s_waitcnt vmcnt(0)")
    ln2_mid(a)
    a("s_barrier")
    sig_wave4(a, f"s_add_u32 s32, s43, {C_P3}\ns_lshl_b32 s32, s32, 7", 32, "Ll_s1", 9)
    a("s_cmp_ge_u32 s2, 216\ns_cbranch_scc1 Ll_now1")
    for i in range(4):
        a(f"s_mov_b32 s40, {i*M1_SLOT}"); m1_w(a)
    a.label("Ll_now1")
    a("s_cmp_lg_u32 s6, 0\ns_cbranch_scc1 Ll_np1")
    a(f"s_add_u32 s32, s43, {C_P3}\ns_lshl_b32 s32, s32, 7\nv_mov_b32 v10, s32")
    poll(a, 10, 16, 244)
    a.label("Ll_np1")
    a("s_barrier")
    a("s_branch Lln_shared")
    a.label("Ll_after_ln")
    a("s_cmp_lg_u32 s6, 0\ns_cbranch_scc1 Ll_s2")
    a(f"s_add_u32 s32, s43, {C_H2}\ns_lshl_b32 s32, s32, 7\nv_lshlrev_b32 v10, 11, v8\nv_mov_b32 v9, 1\ns_mov_b64 exec, 0xff")
    a(f"buffer_atomic_add v9, v10, {SYNC}, s32 offen sc1\ns_mov_b64 exec, -1")
    a.label("Ll_s2")
    a("s_cmp_ge_u32 s2, 216\ns_cbranch_scc1 Ll_nom1")
    a("s_load_dwordx2 s[24:25], s[0:1], 64\ns_waitcnt lgkmcnt(0)")
    m1_bias(a, 6)
    m1_loader_main(a)
    a(f"s_mul_hi_u32 s32, s28, 0x1c71c71d\ns_mul_i32 s32, s32, 6\ns_add_u32 s32, s32, s29\ns_add_u32 s32, s32, {C_U}\ns_lshl_b32 s63, s32, 7")
    g16_loader_setup(a, 'y')
    g16_loader_wpro(a, 'y')
    g2_wpf(a)
    a("v_mov_b32 v12, v2")
    m1_xaddr(a, 6)
    a("v_mov_b32 v2, v12\ns_barrier")
    for i in range(3):
        a(f"ds_read_b128 {vr(16+8*i,4)}, v4 offset:{2048*i}\nds_read_b128 {vr(20+8*i,4)}, v4 offset:{2048*i + 1024}")
    a("s_waitcnt lgkmcnt(0)")
    for i in range(6): a(f"ds_read_b128 {vr(40+4*i,4)}, v3 offset:{6144 + 1024*i}")
    m1_gelu(a, 16, 40, 3)
    a("s_waitcnt vmcnt(0)\ns_barrier")
    sig_wave4(a, "", 63, "Ll_s3", 9)
    a("s_branch Ll_g2")
    a.label("Ll_nom1")
    g16_loader_setup(a, 'y')
    g16_loader_wpro(a, 'y')
    g2_wpf(a)
    a.label("Ll_g2")
    g16_loader_main(a, 'y')
    final_pre(a)
    a("s_waitcnt vmcnt(0)")
    final_mid(a)
    a("s_barrier")
    a("s_cmp_lg_u32 s6, 0\ns_cbranch_scc1 Ll_np2")
    a(f"s_add_u32 s32, s43, {C_P6}\ns_lshl_b32 s32, s32, 7\nv_mov_b32 v10, s32")
    signal(a, 32, 9)
    poll(a, 10, 16, 244)
    a.label("Ll_np2")
    a("s_barrier")
    a.label("Lfinal")
    final_body(a)
    if STAMP:
        a(f"s_cmp_lg_u32 s3, {STAMP_WAVE}\ns_cbranch_scc1 Lend\ns_waitcnt vmcnt(0)")
        a("s_memrealtime s[92:93]\ns_waitcnt lgkmcnt(0)")
        stamp_flush(a, 15, "Lstf")
    a.label("Lend")
    a("s_endpgm")
    return n, a

def build(path):
    n, a = mega()
    txt = a.text()
    hdr = open('cdna_kernels/' + NAME + '.s.ref').read().split('\n')
    top = [l for l in hdr if l.startswith(';') and '@launch' not in l][:19]
    out = '\n'.join(top) + '\n'
    if os.environ.get('LIST'):
        out += f"; @launch kernel={n} grid=(256,1,1) block=(512,1,1) lds={LDS_TOTAL}\n"
    else:
        out += f"; @launch grid=(256,1,1) block=(512,1,1) lds={LDS_TOTAL}\n"
    if STAMP: out += '; stamps: ' + ','.join(STAMP_LIST) + '\n'
    out += '.amdgcn_target "amdgcn-amd-amdhsa--gfx950"\n' + kernel_header(n) + txt + kernel_desc(n, 256, 102)
    open(path, 'w').write(out)

if __name__ == '__main__':
    build(sys.argv[1] if len(sys.argv) > 1 else 'm.s')
```

```python
import sys, math, os
from gen_common import *
import k_attn as AT
from k_attn import (period, rare_path, build_ci, qk_group, pv_group, rd, mf, ADV, W4, KPOS, VPOS, BIG, QSCALE, THRESH, WQ_BYTES,
                    V_LANE16, V_RD, V_L, V_NEGM, V_Y, V_YD, V_T0, LU, T, CI, S, P, FR, Q, Q2, O)

OOB = "0xffffff00"
SENT = ('sent' in os.environ.get('XP', '').split(','))
KORDER = [0, 1, 2, 3, 8, 9, 10, 11, 12, 13, 14, 15, 4, 5, 6, 7]
KREG = {k: (240 + 4*k if k < 4 else 128 + 4*(k - 8) if k >= 8 else 160 + 4*(k - 4)) for k in range(16)}
def kstore(k):
    return f"s_add_u32 s55, s57, {(k >> 2) * 65536}\nbuffer_store_dwordx4 {vr(KREG[k],4)}, v6, s[16:19], s55 offen offset:{(k & 3) * 1024}" + ("" if 'wb' in os.environ.get('XP', '').split(',') else " sc1")
LDS_TOTAL = 163840

def srd_off(a, srd, sptr, soff, add, size):
    a(f"s_add_u32 s{srd+2}, s{soff}, {add}\ns_add_u32 s{srd}, s{sptr}, s{srd+2}\ns_addc_u32 s{srd+1}, s{sptr+1}, 0\ns_and_b32 s{srd+1}, s{srd+1}, 0xffff")
    a(f"s_mov_b32 s{srd+2}, {size}\ns_mov_b32 s{srd+3}, 0x20000")

def phase_kv(a):
    A_BYTES = 32 * 1040; W_BYTES = 16 * 1088; SLOT = A_BYTES + 2 * W_BYTES
    GL = 2 * SLOT
    ML = GL + 2048
    XL = ML + 8192
    HAND = 131072
    ACC = 64; SET = [16, 40]
    NT = ' nt' if 'ntw' in os.environ.get('XP', '') else ''
    NT2 = ' nt' if 'ntg' in os.environ.get('XP', '') else ''
    a("s_load_dwordx8 s[28:35], s[0:1], 0\ns_load_dwordx2 s[36:37], s[0:1], 32\ns_load_dwordx4 s[40:43], s[0:1], 88\ns_load_dwordx4 s[44:47], s[0:1], 112")
    a("v_and_b32 v1, 63, v0\nv_lshrrev_b32 v2, 6, v0\ns_nop 1\nv_readfirstlane_b32 s3, v2")
    a("s_and_b32 s48, s2, 7\ns_lshr_b32 s49, s2, 3")
    a("s_and_b32 s55, s49, 3\ns_lshl_b32 s48, s48, 2\ns_add_u32 s48, s48, s55\ns_lshr_b32 s49, s49, 2")
    a("v_bfe_u32 v3, v1, 3, 2\nv_lshlrev_b32 v3, 13, v3\nv_lshrrev_b32 v4, 5, v1\nv_lshl_add_u32 v3, v4, 18, v3\nv_and_b32 v4, 7, v1\nv_lshl_add_u32 v3, v4, 4, v3")
    a("s_and_b32 s55, s3, 1\ns_lshl_b32 s55, s55, 12\ns_lshr_b32 s56, s3, 1\ns_lshl_b32 s56, s56, 19\ns_add_u32 s55, s55, s56")
    a("v_add_u32 v3, s55, v3")
    a("v_lshrrev_b32 v4, 4, v1\nv_lshlrev_b32 v4, 15, v4\nv_and_b32 v5, 15, v1\nv_lshl_add_u32 v4, v5, 4, v4")
    a("s_and_b32 s55, s3, 3\ns_lshl_b32 s55, s55, 17\nv_add_u32 v4, s55, v4")
    a("s_lshl_b32 s50, s49, 15\ns_lshl_b32 s51, s48, 8\ns_mul_i32 s52, s3, 4160")
    a(f"s_mul_i32 s53, s3, 4352\ns_add_u32 s53, s53, {A_BYTES}")
    a("s_and_b32 s61, s2, 3\ns_mul_i32 s55, s61, 144\nv_lshrrev_b32 v8, 3, v0\nv_add_u32 v8, s55, v8\nv_mul_u32_u24 v245, 6912, v8\nv_and_b32 v2, 7, v0")
    a("v_lshl_add_u32 v245, v2, 4, v245\ns_lshr_b32 s55, s2, 2\ns_lshl_b32 s55, s55, 7\nv_add_u32 v245, s55, v245\nv_lshlrev_b32 v8, 1, v8")
    a("s_lshl_b32 s60, s2, 3\ns_add_u32 s60, s60, s3\ns_mul_i32 s55, s60, 1152\nv_lshlrev_b32 v10, 4, v1\nv_add_u32 v10, s55, v10")
    a(f"v_cmp_gt_u32 vcc, 8, v1\nv_mov_b32 v15, {OOB}\nv_add_u32 v11, 1024, v10\nv_cndmask_b32 v11, v15, v11, vcc")
    a("s_waitcnt lgkmcnt(0)")
    a("s_mov_b32 s4, s46\ns_mov_b32 s5, s47")
    make_srd(a, 8, 30, SIZES['ckv'])
    a("s_cmp_lt_u32 s3, 4\ns_cselect_b32 s34, s34, s36\ns_cselect_b32 s35, s35, s37")
    make_srd(a, 12, 34, SIZES['wuk'])
    def dma_ops(slot):
        ops = []
        for jj in range(4):
            ops.append(f"s_add_u32 m0, s52, {slot*SLOT + 16*jj}\ns_nop 0\nbuffer_load_dwordx4 v3, s[8:11], s50 offen offset:{1024*jj} lds")
        for jj in range(4):
            ops.append(f"s_add_u32 m0, s53, {slot*SLOT + 1088*jj}\ns_add_u32 s55, s51, {8192*jj}\nbuffer_load_dwordx4 v4, s[12:15], s55 offen{NT} lds")
        return ops
    ADVD = f"s_add_u32 s50, s50, 128\ns_add_u32 s51, s51, {64*8192}"
    for st in range(2):
        for o in dma_ops(st): a(o)
        a(ADVD)
    CPF = 0 if 'nocpf' in os.environ.get('XP', '') else 1
    if CPF:
        a("s_getpc_b64 s[16:17]")
        a.label("Lpc")
        a("s_and_b32 s17, s17, 0xffff\ns_mov_b32 s18, Lend-Lpc\ns_mov_b32 s19, 0x20000")
        a("s_lshr_b32 s55, s2, 3\ns_lshl_b32 s55, s55, 3\ns_add_u32 s55, s55, s3\ns_lshl_b32 s55, s55, 9\nv_lshlrev_b32 v2, 3, v1")
        a("buffer_load_dwordx2 v[220:221], v2, s[16:19], s55 offen")
    a("s_lshl_b32 s63, s49, 15\ns_and_b32 s55, s48, 3\ns_lshl_b32 s55, s55, 10\ns_add_u32 s63, s63, s55")
    a("s_and_b32 s7, s49, 3\ns_lshl_b32 s7, s7, 13\ns_lshl_b32 s55, s48, 8\ns_add_u32 s7, s7, s55")
    a("s_bfe_u32 s55, s3, 0x10001\ns_lshr_b32 s56, s49, 2\ns_cmp_eq_u32 s55, s56\ns_cselect_b32 s7, s7, 0x7f000000")
    if 'nol2' in os.environ.get('XP', ''): a("s_mov_b32 s7, 0x7f000000\ns_mov_b32 s63, 0x7f000000")
    def l2pf(t):
        return [f"buffer_load_dwordx4 v[220:223], v3, s[8:11], s63 offen offset:{128*t}",
                f"s_add_u32 s56, s7, {t*64*8192}\nbuffer_load_dwordx4 v[220:223], v4, s[12:15], s56 offen{NT}"]
    l = Ops()
    make_srd(l, 16, 40, SIZES['c']); make_srd(l, 20, 42, SIZES['wmod']); make_srd(l, 24, 28, SIZES['x'])
    l("s_cmp_lt_u32 s2, 216\ns_cselect_b32 s22, s22, 0")
    l(f"s_mov_b32 s59, 0x7f000000\ns_cmp_lt_u32 s3, 2\ns_cselect_b32 s58, {128*6912}, s59\ns_cselect_b32 s59, 256, s59\ns_mov_b32 s55, {64*6912}")
    for i, (so, sc) in enumerate((('0', '0 offen'), ('s55', '0 offen offset:128'), ('s58', 's59 offen'))):
        l(f"buffer_load_dwordx4 {vr(192+4*i,4)}, v245, s[20:23], {so} offen{NT2}")
        l(f"buffer_load_ushort v{204+i}, v8, s[16:19], {sc}")
    l(f"buffer_load_dwordx4 v[224:227], v10, s[24:27], 0 offen\nbuffer_load_dwordx4 v[228:231], v11, s[24:27], 0 offen")
    make_ws_srd(l, 96, 4, 'sync')
    l(f"v_lshlrev_b32 v2, 2, v1\ns_lshl_b32 s55, s2, 8\nv_add_u32 v2, s55, v2\nv_mov_b32 v243, 0")
    l.lines.append("ZSTORE")
    make_srd(l, 36, 44, 256); make_ws_srd(l, 40, 4, 'modp'); make_srd(l, 16, 32, SIZES['wq']); make_ws_srd(l, 24, 4, 'h1'); make_ws_srd(l, 20, 4, 'mod')
    def sloads(role):
        return [(f"s_cmp_lg_u32 s3, 0\ns_cbranch_scc1 Lkv_nz\nbuffer_store_dword v243, v2, {SYNC}, 0 offen sc1\nLkv_nz:" if role == 0 else "s_nop 0")
                if o == "ZSTORE" else o for o in l.ops()]
    a("v_and_b32 v5, 7, v1\nv_mul_u32_u24 v5, 1040, v5\nv_bfe_u32 v6, v1, 3, 2\nv_lshl_add_u32 v5, v6, 7, v5")
    a("v_lshrrev_b32 v6, 5, v1\nv_lshl_add_u32 v5, v6, 4, v5")
    a("s_and_b32 s55, s3, 1\ns_mul_i32 s55, s55, 16640\nv_add_u32 v5, s55, v5")
    a("v_bfe_u32 v6, v1, 2, 2\nv_mul_u32_u24 v6, 1088, v6\nv_lshrrev_b32 v7, 5, v1\nv_lshl_add_u32 v6, v7, 9, v6")
    a("v_bfe_u32 v7, v1, 4, 1\nv_lshl_add_u32 v6, v7, 5, v6\nv_and_b32 v7, 3, v1\nv_lshl_add_u32 v6, v7, 3, v6")
    a(f"s_lshr_b32 s55, s3, 2\ns_mul_i32 s55, s55, {W_BYTES}\ns_bfe_u32 s56, s3, 0x10001\ns_lshl_b32 s56, s56, 7")
    a(f"s_add_u32 s55, s55, s56\ns_add_u32 s55, s55, {A_BYTES}\nv_add_u32 v6, s55, v6")
    a(f"v_lshrrev_b32 v9, 3, v0\nv_lshlrev_b32 v13, 9, v9\nv_lshlrev_b32 v9, 5, v9\nv_add_u32 v9, {ML}, v9\nv_lshlrev_b32 v12, 4, v0\nv_cmp_gt_u32 vcc, 288, v0\ns_nop 1\nv_cndmask_b32 v12, v15, v12, vcc")
    a("s_lshr_b32 s55, s2, 2\ns_mul_i32 s55, s55, 36864\ns_and_b32 s56, s2, 3\ns_lshl_b32 s56, s56, 7\ns_add_u32 s62, s55, s56")
    a(f"v_and_b32 v14, 7, v0\nv_lshl_add_u32 v13, v14, 4, v13\ns_lshl_b32 s55, s3, 4\ns_add_u32 s55, s55, {XL}\nv_lshlrev_b32 v14, 7, v1\nv_add_u32 v14, s55, v14")
    a(f"s_lshl_b32 s55, s3, 8\ns_add_u32 s55, s55, {GL}\nv_lshlrev_b32 v7, 5, v1\nv_add_u32 v7, s55, v7")
    for i in range(0, 128, 2): a(f"v_mov_b64 {vr(ACC+i,2)}, 0")

    pf = ["s_mul_i32 s55, s60, 2304\nv_lshlrev_b32 v2, 4, v1"] + [f"buffer_load_dwordx4 v[220:223], v2, s[16:19], s55 offen offset:{1024*i}" for i in range(3)]
    g = Ops()
    for i in range(3):
        c = 204 + i
        g(f"v_lshlrev_b32 v{c}, 16, v{c}\nv_mul_f32 v216, 0xbfb8aa3b, v{c}\nv_exp_f32 v216, v216\ns_nop 0\nv_add_f32 v216, 1.0, v216\nv_rcp_f32 v216, v216\ns_nop 0\nv_mul_f32 v{c}, v{c}, v216")
        round_bf16(g, c)
        for d in range(4):
            w = 192 + 4*i + d
            op = "v_mul_f32" if i == 0 else "v_fmac_f32"
            g(f"v_lshlrev_b32 v216, 16, v{w}\nv_and_b32 v217, 0xffff0000, v{w}\n{op} v{208+2*d}, v{c}, v216\n{op} v{209+2*d}, v{c}, v217")
    g("s_nop 1")
    for k in range(8): g(f"v_add_f32_dpp v{208+k}, v{208+k}, v{208+k} row_ror:8 row_mask:0xf bank_mask:0xf")
    for sw in ("v_permlane16_swap_b32", "v_permlane32_swap_b32"):
        for k in range(8): g(f"v_mov_b32 v{192+k}, v{208+k}")
        g("s_nop 0")
        for k in range(8): g(f"{sw} v{208+k}, v{192+k}")
        for k in range(8): g(f"v_add_f32 v{208+k}, v{208+k}, v{192+k}")
    gemv = g.ops() + ["s_mov_b64 exec, 0xff\nds_write_b128 v7, v[208:211]\nds_write_b128 v7, v[212:215] offset:16\ns_mov_b64 exec, -1"]
    mload = [f"v_lshlrev_b32 v10, 4, v0\nv_add_u32 v10, {ML}, v10"] + [f"s_mov_b32 s55, {13824*r}\nbuffer_load_dwordx4 {vr(192+4*r,4)}, v12, s[40:43], s55 offen sc1" for r in range(4)]
    q = Ops()
    for k in range(4): q(f"v_add_f32 v{192+k}, v{192+k}, v{196+k}\nv_add_f32 v{200+k}, v{200+k}, v{204+k}")
    for k in range(4): q(f"v_add_f32 v{192+k}, v{192+k}, v{200+k}")
    round_pairs(q, 192, 4, 2)
    q("v_cmp_lt_u32 vcc, 143, v0\ns_nop 1\nv_cndmask_b32 v196, 0, 1.0, vcc")
    for k in range(4): q(f"v_add_f32 v{192+k}, v{192+k}, v196")
    round_pairs(q, 192, 4, 2)
    q("ds_write_b128 v10, v[192:195]")
    msum = q.ops()
    x = Ops()
    unpack8(x, 224, 232); unpack8(x, 228, 240)
    x("v_add_f32 v216, v232, v233")
    for i in range(234, 248): x(f"v_add_f32 v216, v216, v{i}")
    wave_allsum(x, 216, 217)
    x("v_mul_f32 v216, 0x3ae38e39, v216\nv_cmp_gt_u32 vcc, 8, v1\nv_mov_b32 v219, 0\ns_nop 0\nv_cndmask_b32 v218, 0, v216, vcc")
    for i in range(16): x(f"v_sub_f32 v217, v{232+i}, v{216 if i < 8 else 218}\nv_fmac_f32 v219, v217, v217")
    wave_allsum(x, 219, 217)
    x("v_mul_f32 v219, 0x3ae38e39, v219")
    round_bf16(x, 216); round_bf16(x, 219)
    x("v_add_f32 v219, 0x3727c5ac, v219"); round_bf16(x, 219)
    x("v_sqrt_f32 v219, v219\ns_nop 0"); round_bf16(x, 219)
    x("v_rcp_f32 v219, v219\ns_nop 0")
    for i in range(16): x(f"v_sub_f32 v{232+i}, v{232+i}, v216")
    round_pairs(x, 232, 16, 217)
    for i in range(16): x(f"v_mul_f32 v{232+i}, v{232+i}, v219")
    for p in range(8): x(f"v_cvt_pk_bf16_f32 v{248+p}, v{232+2*p}, v{233+2*p}")
    x("ds_write_b128 v14, v[248:251]\nds_write_b128 v14, v[252:255] offset:8192")
    xst = x.ops()
    def h1fin(u):
        h = Ops()
        h(f"ds_read_b128 v[224:227], v10 offset:{XL - ML + 8192*u}")
        for k, off in enumerate((0, 16, 2304, 2320)): h(f"ds_read_b128 {vr(192+4*k,4)}, v9 offset:{off + 2048*u}")
        h("s_waitcnt lgkmcnt(0)")
        unpack8(h, 224, 232)
        for i in range(8): h(f"v_mul_f32 v{232+i}, v{232+i}, v{200+i}")
        round_pairs(h, 232, 8, 2)
        for i in range(8): h(f"v_add_f32 v{232+i}, v{232+i}, v{192+i}")
        for p in range(4): h(f"v_cvt_pk_bf16_f32 v{228+4*u+p}, v{232+2*p}, v{233+2*p}") if u == 0 else h(f"v_cvt_pk_bf16_f32 v{240+p}, v{232+2*p}, v{233+2*p}")
        h(f"s_add_u32 s55, s62, {32768*u}\nbuffer_store_dwordx4 {vr(228 if u == 0 else 240,4)}, v13, s[24:27], s55 offen sc1")
        return h.ops()

    def reads(ks, s):
        b = SET[s]; r = []
        for nn in range(2):
            for e in range(2): r.append(f"ds_read_b64_tr_b16 {vr(b+16+4*nn+2*e,2)}, v6 offset:{ks*4352 + e*256 + nn*64}")
        for m in range(4): r.append(f"ds_read_b128 {vr(b+4*m,4)}, v5 offset:{(m>>1)*8320 + (m&1)*512 + ks*32}")
        return r
    def mfmas(s, role):
        b = SET[s]; r = []
        for m in range(4):
            for nn in range(2):
                acc = vr(ACC + 16*(2*m+nn), 16); c = vr(b+4*m, 4); w = vr(b+16+4*nn, 4)
                r.append(mf(acc, w, c, acc) if role == 0 else mf(acc, c, w, acc))
        return r
    stamp(a, 'kv_pro')
    a(f"s_waitcnt vmcnt({8 + CPF})\ns_barrier")
    stamp(a, 'kv_b0')
    for o in reads(0, 0): a(o)
    a("s_cmp_lt_u32 s3, 4\ns_cbranch_scc0 Lkv_r1")
    for role in range(2):
        a.label(f"Lkv_r{role}")
        if role == 1 and 'p1' in os.environ.get('PR', ''): a("s_setprio 1")
        if role == 0 and 'p0' in os.environ.get('PR', ''): a("s_setprio 1")
        hx = len(xst) // 2
        for t in range(8):
            pl = ['s_cmp_lg_u32 s3, 0\ns_cbranch_scc1 Lkv_npl\nbuffer_load_dword v15, v11, s[36:39], 0 offen sc1\nLkv_npl:'] if role == 0 else []
            side = {0: l2pf(2) + l2pf(3) + sloads(role), 1: gemv, 2: xst[:hx], 3: xst[hx:], 4: ['s_nop 0'] * 10 + pl + pf,
                    5: mload + ['s_nop 0'] * 40 + ['s_waitcnt vmcnt(0)'] + msum, 6: h1fin(0) + ['s_nop 0'] * 46}.get(t, [])
            if 'noval' in os.environ.get('XP', '') and t in (1, 2, 3): side = [o for o in side if 'buffer' in o or 'ds_' in o]
            if 'novm' in os.environ.get('XP', '') and t == 4: side = [o if 'buffer' not in o else o.replace('s55 offen', 's100 offen') for o in side]; a('s_mov_b32 s100, 0x7f000000')
            g0 = 8 * (int(os.environ.get('DKS', '0')) + 1) if ((role == 1 or ('nospread' not in os.environ.get('XP', ''))) and t in (4, 5, 6)) else 0
            if 1 <= t <= 4: side = side + l2pf(t + 3)
            per = (len(side) + 23 - g0) // (24 - g0)
            if t == 1: a(f"s_waitcnt vmcnt({0 if 'nospread' in os.environ.get('XP', '') and role == 1 else 4})")
            if t == 2 and role == 0:
                a("s_cmp_lg_u32 s3, 0\ns_cbranch_scc1 Lkv_nofin")
                a(f"v_lshlrev_b32 v2, 2, v1\nv_add_u32 v15, {GL}, v2")
                for w in range(8): a(f"ds_read_b32 v{192+w}, v15 offset:{256*w}")
                a("s_mul_i32 s55, s61, 13824\ns_lshr_b32 s56, s2, 2\ns_lshl_b32 s56, s56, 8\ns_add_u32 s55, s55, s56\ns_cmp_lt_u32 s2, 216\ns_cselect_b32 s55, s55, 0x7f000000\ns_waitcnt lgkmcnt(0)")
                for w in range(1, 8): a(f"v_add_f32 v192, v192, v{192+w}")
                a("buffer_store_dword v192, v2, s[40:43], s55 offen sc1\nv_mov_b32 v2, 1\ns_lshl_b32 s55, s61, 6\nv_and_b32 v11, 3, v1\nv_lshlrev_b32 v11, 6, v11")
                a("s_waitcnt vmcnt(0)\ns_mov_b64 exec, 1\nbuffer_atomic_add v2, off, s[36:39], s55 sc1\ns_mov_b64 exec, -1")
                a.label("Lkv_nofin")
            if t in (5, 6) and role == 1:
                a(f"s_cmp_lg_u32 s3, 7\ns_cbranch_scc1 Lkv_nofm{t}")
                if t == 5:
                    a(f"s_lshl_b32 s55, s2, 6\nv_lshlrev_b32 v15, 2, v1\nv_add_u32 v15, s55, v15\nv_cmp_gt_u32 vcc, 16, v1\nv_mov_b32 v2, {OOB}\ns_cmp_lt_u32 s2, 216\ns_cselect_b64 vcc, vcc, 0\ns_nop 1\nv_cndmask_b32 v15, v2, v15, vcc")
                    for r in range(4): a(f"s_mov_b32 s55, {13824*r}\nbuffer_load_dword v{216+r}, v15, s[40:43], s55 offen sc1")
                else:
                    a("v_add_f32 v216, v216, v217\nv_add_f32 v218, v218, v219\nv_add_f32 v216, v216, v218")
                    round_bf16(a, 216)
                    a("buffer_store_dword v216, v15, s[20:23], 0 offen sc1")
                a.label(f"Lkv_nofm{t}")
            if t == 7 and role == 1:
                a("s_sub_u32 s6, s3, 4\ns_cmp_ge_u32 s3, 6\ns_cbranch_scc1 Lkv_nls")
                attn_loader_setup(a)
                a.label("Lkv_nls")
                a("s_cmp_lg_u32 s3, 7\ns_cbranch_scc1 Lkv_nl7\ns_lshr_b32 s31, s2, 5\ns_sub_u32 s30, 15, s31")
                a(f"v_and_b32 v3, 1, v1\nv_mov_b32 v4, s30\nv_mov_b32 v2, s31\nv_cmp_eq_u32 vcc, 0, v3\ns_nop 1\nv_cndmask_b32 v3, v2, v4, vcc\nv_lshlrev_b32 v3, 7, v3")
                a.label("Lkv_nl7")
            for ks in range(3):
                if t == 6 and role == 0 and ks == 2:
                    a("s_cmp_lg_u32 s3, 0\ns_cbranch_scc1 Lkv_noh2")
                    for o in h1fin(1): a(o)
                    a.label("Lkv_noh2")
                if t == 7 and role == 1 and ks == 1:
                    a(f"s_cmp_lg_u32 s3, 7\ns_cbranch_scc1 Lkv_nl8\nbuffer_load_dword v244, v3, {SYNC}, 0 offen sc1\nLkv_nl8:")
                a("s_waitcnt lgkmcnt(0)")
                m = mfmas(ks & 1, role); r = reads(ks + 1, (ks + 1) & 1)
                dm = dma_ops((t - 1) & 1) if ((role == 1 or ('nospread' not in os.environ.get('XP', ''))) and ks == int(os.environ.get('DKS', '0')) and 1 <= t <= 6) else None
                for i in range(8):
                    a(m[i])
                    for o in r[2*i:2*i+2]: a(o)
                    if dm and not ('nospread' not in os.environ.get('XP', '')): a(dm[i])
                    if dm and ('nospread' not in os.environ.get('XP', '')) and i % 2 == role: a(dm[4 + i // 2])
                    k = (ks * 8 + i - g0) * per
                    if k >= 0:
                        for o in side[k:k+per]:
                            if o != 's_nop 0' or t not in (4, 5, 6): a(o)
                if dm: a(ADVD)
            d = SLOT if t % 2 == 0 else -SLOT
            a(f"v_add_u32 v5, {d & 0xffffffff}, v5\nv_add_u32 v6, {d & 0xffffffff}, v6")
            a(f"s_waitcnt vmcnt({ {0: 12 + CPF, 1: 2, 2: 2, 3: 2, 4: 5}.get(t, 0) }) lgkmcnt(0)")
            if t == 4 and role == 0:
                a("s_cmp_lg_u32 s3, 0\ns_cbranch_scc1 Lkv_mpd\ns_mov_b32 s100, 0x8000")
                a.label("Lkv_mp")
                a("v_cmp_gt_u32 vcc, 64, v15\ns_sub_u32 s100, s100, 1\ns_cbranch_vccz Lkv_mpd\ns_cmp_eq_u32 s100, 0\ns_cbranch_scc1 Lkv_mpd")
                a("buffer_load_dword v15, v11, s[36:39], 0 offen sc1\ns_waitcnt vmcnt(0)\ns_branch Lkv_mp")
                a.label("Lkv_mpd")
            if t == 7 and role == 1:
                a(f"s_cmp_lg_u32 s3, 7\ns_cbranch_scc1 Lkv_np1\nv_cmp_gt_u32 vcc, 16, v244\nv_mov_b32 v247, {GL}\ns_nop 1")
                a("s_cmp_eq_u64 vcc, 0\ns_cselect_b32 s59, 1, 0\nv_mov_b32 v248, s59\nds_write_b32 v247, v248\ns_waitcnt lgkmcnt(0)")
                a.label("Lkv_np1")
            stamp(a, f'kw{t}')
            a("s_barrier")
            stamp(a, f'kv{t}')
            if t == 7 and role == 1:
                a(f"s_cmp_ge_u32 s3, 6\ns_cbranch_scc1 Lkv_nq0\nv_mov_b32 v247, {GL}\nds_read_b32 v248, v247\ns_waitcnt lgkmcnt(0)")
                a("v_readfirstlane_b32 s51, v248\ns_cmp_eq_u32 s51, 0\ns_cbranch_scc1 Lkv_nq0")
                for i in range(2): wq_part(a); h_part(a)
                a.label("Lkv_nq0")
            if t == 6 and role == 1:
                a("s_cmp_lg_u32 s3, 7\ns_cbranch_scc1 Lkv_ns1\ns_lshr_b32 s55, s2, 4\ns_lshl_b32 s55, s55, 7")
                signal(a, 55, 2)
                a.label("Lkv_ns1")
            m = mfmas(1, role); r = reads(0, 0) if t < 7 else []; dm = dma_ops(t & 1)
            for i in range(8):
                a(m[i])
                for o in r[2*i:2*i+2]: a(o)
                if t < 6 and role == 0 and not ('nospread' not in os.environ.get('XP', '')): a(dm[i])
                if t < 6 and ('nospread' not in os.environ.get('XP', '')) and i % 2 == role: a(dm[i // 2])
            if t < 6 and role == 0 and not ('nospread' not in os.environ.get('XP', '')): a(ADVD)
        stamp(a, 'kv_end')
        def pack(k, dst):
            src = ACC + 8*k
            for p in range(4): a(f"v_cvt_pk_bf16_f32 v{dst+p}, v{src+2*p}, v{src+2*p+1}")
        if role == 1:
            a("s_cmp_ge_u32 s3, 6\ns_cbranch_scc1 Lkv_sw")
            a(f"s_lshl_b32 s55, s6, 14\ns_add_u32 s55, s55, {HAND}\nv_add_u32 v12, s55, v{V_LANE16}\ns_nop 7")
            for k in range(16):
                dst = 16 + 4 * (k % 8)
                pack(k, dst)
                a(f"ds_write_b128 v12, {vr(dst,4)} offset:{1024*k}")
            a("s_waitcnt lgkmcnt(0)\ns_barrier")
            a("s_branch Lat_load")
            a.label("Lkv_sw")
        a("v_lshlrev_b32 v7, 4, v1")
        a("s_lshl_b32 s55, s48, 19\ns_lshl_b32 s56, s49, 13\ns_add_u32 s55, s55, s56")
        a("s_and_b32 s56, s3, 1\ns_lshl_b32 s56, s56, 18\ns_add_u32 s57, s55, s56")
        if role == 1:
            a(f"s_and_b32 s55, s3, 1\ns_lshl_b32 s55, s55, 14\ns_add_u32 s55, s55, {HAND}\nv_add_u32 v2, s55, v7")
            for k in range(16): pack(k, ACC + 4*k)
            make_ws_srd(a, 20, 4, 'vf')
            a("s_cmp_lg_u32 s3, 7\ns_cbranch_scc1 Lkv_np2\ns_cmp_lg_u32 s59, 0\ns_cbranch_scc1 Lkv_np2")
            stamp(a, 'l_h1p0')
            poll(a, 3, 16, 244)
            stamp(a, 'l_h1p1')
            a.label("Lkv_np2")
            a("s_barrier")
            for k in range(16): a(f"ds_read_b128 {vr(128+4*k,4)}, v2 offset:{1024*k}")
            a("s_branch Lat_sw")
        else:
            for k in KORDER: pack(k, KREG[k])
            make_ws_srd(a, 16, 4, 'kf')
            if 'nok' in os.environ.get('XP', ''): a("s_mov_b32 s18, 0")
            a("s_lshr_b32 s56, s3, 1\ns_lshl_b32 s56, s56, 12\ns_add_u32 s57, s57, s56")
            a("v_mov_b32 v6, v7")
            a("s_branch Lat_comp")

def attn_ids(a):
    a("s_and_b32 s28, s2, 7\ns_lshr_b32 s29, s2, 3")
    a("s_and_b32 s30, s29, 3\ns_lshl_b32 s28, s28, 2\ns_add_u32 s28, s28, s30")
    if 'longfirst' in os.environ.get('XP', ''): a("s_lshr_b32 s31, s29, 2\ns_sub_u32 s30, 15, s31")
    else: a("s_lshr_b32 s30, s29, 2\ns_sub_u32 s31, 15, s30")
    a(f"v_and_b32 v8, 63, v0\nv_lshlrev_b32 v{V_LANE16}, 4, v8")

def phase_attn_compute(a):
    a.label("Lat_comp")
    a("s_setprio 1" if 'pc' in os.environ.get('PR', '') else "s_setprio 0" if os.environ.get('PR') else "")
    attn_ids(a)
    a("v_bfe_u32 v2, v8, 2, 2\nv_mul_u32_u24 v2, 1088, v2\nv_lshrrev_b32 v9, 5, v8\nv_lshl_add_u32 v2, v9, 9, v2")
    a("v_bfe_u32 v9, v8, 4, 1\nv_lshl_add_u32 v2, v9, 5, v2\nv_and_b32 v9, 3, v8\nv_lshl_add_u32 v2, v9, 3, v2")
    a(f"s_lshl_b32 s32, s3, 11\ns_add_u32 s32, s32, {WQ_BYTES}\nv_add_u32 v3, s32, v{V_LANE16}")
    a("v_and_b32 v9, 31, v8\ns_lshl_b32 s32, s3, 5\nv_add_u32 v9, s32, v9\nv_lshrrev_b32 v10, 5, v8\nv_lshlrev_b32 v10, 2, v10")
    a(f"v_sub_u32 v9, v9, v10\nv_cvt_f32_i32 v9, v9\nv_add_f32 v9, 0.5, v9\nv_mul_f32 v{V_YD}, {f32(BIG)}, v9")
    QACC = lambda qt, t: (16 + 16*t) if qt == 0 else (O + 16*t)
    QSET = [FR, FR + 24]
    for i in range(0, 64, 2): a(f"v_mov_b64 {vr(16+i,2)}, 0\nv_mov_b64 {vr(O+i,2)}, 0")
    make_ws_srd(a, 20, 4, 'ctx')
    a(f"s_mov_b32 s46, {f32(QSCALE)}\ns_mov_b32 s47, {f32(QSCALE)}")
    def qreads(ks, st):
        b = QSET[st]; r = []
        for qt in range(2): r.append(f"ds_read_b128 {vr(b+16+4*qt,4)}, v3 offset:{qt*8192 + ks*1024}")
        for t in range(4):
            for e in range(2): r.append(f"ds_read_b64_tr_b16 {vr(b+4*t+2*e,2)}, v2 offset:{ks*4352 + e*256 + t*64}")
        return r
    def qmf(st):
        b = QSET[st]
        return [mf(vr(QACC(qt, t), 16), vr(b+4*t, 4), vr(b+16+4*qt, 4), vr(QACC(qt, t), 16)) for t in range(4) for qt in range(2)]
    def front(m, r):
        out = []
        for i, x in enumerate(m):
            out.append(x); out += r[2*i:2*i+2]
        return out
    a("s_mov_b32 s40, 0")
    stamp(a, 'q_pre')
    a("s_barrier\ns_barrier")
    stamp(a, 'q_b0')
    for o in qreads(0, 0): a(o)
    for c in range(18):
        a("s_waitcnt lgkmcnt(0)")
        ops = front(qmf(0), qreads(1, 1))
        if c < 16: ops.insert(20, kstore(c))
        for o in ops: a(o)
        d = AT.SLOT if c % 5 != 4 else -4 * AT.SLOT
        a(f"v_add_u32 v2, {d & 0xffffffff}, v2\nv_add_u32 v3, {d & 0xffffffff}, v3")
        if c == 9: a("s_waitcnt vmcnt(2)")
        if c == 17: a("s_waitcnt vmcnt(0)")
        a("s_waitcnt lgkmcnt(0)")
        for o in front(qmf(1), qreads(0, 0) if c < 17 else []): a(o)
        a("s_barrier")
        stamp(a, f'q{c}')
    a(f"s_mov_b32 s40, {3*AT.SLOT}")
    stamp(a, 'q_end')
    a("v_and_b32 v8, 63, v0\nv_bfe_u32 v9, v8, 4, 1\nv_lshlrev_b32 v9, 17, v9\nv_lshrrev_b32 v10, 5, v8\nv_lshl_add_u32 v9, v10, 8, v9")
    a(f"v_and_b32 v10, 15, v8\nv_lshl_add_u32 v{V_T0}, v10, 4, v9\nv_mov_b32 v{V_T0+1}, {f32(THRESH)}")
    a(ADV[1])
    a("s_nop 7")
    for qt in (1, 0):
        for t in range(4):
            for e in range(2):
                for p in range(4):
                    s_ = QACC(qt, t) + 8*e + 2*p
                    a(f"v_pk_mul_f32 {vr(s_,2)}, {vr(s_,2)}, s[46:47]")
                for p in range(4):
                    s_ = QACC(qt, t) + 8*e + 2*p
                    a(f"v_cvt_pk_bf16_f32 v{(Q, Q2)[qt] + 4*(2*t+e) + p}, v{s_}, v{s_+1}")
        if qt == 1:
            for i in range(8): a(rd(i, KPOS[1]))
    a("s_mov_b32 s42, s30\ns_mov_b32 s43, 0")
    a.label("Lat_qk0")
    a(f"s_lshl_b32 s32, s42, 7\nv_cvt_f32_u32 v{V_Y}, s32\nv_mul_f32 v{V_Y}, {f32(BIG)}, v{V_Y}\nv_add_f32 v{V_Y}, v{V_Y}, v{V_YD}")
    a(f"v_mov_b32 v{V_NEGM}, 0")
    for o in build_ci(): a(o)
    a(ADV[0]); a(ADV[1])
    z = [f"v_mov_b64 {vr(O+i,2)}, 0" for i in range(0, 64, 2)] + [f"v_mov_b64 {vr(P[1]+i,2)}, 0" for i in range(0, 8, 2)]
    z += [f"v_mov_b32 v{V_L}, 0", f"v_mov_b32 v{LU[1]}, 0"]
    m = qk_group(0)
    for i in range(8):
        if i == 0: a("s_waitcnt lgkmcnt(5)")
        if i % 4 == 3: a(W4)
        a(m[i]); a(rd(i, KPOS[0]))
        for o in z[5*i:5*i+5]: a(o)
    a("s_nop 7\ns_nop 1")
    s = S[0]; t = V_T0 + 2; d = V_T0 + 3
    a(f"v_max3_f32 v{d}, v{s}, v{s+1}, v{s+2}")
    for r in range(3, 15, 2): a(f"v_max3_f32 v{d}, v{d}, v{s+r}, v{s+r+1}")
    a(f"v_max_f32 v{d}, v{d}, v{s+15}")
    a(f"v_mov_b32 v{t}, v{d}\ns_nop 1\nv_permlane32_swap_b32 v{d}, v{t}\ns_nop 1")
    a(f"v_max_f32 v{d}, v{d}, v{t}")
    a(f"v_sub_f32 v{V_NEGM}, 0, v{d}")
    for r in range(16): a(f"v_sub_f32 v{s+r}, v{s+r}, v{d}")
    for o in build_ci(): a(o)
    sites = []
    a(f"v_mov_b32 v{V_Y}, v{V_YD}")
    a("s_cmp_eq_u32 s42, 0\ns_cbranch_scc0 Lat_plain_pre")
    a(f"v_add_f32 v{V_Y}, {f32(-64*BIG)}, v{V_Y}\ns_mov_b32 s41, 1\ns_branch Lat_rebuild")
    a.label("Lat_plain_pre")
    a("s_lshl_b32 s41, s42, 1\ns_sub_u32 s41, s41, 1")
    a.label("Lat_plain")
    a("s_barrier")
    sites.append(period(a, 0, 0, VPOS[0], KPOS[1]))
    sites.append(period(a, 1, 1, VPOS[1], KPOS[0], adv=True, tail_ops=["s_sub_u32 s41, s41, 1\ns_cmp_lg_u32 s41, 0"]))
    a("s_cbranch_scc1 Lat_plain")
    a("s_mov_b32 s41, 2")
    a.label("Lat_rebuild")
    a("s_barrier")
    sites.append(period(a, 0, 2, VPOS[0], KPOS[1], rebuild=True))
    sites.append(period(a, 1, 3, VPOS[1], KPOS[0], rebuild=True, adv=True, tail_ops=["s_sub_u32 s41, s41, 1\ns_cmp_lg_u32 s41, 0"]))
    a("s_cbranch_scc1 Lat_rebuild")
    a("s_barrier")
    sites.append(period(a, 0, 4, VPOS[0], VPOS[1]))
    sites.append(period(a, 1, 5, None, VPOS[0], qk=False, adv=True))
    a("s_barrier")
    m = pv_group(1)
    mv = [f"v_mov_b64 {vr(Q+i,2)}, {vr(Q2+i,2)}" for i in range(0, 32, 2)]
    for i in range(8):
        if i % 4 == 3: a(W4)
        a(m[i]); a(rd(i, KPOS[1]))
        for o in mv[2*i:2*i+2]: a(o)
    a("s_cmp_eq_u32 s43, 0\ns_cbranch_scc1 Lat_noE\ns_waitcnt lgkmcnt(0)\ns_barrier")
    a.label("Lat_noE")
    a(f"v_add_f32 v{V_L}, v{V_L}, v{LU[1]}")
    a(f"v_mov_b32 v{t}, v{V_L}\ns_nop 1\nv_permlane32_swap_b32 v{V_L}, v{t}\ns_nop 1\nv_add_f32 v{V_L}, v{V_L}, v{t}")
    a(f"v_rcp_f32 v{T}, v{V_L}\ns_nop 0\nv_mov_b32 v{T+1}, v{T}")
    a("s_lshl_b32 s32, s42, 20\ns_lshl_b32 s33, s3, 18\ns_add_u32 s32, s32, s33\ns_lshl_b32 s33, s28, 12\ns_add_u32 s32, s32, s33")
    a("s_nop 3")
    k = 0
    for tt in range(4):
        for e in range(2):
            src = O + 16*tt + 8*e; dst = S[0] + 4 * k; k += 1
            for p in range(4): a(f"v_pk_mul_f32 {vr(src+2*p,2)}, {vr(src+2*p,2)}, {vr(T,2)}")
            for p in range(4): a(f"v_cvt_pk_bf16_f32 v{dst+p}, v{src+2*p}, v{src+2*p+1}")
            a(f"buffer_store_dwordx4 {vr(dst,4)}, v{V_T0}, s[20:23], s32 offen offset:{tt*1024 + e*512} sc1")
    a("s_cmp_lg_u32 s43, 0\ns_cbranch_scc1 Lat_cend")
    a("s_mov_b32 s43, 1\ns_mov_b32 s42, s31\ns_branch Lat_qk0")
    for site, par in sites:
        a.label(f"Lat_rs{site}")
        a(f"s_call_b64 s[44:45], Lat_rare{par}\ns_branch Lat_rb{site}")
    rare_path(a, 0); rare_path(a, 1)
    a.label("Lat_cend")
    stamp(a, 'at_end')
    a(f"s_lshr_b32 s32, s28, 3\ns_add_u32 s32, s32, {C_CTX}\ns_lshl_b32 s33, s30, 2\ns_add_u32 s33, s33, s32\ns_lshl_b32 s33, s33, 7")
    a("s_lshl_b32 s34, s31, 2\ns_add_u32 s34, s34, s32\ns_lshl_b32 s34, s34, 7")

def wq_part(a):
    a("s_add_u32 s32, s40, s37")
    for jj in range(4): a(f"s_add_u32 m0, s32, {1088*jj}\ns_add_u32 s33, s34, {8192*jj}\nbuffer_load_dwordx4 v2, s[8:11], s33 offen lds")
    a(f"s_add_u32 s34, s34, {32*8192}")

def h_part(a):
    a("s_add_u32 s32, s40, s38")
    for qt in range(2):
        for b in range(2):
            a(f"s_add_u32 m0, s32, {qt*8192 + b*2048}\ns_add_u32 s33, s{35+qt}, {b*36864}")
            a(f"buffer_load_dwordx4 v{V_LANE16}, s[12:15], s33 offen sc1 lds\nbuffer_load_dwordx4 v{V_LANE16}, s[12:15], s33 offen offset:1024 sc1 lds")
    a("s_add_u32 s35, s35, 2048\ns_add_u32 s36, s36, 2048")
    a(ADV[0])

def attn_loader_setup(a):
    SLOT = AT.SLOT
    make_srd(a, 8, 32, SIZES['wq'])
    a("s_load_dwordx2 s[56:57], s[0:1], 40\ns_load_dwordx2 s[58:59], s[0:1], 56\ns_load_dwordx2 s[60:61], s[0:1], 72")
    attn_ids(a)
    a("v_lshrrev_b32 v2, 4, v8\nv_lshlrev_b32 v2, 15, v2\nv_and_b32 v3, 15, v8\nv_lshl_add_u32 v2, v3, 4, v2")
    a("s_lshl_b32 s32, s6, 17\nv_add_u32 v2, s32, v2")
    a("s_lshl_b32 s34, s28, 8\ns_mul_i32 s37, s6, 4352")
    make_ws_srd(a, 12, 4, 'h1')
    a("s_lshl_b32 s32, s28, 19")
    srd_off(a, 16, 4, 32, WS['kf'][0], 512*1024); srd_off(a, 20, 4, 32, WS['vf'][0], 512*1024)
    a("s_lshl_b32 s35, s30, 1\ns_add_u32 s35, s35, s6\ns_mul_i32 s35, s35, 73728")
    a("s_lshl_b32 s36, s31, 1\ns_add_u32 s36, s36, s6\ns_mul_i32 s36, s36, 73728")
    a(f"s_lshl_b32 s38, s6, 12\ns_add_u32 s38, s38, {WQ_BYTES}\ns_lshl_b32 s39, s6, 13\ns_mov_b32 s40, 0")
    a("s_sub_u32 s44, s39, 8192\ns_sub_u32 s45, s39, 24576")
    a("s_mov_b32 s46, s44\ns_mov_b32 s47, s45\ns_mov_b32 s48, 0\ns_lshl_b32 s49, s30, 1\ns_add_u32 s49, s49, 3")

def phase_attn_loader(a):
    a.label("Lat_load")
    a("s_setprio 1" if 'pl' in os.environ.get('PR', '') else "s_setprio 0" if os.environ.get('PR') else "")
    a("s_cmp_lg_u32 s51, 0\ns_cbranch_scc1 Lat_early")
    for i in range(2): wq_part(a); h_part(a)
    a.label("Lat_early")
    for i in range(2): wq_part(a); h_part(a)
    a("s_mov_b32 s41, 14")
    a.label("Lat_lq")
    a("s_waitcnt vmcnt(24)\ns_barrier")
    wq_part(a); h_part(a)
    a("s_sub_u32 s41, s41, 1\ns_cmp_lg_u32 s41, 0\ns_cbranch_scc1 Lat_lq")
    a("s_waitcnt vmcnt(24)\ns_barrier")
    def kvload():
        for (srd, so, lo) in ((16, 46, 0), (20, 47, 16384)):
            a(f"s_add_u32 s32, s40, s39\ns_add_u32 m0, s32, {lo}\ns_add_u32 s33, s{so}, 4096")
            for j in range(4): a(f"buffer_load_dwordx4 v{V_LANE16}, {sr(srd,4)}, s{so} offen offset:{1024*j} sc1 lds")
            a(f"s_add_u32 m0, s32, {lo + 4096}\ns_nop 0")
            for j in range(4): a(f"buffer_load_dwordx4 v{V_LANE16}, {sr(srd,4)}, s33 offen offset:{1024*j} sc1 lds")
        a("s_add_u32 s46, s46, 16384\ns_add_u32 s47, s47, 16384\ns_add_u32 s48, s48, 1")
        a("s_cmp_eq_u32 s48, s49\ns_cselect_b32 s46, s44, s46")
        a("s_add_u32 s32, s49, 1\ns_add_u32 s33, s45, 16384\ns_cmp_eq_u32 s48, s32\ns_cselect_b32 s47, s33, s47")
        a(ADV[0])
    kvload()
    a("s_waitcnt vmcnt(28)\ns_barrier")
    kvload()
    a("s_waitcnt lgkmcnt(0)\ns_lshl_b32 s52, s2, 1\ns_add_u32 s52, s52, s6\ns_mul_i32 s50, s52, 9216\ns_mul_i32 s52, s52, 36864\ns_mov_b32 s41, 0")
    make_srd(a, 24, 56, 0 if 'nopf' in os.environ.get('XP', '') else SIZES['wo'])
    a.label("Lat_lpf")
    a("s_waitcnt vmcnt(32)\ns_barrier")
    kvload()
    for g in range(3):
        for j in range(3): a(f"buffer_load_dwordx4 v[8:11], v{V_LANE16}, s[24:27], s50 offen offset:{1024*j}")
        a("s_add_u32 s50, s50, 3072")
    for r in range(2):
        a("s_waitcnt vmcnt(41)\ns_barrier")
        kvload()
    a("s_add_u32 s41, s41, 1")
    for (n, ptr) in ((1, 58), (5, 60)):
        a(f"s_and_b32 s33, s{ptr+1}, 0xffff\ns_cmp_eq_u32 s41, {n}\ns_cselect_b32 s24, s{ptr}, s24\ns_cselect_b32 s25, s33, s25\ns_cselect_b32 s50, s52, s50")
    if 'nopf' not in os.environ.get('XP', ''): a(f"s_mov_b32 s26, {SIZES['w1']}")
    a("s_cmp_lt_u32 s41, 9\ns_cbranch_scc1 Lat_lpf")
    a("s_mov_b32 s41, 8")
    a.label("Lat_lkv")
    a("s_waitcnt vmcnt(32)\ns_barrier")
    kvload()
    a("s_sub_u32 s41, s41, 1\ns_cmp_lg_u32 s41, 0\ns_cbranch_scc1 Lat_lkv")
    a("s_waitcnt vmcnt(32)\ns_barrier\ns_waitcnt vmcnt(16)\ns_barrier")
    a("s_waitcnt vmcnt(0) lgkmcnt(0)\ns_barrier")
    a("s_branch Lat_ldone")

    a.label("Lat_sw")
    a("s_setprio 1" if 'pl' in os.environ.get('PR', '') else "s_setprio 0" if os.environ.get('PR') else "")
    a("s_mov_b32 s62, s57")
    a("s_load_dwordx2 s[56:57], s[0:1], 40\ns_load_dwordx2 s[58:59], s[0:1], 56\ns_load_dwordx2 s[60:61], s[0:1], 72")
    def vstore(n):
        k = n & 15; m_, nn, e = k >> 2, (k >> 1) & 1, k & 1
        reg = 64 + 4*k if n < 16 else 128 + 4*k
        a(f"s_add_u32 s55, s62, {m_*65536 + e*4096 + (2048 if n < 16 else 0)}\nbuffer_store_dwordx4 {vr(reg,4)}, v7, s[20:23], s55 offen offset:{nn*1024}" + ("" if 'wb' in os.environ.get('XP', '').split(',') else " sc1"))
    order = [n for m_ in range(4) for n in list(range(4*m_, 4*m_ + 4)) + list(range(16 + 4*m_, 16 + 4*m_ + 4))]
    a(f"s_add_u32 s32, s48, {C_KV}\ns_lshl_b32 s32, s32, 7\nv_mov_b32 v3, s32\ns_add_u32 s33, s32, {(C_KV2 - C_KV) * 128}\nv_mov_b32 v5, s33")
    a("s_waitcnt lgkmcnt(0)\ns_barrier")
    a("s_cmp_eq_u32 s3, 7\ns_cbranch_scc1 Lat_w7")
    for c in range(30):
        if c < 16 and c != 13: vstore(order[2*c]); vstore(order[2*c + 1])
        if c == 9: a("s_waitcnt vmcnt(4)")
        if c == 17: a("s_waitcnt vmcnt(0)")
        if c in (10, 18): signal(a, 32 if c == 10 else 33, 4)
        if c == 26:
            a("v_and_b32 v6, 15, v1\nv_lshlrev_b32 v6, 7, v6")
            poll(a, 6, 16, 244)
        if c in (13, 21, 29):
            if c == 29: a(f"v_add_u32 v5, {(C_KV3 - C_KV2) * 128}, v5")
            stamp(a, 'l_kvp0' if c == 13 else 'l_kvq0')
            poll(a, 3 if c == 13 else 5, 8, 244)
            stamp(a, 'l_kvp1' if c == 13 else 'l_kvq1')
            if c == 13: vstore(order[2*c]); vstore(order[2*c + 1])
        a("s_barrier")
    a("s_branch Lat_w67")
    a.label("Lat_w7")
    for c in range(30):
        if 18 <= c < 26:
            for q in range(4): vstore(order[4*(c - 18) + q])
        if c == 27:
            a(f"s_waitcnt vmcnt(0)\ns_add_u32 s33, s32, {(C_KV3 - C_KV) * 128}")
            signal(a, 33, 4)
        a("s_barrier")
    a.label("Lat_w67")
    if SENT:
        tok_ids(a)
        a(f"s_mov_b32 s33, {WS['p6'][0]}\ns_cmp_eq_u32 s3, 6\ns_cselect_b32 s32, {WS['p3'][0]}, s33")
        srd_off(a, 24, 4, 32, 0, WS['p3'][1])
        a("v_mov_b32 v8, -1\nv_mov_b32 v9, -1\nv_mov_b32 v10, -1\nv_mov_b32 v11, -1\ns_mov_b32 s50, s44\ns_mov_b32 s41, 4")
        a.label("Lat_pz")
        for g in range(3):
            a("s_barrier")
            for j in range(3): a(f"buffer_store_dwordx4 v[8:11], v7, s[24:27], s50 offen offset:{1024*j} sc1")
            a(f"s_add_u32 s50, s50, {3072 if g < 2 else 256*9216 - 6144}")
        a("s_sub_u32 s41, s41, 1\ns_cmp_lg_u32 s41, 0\ns_cbranch_scc1 Lat_pz")
        a(f"s_barrier\ns_barrier\ns_waitcnt vmcnt(0)\ns_add_u32 s32, s43, {C_PZ}\ns_lshl_b32 s32, s32, 7")
        signal(a, 32, 4)
    a(f"s_mov_b32 s41, {51 - 30 - (14 if SENT else 0)}")
    a.label("Lat_pfd")
    a("s_barrier\ns_sub_u32 s41, s41, 1\ns_cmp_lg_u32 s41, 0\ns_cbranch_scc1 Lat_pfd")
    if 'wpf' in os.environ.get('XP', ''):
        make_srd(a, 24, 56, SIZES['wo'])
        a(f"s_bfe_u32 s50, s2, 0x20001\ns_mul_i32 s50, s50, {1024*1152}\ns_lshr_b32 s32, s2, 3\ns_lshl_b32 s32, s32, 1\ns_and_b32 s33, s3, 1\ns_add_u32 s32, s32, s33")
        a("s_mul_i32 s32, s32, 18432\ns_add_u32 s50, s50, s32")
        for g in range(6):
            for j in range(3): a(f"buffer_load_dwordx4 v[8:11], v7, s[24:27], s50 offen offset:{1024*j}")
            a("s_add_u32 s50, s50, 3072")
    a("s_barrier\ns_barrier")
    a("s_waitcnt vmcnt(0)")
    a.label("Lat_ldone")

def adv_slot(slot, nslot):
    return f"s_add_u32 s40, s40, {slot}\ns_cmp_eq_u32 s40, {slot*nslot}\ns_cselect_b32 s40, 0, s40"

G16 = {'o': dict(F=16384, W=20480, NST=16, nF=4, nW=5), 'y': dict(F=20480, W=16896, NST=18, nF=5, nW=4)}

def g16_ids(a):
    a("s_bfe_u32 s28, s2, 0x20001")
    a("s_and_b32 s29, s2, 1\ns_lshl_b32 s29, s29, 3\ns_lshr_b32 s30, s2, 5\ns_add_u32 s29, s29, s30")
    a("s_bfe_u32 s30, s2, 0x20003")
    a("v_and_b32 v8, 63, v0\nv_lshlrev_b32 v1, 4, v8")

def g16_compute_setup(a, kind):
    p = G16[kind]
    g16_ids(a)
    a("v_bfe_u32 v2, v8, 4, 1\nv_lshlrev_b32 v2, 2, v2\nv_bfe_u32 v9, v8, 2, 2\nv_add_u32 v2, v2, v9")
    a("v_lshrrev_b32 v9, 5, v8\nv_and_b32 v10, 3, v8")
    if kind == 'o':
        a("v_lshl_add_u32 v2, v9, 4, v2\nv_mul_u32_u24 v2, 288, v2\nv_lshl_add_u32 v2, v10, 3, v2")
        a(f"v_add_u32 v4, {p['F']}, v2\ns_lshl_b32 s35, s3, 12\nv_add_u32 v5, s35, v1")
    else:
        a("v_mul_u32_u24 v2, 1056, v2\nv_lshl_add_u32 v2, v9, 9, v2\nv_lshl_add_u32 v2, v10, 3, v2")
        a(f"s_lshl_b32 s35, s3, 6\ns_add_u32 s35, s35, {p['F']}\nv_add_u32 v4, s35, v2\nv_mov_b32 v5, v1")
    a("v_mov_b32 v2, v4\nv_mov_b32 v3, v5")
    for i in range(0, 72, 2): a(f"v_mov_b64 {vr(16+i,2)}, 0")
    make_ws_srd(a, 20, 4, 'p3' if kind == 'o' else 'p6')
    a("v_bfe_u32 v6, v8, 4, 1\nv_lshlrev_b32 v6, 1, v6\nv_lshrrev_b32 v9, 5, v8\nv_add_u32 v6, v6, v9\nv_mul_u32_u24 v6, 9216, v6\nv_and_b32 v9, 15, v8\nv_lshl_add_u32 v6, v9, 4, v6")

def g16_compute(a, kind):
    p = G16[kind]; pre = 'Lg' + kind; SLOT = p['F'] + p['W']
    ACC = 16; SET = [96, 144]
    def reads(ks, st):
        b = SET[st]; r = []
        if kind == 'o':
            for t in range(2): r.append(f"ds_read_b128 {vr(b+4*t,4)}, v3 offset:{t*2048 + ks*1024}")
            for c in range(9):
                for e in range(2): r.append(f"ds_read_b64_tr_b16 {vr(b+8+4*c+2*e,2)}, v2 offset:{(32*ks + 8*e)*288 + c*32}")
        else:
            for t in range(2):
                for e in range(2): r.append(f"ds_read_b64_tr_b16 {vr(b+4*t+2*e,2)}, v2 offset:{8*ks*1056 + e*256 + t*32}")
            for c in range(9): r.append(f"ds_read_b128 {vr(b+8+4*c,4)}, v3 offset:{c*2048 + ks*1024}")
        return r
    def mfs(st):
        b = SET[st]
        return [f"v_mfma_f32_16x16x32_bf16 {vr(ACC+4*(9*t+c),4)}, {vr(b+4*t,4)}, {vr(b+8+4*c,4)}, {vr(ACC+4*(9*t+c),4)}"
                for c in range(9) for t in range(2)]
    def kstep(m, r, extra):
        n = len(r); NL = 6 if kind == 'o' else 3
        take = [(n * (i + 1)) // 16 - (n * i) // 16 if i < 16 else 0 for i in range(18)]
        k = 0
        a(f"s_waitcnt lgkmcnt({NL})")
        for i, x in enumerate(m):
            if i == 12: a(f"s_waitcnt lgkmcnt({min(15, k)})")
            a(x)
            for o in r[k:k+take[i]]: a(o)
            k += take[i]
            for o in extra.get(i, []): a(o)
    a(f"s_mov_b32 s40, 0\ns_mov_b32 s41, {p['NST']}")
    if kind == 'y': a("s_barrier")
    a("s_barrier")
    stamp(a, kind + '_b0')
    for o in reads(0, 0): a(o)
    a(f"s_branch {pre}_cin")
    a.label(f"{pre}_cloop")
    a("s_barrier")
    a.label(f"{pre}_cin")
    kstep(mfs(0), reads(1, 1), {14: [adv_slot(SLOT, 4)], 16: ["v_add_u32 v2, s40, v4"], 17: ["v_add_u32 v3, s40, v5"]})
    kstep(mfs(1), reads(0, 0), {16: ["s_sub_u32 s41, s41, 1"], 17: ["s_cmp_lg_u32 s41, 0"]})
    a(f"s_cbranch_scc1 {pre}_cloop")
    a.label(f"{pre}_cend")
    stamp(a, kind + '_end')
    a("s_lshl_b32 s32, s28, 8\ns_lshl_b32 s33, s29, 4\ns_add_u32 s32, s32, s33\ns_lshl_b32 s33, s3, 2\ns_add_u32 s32, s32, s33")
    a("s_mul_i32 s32, s32, 9216\ns_mul_i32 s33, s30, 2304\ns_add_u32 s32, s32, s33")
    a("s_waitcnt lgkmcnt(0)")
    for c in range(9):
        A_ = ACC + 4*c; B_ = ACC + 4*(9 + c); dst = 96 + 4*c
        a(f"v_cvt_pk_bf16_f32 v{dst}, v{A_}, v{A_+1}\nv_cvt_pk_bf16_f32 v{dst+1}, v{A_+2}, v{A_+3}")
        a(f"v_cvt_pk_bf16_f32 v{dst+2}, v{B_}, v{B_+1}\nv_cvt_pk_bf16_f32 v{dst+3}, v{B_+2}, v{B_+3}")
    for c in range(9):
        dst = 96 + 4*c
        a(f"v_permlane16_swap_b32 v{dst}, v{dst+2}\nv_permlane16_swap_b32 v{dst+1}, v{dst+3}")
        a(f"buffer_store_dwordx4 {vr(dst,4)}, v6, s[20:23], s32 offen offset:{256*c} sc1")

def g16_loader_setup(a, kind):
    p = G16[kind]
    g16_ids(a)
    if kind == 'o':
        a("s_mul_i32 s32, s6, 320\ns_mov_b32 s33, 0xe38e38f")
        for jj in range(5):
            a(f"v_add_u32 v9, s32, v8\nv_add_u32 v9, {64*jj}, v9\nv_mul_hi_u32 v10, v9, s33")
            a(f"v_mul_u32_u24 v11, 18, v10\nv_sub_u32 v11, v9, v11\nv_mul_u32_u24 v10, 1152, v10\nv_lshl_add_u32 v{2+jj}, v11, 4, v10")
            a(f"v_cmp_gt_u32 vcc, 1152, v9\nv_mov_b32 v10, {OOB}\ns_nop 1\nv_cndmask_b32 v{2+jj}, v10, v{2+jj}, vcc")
        make_srd(a, 8, 56, SIZES['wo']); make_ws_srd(a, 12, 4, 'ctx')
        a(f"s_mul_i32 s34, s28, {1024*1152}\ns_mul_i32 s32, s30, 288\ns_add_u32 s34, s34, s32")
        a("s_lshl_b32 s35, s29, 3\ns_lshl_b32 s32, s6, 1\ns_add_u32 s35, s35, s32\ns_lshl_b32 s35, s35, 17\ns_lshl_b32 s32, s28, 15\ns_add_u32 s35, s35, s32")
        a(f"s_mul_i32 s37, s6, 5120\ns_add_u32 s37, s37, {p['F']}\ns_lshl_b32 s38, s6, 12")
        a(f"s_lshl_b32 s32, s29, 2\ns_add_u32 s32, s32, s28\ns_add_u32 s32, s32, {C_CTX}\ns_lshl_b32 s32, s32, 7\nv_mov_b32 v7, s32")
        if SENT: a(f"s_add_u32 s32, s29, {C_PZ}\ns_lshl_b32 s32, s32, 7\nv_mov_b32 v9, s32\nv_cmp_gt_u32 vcc, 32, v8\ns_nop 1\nv_cndmask_b32 v7, v9, v7, vcc")
    else:
        a("v_lshrrev_b32 v2, 4, v8\nv_lshlrev_b32 v2, 15, v2\nv_and_b32 v9, 15, v8\nv_lshl_add_u32 v2, v9, 4, v2")
        a("s_and_b32 s32, s6, 1\ns_lshl_b32 s32, s32, 14\ns_lshr_b32 s33, s6, 1\ns_lshl_b32 s33, s33, 17\ns_add_u32 s32, s32, s33\nv_add_u32 v2, s32, v2")
        make_srd(a, 8, 60, SIZES['w2']); make_ws_srd(a, 12, 4, 'u')
        a(f"s_mul_i32 s34, s28, {1152*4096}\ns_lshl_b32 s32, s29, 8\ns_add_u32 s34, s34, s32")
        a(f"s_mul_i32 s35, s30, {9*147456}\ns_mul_i32 s32, s28, {36*1024}\ns_add_u32 s35, s35, s32")
        for jj in range(5):
            a(f"s_mul_i32 s32, s6, 5\ns_add_u32 s32, s32, {jj}\ns_lshr_b32 s33, s32, 1\ns_mul_i32 s33, s33, 147456")
            a(f"s_and_b32 s36, s32, 1\ns_lshl_b32 s36, s36, 10\ns_add_u32 s33, s33, s36\ns_add_u32 s33, s33, s35")
            a(f"s_cmp_lt_u32 s32, 18\ns_cselect_b32 s{46+jj}, s33, 0x7f000000")
        a(f"s_mul_i32 s37, s6, 4224\ns_add_u32 s37, s37, {p['F']}\ns_mul_i32 s38, s6, 5120")
        a(f"s_mul_i32 s32, s28, 6\ns_mul_i32 s33, s30, 3\ns_lshr_b32 s33, s33, 1\ns_add_u32 s32, s32, s33\ns_add_u32 s32, s32, {C_U}")
        a("v_and_b32 v7, 1, v8\nv_add_u32 v7, s32, v7\nv_lshlrev_b32 v7, 7, v7")

def g16_w(a, kind):
    if kind == 'o':
        a("s_add_u32 s32, s40, s37")
        for jj in range(5): a(f"s_add_u32 m0, s32, {1024*jj}\ns_nop 0\nbuffer_load_dwordx4 v{2+jj}, s[8:11], s34 offen lds")
        a(f"s_add_u32 s34, s34, {64*1152}")
    else:
        a("s_add_u32 s32, s40, s37")
        for jj in range(4): a(f"s_add_u32 m0, s32, {1056*jj}\ns_add_u32 s33, s34, {4096*jj}\nbuffer_load_dwordx4 v2, s[8:11], s33 offen lds")
        a(f"s_add_u32 s34, s34, {64*4096}")
def g16_f(a, kind):
    if kind == 'o':
        a("s_add_u32 m0, s40, s38\ns_add_u32 s33, s35, 0x20000")
        a("buffer_load_dwordx4 v1, s[12:15], s35 offen sc1 lds\nbuffer_load_dwordx4 v1, s[12:15], s35 offen offset:1024 sc1 lds")
        a("s_add_u32 s32, s40, s38\ns_add_u32 m0, s32, 2048\ns_nop 0")
        a("buffer_load_dwordx4 v1, s[12:15], s33 offen sc1 lds\nbuffer_load_dwordx4 v1, s[12:15], s33 offen offset:1024 sc1 lds")
        a("s_add_u32 s35, s35, 2048")
    else:
        a("s_add_u32 s32, s40, s38")
        for jj in range(5):
            a(f"s_add_u32 m0, s32, {1024*jj}\ns_nop 0\nbuffer_load_dwordx4 v1, s[12:15], s{46+jj} offen sc1 lds\ns_add_u32 s{46+jj}, s{46+jj}, 2048")

def g16_loader_wpro(a, kind):
    p = G16[kind]; SLOT = p['F'] + p['W']
    for i in range(3):
        a(f"s_mov_b32 s40, {i*SLOT}"); g16_w(a, kind)

def g2_wpf(a):
    if 'wpf' not in os.environ.get('XP', ''): return
    a(f"s_mul_i32 s32, s30, {64*4096}\ns_add_u32 s32, s32, s34")
    for i in range(4):
        a(f"s_add_u32 s36, s30, {3 + 4*i}\ns_cmp_lt_u32 s36, 18\ns_cselect_b32 s36, s32, 0x7f000000")
        for jj in range(4): a(f"s_add_u32 s33, s36, {(4*i*64 + jj)*4096}\nbuffer_load_dwordx4 v[12:15], v2, s[8:11], s33 offen")

def g16_loader_main(a, kind):
    p = G16[kind]; pre = 'Lg' + kind; SLOT = p['F'] + p['W']
    if 'gnodma' in os.environ.get('XP', ''): a("s_mov_b32 s10, 0\ns_mov_b32 s14, 0")
    stamp(a, 'l_' + kind + 'p0')
    if kind == 'y': a(f"s_cmp_lg_u32 s6, 0\ns_cbranch_scc1 {pre}_np")
    poll(a, 7, 32 if kind == 'o' else 9, 244)
    if kind == 'y':
        a.label(f"{pre}_np"); a("s_barrier")
    stamp(a, 'l_' + kind + 'p1')
    for i in range(3):
        a(f"s_mov_b32 s40, {i*SLOT}"); g16_f(a, kind)
    a(f"s_mov_b32 s40, {3*SLOT}\ns_mov_b32 s41, {p['NST'] - 3}")
    a(f"s_waitcnt vmcnt({p['nF']})\ns_branch {pre}_lb")
    a.label(f"{pre}_lloop")
    a("s_waitcnt vmcnt(9)")
    a.label(f"{pre}_lb")
    a("s_barrier")
    g16_f(a, kind); g16_w(a, kind)
    a(adv_slot(SLOT, 4))
    a(f"s_sub_u32 s41, s41, 1\ns_cmp_lg_u32 s41, 0\ns_cbranch_scc1 {pre}_lloop")
    a("s_waitcnt vmcnt(9)\ns_barrier\ns_waitcnt vmcnt(0)\ns_barrier\ns_barrier")

def tok_ids(a):
    a("s_bfe_u32 s32, s2, 0x20001\ns_lshl_b32 s32, s32, 2\ns_bfe_u32 s33, s2, 0x20003\ns_add_u32 s32, s32, s33")
    a("s_and_b32 s43, s2, 1\ns_lshl_b32 s43, s43, 3\ns_lshr_b32 s33, s2, 5\ns_add_u32 s43, s43, s33")
    a("s_lshl_b32 s42, s43, 4\ns_add_u32 s42, s42, s32\ns_mul_i32 s44, s42, 9216")
    a(f"v_mov_b32 v232, v0\nv_add_u32 v233, 512, v0\nv_cmp_gt_u32 vcc, 64, v0\nv_mov_b32 v234, 0x0ffffff0\ns_nop 1\nv_cndmask_b32 v233, v234, v233, vcc")
    a("v_lshlrev_b32 v236, 4, v232\nv_lshlrev_b32 v237, 4, v233\nv_mov_b32 v240, 0x3f80\nv_mov_b32 v241, 0x3f800000")

def partial_loads(a, srd, lab):
    a("s_mov_b32 s100, 0x4000")
    a.label(lab)
    for u in range(2):
        if u == 1: a(f"s_cmp_lg_u32 s3, 0\ns_cbranch_scc1 {lab}a")
        a("s_mov_b32 s32, s44")
        for s in range(4):
            a(f"buffer_load_dwordx4 {vr(96+16*u+4*s,4)}, v{236+u}, {sr(srd,4)}, s32 offen sc1")
            if s < 3: a(f"s_add_u32 s32, s32, {256*9216}")
    a.label(f"{lab}a")
    a("s_mov_b64 exec, -1\ns_waitcnt vmcnt(0)")
    if not SENT: return
    for u in range(2):
        if u == 1: a(f"s_cmp_lg_u32 s3, 0\ns_cbranch_scc1 {lab}b")
        b = 96 + 16*u
        a(f"v_max3_u32 v128, v{b}, v{b+1}, v{b+2}" if u == 0 else f"v_max3_u32 v128, v128, v{b}, v{b+1}\nv_max_u32 v128, v128, v{b+2}")
        for k in range(3, 15, 2): a(f"v_max3_u32 v128, v128, v{b+k}, v{b+k+1}")
        a(f"v_max_u32 v128, v128, v{b+15}")
    a.label(f"{lab}b")
    a(f"v_cmp_eq_u32 vcc, -1, v128\ns_sub_u32 s100, s100, 1\ns_cbranch_vccz {lab}d\ns_cmp_eq_u32 s100, 0\ns_cbranch_scc1 {lab}d")
    a(f"s_mov_b64 exec, vcc\ns_branch {lab}")
    a.label(f"{lab}d")

def partial_sum(a, u, dst):
    b = 96 + 16*u
    unpack8(a, b, dst)
    for s in range(1, 4):
        for d in range(4):
            a(f"v_dot2c_f32_bf16 v{dst+2*d}, v{b+4*s+d}, v240\nv_dot2c_f32_bf16 v{dst+2*d+1}, v{b+4*s+d}, v241")
    a("s_nop 2")

def ln_row(a, x, n, t0):
    m, v, t = t0, t0 + 1, t0 + 2
    a(f"v_add_f32 v{m}, v{x}, v{x+1}")
    for i in range(2, n): a(f"v_add_f32 v{m}, v{m}, v{x+i}")
    wave_allsum(a, m, t)
    a(f"v_mul_f32 v{m}, 0x3ae38e39, v{m}\nv_mov_b32 v{v}, 0")
    for i in range(n): a(f"v_sub_f32 v{t}, v{x+i}, v{m}\nv_fmac_f32 v{v}, v{t}, v{t}")
    wave_allsum(a, v, t)
    a(f"v_mul_f32 v{v}, 0x3ae38e39, v{v}")
    round_bf16(a, m); round_bf16(a, v)
    a(f"v_add_f32 v{v}, 0x3727c5ac, v{v}"); round_bf16(a, v)
    a(f"v_sqrt_f32 v{v}, v{v}\ns_nop 0"); round_bf16(a, v)
    a(f"v_rcp_f32 v{v}, v{v}")
    for i in range(n): a(f"v_sub_f32 v{x+i}, v{x+i}, v{m}")
    for i in range(n): a(f"v_mul_f32 v{x+i}, v{x+i}, v{v}")

LN_LDS = 4 * 29696

def ln2_pre(a):
    a("s_load_dwordx2 s[46:47], s[0:1], 0")
    tok_ids(a)
    make_ws_srd(a, 48, 4, 'mod')
    a("v_lshlrev_b32 v238, 2, v232\nv_lshlrev_b32 v239, 2, v233\nv_and_b32 v235, 63, v0\nv_lshlrev_b32 v235, 2, v235")
    a(f"s_mov_b32 s32, {2*2304}\nbuffer_load_dword v208, v238, s[48:51], s32 offen sc1\nbuffer_load_dword v209, v239, s[48:51], s32 offen sc1")
    a(f"s_mov_b32 s32, {3*2304}\ns_mov_b32 s33, {4*2304}")
    for i in range(9):
        a(f"buffer_load_dword v{210+i}, v235, s[48:51], s32 offen offset:{256*i} sc1\nbuffer_load_dword v{220+i}, v235, s[48:51], s33 offen offset:{256*i} sc1")
    a("v_lshlrev_b32 v230, 1, v232\nv_lshlrev_b32 v231, 1, v233")
    a("s_waitcnt lgkmcnt(0)")
    make_srd(a, 48, 46, SIZES['x'])
    a("s_mov_b32 s32, s44")
    for t in range(8):
        for u in range(2): a(f"buffer_load_short_d16_hi v{192+8*u+t}, v{230+u}, s[48:51], s32 offen" + (f" offset:{1152*(t%3)}" if t % 3 else ""))
        if t % 3 == 2: a("s_add_u32 s32, s32, 3456")
    a(f"v_add_u32 v238, {LN_LDS}, v238\ns_mul_i32 s32, s3, 2304\ns_add_u32 s32, s32, {LN_LDS}\nv_add_u32 v239, s32, v235")

def ln2_mid(a):
    for i in range(16): a(f"v_and_b32 v{192+i}, 0xffff0000, v{192+i}")
    for i in range(9):
        a(f"v_add_f32 v{220+i}, 1.0, v{220+i}"); round_bf16(a, 220 + i)
    for u in range(2):
        a(f"v_lshrrev_b32 v{230+u}, 5, v{232+u}\nv_lshlrev_b32 v{230+u}, 17, v{230+u}\nv_and_b32 v234, 31, v{232+u}\nv_lshl_add_u32 v{230+u}, v234, 4, v{230+u}")

def ln2_body(a):
    make_ws_srd(a, 48, 4, 'p3')
    partial_loads(a, 48, "Lln_sp")
    make_ws_srd(a, 48, 4, 'x1'); make_ws_srd(a, 52, 4, 'h2')
    stamp(a, 'ln_ld')
    for u in range(2):
        if u == 1: a("s_cmp_lg_u32 s3, 0\ns_cbranch_scc1 Lln_u1")
        partial_sum(a, u, 128)
        for t in range(8): a(f"v_fmac_f32 v{192+8*u+t}, v{208+u}, v{128+t}")
        for p in range(4): a(f"v_cvt_pk_bf16_f32 v{136+4*u+p}, v{192+8*u+2*p}, v{193+8*u+2*p}")
        unpack8(a, 136 + 4*u, 128)
        for t in range(8): a(f"ds_write_b32 v238, v{128+t} offset:{2304*t + 2048*u}")
        a(f"buffer_store_dwordx4 {vr(136+4*u,4)}, v{236+u}, s[48:51], s44 offen sc1")
    a.label("Lln_u1")
    a("s_waitcnt lgkmcnt(0)\ns_barrier")
    for i in range(9): a(f"ds_read_b32 v{96+i}, v239 offset:{256*i}")
    a("s_waitcnt lgkmcnt(0)")
    ln_row(a, 96, 9, 108)
    for i in range(9): a(f"v_fma_f32 v{96+i}, v{96+i}, v{220+i}, v{210+i}")
    ln_row(a, 96, 9, 108)
    for i in range(9): a(f"ds_write_b32 v239, v{96+i} offset:{256*i}")
    a("s_lshl_b32 s32, s42, 9\ns_waitcnt lgkmcnt(0)\ns_barrier")
    for u in range(2):
        if u == 1: a("s_cmp_lg_u32 s3, 0\ns_cbranch_scc1 Lln_u2")
        for t in range(8): a(f"ds_read_b32 v{96+8*u+t}, v238 offset:{2304*t + 2048*u}")
        a("s_waitcnt lgkmcnt(0)")
        for p in range(4): a(f"v_cvt_pk_bf16_f32 v{112+4*u+p}, v{96+8*u+2*p}, v{97+8*u+2*p}")
        a(f"buffer_store_dwordx4 {vr(112+4*u,4)}, v{230+u}, s[52:55], s32 offen sc1")
    a.label("Lln_u2")
    stamp(a, 'ln_st')
    a("s_waitcnt vmcnt(0)\ns_barrier")

def final_pre(a):
    a("s_load_dwordx2 s[46:47], s[0:1], 80\ns_load_dwordx2 s[52:53], s[0:1], 104")
    tok_ids(a)
    make_ws_srd(a, 48, 4, 'mod')
    a("v_lshlrev_b32 v238, 2, v232\nv_lshlrev_b32 v239, 2, v233")
    a(f"s_mov_b32 s32, {5*2304}\nbuffer_load_dword v208, v238, s[48:51], s32 offen sc1\nbuffer_load_dword v209, v239, s[48:51], s32 offen sc1")
    make_ws_srd(a, 48, 4, 'x1')
    for u in range(2): a(f"buffer_load_dwordx4 {vr(192+4*u,4)}, v{236+u}, s[48:51], s44 offen sc1")
    a("v_lshlrev_b32 v230, 1, v232\nv_lshlrev_b32 v231, 1, v233")
    a("s_waitcnt lgkmcnt(0)")
    a("s_lshl_b32 s32, s42, 4\ns_add_u32 s46, s46, s32\ns_addc_u32 s47, s47, 0\ns_load_dwordx4 s[36:39], s[46:47], 0")
    make_srd(a, 24, 52, SIZES['out'])
    a("s_waitcnt lgkmcnt(0)")

def final_mid(a):
    for p in range(4): a(f"s_lshl_b32 s{48+2*p}, s{36+p}, 16\ns_and_b32 s{49+2*p}, s{36+p}, 0xffff0000")
    for u in range(2):
        unpack8(a, 192 + 4*u, 210 + 8*u)
        for t in range(8): a(f"v_fmac_f32 v{210+8*u+t}, s{48+t}, v{208+u}")

def final_body(a):
    make_ws_srd(a, 48, 4, 'p6')
    partial_loads(a, 48, "Lfi_sp")
    for u in range(2):
        if u == 1: a("s_cmp_lg_u32 s3, 0\ns_cbranch_scc1 Lfi_u1")
        partial_sum(a, u, 128)
        for t in range(8): a(f"v_fmac_f32 v{210+8*u+t}, v{208+u}, v{128+t}")
        for p in range(4): a(f"v_cvt_pk_bf16_f32 v{136+4*u+p}, v{210+8*u+2*p}, v{211+8*u+2*p}")
        a("s_mov_b32 s32, s44")
        for t in range(8):
            op = "buffer_store_short" if t % 2 == 0 else "buffer_store_short_d16_hi"
            a(f"{op} v{136+4*u+t//2}, v{230+u}, s[24:27], s32 offen" + (f" offset:{1152*(t%3)}" if t % 3 else ""))
            if t % 3 == 2: a("s_add_u32 s32, s32, 3456")
    a.label("Lfi_u1")

M1_W = 17408; M1_SLOT = M1_W + 12288; M1_NST = 32; M1_X = 114688
def m1_ids(a):
    a("s_and_b32 s32, s2, 7\ns_mul_i32 s32, s32, 27\ns_lshr_b32 s33, s2, 3\ns_add_u32 s32, s32, s33")
    a("s_mul_hi_u32 s28, s32, 0x2aaaaaab\ns_mul_i32 s33, s28, 6\ns_sub_u32 s29, s32, s33")
    a("v_and_b32 v8, 63, v0\nv_lshlrev_b32 v1, 4, v8")

def m1_compute(a):
    pre = 'Lm1'
    ACC = 16; SET = [112, 132]
    a("s_load_dwordx2 s[24:25], s[0:1], 64")
    m1_ids(a)
    a("v_bfe_u32 v2, v8, 2, 2\nv_mul_u32_u24 v2, 1088, v2\nv_lshrrev_b32 v9, 5, v8\nv_lshl_add_u32 v2, v9, 9, v2")
    a("v_bfe_u32 v9, v8, 4, 1\nv_lshl_add_u32 v2, v9, 5, v2\nv_and_b32 v9, 3, v8\nv_lshl_add_u32 v2, v9, 3, v2")
    a("s_and_b32 s30, s3, 1\ns_lshr_b32 s31, s3, 1")
    a("s_lshl_b32 s32, s30, 7\ns_mul_i32 s33, s31, 8704\ns_add_u32 s32, s32, s33\nv_add_u32 v4, s32, v2")
    a(f"s_lshl_b32 s32, s31, 11\ns_add_u32 s32, s32, {M1_W}\nv_add_u32 v5, s32, v1")
    a("v_mov_b32 v2, v4\nv_mov_b32 v3, v5")
    for i in range(0, 96, 2): a(f"v_mov_b64 {vr(ACC+i,2)}, 0")
    a("s_waitcnt lgkmcnt(0)")
    m1_bias(a, 3)
    def reads(ks, st):
        b = SET[st]; r = []
        for d in range(3): r.append(f"ds_read_b128 {vr(b+8+4*d,4)}, v3 offset:{d*4096 + ks*1024}")
        for t in range(2):
            for e in range(2): r.append(f"ds_read_b64_tr_b16 {vr(b+4*t+2*e,2)}, v2 offset:{ks*4352 + e*256 + t*64}")
        return r
    def mfs(st):
        b = SET[st]
        return [mf(vr(ACC+16*(3*t+d),16), vr(b+4*t,4), vr(b+8+4*d,4), vr(ACC+16*(3*t+d),16)) for t in range(2) for d in range(3)]
    def front(m, r):
        out = []
        if 'gnocomp' in os.environ.get('XP', ''): return out
        if 'gnord' in os.environ.get('XP', ''): return m
        for i, x in enumerate(m):
            out.append(x); out += r[2*i:2*i+2]
        return out
    a(f"s_mov_b32 s40, 0\ns_mov_b32 s41, {M1_NST}")
    a("s_barrier\ns_barrier")
    stamp(a, 'm1_b0')
    for o in reads(0, 0): a(o)
    a.label(f"{pre}_cloop")
    a("s_waitcnt lgkmcnt(0)")
    for o in front(mfs(0), reads(1, 1)): a(o)
    a(adv_slot(M1_SLOT, 5))
    a("v_add_u32 v2, s40, v4\nv_add_u32 v3, s40, v5")
    a("s_waitcnt lgkmcnt(0)")
    for o in front(mfs(1), reads(0, 0)): a(o)
    a(f"s_sub_u32 s41, s41, 1\ns_cmp_lg_u32 s41, 0\ns_waitcnt lgkmcnt(0)\ns_barrier\ns_cbranch_scc1 {pre}_cloop" if False else
      f"s_sub_u32 s41, s41, 1\ns_cmp_lg_u32 s41, 0\ns_barrier\ns_cbranch_scc1 {pre}_cloop")
    stamp(a, 'm1_end')
    a("s_waitcnt lgkmcnt(0)")
    m1_xaddr(a, 3)
    a(f"s_cmp_eq_u32 s31, 0\ns_cbranch_scc1 {pre}_k0")
    for kh in (1, 0):
        if kh == 0: a.label(f"{pre}_k0")
        keep = ACC + 48 * kh; send = ACC + 48 * (1 - kh)
        a("s_nop 7")
        for i in range(12): a(f"ds_write_b128 v2, {vr(send+4*i,4)} offset:{1024*i}")
        for i in range(6): a(f"ds_write_b128 v4, {vr(keep+24+4*i,4)} offset:{1024*i}")
        a("s_waitcnt lgkmcnt(0)\ns_barrier")
        for i in range(6): a(f"ds_read_b128 {vr(send+4*i,4)}, v3 offset:{1024*i}")
        m1_gelu(a, keep, send, 0)
        if kh == 1: a(f"s_branch {pre}_cdone")
    a.label(f"{pre}_cdone")

def m1_xaddr(a, sw):
    a(f"s_mul_i32 s32, s{sw}, 12288\ns_add_u32 s32, s32, {M1_X}\nv_add_u32 v2, s32, v1")
    a(f"s_xor_b32 s33, s{sw}, 2\ns_mul_i32 s33, s33, 12288\ns_add_u32 s33, s33, {M1_X}\nv_add_u32 v3, s33, v1")
    a(f"s_and_b32 s32, s{sw}, 1\ns_mul_i32 s32, s32, 6144\ns_lshr_b32 s33, s{sw}, 1\ns_mul_i32 s33, s33, 37376\ns_add_u32 s32, s32, s33\nv_add_u32 v4, s32, v1")

def m1_bias(a, sw):
    make_srd(a, 16, 24, SIZES['b1'])
    a(f"s_lshl_b32 s32, s28, 2\ns_and_b32 s33, s{sw}, 1\ns_lshl_b32 s33, s33, 1\ns_add_u32 s32, s32, s33\ns_lshr_b32 s33, s{sw}, 1\ns_add_u32 s45, s32, s33")
    a("s_lshl_b32 s32, s45, 6\nv_lshrrev_b32 v9, 5, v8\nv_lshlrev_b32 v9, 3, v9")
    for q in range(4): a(f"buffer_load_dwordx2 {vr(152+2*q,2)}, v9, s[16:19], s32 offen offset:{16*q}")
    make_ws_srd(a, 20, 4, 'u')
    a("v_bfe_u32 v9, v8, 4, 1\nv_mul_u32_u24 v9, 147456, v9\nv_lshrrev_b32 v10, 5, v8\nv_lshl_add_u32 v9, v10, 8, v9")
    a("v_and_b32 v10, 15, v8\nv_lshl_add_u32 v6, v10, 4, v9")
    a(f"s_mul_i32 s39, s29, {6*147456}\ns_lshl_b32 s33, s45, 10\ns_add_u32 s39, s39, s33")

def m1_gelu(a, keep, oth, h0):
    a("s_waitcnt vmcnt(0)" if h0 == 0 else "")
    for q in range(4):
        for h in range(2):
            a(f"v_lshlrev_b32 v{160+4*q+2*h}, 16, v{152+2*q+h}\nv_and_b32 v{161+4*q+2*h}, 0xffff0000, v{152+2*q+h}")
    c1 = -2 * math.sqrt(2 / math.pi) * math.log2(math.e); c2 = c1 * 0.044715
    a(f"v_mov_b32 v10, {f32(c1)}\nv_mov_b32 v11, {f32(c2)}")
    for i in range(3):
        d, e = (h0 + i) >> 1, (h0 + i) & 1
        a(f"s_waitcnt lgkmcnt({4 - 2*i})")
        b = keep + 8*i; o = oth + 8*i
        for r in range(8): a(f"v_add_f32 v{b+r}, v{b+r}, v{o+r}")
        for r in range(8): a(f"v_add_f32 v{b+r}, v{b+r}, v{160+8*e+r}")
        for r in range(8): a(f"v_mul_f32 v{o+r}, v{b+r}, v{b+r}")
        for r in range(8): a(f"v_fma_f32 v{o+r}, v{o+r}, v11, v10")
        for r in range(8): a(f"v_mul_f32 v{o+r}, v{o+r}, v{b+r}")
        for r in range(8): a(f"v_exp_f32 v{o+r}, v{o+r}")
        for r in range(8): a(f"v_add_f32 v{o+r}, 1.0, v{o+r}")
        for r in range(8): a(f"v_rcp_f32 v{o+r}, v{o+r}")
        for r in range(8): a(f"v_mul_f32 v{b+r}, v{b+r}, v{o+r}")
        for p in range(4): a(f"v_cvt_pk_bf16_f32 v{o+p}, v{b+2*p}, v{b+2*p+1}")
        a(f"s_add_u32 s32, s39, {d*2*147456}\nbuffer_store_dwordx4 {vr(o,4)}, v6, s[20:23], s32 offen offset:{e*512} sc1")

def m1_loader_setup(a):
    m1_ids(a)
    a("v_lshrrev_b32 v2, 4, v8\nv_mul_u32_u24 v2, 36864, v2\nv_and_b32 v9, 15, v8\nv_lshl_add_u32 v2, v9, 4, v2")
    a(f"s_mul_i32 s32, s6, {16*9216}\nv_add_u32 v2, s32, v2")
    make_srd(a, 8, 58, SIZES['w1']); make_ws_srd(a, 12, 4, 'h2')
    a("s_lshl_b32 s34, s28, 8")
    a(f"s_mul_i32 s35, s29, {3*131072}\ns_lshl_b32 s32, s6, 10\ns_add_u32 s35, s35, s32")
    a(f"s_mul_i32 s37, s6, 4352\ns_lshl_b32 s38, s6, 10\ns_add_u32 s38, s38, {M1_W}")
    a(f"s_and_b32 s32, s2, 7\ns_lshl_b32 s32, s32, 4\ns_add_u32 s32, s32, {C_H2}\nv_and_b32 v7, 15, v8\nv_add_u32 v7, s32, v7\nv_lshlrev_b32 v7, 7, v7")
def m1_w(a):
    a("s_add_u32 s32, s40, s37")
    for jj in range(4): a(f"s_add_u32 m0, s32, {1088*jj}\ns_add_u32 s33, s34, {9216*jj}\nbuffer_load_dwordx4 v2, s[8:11], s33 offen lds")
    a(f"s_add_u32 s34, s34, {64*9216}")
def m1_f(a):
    a("s_add_u32 s32, s40, s38")
    for d in range(3): a(f"s_add_u32 m0, s32, {4096*d}\ns_add_u32 s33, s35, {131072*d}\nbuffer_load_dwordx4 v1, s[12:15], s33 offen sc1 lds")
    a("s_add_u32 s35, s35, 4096")
def m1_loader_main(a):
    if 'gnodma' in os.environ.get('XP', ''): a("s_mov_b32 s10, 0\ns_mov_b32 s14, 0")
    stamp(a, 'l_h2p0')
    a("s_cmp_lg_u32 s6, 0\ns_cbranch_scc1 Lm1_np")
    poll(a, 7, 16, 244)
    a.label("Lm1_np"); a("s_barrier")
    stamp(a, 'l_h2p1')
    for i in range(4):
        a(f"s_mov_b32 s40, {i*M1_SLOT}"); m1_f(a)
    a(f"s_mov_b32 s40, {4*M1_SLOT}")
    for w in (6, 10):
        a(f"s_waitcnt vmcnt({w})\ns_barrier"); m1_f(a); m1_w(a); a(adv_slot(M1_SLOT, 5))
    a(f"s_mov_b32 s41, {M1_NST - 6}")
    a.label("Lm1_lloop")
    a("s_waitcnt vmcnt(14)\ns_barrier"); m1_f(a); m1_w(a); a(adv_slot(M1_SLOT, 5))
    a("s_sub_u32 s41, s41, 1\ns_cmp_lg_u32 s41, 0\ns_cbranch_scc1 Lm1_lloop")
    for w in (14, 7, 0, 0): a(f"s_waitcnt vmcnt({w})\ns_barrier")
    a("s_barrier")

def sig_wave4(a, soff_code, soff, lab, vtmp):
    a(f"s_cmp_lg_u32 s6, 0\ns_cbranch_scc1 {lab}")
    a(soff_code); signal(a, soff, vtmp)
    a.label(lab)

def mega():
    a = Asm(); n = NAME + '_kernel'
    a("s_cmp_ge_u32 s2, 256\ns_cbranch_scc1 Lend")
    stamp(a, 'start')
    phase_kv(a)
    phase_attn_compute(a)
    a("s_mov_b32 s60, s33\ns_mov_b32 s61, s34")
    g16_compute_setup(a, 'o')
    a("s_waitcnt vmcnt(0)")
    stamp(a, 'at_dr')
    signal(a, 60, 9); signal(a, 61, 9)
    ln2_pre(a)
    g16_compute(a, 'o')
    stamp(a, 'o_st')
    a("s_waitcnt vmcnt(9)")
    ln2_mid(a)
    if not SENT: a("s_waitcnt vmcnt(0)")
    stamp(a, 'o_dr')
    a("s_barrier")
    stamp(a, 'S')
    if not SENT: a("s_barrier")
    a.label("Lln_shared")
    stamp(a, 'R')
    ln2_body(a)
    stamp(a, 'S2')
    a("s_cmp_ge_u32 s3, 4\ns_cbranch_scc1 Ll_after_ln")
    a("s_cmp_ge_u32 s2, 216\ns_cbranch_scc1 Lc_g2")
    m1_compute(a)
    stamp(a, 'm1_st')
    a("s_waitcnt vmcnt(0)")
    stamp(a, 'm1_dr')
    a("s_barrier")
    stamp(a, 'S3')
    a.label("Lc_g2")
    g16_compute_setup(a, 'y')
    final_pre(a)
    g16_compute(a, 'y')
    stamp(a, 'y_st')
    a("s_waitcnt vmcnt(9)")
    final_mid(a)
    if not SENT: a("s_waitcnt vmcnt(0)\ns_barrier\ns_barrier")
    stamp(a, 'R4')
    a("s_branch Lfinal")
    phase_attn_loader(a)
    g16_loader_setup(a, 'o')
    a("s_barrier\ns_barrier")
    g16_loader_wpro(a, 'o')
    g16_loader_main(a, 'o')
    ln2_pre(a)
    m1_loader_setup(a)
    a("s_waitcnt vmcnt(0)")
    ln2_mid(a)
    a("s_barrier")
    if not SENT: sig_wave4(a, f"s_add_u32 s32, s43, {C_P3}\ns_lshl_b32 s32, s32, 7", 32, "Ll_s1", 9)
    a("s_cmp_ge_u32 s2, 216\ns_cbranch_scc1 Ll_now1")
    for i in range(4):
        a(f"s_mov_b32 s40, {i*M1_SLOT}"); m1_w(a)
    a.label("Ll_now1")
    if not SENT:
        a("s_cmp_lg_u32 s6, 0\ns_cbranch_scc1 Ll_np1")
        a(f"s_add_u32 s32, s43, {C_P3}\ns_lshl_b32 s32, s32, 7\nv_mov_b32 v10, s32")
        poll(a, 10, 16, 244)
        a.label("Ll_np1")
        a("s_barrier")
    a("s_branch Lln_shared")
    a.label("Ll_after_ln")
    a("s_cmp_lg_u32 s6, 0\ns_cbranch_scc1 Ll_s2")
    a(f"s_add_u32 s32, s43, {C_H2}\ns_lshl_b32 s32, s32, 7\nv_lshlrev_b32 v10, 11, v8\nv_mov_b32 v9, 1\ns_mov_b64 exec, 0xff")
    a(f"buffer_atomic_add v9, v10, {SYNC}, s32 offen sc1\ns_mov_b64 exec, -1")
    a.label("Ll_s2")
    a("s_cmp_ge_u32 s2, 216\ns_cbranch_scc1 Ll_nom1")
    a("s_load_dwordx2 s[24:25], s[0:1], 64\ns_waitcnt lgkmcnt(0)")
    m1_bias(a, 6)
    m1_loader_main(a)
    a(f"s_mul_hi_u32 s32, s28, 0x1c71c71d\ns_mul_i32 s32, s32, 6\ns_add_u32 s32, s32, s29\ns_add_u32 s32, s32, {C_U}\ns_lshl_b32 s63, s32, 7")
    g16_loader_setup(a, 'y')
    g16_loader_wpro(a, 'y')
    g2_wpf(a)
    a("v_mov_b32 v12, v2")
    m1_xaddr(a, 6)
    a("v_mov_b32 v2, v12\ns_barrier")
    for i in range(3):
        a(f"ds_read_b128 {vr(16+8*i,4)}, v4 offset:{2048*i}\nds_read_b128 {vr(20+8*i,4)}, v4 offset:{2048*i + 1024}")
    a("s_waitcnt lgkmcnt(0)")
    for i in range(6): a(f"ds_read_b128 {vr(40+4*i,4)}, v3 offset:{6144 + 1024*i}")
    m1_gelu(a, 16, 40, 3)
    a("s_waitcnt vmcnt(0)\ns_barrier")
    sig_wave4(a, "", 63, "Ll_s3", 9)
    a("s_branch Ll_g2")
    a.label("Ll_nom1")
    g16_loader_setup(a, 'y')
    g16_loader_wpro(a, 'y')
    g2_wpf(a)
    a.label("Ll_g2")
    g16_loader_main(a, 'y')
    final_pre(a)
    a("s_waitcnt vmcnt(0)")
    final_mid(a)
    if not SENT:
        a("s_barrier")
        a("s_cmp_lg_u32 s6, 0\ns_cbranch_scc1 Ll_np2")
        a(f"s_add_u32 s32, s43, {C_P6}\ns_lshl_b32 s32, s32, 7\nv_mov_b32 v10, s32")
        signal(a, 32, 9)
        poll(a, 10, 16, 244)
        a.label("Ll_np2")
        a("s_barrier")
    a.label("Lfinal")
    final_body(a)
    if STAMP:
        a(f"s_cmp_lg_u32 s3, {STAMP_WAVE}\ns_cbranch_scc1 Lend\ns_waitcnt vmcnt(0)")
        a("s_memrealtime s[92:93]\ns_waitcnt lgkmcnt(0)")
        stamp_flush(a, 15, "Lstf")
    a.label("Lend")
    a("s_endpgm")
    return n, a

def build(path):
    n, a = mega()
    txt = a.text()
    hdr = open('cdna_kernels/' + NAME + '.s.ref').read().split('\n')
    top = [l for l in hdr if l.startswith(';') and '@launch' not in l][:19]
    out = '\n'.join(top) + '\n'
    if os.environ.get('LIST'):
        out += f"; @launch kernel={n} grid=(256,1,1) block=(512,1,1) lds={LDS_TOTAL}\n"
    else:
        out += f"; @launch grid=(256,1,1) block=(512,1,1) lds={LDS_TOTAL}\n"
    if STAMP: out += '; stamps: ' + ','.join(STAMP_LIST) + '\n'
    out += '.amdgcn_target "amdgcn-amd-amdhsa--gfx950"\n' + kernel_header(n) + txt + kernel_desc(n, 256, 102)
    open(path, 'w').write(out)

if __name__ == '__main__':
    build(sys.argv[1] if len(sys.argv) > 1 else 'm.s')
```

```python
import sys, math, os
from gen_common import *
import k_attn as AT
from k_attn import (period, rare_path, build_ci, qk_group, pv_group, rd, mf, ADV, W4, KPOS, VPOS, BIG, QSCALE, THRESH, WQ_BYTES,
                    V_LANE16, V_RD, V_L, V_NEGM, V_Y, V_YD, V_T0, LU, T, CI, S, P, FR, Q, Q2, O)

OOB = "0xffffff00"
SENT = ('sent' in os.environ.get('XP', '').split(','))
KORDER = [0, 1, 2, 3, 8, 9, 10, 11, 12, 13, 14, 15, 4, 5, 6, 7]
KREG = {k: (240 + 4*k if k < 4 else 128 + 4*(k - 8) if k >= 8 else 160 + 4*(k - 4)) for k in range(16)}
def kstore(k):
    return f"s_add_u32 s55, s57, {(k >> 2) * 65536}\nbuffer_store_dwordx4 {vr(KREG[k],4)}, v6, s[16:19], s55 offen offset:{(k & 3) * 1024}" + ("" if 'wb' in os.environ.get('XP', '').split(',') else " sc1")
LDS_TOTAL = 163840

def srd_off(a, srd, sptr, soff, add, size):
    a(f"s_add_u32 s{srd+2}, s{soff}, {add}\ns_add_u32 s{srd}, s{sptr}, s{srd+2}\ns_addc_u32 s{srd+1}, s{sptr+1}, 0\ns_and_b32 s{srd+1}, s{srd+1}, 0xffff")
    a(f"s_mov_b32 s{srd+2}, {size}\ns_mov_b32 s{srd+3}, 0x20000")

def phase_kv(a):
    A_BYTES = 32 * 1040; W_BYTES = 16 * 1088; SLOT = A_BYTES + 2 * W_BYTES
    GL = 2 * SLOT
    ML = GL + 2048
    XL = ML + 8192
    HAND = 131072
    ACC = 64; SET = [16, 40]
    NT = ' nt' if 'ntw' in os.environ.get('XP', '') else ''
    NT2 = ' nt' if 'ntg' in os.environ.get('XP', '') else ''
    a("s_load_dwordx8 s[28:35], s[0:1], 0\ns_load_dwordx2 s[36:37], s[0:1], 32\ns_load_dwordx4 s[40:43], s[0:1], 88\ns_load_dwordx4 s[44:47], s[0:1], 112")
    a("v_and_b32 v1, 63, v0\nv_lshrrev_b32 v2, 6, v0\ns_nop 1\nv_readfirstlane_b32 s3, v2")
    a("s_and_b32 s48, s2, 7\ns_lshr_b32 s49, s2, 3")
    a("s_and_b32 s55, s49, 3\ns_lshl_b32 s48, s48, 2\ns_add_u32 s48, s48, s55\ns_lshr_b32 s49, s49, 2")
    a("v_bfe_u32 v3, v1, 3, 2\nv_lshlrev_b32 v3, 13, v3\nv_lshrrev_b32 v4, 5, v1\nv_lshl_add_u32 v3, v4, 18, v3\nv_and_b32 v4, 7, v1\nv_lshl_add_u32 v3, v4, 4, v3")
    a("s_and_b32 s55, s3, 1\ns_lshl_b32 s55, s55, 12\ns_lshr_b32 s56, s3, 1\ns_lshl_b32 s56, s56, 19\ns_add_u32 s55, s55, s56")
    a("v_add_u32 v3, s55, v3")
    a("v_lshrrev_b32 v4, 4, v1\nv_lshlrev_b32 v4, 15, v4\nv_and_b32 v5, 15, v1\nv_lshl_add_u32 v4, v5, 4, v4")
    a("s_and_b32 s55, s3, 3\ns_lshl_b32 s55, s55, 17\nv_add_u32 v4, s55, v4")
    a("s_lshl_b32 s50, s49, 15\ns_lshl_b32 s51, s48, 8\ns_mul_i32 s52, s3, 4160")
    a(f"s_mul_i32 s53, s3, 4352\ns_add_u32 s53, s53, {A_BYTES}")
    a("s_and_b32 s61, s2, 3\ns_mul_i32 s55, s61, 144\nv_lshrrev_b32 v8, 3, v0\nv_add_u32 v8, s55, v8\nv_mul_u32_u24 v245, 6912, v8\nv_and_b32 v2, 7, v0")
    a("v_lshl_add_u32 v245, v2, 4, v245\ns_lshr_b32 s55, s2, 2\ns_lshl_b32 s55, s55, 7\nv_add_u32 v245, s55, v245\nv_lshlrev_b32 v8, 1, v8")
    a("s_lshl_b32 s60, s2, 3\ns_add_u32 s60, s60, s3\ns_mul_i32 s55, s60, 1152\nv_lshlrev_b32 v10, 4, v1\nv_add_u32 v10, s55, v10")
    a(f"v_cmp_gt_u32 vcc, 8, v1\nv_mov_b32 v15, {OOB}\nv_add_u32 v11, 1024, v10\nv_cndmask_b32 v11, v15, v11, vcc")
    a("s_waitcnt lgkmcnt(0)")
    a("s_mov_b32 s4, s46\ns_mov_b32 s5, s47")
    make_srd(a, 8, 30, SIZES['ckv'])
    a("s_cmp_lt_u32 s3, 4\ns_cselect_b32 s34, s34, s36\ns_cselect_b32 s35, s35, s37")
    make_srd(a, 12, 34, SIZES['wuk'])
    def dma_ops(slot):
        ops = []
        for jj in range(4):
            ops.append(f"s_add_u32 m0, s52, {slot*SLOT + 16*jj}\ns_nop 0\nbuffer_load_dwordx4 v3, s[8:11], s50 offen offset:{1024*jj} lds")
        for jj in range(4):
            ops.append(f"s_add_u32 m0, s53, {slot*SLOT + 1088*jj}\ns_add_u32 s55, s51, {8192*jj}\nbuffer_load_dwordx4 v4, s[12:15], s55 offen{NT} lds")
        return ops
    ADVD = f"s_add_u32 s50, s50, 128\ns_add_u32 s51, s51, {64*8192}"
    for st in range(2):
        for o in dma_ops(st): a(o)
        a(ADVD)
    CPF = 0 if 'nocpf' in os.environ.get('XP', '') else 1
    if CPF:
        a("s_getpc_b64 s[16:17]")
        a.label("Lpc")
        a("s_and_b32 s17, s17, 0xffff\ns_mov_b32 s18, Lend-Lpc\ns_mov_b32 s19, 0x20000")
        a("s_lshr_b32 s55, s2, 3\ns_lshl_b32 s55, s55, 3\ns_add_u32 s55, s55, s3\ns_lshl_b32 s55, s55, 9\nv_lshlrev_b32 v2, 3, v1")
        a("buffer_load_dwordx2 v[220:221], v2, s[16:19], s55 offen")
    a("s_lshl_b32 s63, s49, 15\ns_and_b32 s55, s48, 3\ns_lshl_b32 s55, s55, 10\ns_add_u32 s63, s63, s55")
    a("s_and_b32 s7, s49, 3\ns_lshl_b32 s7, s7, 13\ns_lshl_b32 s55, s48, 8\ns_add_u32 s7, s7, s55")
    a("s_bfe_u32 s55, s3, 0x10001\ns_lshr_b32 s56, s49, 2\ns_cmp_eq_u32 s55, s56\ns_cselect_b32 s7, s7, 0x7f000000")
    if 'nol2' in os.environ.get('XP', ''): a("s_mov_b32 s7, 0x7f000000\ns_mov_b32 s63, 0x7f000000")
    def l2pf(t):
        return [f"buffer_load_dwordx4 v[220:223], v3, s[8:11], s63 offen offset:{128*t}",
                f"s_add_u32 s56, s7, {t*64*8192}\nbuffer_load_dwordx4 v[220:223], v4, s[12:15], s56 offen{NT}"]
    l = Ops()
    make_srd(l, 16, 40, SIZES['c']); make_srd(l, 20, 42, SIZES['wmod']); make_srd(l, 24, 28, SIZES['x'])
    l("s_cmp_lt_u32 s2, 216\ns_cselect_b32 s22, s22, 0")
    l(f"s_mov_b32 s59, 0x7f000000\ns_cmp_lt_u32 s3, 2\ns_cselect_b32 s58, {128*6912}, s59\ns_cselect_b32 s59, 256, s59\ns_mov_b32 s55, {64*6912}")
    for i, (so, sc) in enumerate((('0', '0 offen'), ('s55', '0 offen offset:128'), ('s58', 's59 offen'))):
        l(f"buffer_load_dwordx4 {vr(192+4*i,4)}, v245, s[20:23], {so} offen{NT2}")
        l(f"buffer_load_ushort v{204+i}, v8, s[16:19], {sc}")
    l(f"buffer_load_dwordx4 v[224:227], v10, s[24:27], 0 offen\nbuffer_load_dwordx4 v[228:231], v11, s[24:27], 0 offen")
    make_ws_srd(l, 96, 4, 'sync')
    l(f"v_lshlrev_b32 v2, 2, v1\ns_lshl_b32 s55, s2, 8\nv_add_u32 v2, s55, v2\nv_mov_b32 v243, 0")
    l.lines.append("ZSTORE")
    make_srd(l, 36, 44, 256); make_ws_srd(l, 40, 4, 'modp'); make_srd(l, 16, 32, SIZES['wq']); make_ws_srd(l, 24, 4, 'h1'); make_ws_srd(l, 20, 4, 'mod')
    def sloads(role):
        return [(f"s_cmp_lg_u32 s3, 0\ns_cbranch_scc1 Lkv_nz\nbuffer_store_dword v243, v2, {SYNC}, 0 offen sc1\nLkv_nz:" if role == 0 else "s_nop 0")
                if o == "ZSTORE" else o for o in l.ops()]
    a("v_and_b32 v5, 7, v1\nv_mul_u32_u24 v5, 1040, v5\nv_bfe_u32 v6, v1, 3, 2\nv_lshl_add_u32 v5, v6, 7, v5")
    a("v_lshrrev_b32 v6, 5, v1\nv_lshl_add_u32 v5, v6, 4, v5")
    a("s_and_b32 s55, s3, 1\ns_mul_i32 s55, s55, 16640\nv_add_u32 v5, s55, v5")
    a("v_bfe_u32 v6, v1, 2, 2\nv_mul_u32_u24 v6, 1088, v6\nv_lshrrev_b32 v7, 5, v1\nv_lshl_add_u32 v6, v7, 9, v6")
    a("v_bfe_u32 v7, v1, 4, 1\nv_lshl_add_u32 v6, v7, 5, v6\nv_and_b32 v7, 3, v1\nv_lshl_add_u32 v6, v7, 3, v6")
    a(f"s_lshr_b32 s55, s3, 2\ns_mul_i32 s55, s55, {W_BYTES}\ns_bfe_u32 s56, s3, 0x10001\ns_lshl_b32 s56, s56, 7")
    a(f"s_add_u32 s55, s55, s56\ns_add_u32 s55, s55, {A_BYTES}\nv_add_u32 v6, s55, v6")
    a(f"v_lshrrev_b32 v9, 3, v0\nv_lshlrev_b32 v13, 9, v9\nv_lshlrev_b32 v9, 5, v9\nv_add_u32 v9, {ML}, v9\nv_lshlrev_b32 v12, 4, v0\nv_cmp_gt_u32 vcc, 288, v0\ns_nop 1\nv_cndmask_b32 v12, v15, v12, vcc")
    a("s_lshr_b32 s55, s2, 2\ns_mul_i32 s55, s55, 36864\ns_and_b32 s56, s2, 3\ns_lshl_b32 s56, s56, 7\ns_add_u32 s62, s55, s56")
    a(f"v_and_b32 v14, 7, v0\nv_lshl_add_u32 v13, v14, 4, v13\ns_lshl_b32 s55, s3, 4\ns_add_u32 s55, s55, {XL}\nv_lshlrev_b32 v14, 7, v1\nv_add_u32 v14, s55, v14")
    a(f"s_lshl_b32 s55, s3, 8\ns_add_u32 s55, s55, {GL}\nv_lshlrev_b32 v7, 5, v1\nv_add_u32 v7, s55, v7")
    for i in range(0, 128, 2): a(f"v_mov_b64 {vr(ACC+i,2)}, 0")

    pf = ["s_mul_i32 s55, s60, 2304\nv_lshlrev_b32 v2, 4, v1"] + [f"buffer_load_dwordx4 v[220:223], v2, s[16:19], s55 offen offset:{1024*i}" for i in range(3)]
    g = Ops()
    for i in range(3):
        c = 204 + i
        g(f"v_lshlrev_b32 v{c}, 16, v{c}\nv_mul_f32 v216, 0xbfb8aa3b, v{c}\nv_exp_f32 v216, v216\ns_nop 0\nv_add_f32 v216, 1.0, v216\nv_rcp_f32 v216, v216\ns_nop 0\nv_mul_f32 v{c}, v{c}, v216")
        round_bf16(g, c)
        for d in range(4):
            w = 192 + 4*i + d
            op = "v_mul_f32" if i == 0 else "v_fmac_f32"
            g(f"v_lshlrev_b32 v216, 16, v{w}\nv_and_b32 v217, 0xffff0000, v{w}\n{op} v{208+2*d}, v{c}, v216\n{op} v{209+2*d}, v{c}, v217")
    g("s_nop 1")
    for k in range(8): g(f"v_add_f32_dpp v{208+k}, v{208+k}, v{208+k} row_ror:8 row_mask:0xf bank_mask:0xf")
    for sw in ("v_permlane16_swap_b32", "v_permlane32_swap_b32"):
        for k in range(8): g(f"v_mov_b32 v{192+k}, v{208+k}")
        g("s_nop 0")
        for k in range(8): g(f"{sw} v{208+k}, v{192+k}")
        for k in range(8): g(f"v_add_f32 v{208+k}, v{208+k}, v{192+k}")
    gemv = g.ops() + ["s_mov_b64 exec, 0xff\nds_write_b128 v7, v[208:211]\nds_write_b128 v7, v[212:215] offset:16\ns_mov_b64 exec, -1"]
    mload = [f"v_lshlrev_b32 v10, 4, v0\nv_add_u32 v10, {ML}, v10"] + [f"s_mov_b32 s55, {13824*r}\nbuffer_load_dwordx4 {vr(192+4*r,4)}, v12, s[40:43], s55 offen sc1" for r in range(4)]
    q = Ops()
    for k in range(4): q(f"v_add_f32 v{192+k}, v{192+k}, v{196+k}\nv_add_f32 v{200+k}, v{200+k}, v{204+k}")
    for k in range(4): q(f"v_add_f32 v{192+k}, v{192+k}, v{200+k}")
    round_pairs(q, 192, 4, 2)
    q("v_cmp_lt_u32 vcc, 143, v0\ns_nop 1\nv_cndmask_b32 v196, 0, 1.0, vcc")
    for k in range(4): q(f"v_add_f32 v{192+k}, v{192+k}, v196")
    round_pairs(q, 192, 4, 2)
    q("ds_write_b128 v10, v[192:195]")
    msum = q.ops()
    x = Ops()
    unpack8(x, 224, 232); unpack8(x, 228, 240)
    x("v_add_f32 v216, v232, v233")
    for i in range(234, 248): x(f"v_add_f32 v216, v216, v{i}")
    wave_allsum(x, 216, 217)
    x("v_mul_f32 v216, 0x3ae38e39, v216\nv_cmp_gt_u32 vcc, 8, v1\nv_mov_b32 v219, 0\ns_nop 0\nv_cndmask_b32 v218, 0, v216, vcc")
    for i in range(16): x(f"v_sub_f32 v217, v{232+i}, v{216 if i < 8 else 218}\nv_fmac_f32 v219, v217, v217")
    wave_allsum(x, 219, 217)
    x("v_mul_f32 v219, 0x3ae38e39, v219")
    round_bf16(x, 216); round_bf16(x, 219)
    x("v_add_f32 v219, 0x3727c5ac, v219"); round_bf16(x, 219)
    x("v_sqrt_f32 v219, v219\ns_nop 0"); round_bf16(x, 219)
    x("v_rcp_f32 v219, v219\ns_nop 0")
    for i in range(16): x(f"v_sub_f32 v{232+i}, v{232+i}, v216")
    round_pairs(x, 232, 16, 217)
    for i in range(16): x(f"v_mul_f32 v{232+i}, v{232+i}, v219")
    for p in range(8): x(f"v_cvt_pk_bf16_f32 v{248+p}, v{232+2*p}, v{233+2*p}")
    x("ds_write_b128 v14, v[248:251]\nds_write_b128 v14, v[252:255] offset:8192")
    xst = x.ops()
    def h1fin(u):
        h = Ops()
        h(f"ds_read_b128 v[224:227], v10 offset:{XL - ML + 8192*u}")
        for k, off in enumerate((0, 16, 2304, 2320)): h(f"ds_read_b128 {vr(192+4*k,4)}, v9 offset:{off + 2048*u}")
        h("s_waitcnt lgkmcnt(0)")
        unpack8(h, 224, 232)
        for i in range(8): h(f"v_mul_f32 v{232+i}, v{232+i}, v{200+i}")
        round_pairs(h, 232, 8, 2)
        for i in range(8): h(f"v_add_f32 v{232+i}, v{232+i}, v{192+i}")
        for p in range(4): h(f"v_cvt_pk_bf16_f32 v{228+4*u+p}, v{232+2*p}, v{233+2*p}") if u == 0 else h(f"v_cvt_pk_bf16_f32 v{240+p}, v{232+2*p}, v{233+2*p}")
        h(f"s_add_u32 s55, s62, {32768*u}\nbuffer_store_dwordx4 {vr(228 if u == 0 else 240,4)}, v13, s[24:27], s55 offen sc1")
        return h.ops()

    def reads(ks, s):
        b = SET[s]; r = []
        for nn in range(2):
            for e in range(2): r.append(f"ds_read_b64_tr_b16 {vr(b+16+4*nn+2*e,2)}, v6 offset:{ks*4352 + e*256 + nn*64}")
        for m in range(4): r.append(f"ds_read_b128 {vr(b+4*m,4)}, v5 offset:{(m>>1)*8320 + (m&1)*512 + ks*32}")
        return r
    def mfmas(s, role):
        b = SET[s]; r = []
        for m in range(4):
            for nn in range(2):
                acc = vr(ACC + 16*(2*m+nn), 16); c = vr(b+4*m, 4); w = vr(b+16+4*nn, 4)
                r.append(mf(acc, w, c, acc) if role == 0 else mf(acc, c, w, acc))
        return r
    stamp(a, 'kv_pro')
    a(f"s_waitcnt vmcnt({8 + CPF})\ns_barrier")
    stamp(a, 'kv_b0')
    for o in reads(0, 0): a(o)
    a("s_cmp_lt_u32 s3, 4\ns_cbranch_scc0 Lkv_r1")
    for role in range(2):
        a.label(f"Lkv_r{role}")
        if role == 1 and 'p1' in os.environ.get('PR', ''): a("s_setprio 1")
        if role == 0 and 'p0' in os.environ.get('PR', ''): a("s_setprio 1")
        hx = len(xst) // 2
        for t in range(8):
            pl = ['s_cmp_lg_u32 s3, 0\ns_cbranch_scc1 Lkv_npl\nbuffer_load_dword v15, v11, s[36:39], 0 offen sc1\nLkv_npl:'] if role == 0 else []
            side = {0: l2pf(2) + l2pf(3) + sloads(role), 1: gemv, 2: xst[:hx], 3: xst[hx:], 4: ['s_nop 0'] * 10 + pl + pf,
                    5: mload + ['s_nop 0'] * 40 + ['s_waitcnt vmcnt(0)'] + msum, 6: h1fin(0) + ['s_nop 0'] * 46}.get(t, [])
            if 'noval' in os.environ.get('XP', '') and t in (1, 2, 3): side = [o for o in side if 'buffer' in o or 'ds_' in o]
            if 'novm' in os.environ.get('XP', '') and t == 4: side = [o if 'buffer' not in o else o.replace('s55 offen', 's100 offen') for o in side]; a('s_mov_b32 s100, 0x7f000000')
            g0 = 8 * (int(os.environ.get('DKS', '0')) + 1) if ((role == 1 or ('nospread' not in os.environ.get('XP', ''))) and t in (4, 5, 6)) else 0
            if 1 <= t <= 4: side = side + l2pf(t + 3)
            per = (len(side) + 23 - g0) // (24 - g0)
            if t == 1: a(f"s_waitcnt vmcnt({0 if 'nospread' in os.environ.get('XP', '') and role == 1 else 4})")
            if t == 2 and role == 0:
                a("s_cmp_lg_u32 s3, 0\ns_cbranch_scc1 Lkv_nofin")
                a(f"v_lshlrev_b32 v2, 2, v1\nv_add_u32 v15, {GL}, v2")
                for w in range(8): a(f"ds_read_b32 v{192+w}, v15 offset:{256*w}")
                a("s_mul_i32 s55, s61, 13824\ns_lshr_b32 s56, s2, 2\ns_lshl_b32 s56, s56, 8\ns_add_u32 s55, s55, s56\ns_cmp_lt_u32 s2, 216\ns_cselect_b32 s55, s55, 0x7f000000\ns_waitcnt lgkmcnt(0)")
                for w in range(1, 8): a(f"v_add_f32 v192, v192, v{192+w}")
                a("buffer_store_dword v192, v2, s[40:43], s55 offen sc1\nv_mov_b32 v2, 1\ns_lshl_b32 s55, s61, 6\nv_and_b32 v11, 3, v1\nv_lshlrev_b32 v11, 6, v11")
                a("s_waitcnt vmcnt(0)\ns_mov_b64 exec, 1\nbuffer_atomic_add v2, off, s[36:39], s55 sc1\ns_mov_b64 exec, -1")
                a.label("Lkv_nofin")
            if t in (5, 6) and role == 1:
                a(f"s_cmp_lg_u32 s3, 7\ns_cbranch_scc1 Lkv_nofm{t}")
                if t == 5:
                    a(f"s_lshl_b32 s55, s2, 6\nv_lshlrev_b32 v15, 2, v1\nv_add_u32 v15, s55, v15\nv_cmp_gt_u32 vcc, 16, v1\nv_mov_b32 v2, {OOB}\ns_cmp_lt_u32 s2, 216\ns_cselect_b64 vcc, vcc, 0\ns_nop 1\nv_cndmask_b32 v15, v2, v15, vcc")
                    for r in range(4): a(f"s_mov_b32 s55, {13824*r}\nbuffer_load_dword v{216+r}, v15, s[40:43], s55 offen sc1")
                else:
                    a("v_add_f32 v216, v216, v217\nv_add_f32 v218, v218, v219\nv_add_f32 v216, v216, v218")
                    round_bf16(a, 216)
                    a("buffer_store_dword v216, v15, s[20:23], 0 offen sc1")
                a.label(f"Lkv_nofm{t}")
            if t == 7 and role == 1:
                a("s_sub_u32 s6, s3, 4\ns_cmp_ge_u32 s3, 6\ns_cbranch_scc1 Lkv_nls")
                attn_loader_setup(a)
                a.label("Lkv_nls")
                a("s_cmp_lg_u32 s3, 7\ns_cbranch_scc1 Lkv_nl7\ns_lshr_b32 s31, s2, 5\ns_sub_u32 s30, 15, s31")
                a(f"v_and_b32 v3, 1, v1\nv_mov_b32 v4, s30\nv_mov_b32 v2, s31\nv_cmp_eq_u32 vcc, 0, v3\ns_nop 1\nv_cndmask_b32 v3, v2, v4, vcc\nv_lshlrev_b32 v3, 7, v3")
                a.label("Lkv_nl7")
            for ks in range(3):
                if t == 6 and role == 0 and ks == 2:
                    a("s_cmp_lg_u32 s3, 0\ns_cbranch_scc1 Lkv_noh2")
                    for o in h1fin(1): a(o)
                    a.label("Lkv_noh2")
                if t == 7 and role == 1 and ks == 1:
                    a(f"s_cmp_lg_u32 s3, 7\ns_cbranch_scc1 Lkv_nl8\nbuffer_load_dword v244, v3, {SYNC}, 0 offen sc1\nLkv_nl8:")
                a("s_waitcnt lgkmcnt(0)")
                m = mfmas(ks & 1, role); r = reads(ks + 1, (ks + 1) & 1)
                dm = dma_ops((t - 1) & 1) if ((role == 1 or ('nospread' not in os.environ.get('XP', ''))) and ks == int(os.environ.get('DKS', '0')) and 1 <= t <= 6) else None
                for i in range(8):
                    a(m[i])
                    for o in r[2*i:2*i+2]: a(o)
                    if dm and not ('nospread' not in os.environ.get('XP', '')): a(dm[i])
                    if dm and ('nospread' not in os.environ.get('XP', '')) and i % 2 == role: a(dm[4 + i // 2])
                    k = (ks * 8 + i - g0) * per
                    if k >= 0:
                        for o in side[k:k+per]:
                            if o != 's_nop 0' or t not in (4, 5, 6): a(o)
                if dm: a(ADVD)
            d = SLOT if t % 2 == 0 else -SLOT
            a(f"v_add_u32 v5, {d & 0xffffffff}, v5\nv_add_u32 v6, {d & 0xffffffff}, v6")
            a(f"s_waitcnt vmcnt({ {0: 12 + CPF, 1: 2, 2: 2, 3: 2, 4: 5}.get(t, 0) }) lgkmcnt(0)")
            if t == 4 and role == 0:
                a("s_cmp_lg_u32 s3, 0\ns_cbranch_scc1 Lkv_mpd\ns_mov_b32 s100, 0x8000")
                a.label("Lkv_mp")
                a("v_cmp_gt_u32 vcc, 64, v15\ns_sub_u32 s100, s100, 1\ns_cbranch_vccz Lkv_mpd\ns_cmp_eq_u32 s100, 0\ns_cbranch_scc1 Lkv_mpd")
                a("buffer_load_dword v15, v11, s[36:39], 0 offen sc1\ns_waitcnt vmcnt(0)\ns_branch Lkv_mp")
                a.label("Lkv_mpd")
            if t == 7 and role == 1:
                a(f"s_cmp_lg_u32 s3, 7\ns_cbranch_scc1 Lkv_np1\nv_cmp_gt_u32 vcc, 16, v244\nv_mov_b32 v247, {GL}\ns_nop 1")
                a("s_cmp_eq_u64 vcc, 0\ns_cselect_b32 s59, 1, 0\nv_mov_b32 v248, s59\nds_write_b32 v247, v248\ns_waitcnt lgkmcnt(0)")
                a.label("Lkv_np1")
            stamp(a, f'kw{t}')
            a("s_barrier")
            stamp(a, f'kv{t}')
            if t == 7 and role == 1:
                a(f"s_cmp_ge_u32 s3, 6\ns_cbranch_scc1 Lkv_nq0\nv_mov_b32 v247, {GL}\nds_read_b32 v248, v247\ns_waitcnt lgkmcnt(0)")
                a("v_readfirstlane_b32 s51, v248\ns_cmp_eq_u32 s51, 0\ns_cbranch_scc1 Lkv_nq0")
                for i in range(2): wq_part(a); h_part(a)
                a.label("Lkv_nq0")
            if t == 6 and role == 1:
                a("s_cmp_lg_u32 s3, 7\ns_cbranch_scc1 Lkv_ns1\ns_lshr_b32 s55, s2, 4\ns_lshl_b32 s55, s55, 7")
                signal(a, 55, 2)
                a.label("Lkv_ns1")
            m = mfmas(1, role); r = reads(0, 0) if t < 7 else []; dm = dma_ops(t & 1)
            for i in range(8):
                a(m[i])
                for o in r[2*i:2*i+2]: a(o)
                if t < 6 and role == 0 and not ('nospread' not in os.environ.get('XP', '')): a(dm[i])
                if t < 6 and ('nospread' not in os.environ.get('XP', '')) and i % 2 == role: a(dm[i // 2])
            if t < 6 and role == 0 and not ('nospread' not in os.environ.get('XP', '')): a(ADVD)
        stamp(a, 'kv_end')
        def pack(k, dst):
            src = ACC + 8*k
            for p in range(4): a(f"v_cvt_pk_bf16_f32 v{dst+p}, v{src+2*p}, v{src+2*p+1}")
        if role == 1:
            a("s_cmp_ge_u32 s3, 6\ns_cbranch_scc1 Lkv_sw")
            a(f"s_lshl_b32 s55, s6, 14\ns_add_u32 s55, s55, {HAND}\nv_add_u32 v12, s55, v{V_LANE16}\ns_nop 7")
            for k in range(16):
                dst = 16 + 4 * (k % 8)
                pack(k, dst)
                a(f"ds_write_b128 v12, {vr(dst,4)} offset:{1024*k}")
            a("s_waitcnt lgkmcnt(0)\ns_barrier")
            a("s_branch Lat_load")
            a.label("Lkv_sw")
        a("v_lshlrev_b32 v7, 4, v1")
        a("s_lshl_b32 s55, s48, 19\ns_lshl_b32 s56, s49, 13\ns_add_u32 s55, s55, s56")
        a("s_and_b32 s56, s3, 1\ns_lshl_b32 s56, s56, 18\ns_add_u32 s57, s55, s56")
        if role == 1:
            a(f"s_and_b32 s55, s3, 1\ns_lshl_b32 s55, s55, 14\ns_add_u32 s55, s55, {HAND}\nv_add_u32 v2, s55, v7")
            for k in range(16): pack(k, ACC + 4*k)
            make_ws_srd(a, 20, 4, 'vf')
            a("s_cmp_lg_u32 s3, 7\ns_cbranch_scc1 Lkv_np2\ns_cmp_lg_u32 s59, 0\ns_cbranch_scc1 Lkv_np2")
            stamp(a, 'l_h1p0')
            poll(a, 3, 16, 244)
            stamp(a, 'l_h1p1')
            a.label("Lkv_np2")
            a("s_barrier")
            for k in range(16): a(f"ds_read_b128 {vr(128+4*k,4)}, v2 offset:{1024*k}")
            a("s_branch Lat_sw")
        else:
            for k in KORDER: pack(k, KREG[k])
            make_ws_srd(a, 16, 4, 'kf')
            if 'nok' in os.environ.get('XP', ''): a("s_mov_b32 s18, 0")
            a("s_lshr_b32 s56, s3, 1\ns_lshl_b32 s56, s56, 12\ns_add_u32 s57, s57, s56")
            a("v_mov_b32 v6, v7")
            a("s_branch Lat_comp")

def attn_ids(a):
    a("s_and_b32 s28, s2, 7\ns_lshr_b32 s29, s2, 3")
    a("s_and_b32 s30, s29, 3\ns_lshl_b32 s28, s28, 2\ns_add_u32 s28, s28, s30")
    if 'shortfirst' not in os.environ.get('XP', ''): a("s_lshr_b32 s31, s29, 2\ns_sub_u32 s30, 15, s31")
    else: a("s_lshr_b32 s30, s29, 2\ns_sub_u32 s31, 15, s30")
    a(f"v_and_b32 v8, 63, v0\nv_lshlrev_b32 v{V_LANE16}, 4, v8")

def phase_attn_compute(a):
    a.label("Lat_comp")
    a("s_setprio 1" if 'pc' in os.environ.get('PR', '') else "s_setprio 0" if os.environ.get('PR') else "")
    attn_ids(a)
    a("v_bfe_u32 v2, v8, 2, 2\nv_mul_u32_u24 v2, 1088, v2\nv_lshrrev_b32 v9, 5, v8\nv_lshl_add_u32 v2, v9, 9, v2")
    a("v_bfe_u32 v9, v8, 4, 1\nv_lshl_add_u32 v2, v9, 5, v2\nv_and_b32 v9, 3, v8\nv_lshl_add_u32 v2, v9, 3, v2")
    a(f"s_lshl_b32 s32, s3, 11\ns_add_u32 s32, s32, {WQ_BYTES}\nv_add_u32 v3, s32, v{V_LANE16}")
    a("v_and_b32 v9, 31, v8\ns_lshl_b32 s32, s3, 5\nv_add_u32 v9, s32, v9\nv_lshrrev_b32 v10, 5, v8\nv_lshlrev_b32 v10, 2, v10")
    a(f"v_sub_u32 v9, v9, v10\nv_cvt_f32_i32 v9, v9\nv_add_f32 v9, 0.5, v9\nv_mul_f32 v{V_YD}, {f32(BIG)}, v9")
    QACC = lambda qt, t: (16 + 16*t) if qt == 0 else (O + 16*t)
    QSET = [FR, FR + 24]
    for i in range(0, 64, 2): a(f"v_mov_b64 {vr(16+i,2)}, 0\nv_mov_b64 {vr(O+i,2)}, 0")
    make_ws_srd(a, 20, 4, 'ctx')
    a(f"s_mov_b32 s46, {f32(QSCALE)}\ns_mov_b32 s47, {f32(QSCALE)}")
    def qreads(ks, st):
        b = QSET[st]; r = []
        for qt in range(2): r.append(f"ds_read_b128 {vr(b+16+4*qt,4)}, v3 offset:{qt*8192 + ks*1024}")
        for t in range(4):
            for e in range(2): r.append(f"ds_read_b64_tr_b16 {vr(b+4*t+2*e,2)}, v2 offset:{ks*4352 + e*256 + t*64}")
        return r
    def qmf(st):
        b = QSET[st]
        return [mf(vr(QACC(qt, t), 16), vr(b+4*t, 4), vr(b+16+4*qt, 4), vr(QACC(qt, t), 16)) for t in range(4) for qt in range(2)]
    def front(m, r):
        out = []
        for i, x in enumerate(m):
            out.append(x); out += r[2*i:2*i+2]
        return out
    a("s_mov_b32 s40, 0")
    stamp(a, 'q_pre')
    a("s_barrier\ns_barrier")
    stamp(a, 'q_b0')
    for o in qreads(0, 0): a(o)
    for c in range(18):
        a("s_waitcnt lgkmcnt(0)")
        ops = front(qmf(0), qreads(1, 1))
        if c < 16: ops.insert(20, kstore(c))
        for o in ops: a(o)
        d = AT.SLOT if c % 5 != 4 else -4 * AT.SLOT
        a(f"v_add_u32 v2, {d & 0xffffffff}, v2\nv_add_u32 v3, {d & 0xffffffff}, v3")
        if c == 9: a("s_waitcnt vmcnt(2)")
        if c == 17: a("s_waitcnt vmcnt(0)")
        a("s_waitcnt lgkmcnt(0)")
        for o in front(qmf(1), qreads(0, 0) if c < 17 else []): a(o)
        a("s_barrier")
        stamp(a, f'q{c}')
    a(f"s_mov_b32 s40, {3*AT.SLOT}")
    stamp(a, 'q_end')
    a("v_and_b32 v8, 63, v0\nv_bfe_u32 v9, v8, 4, 1\nv_lshlrev_b32 v9, 17, v9\nv_lshrrev_b32 v10, 5, v8\nv_lshl_add_u32 v9, v10, 8, v9")
    a(f"v_and_b32 v10, 15, v8\nv_lshl_add_u32 v{V_T0}, v10, 4, v9\nv_mov_b32 v{V_T0+1}, {f32(THRESH)}")
    a(ADV[1])
    a("s_nop 7")
    for qt in (1, 0):
        for t in range(4):
            for e in range(2):
                for p in range(4):
                    s_ = QACC(qt, t) + 8*e + 2*p
                    a(f"v_pk_mul_f32 {vr(s_,2)}, {vr(s_,2)}, s[46:47]")
                for p in range(4):
                    s_ = QACC(qt, t) + 8*e + 2*p
                    a(f"v_cvt_pk_bf16_f32 v{(Q, Q2)[qt] + 4*(2*t+e) + p}, v{s_}, v{s_+1}")
        if qt == 1:
            for i in range(8): a(rd(i, KPOS[1]))
    a("s_mov_b32 s42, s30\ns_mov_b32 s43, 0")
    a.label("Lat_qk0")
    a(f"s_lshl_b32 s32, s42, 7\nv_cvt_f32_u32 v{V_Y}, s32\nv_mul_f32 v{V_Y}, {f32(BIG)}, v{V_Y}\nv_add_f32 v{V_Y}, v{V_Y}, v{V_YD}")
    a(f"v_mov_b32 v{V_NEGM}, 0")
    for o in build_ci(): a(o)
    a(ADV[0]); a(ADV[1])
    z = [f"v_mov_b64 {vr(O+i,2)}, 0" for i in range(0, 64, 2)] + [f"v_mov_b64 {vr(P[1]+i,2)}, 0" for i in range(0, 8, 2)]
    z += [f"v_mov_b32 v{V_L}, 0", f"v_mov_b32 v{LU[1]}, 0"]
    m = qk_group(0)
    for i in range(8):
        if i == 0: a("s_waitcnt lgkmcnt(5)")
        if i % 4 == 3: a(W4)
        a(m[i]); a(rd(i, KPOS[0]))
        for o in z[5*i:5*i+5]: a(o)
    a("s_nop 7\ns_nop 1")
    s = S[0]; t = V_T0 + 2; d = V_T0 + 3
    a(f"v_max3_f32 v{d}, v{s}, v{s+1}, v{s+2}")
    for r in range(3, 15, 2): a(f"v_max3_f32 v{d}, v{d}, v{s+r}, v{s+r+1}")
    a(f"v_max_f32 v{d}, v{d}, v{s+15}")
    a(f"v_mov_b32 v{t}, v{d}\ns_nop 1\nv_permlane32_swap_b32 v{d}, v{t}\ns_nop 1")
    a(f"v_max_f32 v{d}, v{d}, v{t}")
    a(f"v_sub_f32 v{V_NEGM}, 0, v{d}")
    for r in range(16): a(f"v_sub_f32 v{s+r}, v{s+r}, v{d}")
    for o in build_ci(): a(o)
    sites = []
    a(f"v_mov_b32 v{V_Y}, v{V_YD}")
    a("s_cmp_eq_u32 s42, 0\ns_cbranch_scc0 Lat_plain_pre")
    a(f"v_add_f32 v{V_Y}, {f32(-64*BIG)}, v{V_Y}\ns_mov_b32 s41, 1\ns_branch Lat_rebuild")
    a.label("Lat_plain_pre")
    a("s_lshl_b32 s41, s42, 1\ns_sub_u32 s41, s41, 1")
    a.label("Lat_plain")
    a("s_barrier")
    sites.append(period(a, 0, 0, VPOS[0], KPOS[1]))
    sites.append(period(a, 1, 1, VPOS[1], KPOS[0], adv=True, tail_ops=["s_sub_u32 s41, s41, 1\ns_cmp_lg_u32 s41, 0"]))
    a("s_cbranch_scc1 Lat_plain")
    a("s_mov_b32 s41, 2")
    a.label("Lat_rebuild")
    a("s_barrier")
    sites.append(period(a, 0, 2, VPOS[0], KPOS[1], rebuild=True))
    sites.append(period(a, 1, 3, VPOS[1], KPOS[0], rebuild=True, adv=True, tail_ops=["s_sub_u32 s41, s41, 1\ns_cmp_lg_u32 s41, 0"]))
    a("s_cbranch_scc1 Lat_rebuild")
    a("s_barrier")
    sites.append(period(a, 0, 4, VPOS[0], VPOS[1]))
    sites.append(period(a, 1, 5, None, VPOS[0], qk=False, adv=True))
    a("s_barrier")
    m = pv_group(1)
    mv = [f"v_mov_b64 {vr(Q+i,2)}, {vr(Q2+i,2)}" for i in range(0, 32, 2)]
    for i in range(8):
        if i % 4 == 3: a(W4)
        a(m[i]); a(rd(i, KPOS[1]))
        for o in mv[2*i:2*i+2]: a(o)
    a("s_cmp_eq_u32 s43, 0\ns_cbranch_scc1 Lat_noE\ns_waitcnt lgkmcnt(0)\ns_barrier")
    a.label("Lat_noE")
    a(f"v_add_f32 v{V_L}, v{V_L}, v{LU[1]}")
    a(f"v_mov_b32 v{t}, v{V_L}\ns_nop 1\nv_permlane32_swap_b32 v{V_L}, v{t}\ns_nop 1\nv_add_f32 v{V_L}, v{V_L}, v{t}")
    a(f"v_rcp_f32 v{T}, v{V_L}\ns_nop 0\nv_mov_b32 v{T+1}, v{T}")
    a("s_lshl_b32 s32, s42, 20\ns_lshl_b32 s33, s3, 18\ns_add_u32 s32, s32, s33\ns_lshl_b32 s33, s28, 12\ns_add_u32 s32, s32, s33")
    a("s_nop 3")
    k = 0
    for tt in range(4):
        for e in range(2):
            src = O + 16*tt + 8*e; dst = S[0] + 4 * k; k += 1
            for p in range(4): a(f"v_pk_mul_f32 {vr(src+2*p,2)}, {vr(src+2*p,2)}, {vr(T,2)}")
            for p in range(4): a(f"v_cvt_pk_bf16_f32 v{dst+p}, v{src+2*p}, v{src+2*p+1}")
            a(f"buffer_store_dwordx4 {vr(dst,4)}, v{V_T0}, s[20:23], s32 offen offset:{tt*1024 + e*512} sc1")
    a("s_cmp_lg_u32 s43, 0\ns_cbranch_scc1 Lat_cend")
    a("s_mov_b32 s43, 1\ns_mov_b32 s42, s31\ns_branch Lat_qk0")
    for site, par in sites:
        a.label(f"Lat_rs{site}")
        a(f"s_call_b64 s[44:45], Lat_rare{par}\ns_branch Lat_rb{site}")
    rare_path(a, 0); rare_path(a, 1)
    a.label("Lat_cend")
    stamp(a, 'at_end')
    a(f"s_lshr_b32 s32, s28, 3\ns_add_u32 s32, s32, {C_CTX}\ns_lshl_b32 s33, s30, 2\ns_add_u32 s33, s33, s32\ns_lshl_b32 s33, s33, 7")
    a("s_lshl_b32 s34, s31, 2\ns_add_u32 s34, s34, s32\ns_lshl_b32 s34, s34, 7")

def wq_part(a):
    a("s_add_u32 s32, s40, s37")
    for jj in range(4): a(f"s_add_u32 m0, s32, {1088*jj}\ns_add_u32 s33, s34, {8192*jj}\nbuffer_load_dwordx4 v2, s[8:11], s33 offen lds")
    a(f"s_add_u32 s34, s34, {32*8192}")

def h_part(a):
    a("s_add_u32 s32, s40, s38")
    for qt in range(2):
        for b in range(2):
            a(f"s_add_u32 m0, s32, {qt*8192 + b*2048}\ns_add_u32 s33, s{35+qt}, {b*36864}")
            a(f"buffer_load_dwordx4 v{V_LANE16}, s[12:15], s33 offen sc1 lds\nbuffer_load_dwordx4 v{V_LANE16}, s[12:15], s33 offen offset:1024 sc1 lds")
    a("s_add_u32 s35, s35, 2048\ns_add_u32 s36, s36, 2048")
    a(ADV[0])

def attn_loader_setup(a):
    SLOT = AT.SLOT
    make_srd(a, 8, 32, SIZES['wq'])
    a("s_load_dwordx2 s[56:57], s[0:1], 40\ns_load_dwordx2 s[58:59], s[0:1], 56\ns_load_dwordx2 s[60:61], s[0:1], 72")
    attn_ids(a)
    a("v_lshrrev_b32 v2, 4, v8\nv_lshlrev_b32 v2, 15, v2\nv_and_b32 v3, 15, v8\nv_lshl_add_u32 v2, v3, 4, v2")
    a("s_lshl_b32 s32, s6, 17\nv_add_u32 v2, s32, v2")
    a("s_lshl_b32 s34, s28, 8\ns_mul_i32 s37, s6, 4352")
    make_ws_srd(a, 12, 4, 'h1')
    a("s_lshl_b32 s32, s28, 19")
    srd_off(a, 16, 4, 32, WS['kf'][0], 512*1024); srd_off(a, 20, 4, 32, WS['vf'][0], 512*1024)
    a("s_lshl_b32 s35, s30, 1\ns_add_u32 s35, s35, s6\ns_mul_i32 s35, s35, 73728")
    a("s_lshl_b32 s36, s31, 1\ns_add_u32 s36, s36, s6\ns_mul_i32 s36, s36, 73728")
    a(f"s_lshl_b32 s38, s6, 12\ns_add_u32 s38, s38, {WQ_BYTES}\ns_lshl_b32 s39, s6, 13\ns_mov_b32 s40, 0")
    a("s_sub_u32 s44, s39, 8192\ns_sub_u32 s45, s39, 24576")
    a("s_mov_b32 s46, s44\ns_mov_b32 s47, s45\ns_mov_b32 s48, 0\ns_lshl_b32 s49, s30, 1\ns_add_u32 s49, s49, 3")

def phase_attn_loader(a):
    a.label("Lat_load")
    a("s_setprio 1" if 'pl' in os.environ.get('PR', '') else "s_setprio 0" if os.environ.get('PR') else "")
    a("s_cmp_lg_u32 s51, 0\ns_cbranch_scc1 Lat_early")
    for i in range(2): wq_part(a); h_part(a)
    a.label("Lat_early")
    for i in range(2): wq_part(a); h_part(a)
    a("s_mov_b32 s41, 14")
    a.label("Lat_lq")
    a("s_waitcnt vmcnt(24)\ns_barrier")
    wq_part(a); h_part(a)
    a("s_sub_u32 s41, s41, 1\ns_cmp_lg_u32 s41, 0\ns_cbranch_scc1 Lat_lq")
    a("s_waitcnt vmcnt(24)\ns_barrier")
    def kvload():
        for (srd, so, lo) in ((16, 46, 0), (20, 47, 16384)):
            a(f"s_add_u32 s32, s40, s39\ns_add_u32 m0, s32, {lo}\ns_add_u32 s33, s{so}, 4096")
            for j in range(4): a(f"buffer_load_dwordx4 v{V_LANE16}, {sr(srd,4)}, s{so} offen offset:{1024*j} sc1 lds")
            a(f"s_add_u32 m0, s32, {lo + 4096}\ns_nop 0")
            for j in range(4): a(f"buffer_load_dwordx4 v{V_LANE16}, {sr(srd,4)}, s33 offen offset:{1024*j} sc1 lds")
        a("s_add_u32 s46, s46, 16384\ns_add_u32 s47, s47, 16384\ns_add_u32 s48, s48, 1")
        a("s_cmp_eq_u32 s48, s49\ns_cselect_b32 s46, s44, s46")
        a("s_add_u32 s32, s49, 1\ns_add_u32 s33, s45, 16384\ns_cmp_eq_u32 s48, s32\ns_cselect_b32 s47, s33, s47")
        a(ADV[0])
    kvload()
    a("s_waitcnt vmcnt(28)\ns_barrier")
    kvload()
    a("s_waitcnt lgkmcnt(0)\ns_lshl_b32 s52, s2, 1\ns_add_u32 s52, s52, s6\ns_mul_i32 s50, s52, 9216\ns_mul_i32 s52, s52, 36864\ns_mov_b32 s41, 0")
    make_srd(a, 24, 56, 0 if 'nopf' in os.environ.get('XP', '') else SIZES['wo'])
    a.label("Lat_lpf")
    a("s_waitcnt vmcnt(32)\ns_barrier")
    kvload()
    for g in range(3):
        for j in range(3): a(f"buffer_load_dwordx4 v[8:11], v{V_LANE16}, s[24:27], s50 offen offset:{1024*j}")
        a("s_add_u32 s50, s50, 3072")
    for r in range(2):
        a("s_waitcnt vmcnt(41)\ns_barrier")
        kvload()
    a("s_add_u32 s41, s41, 1")
    for (n, ptr) in ((1, 58), (5, 60)):
        a(f"s_and_b32 s33, s{ptr+1}, 0xffff\ns_cmp_eq_u32 s41, {n}\ns_cselect_b32 s24, s{ptr}, s24\ns_cselect_b32 s25, s33, s25\ns_cselect_b32 s50, s52, s50")
    if 'nopf' not in os.environ.get('XP', ''): a(f"s_mov_b32 s26, {SIZES['w1']}")
    a("s_cmp_lt_u32 s41, 9\ns_cbranch_scc1 Lat_lpf")
    a("s_mov_b32 s41, 8")
    a.label("Lat_lkv")
    a("s_waitcnt vmcnt(32)\ns_barrier")
    kvload()
    a("s_sub_u32 s41, s41, 1\ns_cmp_lg_u32 s41, 0\ns_cbranch_scc1 Lat_lkv")
    a("s_waitcnt vmcnt(32)\ns_barrier\ns_waitcnt vmcnt(16)\ns_barrier")
    a("s_waitcnt vmcnt(0) lgkmcnt(0)\ns_barrier")
    a("s_branch Lat_ldone")

    a.label("Lat_sw")
    a("s_setprio 1" if 'pl' in os.environ.get('PR', '') else "s_setprio 0" if os.environ.get('PR') else "")
    a("s_mov_b32 s62, s57")
    a("s_load_dwordx2 s[56:57], s[0:1], 40\ns_load_dwordx2 s[58:59], s[0:1], 56\ns_load_dwordx2 s[60:61], s[0:1], 72")
    def vstore(n):
        k = n & 15; m_, nn, e = k >> 2, (k >> 1) & 1, k & 1
        reg = 64 + 4*k if n < 16 else 128 + 4*k
        a(f"s_add_u32 s55, s62, {m_*65536 + e*4096 + (2048 if n < 16 else 0)}\nbuffer_store_dwordx4 {vr(reg,4)}, v7, s[20:23], s55 offen offset:{nn*1024}" + ("" if 'wb' in os.environ.get('XP', '').split(',') else " sc1"))
    order = [n for m_ in range(4) for n in list(range(4*m_, 4*m_ + 4)) + list(range(16 + 4*m_, 16 + 4*m_ + 4))]
    a(f"s_add_u32 s32, s48, {C_KV}\ns_lshl_b32 s32, s32, 7\nv_mov_b32 v3, s32\ns_add_u32 s33, s32, {(C_KV2 - C_KV) * 128}\nv_mov_b32 v5, s33")
    a("s_waitcnt lgkmcnt(0)\ns_barrier")
    a("s_cmp_eq_u32 s3, 7\ns_cbranch_scc1 Lat_w7")
    for c in range(30):
        if c < 16 and c != 13: vstore(order[2*c]); vstore(order[2*c + 1])
        if c == 9: a("s_waitcnt vmcnt(4)")
        if c == 17: a("s_waitcnt vmcnt(0)")
        if c in (10, 18): signal(a, 32 if c == 10 else 33, 4)
        if c == 26:
            a("v_and_b32 v6, 15, v1\nv_lshlrev_b32 v6, 7, v6")
            poll(a, 6, 16, 244)
        if c in (13, 21, 29):
            if c == 29: a(f"v_add_u32 v5, {(C_KV3 - C_KV2) * 128}, v5")
            stamp(a, 'l_kvp0' if c == 13 else 'l_kvq0')
            poll(a, 3 if c == 13 else 5, 8, 244)
            stamp(a, 'l_kvp1' if c == 13 else 'l_kvq1')
            if c == 13: vstore(order[2*c]); vstore(order[2*c + 1])
        a("s_barrier")
    a("s_branch Lat_w67")
    a.label("Lat_w7")
    for c in range(30):
        if 18 <= c < 26:
            for q in range(4): vstore(order[4*(c - 18) + q])
        if c == 27:
            a(f"s_waitcnt vmcnt(0)\ns_add_u32 s33, s32, {(C_KV3 - C_KV) * 128}")
            signal(a, 33, 4)
        a("s_barrier")
    a.label("Lat_w67")
    if SENT:
        tok_ids(a)
        a(f"s_mov_b32 s33, {WS['p6'][0]}\ns_cmp_eq_u32 s3, 6\ns_cselect_b32 s32, {WS['p3'][0]}, s33")
        srd_off(a, 24, 4, 32, 0, WS['p3'][1])
        a("v_mov_b32 v8, -1\nv_mov_b32 v9, -1\nv_mov_b32 v10, -1\nv_mov_b32 v11, -1\ns_mov_b32 s50, s44\ns_mov_b32 s41, 4")
        a.label("Lat_pz")
        for g in range(3):
            a("s_barrier")
            for j in range(3): a(f"buffer_store_dwordx4 v[8:11], v7, s[24:27], s50 offen offset:{1024*j} sc1")
            a(f"s_add_u32 s50, s50, {3072 if g < 2 else 256*9216 - 6144}")
        a("s_sub_u32 s41, s41, 1\ns_cmp_lg_u32 s41, 0\ns_cbranch_scc1 Lat_pz")
        a(f"s_barrier\ns_barrier\ns_waitcnt vmcnt(0)\ns_add_u32 s32, s43, {C_PZ}\ns_lshl_b32 s32, s32, 7")
        signal(a, 32, 4)
    a(f"s_mov_b32 s41, {51 - 30 - (14 if SENT else 0)}")
    a.label("Lat_pfd")
    a("s_barrier\ns_sub_u32 s41, s41, 1\ns_cmp_lg_u32 s41, 0\ns_cbranch_scc1 Lat_pfd")
    if 'wpf' in os.environ.get('XP', ''):
        make_srd(a, 24, 56, SIZES['wo'])
        a(f"s_bfe_u32 s50, s2, 0x20001\ns_mul_i32 s50, s50, {1024*1152}\ns_lshr_b32 s32, s2, 3\ns_lshl_b32 s32, s32, 1\ns_and_b32 s33, s3, 1\ns_add_u32 s32, s32, s33")
        a("s_mul_i32 s32, s32, 18432\ns_add_u32 s50, s50, s32")
        for g in range(6):
            for j in range(3): a(f"buffer_load_dwordx4 v[8:11], v7, s[24:27], s50 offen offset:{1024*j}")
            a("s_add_u32 s50, s50, 3072")
    a("s_barrier\ns_barrier")
    a("s_waitcnt vmcnt(0)")
    a.label("Lat_ldone")

def adv_slot(slot, nslot):
    return f"s_add_u32 s40, s40, {slot}\ns_cmp_eq_u32 s40, {slot*nslot}\ns_cselect_b32 s40, 0, s40"

G16 = {'o': dict(F=16384, W=20480, NST=16, nF=4, nW=5), 'y': dict(F=20480, W=16896, NST=18, nF=5, nW=4)}

def g16_ids(a):
    a("s_bfe_u32 s28, s2, 0x20001")
    a("s_and_b32 s29, s2, 1\ns_lshl_b32 s29, s29, 3\ns_lshr_b32 s30, s2, 5\ns_add_u32 s29, s29, s30")
    a("s_bfe_u32 s30, s2, 0x20003")
    a("v_and_b32 v8, 63, v0\nv_lshlrev_b32 v1, 4, v8")

def g16_compute_setup(a, kind):
    p = G16[kind]
    g16_ids(a)
    a("v_bfe_u32 v2, v8, 4, 1\nv_lshlrev_b32 v2, 2, v2\nv_bfe_u32 v9, v8, 2, 2\nv_add_u32 v2, v2, v9")
    a("v_lshrrev_b32 v9, 5, v8\nv_and_b32 v10, 3, v8")
    if kind == 'o':
        a("v_lshl_add_u32 v2, v9, 4, v2\nv_mul_u32_u24 v2, 288, v2\nv_lshl_add_u32 v2, v10, 3, v2")
        a(f"v_add_u32 v4, {p['F']}, v2\ns_lshl_b32 s35, s3, 12\nv_add_u32 v5, s35, v1")
    else:
        a("v_mul_u32_u24 v2, 1056, v2\nv_lshl_add_u32 v2, v9, 9, v2\nv_lshl_add_u32 v2, v10, 3, v2")
        a(f"s_lshl_b32 s35, s3, 6\ns_add_u32 s35, s35, {p['F']}\nv_add_u32 v4, s35, v2\nv_mov_b32 v5, v1")
    a("v_mov_b32 v2, v4\nv_mov_b32 v3, v5")
    for i in range(0, 72, 2): a(f"v_mov_b64 {vr(16+i,2)}, 0")
    make_ws_srd(a, 20, 4, 'p3' if kind == 'o' else 'p6')
    a("v_bfe_u32 v6, v8, 4, 1\nv_lshlrev_b32 v6, 1, v6\nv_lshrrev_b32 v9, 5, v8\nv_add_u32 v6, v6, v9\nv_mul_u32_u24 v6, 9216, v6\nv_and_b32 v9, 15, v8\nv_lshl_add_u32 v6, v9, 4, v6")

def g16_compute(a, kind):
    p = G16[kind]; pre = 'Lg' + kind; SLOT = p['F'] + p['W']
    ACC = 16; SET = [96, 144]
    def reads(ks, st):
        b = SET[st]; r = []
        if kind == 'o':
            for t in range(2): r.append(f"ds_read_b128 {vr(b+4*t,4)}, v3 offset:{t*2048 + ks*1024}")
            for c in range(9):
                for e in range(2): r.append(f"ds_read_b64_tr_b16 {vr(b+8+4*c+2*e,2)}, v2 offset:{(32*ks + 8*e)*288 + c*32}")
        else:
            for t in range(2):
                for e in range(2): r.append(f"ds_read_b64_tr_b16 {vr(b+4*t+2*e,2)}, v2 offset:{8*ks*1056 + e*256 + t*32}")
            for c in range(9): r.append(f"ds_read_b128 {vr(b+8+4*c,4)}, v3 offset:{c*2048 + ks*1024}")
        return r
    def mfs(st):
        b = SET[st]
        return [f"v_mfma_f32_16x16x32_bf16 {vr(ACC+4*(9*t+c),4)}, {vr(b+4*t,4)}, {vr(b+8+4*c,4)}, {vr(ACC+4*(9*t+c),4)}"
                for c in range(9) for t in range(2)]
    def kstep(m, r, extra):
        n = len(r); NL = 6 if kind == 'o' else 3
        take = [(n * (i + 1)) // 16 - (n * i) // 16 if i < 16 else 0 for i in range(18)]
        k = 0
        a(f"s_waitcnt lgkmcnt({NL})")
        for i, x in enumerate(m):
            if i == 12: a(f"s_waitcnt lgkmcnt({min(15, k)})")
            a(x)
            for o in r[k:k+take[i]]: a(o)
            k += take[i]
            for o in extra.get(i, []): a(o)
    a(f"s_mov_b32 s40, 0\ns_mov_b32 s41, {p['NST']}")
    if kind == 'y': a("s_barrier")
    a("s_barrier")
    stamp(a, kind + '_b0')
    for o in reads(0, 0): a(o)
    a(f"s_branch {pre}_cin")
    a.label(f"{pre}_cloop")
    a("s_barrier")
    a.label(f"{pre}_cin")
    kstep(mfs(0), reads(1, 1), {14: [adv_slot(SLOT, 4)], 16: ["v_add_u32 v2, s40, v4"], 17: ["v_add_u32 v3, s40, v5"]})
    kstep(mfs(1), reads(0, 0), {16: ["s_sub_u32 s41, s41, 1"], 17: ["s_cmp_lg_u32 s41, 0"]})
    a(f"s_cbranch_scc1 {pre}_cloop")
    a.label(f"{pre}_cend")
    stamp(a, kind + '_end')
    a("s_lshl_b32 s32, s28, 8\ns_lshl_b32 s33, s29, 4\ns_add_u32 s32, s32, s33\ns_lshl_b32 s33, s3, 2\ns_add_u32 s32, s32, s33")
    a("s_mul_i32 s32, s32, 9216\ns_mul_i32 s33, s30, 2304\ns_add_u32 s32, s32, s33")
    a("s_waitcnt lgkmcnt(0)")
    for c in range(9):
        A_ = ACC + 4*c; B_ = ACC + 4*(9 + c); dst = 96 + 4*c
        a(f"v_cvt_pk_bf16_f32 v{dst}, v{A_}, v{A_+1}\nv_cvt_pk_bf16_f32 v{dst+1}, v{A_+2}, v{A_+3}")
        a(f"v_cvt_pk_bf16_f32 v{dst+2}, v{B_}, v{B_+1}\nv_cvt_pk_bf16_f32 v{dst+3}, v{B_+2}, v{B_+3}")
    for c in range(9):
        dst = 96 + 4*c
        a(f"v_permlane16_swap_b32 v{dst}, v{dst+2}\nv_permlane16_swap_b32 v{dst+1}, v{dst+3}")
        a(f"buffer_store_dwordx4 {vr(dst,4)}, v6, s[20:23], s32 offen offset:{256*c} sc1")

def g16_loader_setup(a, kind):
    p = G16[kind]
    g16_ids(a)
    if kind == 'o':
        a("s_mul_i32 s32, s6, 320\ns_mov_b32 s33, 0xe38e38f")
        for jj in range(5):
            a(f"v_add_u32 v9, s32, v8\nv_add_u32 v9, {64*jj}, v9\nv_mul_hi_u32 v10, v9, s33")
            a(f"v_mul_u32_u24 v11, 18, v10\nv_sub_u32 v11, v9, v11\nv_mul_u32_u24 v10, 1152, v10\nv_lshl_add_u32 v{2+jj}, v11, 4, v10")
            a(f"v_cmp_gt_u32 vcc, 1152, v9\nv_mov_b32 v10, {OOB}\ns_nop 1\nv_cndmask_b32 v{2+jj}, v10, v{2+jj}, vcc")
        make_srd(a, 8, 56, SIZES['wo']); make_ws_srd(a, 12, 4, 'ctx')
        a(f"s_mul_i32 s34, s28, {1024*1152}\ns_mul_i32 s32, s30, 288\ns_add_u32 s34, s34, s32")
        a("s_lshl_b32 s35, s29, 3\ns_lshl_b32 s32, s6, 1\ns_add_u32 s35, s35, s32\ns_lshl_b32 s35, s35, 17\ns_lshl_b32 s32, s28, 15\ns_add_u32 s35, s35, s32")
        a(f"s_mul_i32 s37, s6, 5120\ns_add_u32 s37, s37, {p['F']}\ns_lshl_b32 s38, s6, 12")
        a(f"s_lshl_b32 s32, s29, 2\ns_add_u32 s32, s32, s28\ns_add_u32 s32, s32, {C_CTX}\ns_lshl_b32 s32, s32, 7\nv_mov_b32 v7, s32")
        if SENT: a(f"s_add_u32 s32, s29, {C_PZ}\ns_lshl_b32 s32, s32, 7\nv_mov_b32 v9, s32\nv_cmp_gt_u32 vcc, 32, v8\ns_nop 1\nv_cndmask_b32 v7, v9, v7, vcc")
    else:
        a("v_lshrrev_b32 v2, 4, v8\nv_lshlrev_b32 v2, 15, v2\nv_and_b32 v9, 15, v8\nv_lshl_add_u32 v2, v9, 4, v2")
        a("s_and_b32 s32, s6, 1\ns_lshl_b32 s32, s32, 14\ns_lshr_b32 s33, s6, 1\ns_lshl_b32 s33, s33, 17\ns_add_u32 s32, s32, s33\nv_add_u32 v2, s32, v2")
        make_srd(a, 8, 60, SIZES['w2']); make_ws_srd(a, 12, 4, 'u')
        a(f"s_mul_i32 s34, s28, {1152*4096}\ns_lshl_b32 s32, s29, 8\ns_add_u32 s34, s34, s32")
        a(f"s_mul_i32 s35, s30, {9*147456}\ns_mul_i32 s32, s28, {36*1024}\ns_add_u32 s35, s35, s32")
        for jj in range(5):
            a(f"s_mul_i32 s32, s6, 5\ns_add_u32 s32, s32, {jj}\ns_lshr_b32 s33, s32, 1\ns_mul_i32 s33, s33, 147456")
            a(f"s_and_b32 s36, s32, 1\ns_lshl_b32 s36, s36, 10\ns_add_u32 s33, s33, s36\ns_add_u32 s33, s33, s35")
            a(f"s_cmp_lt_u32 s32, 18\ns_cselect_b32 s{46+jj}, s33, 0x7f000000")
        a(f"s_mul_i32 s37, s6, 4224\ns_add_u32 s37, s37, {p['F']}\ns_mul_i32 s38, s6, 5120")
        a(f"s_mul_i32 s32, s28, 6\ns_mul_i32 s33, s30, 3\ns_lshr_b32 s33, s33, 1\ns_add_u32 s32, s32, s33\ns_add_u32 s32, s32, {C_U}")
        a("v_and_b32 v7, 1, v8\nv_add_u32 v7, s32, v7\nv_lshlrev_b32 v7, 7, v7")

def g16_w(a, kind):
    if kind == 'o':
        a("s_add_u32 s32, s40, s37")
        for jj in range(5): a(f"s_add_u32 m0, s32, {1024*jj}\ns_nop 0\nbuffer_load_dwordx4 v{2+jj}, s[8:11], s34 offen lds")
        a(f"s_add_u32 s34, s34, {64*1152}")
    else:
        a("s_add_u32 s32, s40, s37")
        for jj in range(4): a(f"s_add_u32 m0, s32, {1056*jj}\ns_add_u32 s33, s34, {4096*jj}\nbuffer_load_dwordx4 v2, s[8:11], s33 offen lds")
        a(f"s_add_u32 s34, s34, {64*4096}")
def g16_f(a, kind):
    if kind == 'o':
        a("s_add_u32 m0, s40, s38\ns_add_u32 s33, s35, 0x20000")
        a("buffer_load_dwordx4 v1, s[12:15], s35 offen sc1 lds\nbuffer_load_dwordx4 v1, s[12:15], s35 offen offset:1024 sc1 lds")
        a("s_add_u32 s32, s40, s38\ns_add_u32 m0, s32, 2048\ns_nop 0")
        a("buffer_load_dwordx4 v1, s[12:15], s33 offen sc1 lds\nbuffer_load_dwordx4 v1, s[12:15], s33 offen offset:1024 sc1 lds")
        a("s_add_u32 s35, s35, 2048")
    else:
        a("s_add_u32 s32, s40, s38")
        for jj in range(5):
            a(f"s_add_u32 m0, s32, {1024*jj}\ns_nop 0\nbuffer_load_dwordx4 v1, s[12:15], s{46+jj} offen sc1 lds\ns_add_u32 s{46+jj}, s{46+jj}, 2048")

def g16_loader_wpro(a, kind):
    p = G16[kind]; SLOT = p['F'] + p['W']
    for i in range(3):
        a(f"s_mov_b32 s40, {i*SLOT}"); g16_w(a, kind)

def g2_wpf(a):
    if 'wpf' not in os.environ.get('XP', ''): return
    a(f"s_mul_i32 s32, s30, {64*4096}\ns_add_u32 s32, s32, s34")
    for i in range(4):
        a(f"s_add_u32 s36, s30, {3 + 4*i}\ns_cmp_lt_u32 s36, 18\ns_cselect_b32 s36, s32, 0x7f000000")
        for jj in range(4): a(f"s_add_u32 s33, s36, {(4*i*64 + jj)*4096}\nbuffer_load_dwordx4 v[12:15], v2, s[8:11], s33 offen")

def g16_loader_main(a, kind):
    p = G16[kind]; pre = 'Lg' + kind; SLOT = p['F'] + p['W']
    if 'gnodma' in os.environ.get('XP', ''): a("s_mov_b32 s10, 0\ns_mov_b32 s14, 0")
    stamp(a, 'l_' + kind + 'p0')
    if kind == 'y': a(f"s_cmp_lg_u32 s6, 0\ns_cbranch_scc1 {pre}_np")
    poll(a, 7, 32 if kind == 'o' else 9, 244)
    if kind == 'y':
        a.label(f"{pre}_np"); a("s_barrier")
    stamp(a, 'l_' + kind + 'p1')
    for i in range(3):
        a(f"s_mov_b32 s40, {i*SLOT}"); g16_f(a, kind)
    a(f"s_mov_b32 s40, {3*SLOT}\ns_mov_b32 s41, {p['NST'] - 3}")
    a(f"s_waitcnt vmcnt({p['nF']})\ns_branch {pre}_lb")
    a.label(f"{pre}_lloop")
    a("s_waitcnt vmcnt(9)")
    a.label(f"{pre}_lb")
    a("s_barrier")
    g16_f(a, kind); g16_w(a, kind)
    a(adv_slot(SLOT, 4))
    a(f"s_sub_u32 s41, s41, 1\ns_cmp_lg_u32 s41, 0\ns_cbranch_scc1 {pre}_lloop")
    a("s_waitcnt vmcnt(9)\ns_barrier\ns_waitcnt vmcnt(0)\ns_barrier\ns_barrier")

def tok_ids(a):
    a("s_bfe_u32 s32, s2, 0x20001\ns_lshl_b32 s32, s32, 2\ns_bfe_u32 s33, s2, 0x20003\ns_add_u32 s32, s32, s33")
    a("s_and_b32 s43, s2, 1\ns_lshl_b32 s43, s43, 3\ns_lshr_b32 s33, s2, 5\ns_add_u32 s43, s43, s33")
    a("s_lshl_b32 s42, s43, 4\ns_add_u32 s42, s42, s32\ns_mul_i32 s44, s42, 9216")
    a(f"v_mov_b32 v232, v0\nv_add_u32 v233, 512, v0\nv_cmp_gt_u32 vcc, 64, v0\nv_mov_b32 v234, 0x0ffffff0\ns_nop 1\nv_cndmask_b32 v233, v234, v233, vcc")
    a("v_lshlrev_b32 v236, 4, v232\nv_lshlrev_b32 v237, 4, v233\nv_mov_b32 v240, 0x3f80\nv_mov_b32 v241, 0x3f800000")

def partial_loads(a, srd, lab):
    a("s_mov_b32 s100, 0x4000")
    a.label(lab)
    for u in range(2):
        if u == 1: a(f"s_cmp_lg_u32 s3, 0\ns_cbranch_scc1 {lab}a")
        a("s_mov_b32 s32, s44")
        for s in range(4):
            a(f"buffer_load_dwordx4 {vr(96+16*u+4*s,4)}, v{236+u}, {sr(srd,4)}, s32 offen sc1")
            if s < 3: a(f"s_add_u32 s32, s32, {256*9216}")
    a.label(f"{lab}a")
    a("s_mov_b64 exec, -1\ns_waitcnt vmcnt(0)")
    if not SENT: return
    for u in range(2):
        if u == 1: a(f"s_cmp_lg_u32 s3, 0\ns_cbranch_scc1 {lab}b")
        b = 96 + 16*u
        a(f"v_max3_u32 v128, v{b}, v{b+1}, v{b+2}" if u == 0 else f"v_max3_u32 v128, v128, v{b}, v{b+1}\nv_max_u32 v128, v128, v{b+2}")
        for k in range(3, 15, 2): a(f"v_max3_u32 v128, v128, v{b+k}, v{b+k+1}")
        a(f"v_max_u32 v128, v128, v{b+15}")
    a.label(f"{lab}b")
    a(f"v_cmp_eq_u32 vcc, -1, v128\ns_sub_u32 s100, s100, 1\ns_cbranch_vccz {lab}d\ns_cmp_eq_u32 s100, 0\ns_cbranch_scc1 {lab}d")
    a(f"s_mov_b64 exec, vcc\ns_branch {lab}")
    a.label(f"{lab}d")

def partial_sum(a, u, dst):
    b = 96 + 16*u
    unpack8(a, b, dst)
    for s in range(1, 4):
        for d in range(4):
            a(f"v_dot2c_f32_bf16 v{dst+2*d}, v{b+4*s+d}, v240\nv_dot2c_f32_bf16 v{dst+2*d+1}, v{b+4*s+d}, v241")
    a("s_nop 2")

def ln_row(a, x, n, t0):
    m, v, t = t0, t0 + 1, t0 + 2
    a(f"v_add_f32 v{m}, v{x}, v{x+1}")
    for i in range(2, n): a(f"v_add_f32 v{m}, v{m}, v{x+i}")
    wave_allsum(a, m, t)
    a(f"v_mul_f32 v{m}, 0x3ae38e39, v{m}\nv_mov_b32 v{v}, 0")
    for i in range(n): a(f"v_sub_f32 v{t}, v{x+i}, v{m}\nv_fmac_f32 v{v}, v{t}, v{t}")
    wave_allsum(a, v, t)
    a(f"v_mul_f32 v{v}, 0x3ae38e39, v{v}")
    round_bf16(a, m); round_bf16(a, v)
    a(f"v_add_f32 v{v}, 0x3727c5ac, v{v}"); round_bf16(a, v)
    a(f"v_sqrt_f32 v{v}, v{v}\ns_nop 0"); round_bf16(a, v)
    a(f"v_rcp_f32 v{v}, v{v}")
    for i in range(n): a(f"v_sub_f32 v{x+i}, v{x+i}, v{m}")
    for i in range(n): a(f"v_mul_f32 v{x+i}, v{x+i}, v{v}")

LN_LDS = 4 * 29696

def ln2_pre(a):
    a("s_load_dwordx2 s[46:47], s[0:1], 0")
    tok_ids(a)
    make_ws_srd(a, 48, 4, 'mod')
    a("v_lshlrev_b32 v238, 2, v232\nv_lshlrev_b32 v239, 2, v233\nv_and_b32 v235, 63, v0\nv_lshlrev_b32 v235, 2, v235")
    a(f"s_mov_b32 s32, {2*2304}\nbuffer_load_dword v208, v238, s[48:51], s32 offen sc1\nbuffer_load_dword v209, v239, s[48:51], s32 offen sc1")
    a(f"s_mov_b32 s32, {3*2304}\ns_mov_b32 s33, {4*2304}")
    for i in range(9):
        a(f"buffer_load_dword v{210+i}, v235, s[48:51], s32 offen offset:{256*i} sc1\nbuffer_load_dword v{220+i}, v235, s[48:51], s33 offen offset:{256*i} sc1")
    a("v_lshlrev_b32 v230, 1, v232\nv_lshlrev_b32 v231, 1, v233")
    a("s_waitcnt lgkmcnt(0)")
    make_srd(a, 48, 46, SIZES['x'])
    a("s_mov_b32 s32, s44")
    for t in range(8):
        for u in range(2): a(f"buffer_load_short_d16_hi v{192+8*u+t}, v{230+u}, s[48:51], s32 offen" + (f" offset:{1152*(t%3)}" if t % 3 else ""))
        if t % 3 == 2: a("s_add_u32 s32, s32, 3456")
    a(f"v_add_u32 v238, {LN_LDS}, v238\ns_mul_i32 s32, s3, 2304\ns_add_u32 s32, s32, {LN_LDS}\nv_add_u32 v239, s32, v235")

def ln2_mid(a):
    for i in range(16): a(f"v_and_b32 v{192+i}, 0xffff0000, v{192+i}")
    for i in range(9):
        a(f"v_add_f32 v{220+i}, 1.0, v{220+i}"); round_bf16(a, 220 + i)
    for u in range(2):
        a(f"v_lshrrev_b32 v{230+u}, 5, v{232+u}\nv_lshlrev_b32 v{230+u}, 17, v{230+u}\nv_and_b32 v234, 31, v{232+u}\nv_lshl_add_u32 v{230+u}, v234, 4, v{230+u}")

def ln2_body(a):
    make_ws_srd(a, 48, 4, 'p3')
    partial_loads(a, 48, "Lln_sp")
    make_ws_srd(a, 48, 4, 'x1'); make_ws_srd(a, 52, 4, 'h2')
    stamp(a, 'ln_ld')
    for u in range(2):
        if u == 1: a("s_cmp_lg_u32 s3, 0\ns_cbranch_scc1 Lln_u1")
        partial_sum(a, u, 128)
        for t in range(8): a(f"v_fmac_f32 v{192+8*u+t}, v{208+u}, v{128+t}")
        for p in range(4): a(f"v_cvt_pk_bf16_f32 v{136+4*u+p}, v{192+8*u+2*p}, v{193+8*u+2*p}")
        unpack8(a, 136 + 4*u, 128)
        for t in range(8): a(f"ds_write_b32 v238, v{128+t} offset:{2304*t + 2048*u}")
        a(f"buffer_store_dwordx4 {vr(136+4*u,4)}, v{236+u}, s[48:51], s44 offen sc1")
    a.label("Lln_u1")
    a("s_waitcnt lgkmcnt(0)\ns_barrier")
    for i in range(9): a(f"ds_read_b32 v{96+i}, v239 offset:{256*i}")
    a("s_waitcnt lgkmcnt(0)")
    ln_row(a, 96, 9, 108)
    for i in range(9): a(f"v_fma_f32 v{96+i}, v{96+i}, v{220+i}, v{210+i}")
    ln_row(a, 96, 9, 108)
    for i in range(9): a(f"ds_write_b32 v239, v{96+i} offset:{256*i}")
    a("s_lshl_b32 s32, s42, 9\ns_waitcnt lgkmcnt(0)\ns_barrier")
    for u in range(2):
        if u == 1: a("s_cmp_lg_u32 s3, 0\ns_cbranch_scc1 Lln_u2")
        for t in range(8): a(f"ds_read_b32 v{96+8*u+t}, v238 offset:{2304*t + 2048*u}")
        a("s_waitcnt lgkmcnt(0)")
        for p in range(4): a(f"v_cvt_pk_bf16_f32 v{112+4*u+p}, v{96+8*u+2*p}, v{97+8*u+2*p}")
        a(f"buffer_store_dwordx4 {vr(112+4*u,4)}, v{230+u}, s[52:55], s32 offen sc1")
    a.label("Lln_u2")
    stamp(a, 'ln_st')
    a("s_waitcnt vmcnt(0)\ns_barrier")

def final_pre(a):
    a("s_load_dwordx2 s[46:47], s[0:1], 80\ns_load_dwordx2 s[52:53], s[0:1], 104")
    tok_ids(a)
    make_ws_srd(a, 48, 4, 'mod')
    a("v_lshlrev_b32 v238, 2, v232\nv_lshlrev_b32 v239, 2, v233")
    a(f"s_mov_b32 s32, {5*2304}\nbuffer_load_dword v208, v238, s[48:51], s32 offen sc1\nbuffer_load_dword v209, v239, s[48:51], s32 offen sc1")
    make_ws_srd(a, 48, 4, 'x1')
    for u in range(2): a(f"buffer_load_dwordx4 {vr(192+4*u,4)}, v{236+u}, s[48:51], s44 offen sc1")
    a("v_lshlrev_b32 v230, 1, v232\nv_lshlrev_b32 v231, 1, v233")
    a("s_waitcnt lgkmcnt(0)")
    a("s_lshl_b32 s32, s42, 4\ns_add_u32 s46, s46, s32\ns_addc_u32 s47, s47, 0\ns_load_dwordx4 s[36:39], s[46:47], 0")
    make_srd(a, 24, 52, SIZES['out'])
    a("s_waitcnt lgkmcnt(0)")

def final_mid(a):
    for p in range(4): a(f"s_lshl_b32 s{48+2*p}, s{36+p}, 16\ns_and_b32 s{49+2*p}, s{36+p}, 0xffff0000")
    for u in range(2):
        unpack8(a, 192 + 4*u, 210 + 8*u)
        for t in range(8): a(f"v_fmac_f32 v{210+8*u+t}, s{48+t}, v{208+u}")

def final_body(a):
    make_ws_srd(a, 48, 4, 'p6')
    partial_loads(a, 48, "Lfi_sp")
    for u in range(2):
        if u == 1: a("s_cmp_lg_u32 s3, 0\ns_cbranch_scc1 Lfi_u1")
        partial_sum(a, u, 128)
        for t in range(8): a(f"v_fmac_f32 v{210+8*u+t}, v{208+u}, v{128+t}")
        for p in range(4): a(f"v_cvt_pk_bf16_f32 v{136+4*u+p}, v{210+8*u+2*p}, v{211+8*u+2*p}")
        a("s_mov_b32 s32, s44")
        for t in range(8):
            op = "buffer_store_short" if t % 2 == 0 else "buffer_store_short_d16_hi"
            a(f"{op} v{136+4*u+t//2}, v{230+u}, s[24:27], s32 offen" + (f" offset:{1152*(t%3)}" if t % 3 else ""))
            if t % 3 == 2: a("s_add_u32 s32, s32, 3456")
    a.label("Lfi_u1")

M1_W = 17408; M1_SLOT = M1_W + 12288; M1_NST = 32; M1_X = 114688
def m1_ids(a):
    a("s_and_b32 s32, s2, 7\ns_mul_i32 s32, s32, 27\ns_lshr_b32 s33, s2, 3\ns_add_u32 s32, s32, s33")
    a("s_mul_hi_u32 s28, s32, 0x2aaaaaab\ns_mul_i32 s33, s28, 6\ns_sub_u32 s29, s32, s33")
    a("v_and_b32 v8, 63, v0\nv_lshlrev_b32 v1, 4, v8")

def m1_compute(a):
    pre = 'Lm1'
    ACC = 16; SET = [112, 132]
    a("s_load_dwordx2 s[24:25], s[0:1], 64")
    m1_ids(a)
    a("v_bfe_u32 v2, v8, 2, 2\nv_mul_u32_u24 v2, 1088, v2\nv_lshrrev_b32 v9, 5, v8\nv_lshl_add_u32 v2, v9, 9, v2")
    a("v_bfe_u32 v9, v8, 4, 1\nv_lshl_add_u32 v2, v9, 5, v2\nv_and_b32 v9, 3, v8\nv_lshl_add_u32 v2, v9, 3, v2")
    a("s_and_b32 s30, s3, 1\ns_lshr_b32 s31, s3, 1")
    a("s_lshl_b32 s32, s30, 7\ns_mul_i32 s33, s31, 8704\ns_add_u32 s32, s32, s33\nv_add_u32 v4, s32, v2")
    a(f"s_lshl_b32 s32, s31, 11\ns_add_u32 s32, s32, {M1_W}\nv_add_u32 v5, s32, v1")
    a("v_mov_b32 v2, v4\nv_mov_b32 v3, v5")
    for i in range(0, 96, 2): a(f"v_mov_b64 {vr(ACC+i,2)}, 0")
    a("s_waitcnt lgkmcnt(0)")
    m1_bias(a, 3)
    def reads(ks, st):
        b = SET[st]; r = []
        for d in range(3): r.append(f"ds_read_b128 {vr(b+8+4*d,4)}, v3 offset:{d*4096 + ks*1024}")
        for t in range(2):
            for e in range(2): r.append(f"ds_read_b64_tr_b16 {vr(b+4*t+2*e,2)}, v2 offset:{ks*4352 + e*256 + t*64}")
        return r
    def mfs(st):
        b = SET[st]
        return [mf(vr(ACC+16*(3*t+d),16), vr(b+4*t,4), vr(b+8+4*d,4), vr(ACC+16*(3*t+d),16)) for t in range(2) for d in range(3)]
    def front(m, r):
        out = []
        if 'gnocomp' in os.environ.get('XP', ''): return out
        if 'gnord' in os.environ.get('XP', ''): return m
        for i, x in enumerate(m):
            out.append(x); out += r[2*i:2*i+2]
        return out
    a(f"s_mov_b32 s40, 0\ns_mov_b32 s41, {M1_NST}")
    a("s_barrier\ns_barrier")
    stamp(a, 'm1_b0')
    for o in reads(0, 0): a(o)
    a.label(f"{pre}_cloop")
    a("s_waitcnt lgkmcnt(0)")
    for o in front(mfs(0), reads(1, 1)): a(o)
    a(adv_slot(M1_SLOT, 5))
    a("v_add_u32 v2, s40, v4\nv_add_u32 v3, s40, v5")
    a("s_waitcnt lgkmcnt(0)")
    for o in front(mfs(1), reads(0, 0)): a(o)
    a(f"s_sub_u32 s41, s41, 1\ns_cmp_lg_u32 s41, 0\ns_waitcnt lgkmcnt(0)\ns_barrier\ns_cbranch_scc1 {pre}_cloop" if False else
      f"s_sub_u32 s41, s41, 1\ns_cmp_lg_u32 s41, 0\ns_barrier\ns_cbranch_scc1 {pre}_cloop")
    stamp(a, 'm1_end')
    a("s_waitcnt lgkmcnt(0)")
    m1_xaddr(a, 3)
    a(f"s_cmp_eq_u32 s31, 0\ns_cbranch_scc1 {pre}_k0")
    for kh in (1, 0):
        if kh == 0: a.label(f"{pre}_k0")
        keep = ACC + 48 * kh; send = ACC + 48 * (1 - kh)
        a("s_nop 7")
        for i in range(12): a(f"ds_write_b128 v2, {vr(send+4*i,4)} offset:{1024*i}")
        for i in range(6): a(f"ds_write_b128 v4, {vr(keep+24+4*i,4)} offset:{1024*i}")
        a("s_waitcnt lgkmcnt(0)\ns_barrier")
        for i in range(6): a(f"ds_read_b128 {vr(send+4*i,4)}, v3 offset:{1024*i}")
        m1_gelu(a, keep, send, 0)
        if kh == 1: a(f"s_branch {pre}_cdone")
    a.label(f"{pre}_cdone")

def m1_xaddr(a, sw):
    a(f"s_mul_i32 s32, s{sw}, 12288\ns_add_u32 s32, s32, {M1_X}\nv_add_u32 v2, s32, v1")
    a(f"s_xor_b32 s33, s{sw}, 2\ns_mul_i32 s33, s33, 12288\ns_add_u32 s33, s33, {M1_X}\nv_add_u32 v3, s33, v1")
    a(f"s_and_b32 s32, s{sw}, 1\ns_mul_i32 s32, s32, 6144\ns_lshr_b32 s33, s{sw}, 1\ns_mul_i32 s33, s33, 37376\ns_add_u32 s32, s32, s33\nv_add_u32 v4, s32, v1")

def m1_bias(a, sw):
    make_srd(a, 16, 24, SIZES['b1'])
    a(f"s_lshl_b32 s32, s28, 2\ns_and_b32 s33, s{sw}, 1\ns_lshl_b32 s33, s33, 1\ns_add_u32 s32, s32, s33\ns_lshr_b32 s33, s{sw}, 1\ns_add_u32 s45, s32, s33")
    a("s_lshl_b32 s32, s45, 6\nv_lshrrev_b32 v9, 5, v8\nv_lshlrev_b32 v9, 3, v9")
    for q in range(4): a(f"buffer_load_dwordx2 {vr(152+2*q,2)}, v9, s[16:19], s32 offen offset:{16*q}")
    make_ws_srd(a, 20, 4, 'u')
    a("v_bfe_u32 v9, v8, 4, 1\nv_mul_u32_u24 v9, 147456, v9\nv_lshrrev_b32 v10, 5, v8\nv_lshl_add_u32 v9, v10, 8, v9")
    a("v_and_b32 v10, 15, v8\nv_lshl_add_u32 v6, v10, 4, v9")
    a(f"s_mul_i32 s39, s29, {6*147456}\ns_lshl_b32 s33, s45, 10\ns_add_u32 s39, s39, s33")

def m1_gelu(a, keep, oth, h0):
    a("s_waitcnt vmcnt(0)" if h0 == 0 else "")
    for q in range(4):
        for h in range(2):
            a(f"v_lshlrev_b32 v{160+4*q+2*h}, 16, v{152+2*q+h}\nv_and_b32 v{161+4*q+2*h}, 0xffff0000, v{152+2*q+h}")
    c1 = -2 * math.sqrt(2 / math.pi) * math.log2(math.e); c2 = c1 * 0.044715
    a(f"v_mov_b32 v10, {f32(c1)}\nv_mov_b32 v11, {f32(c2)}")
    for i in range(3):
        d, e = (h0 + i) >> 1, (h0 + i) & 1
        a(f"s_waitcnt lgkmcnt({4 - 2*i})")
        b = keep + 8*i; o = oth + 8*i
        for r in range(8): a(f"v_add_f32 v{b+r}, v{b+r}, v{o+r}")
        for r in range(8): a(f"v_add_f32 v{b+r}, v{b+r}, v{160+8*e+r}")
        for r in range(8): a(f"v_mul_f32 v{o+r}, v{b+r}, v{b+r}")
        for r in range(8): a(f"v_fma_f32 v{o+r}, v{o+r}, v11, v10")
        for r in range(8): a(f"v_mul_f32 v{o+r}, v{o+r}, v{b+r}")
        for r in range(8): a(f"v_exp_f32 v{o+r}, v{o+r}")
        for r in range(8): a(f"v_add_f32 v{o+r}, 1.0, v{o+r}")
        for r in range(8): a(f"v_rcp_f32 v{o+r}, v{o+r}")
        for r in range(8): a(f"v_mul_f32 v{b+r}, v{b+r}, v{o+r}")
        for p in range(4): a(f"v_cvt_pk_bf16_f32 v{o+p}, v{b+2*p}, v{b+2*p+1}")
        a(f"s_add_u32 s32, s39, {d*2*147456}\nbuffer_store_dwordx4 {vr(o,4)}, v6, s[20:23], s32 offen offset:{e*512} sc1")

def m1_loader_setup(a):
    m1_ids(a)
    a("v_lshrrev_b32 v2, 4, v8\nv_mul_u32_u24 v2, 36864, v2\nv_and_b32 v9, 15, v8\nv_lshl_add_u32 v2, v9, 4, v2")
    a(f"s_mul_i32 s32, s6, {16*9216}\nv_add_u32 v2, s32, v2")
    make_srd(a, 8, 58, SIZES['w1']); make_ws_srd(a, 12, 4, 'h2')
    a("s_lshl_b32 s34, s28, 8")
    a(f"s_mul_i32 s35, s29, {3*131072}\ns_lshl_b32 s32, s6, 10\ns_add_u32 s35, s35, s32")
    a(f"s_mul_i32 s37, s6, 4352\ns_lshl_b32 s38, s6, 10\ns_add_u32 s38, s38, {M1_W}")
    a(f"s_and_b32 s32, s2, 7\ns_lshl_b32 s32, s32, 4\ns_add_u32 s32, s32, {C_H2}\nv_and_b32 v7, 15, v8\nv_add_u32 v7, s32, v7\nv_lshlrev_b32 v7, 7, v7")
def m1_w(a):
    a("s_add_u32 s32, s40, s37")
    for jj in range(4): a(f"s_add_u32 m0, s32, {1088*jj}\ns_add_u32 s33, s34, {9216*jj}\nbuffer_load_dwordx4 v2, s[8:11], s33 offen lds")
    a(f"s_add_u32 s34, s34, {64*9216}")
def m1_f(a):
    a("s_add_u32 s32, s40, s38")
    for d in range(3): a(f"s_add_u32 m0, s32, {4096*d}\ns_add_u32 s33, s35, {131072*d}\nbuffer_load_dwordx4 v1, s[12:15], s33 offen sc1 lds")
    a("s_add_u32 s35, s35, 4096")
def m1_loader_main(a):
    if 'gnodma' in os.environ.get('XP', ''): a("s_mov_b32 s10, 0\ns_mov_b32 s14, 0")
    stamp(a, 'l_h2p0')
    a("s_cmp_lg_u32 s6, 0\ns_cbranch_scc1 Lm1_np")
    poll(a, 7, 16, 244)
    a.label("Lm1_np"); a("s_barrier")
    stamp(a, 'l_h2p1')
    for i in range(4):
        a(f"s_mov_b32 s40, {i*M1_SLOT}"); m1_f(a)
    a(f"s_mov_b32 s40, {4*M1_SLOT}")
    for w in (6, 10):
        a(f"s_waitcnt vmcnt({w})\ns_barrier"); m1_f(a); m1_w(a); a(adv_slot(M1_SLOT, 5))
    a(f"s_mov_b32 s41, {M1_NST - 6}")
    a.label("Lm1_lloop")
    a("s_waitcnt vmcnt(14)\ns_barrier"); m1_f(a); m1_w(a); a(adv_slot(M1_SLOT, 5))
    a("s_sub_u32 s41, s41, 1\ns_cmp_lg_u32 s41, 0\ns_cbranch_scc1 Lm1_lloop")
    for w in (14, 7, 0, 0): a(f"s_waitcnt vmcnt({w})\ns_barrier")
    a("s_barrier")

def sig_wave4(a, soff_code, soff, lab, vtmp):
    a(f"s_cmp_lg_u32 s6, 0\ns_cbranch_scc1 {lab}")
    a(soff_code); signal(a, soff, vtmp)
    a.label(lab)

def mega():
    a = Asm(); n = NAME + '_kernel'
    a("s_cmp_ge_u32 s2, 256\ns_cbranch_scc1 Lend")
    stamp(a, 'start')
    phase_kv(a)
    phase_attn_compute(a)
    a("s_mov_b32 s60, s33\ns_mov_b32 s61, s34")
    g16_compute_setup(a, 'o')
    a("s_waitcnt vmcnt(0)")
    stamp(a, 'at_dr')
    signal(a, 60, 9); signal(a, 61, 9)
    ln2_pre(a)
    g16_compute(a, 'o')
    stamp(a, 'o_st')
    a("s_waitcnt vmcnt(9)")
    ln2_mid(a)
    if not SENT: a("s_waitcnt vmcnt(0)")
    stamp(a, 'o_dr')
    a("s_barrier")
    stamp(a, 'S')
    if not SENT: a("s_barrier")
    a.label("Lln_shared")
    stamp(a, 'R')
    ln2_body(a)
    stamp(a, 'S2')
    a("s_cmp_ge_u32 s3, 4\ns_cbranch_scc1 Ll_after_ln")
    a("s_cmp_ge_u32 s2, 216\ns_cbranch_scc1 Lc_g2")
    m1_compute(a)
    stamp(a, 'm1_st')
    a("s_waitcnt vmcnt(0)")
    stamp(a, 'm1_dr')
    a("s_barrier")
    stamp(a, 'S3')
    a.label("Lc_g2")
    g16_compute_setup(a, 'y')
    final_pre(a)
    g16_compute(a, 'y')
    stamp(a, 'y_st')
    a("s_waitcnt vmcnt(9)")
    final_mid(a)
    if not SENT: a("s_waitcnt vmcnt(0)\ns_barrier\ns_barrier")
    stamp(a, 'R4')
    a("s_branch Lfinal")
    phase_attn_loader(a)
    g16_loader_setup(a, 'o')
    a("s_barrier\ns_barrier")
    g16_loader_wpro(a, 'o')
    g16_loader_main(a, 'o')
    ln2_pre(a)
    m1_loader_setup(a)
    a("s_waitcnt vmcnt(0)")
    ln2_mid(a)
    a("s_barrier")
    if not SENT: sig_wave4(a, f"s_add_u32 s32, s43, {C_P3}\ns_lshl_b32 s32, s32, 7", 32, "Ll_s1", 9)
    a("s_cmp_ge_u32 s2, 216\ns_cbranch_scc1 Ll_now1")
    for i in range(4):
        a(f"s_mov_b32 s40, {i*M1_SLOT}"); m1_w(a)
    a.label("Ll_now1")
    if not SENT:
        a("s_cmp_lg_u32 s6, 0\ns_cbranch_scc1 Ll_np1")
        a(f"s_add_u32 s32, s43, {C_P3}\ns_lshl_b32 s32, s32, 7\nv_mov_b32 v10, s32")
        poll(a, 10, 16, 244)
        a.label("Ll_np1")
        a("s_barrier")
    a("s_branch Lln_shared")
    a.label("Ll_after_ln")
    a("s_cmp_lg_u32 s6, 0\ns_cbranch_scc1 Ll_s2")
    a(f"s_add_u32 s32, s43, {C_H2}\ns_lshl_b32 s32, s32, 7\nv_lshlrev_b32 v10, 11, v8\nv_mov_b32 v9, 1\ns_mov_b64 exec, 0xff")
    a(f"buffer_atomic_add v9, v10, {SYNC}, s32 offen sc1\ns_mov_b64 exec, -1")
    a.label("Ll_s2")
    a("s_cmp_ge_u32 s2, 216\ns_cbranch_scc1 Ll_nom1")
    a("s_load_dwordx2 s[24:25], s[0:1], 64\ns_waitcnt lgkmcnt(0)")
    m1_bias(a, 6)
    m1_loader_main(a)
    a(f"s_mul_hi_u32 s32, s28, 0x1c71c71d\ns_mul_i32 s32, s32, 6\ns_add_u32 s32, s32, s29\ns_add_u32 s32, s32, {C_U}\ns_lshl_b32 s63, s32, 7")
    g16_loader_setup(a, 'y')
    g16_loader_wpro(a, 'y')
    a("v_mov_b32 v12, v2")
    m1_xaddr(a, 6)
    a("v_mov_b32 v2, v12\ns_barrier")
    for i in range(3):
        a(f"ds_read_b128 {vr(16+8*i,4)}, v4 offset:{2048*i}\nds_read_b128 {vr(20+8*i,4)}, v4 offset:{2048*i + 1024}")
    a("s_waitcnt lgkmcnt(0)")
    for i in range(6): a(f"ds_read_b128 {vr(40+4*i,4)}, v3 offset:{6144 + 1024*i}")
    m1_gelu(a, 16, 40, 3)
    a("s_waitcnt vmcnt(0)\ns_barrier")
    sig_wave4(a, "", 63, "Ll_s3", 9)
    a("s_branch Ll_g2")
    a.label("Ll_nom1")
    g16_loader_setup(a, 'y')
    g16_loader_wpro(a, 'y')
    if 'fastidle' not in os.environ.get('XP', ''):
        a("s_cmp_lg_u32 s6, 0\ns_cbranch_scc1 Ll_g2\ns_mov_b32 s100, 0x2000")
        a.label("Ll_idle")
        a(f"s_sleep 32\nbuffer_load_dword v244, v7, {SYNC}, 0 offen sc1\ns_waitcnt vmcnt(0)\nv_cmp_gt_u32 vcc, 1, v244\ns_sub_u32 s100, s100, 1")
        a("s_cbranch_vccz Ll_g2\ns_cmp_lg_u32 s100, 0\ns_cbranch_scc1 Ll_idle")
    a.label("Ll_g2")
    g16_loader_main(a, 'y')
    final_pre(a)
    a("s_waitcnt vmcnt(0)")
    final_mid(a)
    if not SENT:
        a("s_barrier")
        a("s_cmp_lg_u32 s6, 0\ns_cbranch_scc1 Ll_np2")
        a(f"s_add_u32 s32, s43, {C_P6}\ns_lshl_b32 s32, s32, 7\nv_mov_b32 v10, s32")
        signal(a, 32, 9)
        poll(a, 10, 16, 244)
        a.label("Ll_np2")
        a("s_barrier")
    a.label("Lfinal")
    final_body(a)
    if STAMP:
        a(f"s_cmp_lg_u32 s3, {STAMP_WAVE}\ns_cbranch_scc1 Lend\ns_waitcnt vmcnt(0)")
        a("s_memrealtime s[92:93]\ns_waitcnt lgkmcnt(0)")
        stamp_flush(a, 15, "Lstf")
    a.label("Lend")
    a("s_endpgm")
    return n, a

def build(path):
    n, a = mega()
    txt = a.text()
    hdr = open('cdna_kernels/' + NAME + '.s.ref').read().split('\n')
    top = [l for l in hdr if l.startswith(';') and '@launch' not in l][:19]
    out = '\n'.join(top) + '\n'
    if os.environ.get('LIST'):
        out += f"; @launch kernel={n} grid=(256,1,1) block=(512,1,1) lds={LDS_TOTAL}\n"
    else:
        out += f"; @launch grid=(256,1,1) block=(512,1,1) lds={LDS_TOTAL}\n"
    if STAMP: out += '; stamps: ' + ','.join(STAMP_LIST) + '\n'
    out += '.amdgcn_target "amdgcn-amd-amdhsa--gfx950"\n' + kernel_header(n) + txt + kernel_desc(n, 256, 102)
    open(path, 'w').write(out)

if __name__ == '__main__':
    build(sys.argv[1] if len(sys.argv) > 1 else 'm.s')
```

```python
NAME = 'adaLN_cond__compressed_kv_cla__mixer_token_mlp__prompt'

class Asm:
    def __init__(self):
        self.lines = []
    def __call__(self, s=''):
        for l in s.split('\n'):
            t = l.strip()
            if not t: continue
            self.lines.append(t if t.endswith(':') else '    ' + t)
    def label(self, s): self.lines.append(s + ':')
    def text(self): return '\n'.join(self.lines) + '\n'

def kernel_header(name):
    return f".text\n.globl {name}\n.p2align 8\n.type {name},@function\n{name}:\n"

def kernel_desc(name, vgpr, sgpr=102, accum=None):
    if accum is None: accum = (vgpr + 3) // 4 * 4
    return f""".section .rodata,"a"
.p2align 6
.amdhsa_kernel {name}
  .amdhsa_next_free_vgpr {vgpr}
  .amdhsa_next_free_sgpr {sgpr}
  .amdhsa_accum_offset {accum}
  .amdhsa_group_segment_fixed_size 0
  .amdhsa_kernarg_size 128
  .amdhsa_user_sgpr_count 2
  .amdhsa_user_sgpr_kernarg_segment_ptr 1
  .amdhsa_system_sgpr_workgroup_id_x 1
.end_amdhsa_kernel
"""

KA = dict(x=0, ckv=8, wq=16, wuk=24, wuv=32, wo=40, bx=48, w1=56, b1=64, w2=72, b2=80, c=88, wmod=96, out=104, dbg=112, ws=120)
SIZES = dict(x=2048*576*2, ckv=2048*512*2, wq=576*4096*2, wuk=512*4096*2, wuv=512*4096*2, wo=4096*576*2,
             w1=2048*4608*2, b1=4608*2, w2=4608*2048*2, b2=2048*2, c=576*2, wmod=576*3456*2, out=2048*576*2, dbg=256)

MB = 1 << 20
WS = {}
def _ws():
    off = 0
    for n, sz in [('sync', 512*128), ('mod', 3456*4), ('modp', 4*3456*4), ('h1', 2048*576*2), ('kf', 32*2048*128*2), ('vf', 32*2048*128*2), ('ctx', 2048*4096*2),
                  ('p3', 8*2048*576*2), ('x1', 2048*576*2), ('h2', 2048*576*2), ('u', 576*4608*2), ('p6', 4*2048*576*2), ('wo2', 4096*576*2)]:
        WS[n] = (off, sz)
        off += (sz + 0xffff) & ~0xffff
_ws()

def vr(b, n): return f"v[{b}:{b+n-1}]" if n > 1 else f"v{b}"
def sr(b, n): return f"s[{b}:{b+n-1}]" if n > 1 else f"s{b}"

def load_ptr(a, sdst, name):
    a(f"s_load_dwordx2 {sr(sdst,2)}, s[0:1], {KA[name]}")

def make_srd(a, srd, sptr, size, add=0):
    if add:
        a(f"s_add_u32 s{srd}, s{sptr}, {add}")
        a(f"s_addc_u32 s{srd+1}, s{sptr+1}, 0")
        a(f"s_and_b32 s{srd+1}, s{srd+1}, 0xffff")
    else:
        a(f"s_mov_b32 s{srd}, s{sptr}")
        a(f"s_and_b32 s{srd+1}, s{sptr+1}, 0xffff")
    a(f"s_mov_b32 s{srd+2}, {size}")
    a(f"s_mov_b32 s{srd+3}, 0x20000")

def make_ws_srd(a, srd, sws, name):
    make_srd(a, srd, sws, WS[name][1], WS[name][0])

def interleave(primary, secondary, start=0, every=1):
    out = []
    sec = list(secondary)
    for i, p in enumerate(primary):
        out.append(p)
        if i >= start and (i - start) % every == 0 and sec:
            out.append(sec.pop(0))
    out.extend(sec)
    return out

def spread(primary, secondary):
    n = len(primary); m = len(secondary)
    out = []; k = 0
    for i, p in enumerate(primary):
        out.append(p)
        tgt = (m * (i + 1) + n - 1) // n
        while k < tgt:
            out.append(secondary[k]); k += 1
    return out

def round_bf16(a, v, tmp=None):
    a(f"v_cvt_pk_bf16_f32 v{v}, v{v}, v{v}")
    a(f"v_and_b32 v{v}, 0xffff0000, v{v}")

def wave_allsum(a, v, t):
    for r in (8, 4, 2, 1):
        a("s_nop 1")
        a(f"v_add_f32_dpp v{v}, v{v}, v{v} row_ror:{r} row_mask:0xf bank_mask:0xf")
    a(f"v_mov_b32 v{t}, v{v}")
    a("s_nop 1")
    a(f"v_permlane16_swap_b32 v{v}, v{t}")
    a("s_nop 1")
    a(f"v_add_f32 v{v}, v{v}, v{t}")
    a(f"v_mov_b32 v{t}, v{v}")
    a("s_nop 1")
    a(f"v_permlane32_swap_b32 v{v}, v{t}")
    a("s_nop 1")
    a(f"v_add_f32 v{v}, v{v}, v{t}")

import os
STAMP = os.environ.get('STAMP', '') != ''
STAMP_WG = int(os.environ.get('STAMP_WG', '100'))
STAMP_LIST = os.environ.get('STAMP', '').split(',')
STAMP_WAVE = int(os.environ.get('STAMP_WAVE', '0'))
def stamp(a, name):
    if STAMP and name in STAMP_LIST:
        i = STAMP_LIST.index(name)
        assert i < 14
        a(f"{'s_memtime' if os.environ.get('STAMPC') and i else 's_memrealtime'} s[{64+2*i}:{65+2*i}]")
STAMP_WS = 200 << 20
def stamp_flush(a, n, lab, dword0=16):
    if not STAMP: return
    a("s_waitcnt vmcnt(0) lgkmcnt(0)")
    a(f"s_add_u32 s56, s4, {STAMP_WS}\ns_addc_u32 s57, s5, 0\ns_and_b32 s57, s57, 0xffff\ns_mov_b32 s58, 16384\ns_mov_b32 s59, 0x20000")
    a("s_lshl_b32 s60, s2, 6\nv_mov_b32 v1, s60")
    for i in range(n):
        a(f"v_mov_b32 v2, s{64+2*i}\nbuffer_store_dword v2, v1, s[56:59], 0 offen offset:{4*i}\ns_nop 1")
    if os.environ.get('STAMP_DBG'):
        a(f"s_cmp_lg_u32 s2, {STAMP_WG}\ns_cbranch_scc1 {lab}")
        a("s_load_dwordx2 s[60:61], s[0:1], 112\ns_waitcnt lgkmcnt(0)")
        a("s_mov_b32 s56, s60\ns_and_b32 s57, s61, 0xffff\ns_mov_b32 s58, 256\ns_mov_b32 s59, 0x20000\nv_mov_b32 v1, 0")
        for i in range(1, n):
            a(f"s_sub_u32 s62, s{64+2*i}, s64\nv_mov_b32 v2, s62\nbuffer_store_dword v2, v1, s[56:59], 0 offen offset:{4*i}\ns_nop 1")
    a.label(lab)

import struct
def f32(x): return "0x%08x" % struct.unpack('<I', struct.pack('<f', x))[0]

def unpack8(a, src, dst):
    for d in range(4):
        a(f"v_lshlrev_b32 v{dst+2*d}, 16, v{src+d}\nv_and_b32 v{dst+2*d+1}, 0xffff0000, v{src+d}")

def round_pairs(a, base, n, tmp):
    for p in range(0, n, 2):
        a(f"v_cvt_pk_bf16_f32 v{tmp}, v{base+p}, v{base+p+1}")
        a(f"v_lshlrev_b32 v{base+p}, 16, v{tmp}\nv_and_b32 v{base+p+1}, 0xffff0000, v{tmp}")

class Ops(Asm):
    def ops(self): return [l.strip() for l in self.lines]

C_H1, C_KV, C_CTX, C_P3, C_U, C_P6, C_H2 = 0, 16, 48, 176, 192, 216, 232
C_KV2 = 360
C_KV3 = 392
C_PZ = 424
C_WO = 440
SYNC = "s[96:99]"
_poll_id = [0]
def poll(a, voff, target, vtmp):
    i = _poll_id[0]; _poll_id[0] += 1
    ld = lambda k: f"buffer_load_dword v{vtmp+k}, v{voff}, {SYNC}, 0 offen sc1"
    if not os.environ.get('POLL3'):
        a("s_mov_b32 s100, 0x8000")
        a.label(f"Lpoll{i}")
        a(ld(0)); a("s_waitcnt vmcnt(0)")
        a(f"v_cmp_gt_u32 vcc, {target}, v{vtmp}")
        a(f"s_sub_u32 s100, s100, 1\ns_cbranch_vccz Lpolld{i}")
        a(f"s_cmp_eq_u32 s100, 0\ns_cbranch_scc1 Lpolld{i}\ns_sleep 1\ns_branch Lpoll{i}")
        a.label(f"Lpolld{i}")
        return
    a("s_mov_b32 s100, 0x4000")
    a(ld(0)); a("s_sleep 4"); a(ld(1)); a("s_sleep 4"); a(ld(2))
    a.label(f"Lpoll{i}")
    for k in range(3):
        a("s_waitcnt vmcnt(2)")
        a(f"v_cmp_gt_u32 vcc, {target}, v{vtmp+k}")
        a(f"s_nop 0\ns_cbranch_vccz Lpolld{i}")
        a(ld(k))
    a(f"s_sub_u32 s100, s100, 1\ns_cmp_lg_u32 s100, 0\ns_cbranch_scc1 Lpoll{i}")
    a.label(f"Lpolld{i}")
def signal(a, soff, vtmp):
    a(f"v_mov_b32 v{vtmp}, 1\ns_mov_b64 exec, 1")
    a(f"buffer_atomic_add v{vtmp}, off, {SYNC}, s{soff} sc1")
    a("s_mov_b64 exec, -1")
```

```python
import sys, math, os
from gen_common import *
import k_attn as AT
from k_attn import (period, rare_path, build_ci, qk_group, pv_group, rd, mf, ADV, W4, KPOS, VPOS, BIG, QSCALE, THRESH, WQ_BYTES,
                    V_LANE16, V_RD, V_L, V_NEGM, V_Y, V_YD, V_T0, LU, T, CI, S, P, FR, Q, Q2, O)

OOB = "0xffffff00"
SENT = ('sent' in os.environ.get('XP', '').split(','))
KORDER = [0, 1, 2, 3, 8, 9, 10, 11, 12, 13, 14, 15, 4, 5, 6, 7]
KREG = {k: (240 + 4*k if k < 4 else 128 + 4*(k - 8) if k >= 8 else 160 + 4*(k - 4)) for k in range(16)}
def kstore(k):
    return f"s_add_u32 s55, s57, {(k >> 2) * 65536}\nbuffer_store_dwordx4 {vr(KREG[k],4)}, v6, s[16:19], s55 offen offset:{(k & 3) * 1024}" + ("" if 'wb' in os.environ.get('XP', '').split(',') else " sc1")
LDS_TOTAL = 163840

def srd_off(a, srd, sptr, soff, add, size):
    a(f"s_add_u32 s{srd+2}, s{soff}, {add}\ns_add_u32 s{srd}, s{sptr}, s{srd+2}\ns_addc_u32 s{srd+1}, s{sptr+1}, 0\ns_and_b32 s{srd+1}, s{srd+1}, 0xffff")
    a(f"s_mov_b32 s{srd+2}, {size}\ns_mov_b32 s{srd+3}, 0x20000")

def phase_kv(a):
    A_BYTES = 32 * 1040; W_BYTES = 16 * 1088; SLOT = A_BYTES + 2 * W_BYTES
    GL = 2 * SLOT
    ML = GL + 2048
    XL = ML + 8192
    HAND = 131072
    ACC = 64; SET = [16, 40]
    NT = ' nt' if 'ntw' in os.environ.get('XP', '') else ''
    NT2 = ' nt' if 'ntg' in os.environ.get('XP', '') else ''
    a("s_load_dwordx8 s[28:35], s[0:1], 0\ns_load_dwordx2 s[36:37], s[0:1], 32\ns_load_dwordx4 s[40:43], s[0:1], 88\ns_load_dwordx4 s[44:47], s[0:1], 112")
    a("v_and_b32 v1, 63, v0\nv_lshrrev_b32 v2, 6, v0\ns_nop 1\nv_readfirstlane_b32 s3, v2")
    a("s_and_b32 s48, s2, 7\ns_lshr_b32 s49, s2, 3")
    a("s_and_b32 s55, s49, 3\ns_lshl_b32 s48, s48, 2\ns_add_u32 s48, s48, s55\ns_lshr_b32 s49, s49, 2")
    a("v_bfe_u32 v3, v1, 3, 2\nv_lshlrev_b32 v3, 13, v3\nv_lshrrev_b32 v4, 5, v1\nv_lshl_add_u32 v3, v4, 18, v3\nv_and_b32 v4, 7, v1\nv_lshl_add_u32 v3, v4, 4, v3")
    a("s_and_b32 s55, s3, 1\ns_lshl_b32 s55, s55, 12\ns_lshr_b32 s56, s3, 1\ns_lshl_b32 s56, s56, 19\ns_add_u32 s55, s55, s56")
    a("v_add_u32 v3, s55, v3")
    a("v_lshrrev_b32 v4, 4, v1\nv_lshlrev_b32 v4, 15, v4\nv_and_b32 v5, 15, v1\nv_lshl_add_u32 v4, v5, 4, v4")
    a("s_and_b32 s55, s3, 3\ns_lshl_b32 s55, s55, 17\nv_add_u32 v4, s55, v4")
    a("s_lshl_b32 s50, s49, 15\ns_lshl_b32 s51, s48, 8\ns_mul_i32 s52, s3, 4160")
    a(f"s_mul_i32 s53, s3, 4352\ns_add_u32 s53, s53, {A_BYTES}")
    a("s_and_b32 s61, s2, 3\ns_mul_i32 s55, s61, 144\nv_lshrrev_b32 v8, 3, v0\nv_add_u32 v8, s55, v8\nv_mul_u32_u24 v245, 6912, v8\nv_and_b32 v2, 7, v0")
    a("v_lshl_add_u32 v245, v2, 4, v245\ns_lshr_b32 s55, s2, 2\ns_lshl_b32 s55, s55, 7\nv_add_u32 v245, s55, v245\nv_lshlrev_b32 v8, 1, v8")
    a("s_lshl_b32 s60, s2, 3\ns_add_u32 s60, s60, s3\ns_mul_i32 s55, s60, 1152\nv_lshlrev_b32 v10, 4, v1\nv_add_u32 v10, s55, v10")
    a(f"v_cmp_gt_u32 vcc, 8, v1\nv_mov_b32 v15, {OOB}\nv_add_u32 v11, 1024, v10\nv_cndmask_b32 v11, v15, v11, vcc")
    a("s_waitcnt lgkmcnt(0)")
    a("s_mov_b32 s4, s46\ns_mov_b32 s5, s47")
    make_srd(a, 8, 30, SIZES['ckv'])
    a("s_cmp_lt_u32 s3, 4\ns_cselect_b32 s34, s34, s36\ns_cselect_b32 s35, s35, s37")
    make_srd(a, 12, 34, SIZES['wuk'])
    def dma_ops(slot):
        ops = []
        for jj in range(4):
            ops.append(f"s_add_u32 m0, s52, {slot*SLOT + 16*jj}\ns_nop 0\nbuffer_load_dwordx4 v3, s[8:11], s50 offen offset:{1024*jj} lds")
        for jj in range(4):
            ops.append(f"s_add_u32 m0, s53, {slot*SLOT + 1088*jj}\ns_add_u32 s55, s51, {8192*jj}\nbuffer_load_dwordx4 v4, s[12:15], s55 offen{NT} lds")
        return ops
    ADVD = f"s_add_u32 s50, s50, 128\ns_add_u32 s51, s51, {64*8192}"
    for st in range(2):
        for o in dma_ops(st): a(o)
        a(ADVD)
    CPF = 0 if 'nocpf' in os.environ.get('XP', '') else 1
    if CPF:
        a("s_getpc_b64 s[16:17]")
        a.label("Lpc")
        a("s_and_b32 s17, s17, 0xffff\ns_mov_b32 s18, Lend-Lpc\ns_mov_b32 s19, 0x20000")
        a("s_lshr_b32 s55, s2, 3\ns_lshl_b32 s55, s55, 3\ns_add_u32 s55, s55, s3\ns_lshl_b32 s55, s55, 9\nv_lshlrev_b32 v2, 3, v1")
        a("buffer_load_dwordx2 v[220:221], v2, s[16:19], s55 offen")
    a("s_lshl_b32 s63, s49, 15\ns_and_b32 s55, s48, 3\ns_lshl_b32 s55, s55, 10\ns_add_u32 s63, s63, s55")
    a("s_and_b32 s7, s49, 3\ns_lshl_b32 s7, s7, 13\ns_lshl_b32 s55, s48, 8\ns_add_u32 s7, s7, s55")
    a("s_bfe_u32 s55, s3, 0x10001\ns_lshr_b32 s56, s49, 2\ns_cmp_eq_u32 s55, s56\ns_cselect_b32 s7, s7, 0x7f000000")
    if 'nol2' in os.environ.get('XP', ''): a("s_mov_b32 s7, 0x7f000000\ns_mov_b32 s63, 0x7f000000")
    def l2pf(t):
        return [f"buffer_load_dwordx4 v[220:223], v3, s[8:11], s63 offen offset:{128*t}",
                f"s_add_u32 s56, s7, {t*64*8192}\nbuffer_load_dwordx4 v[220:223], v4, s[12:15], s56 offen{NT}"]
    l = Ops()
    make_srd(l, 16, 40, SIZES['c']); make_srd(l, 20, 42, SIZES['wmod']); make_srd(l, 24, 28, SIZES['x'])
    l("s_cmp_lt_u32 s2, 216\ns_cselect_b32 s22, s22, 0")
    l(f"s_mov_b32 s59, 0x7f000000\ns_cmp_lt_u32 s3, 2\ns_cselect_b32 s58, {128*6912}, s59\ns_cselect_b32 s59, 256, s59\ns_mov_b32 s55, {64*6912}")
    for i, (so, sc) in enumerate((('0', '0 offen'), ('s55', '0 offen offset:128'), ('s58', 's59 offen'))):
        l(f"buffer_load_dwordx4 {vr(192+4*i,4)}, v245, s[20:23], {so} offen{NT2}")
        l(f"buffer_load_ushort v{204+i}, v8, s[16:19], {sc}")
    l(f"buffer_load_dwordx4 v[224:227], v10, s[24:27], 0 offen\nbuffer_load_dwordx4 v[228:231], v11, s[24:27], 0 offen")
    make_ws_srd(l, 96, 4, 'sync')
    l(f"v_lshlrev_b32 v2, 2, v1\ns_lshl_b32 s55, s2, 8\nv_add_u32 v2, s55, v2\nv_mov_b32 v243, 0")
    l.lines.append("ZSTORE")
    make_srd(l, 36, 44, 256); make_ws_srd(l, 40, 4, 'modp'); make_srd(l, 16, 32, SIZES['wq']); make_ws_srd(l, 24, 4, 'h1'); make_ws_srd(l, 20, 4, 'mod')
    def sloads(role):
        return [(f"s_cmp_lg_u32 s3, 0\ns_cbranch_scc1 Lkv_nz\nbuffer_store_dword v243, v2, {SYNC}, 0 offen sc1\nLkv_nz:" if role == 0 else "s_nop 0")
                if o == "ZSTORE" else o for o in l.ops()]
    a("v_and_b32 v5, 7, v1\nv_mul_u32_u24 v5, 1040, v5\nv_bfe_u32 v6, v1, 3, 2\nv_lshl_add_u32 v5, v6, 7, v5")
    a("v_lshrrev_b32 v6, 5, v1\nv_lshl_add_u32 v5, v6, 4, v5")
    a("s_and_b32 s55, s3, 1\ns_mul_i32 s55, s55, 16640\nv_add_u32 v5, s55, v5")
    a("v_bfe_u32 v6, v1, 2, 2\nv_mul_u32_u24 v6, 1088, v6\nv_lshrrev_b32 v7, 5, v1\nv_lshl_add_u32 v6, v7, 9, v6")
    a("v_bfe_u32 v7, v1, 4, 1\nv_lshl_add_u32 v6, v7, 5, v6\nv_and_b32 v7, 3, v1\nv_lshl_add_u32 v6, v7, 3, v6")
    a(f"s_lshr_b32 s55, s3, 2\ns_mul_i32 s55, s55, {W_BYTES}\ns_bfe_u32 s56, s3, 0x10001\ns_lshl_b32 s56, s56, 7")
    a(f"s_add_u32 s55, s55, s56\ns_add_u32 s55, s55, {A_BYTES}\nv_add_u32 v6, s55, v6")
    a(f"v_lshrrev_b32 v9, 3, v0\nv_lshlrev_b32 v13, 9, v9\nv_lshlrev_b32 v9, 5, v9\nv_add_u32 v9, {ML}, v9\nv_lshlrev_b32 v12, 4, v0\nv_cmp_gt_u32 vcc, 288, v0\ns_nop 1\nv_cndmask_b32 v12, v15, v12, vcc")
    a("s_lshr_b32 s55, s2, 2\ns_mul_i32 s55, s55, 36864\ns_and_b32 s56, s2, 3\ns_lshl_b32 s56, s56, 7\ns_add_u32 s62, s55, s56")
    a(f"v_and_b32 v14, 7, v0\nv_lshl_add_u32 v13, v14, 4, v13\ns_lshl_b32 s55, s3, 4\ns_add_u32 s55, s55, {XL}\nv_lshlrev_b32 v14, 7, v1\nv_add_u32 v14, s55, v14")
    a(f"s_lshl_b32 s55, s3, 8\ns_add_u32 s55, s55, {GL}\nv_lshlrev_b32 v7, 5, v1\nv_add_u32 v7, s55, v7")
    for i in range(0, 128, 2): a(f"v_mov_b64 {vr(ACC+i,2)}, 0")

    pf = ["s_mul_i32 s55, s60, 2304\nv_lshlrev_b32 v2, 4, v1"] + [f"buffer_load_dwordx4 v[220:223], v2, s[16:19], s55 offen offset:{1024*i}" for i in range(3)]
    g = Ops()
    for i in range(3):
        c = 204 + i
        g(f"v_lshlrev_b32 v{c}, 16, v{c}\nv_mul_f32 v216, 0xbfb8aa3b, v{c}\nv_exp_f32 v216, v216\ns_nop 0\nv_add_f32 v216, 1.0, v216\nv_rcp_f32 v216, v216\ns_nop 0\nv_mul_f32 v{c}, v{c}, v216")
        round_bf16(g, c)
        for d in range(4):
            w = 192 + 4*i + d
            op = "v_mul_f32" if i == 0 else "v_fmac_f32"
            g(f"v_lshlrev_b32 v216, 16, v{w}\nv_and_b32 v217, 0xffff0000, v{w}\n{op} v{208+2*d}, v{c}, v216\n{op} v{209+2*d}, v{c}, v217")
    g("s_nop 1")
    for k in range(8): g(f"v_add_f32_dpp v{208+k}, v{208+k}, v{208+k} row_ror:8 row_mask:0xf bank_mask:0xf")
    for sw in ("v_permlane16_swap_b32", "v_permlane32_swap_b32"):
        for k in range(8): g(f"v_mov_b32 v{192+k}, v{208+k}")
        g("s_nop 0")
        for k in range(8): g(f"{sw} v{208+k}, v{192+k}")
        for k in range(8): g(f"v_add_f32 v{208+k}, v{208+k}, v{192+k}")
    gemv = g.ops() + ["s_mov_b64 exec, 0xff\nds_write_b128 v7, v[208:211]\nds_write_b128 v7, v[212:215] offset:16\ns_mov_b64 exec, -1"]
    mload = [f"v_lshlrev_b32 v10, 4, v0\nv_add_u32 v10, {ML}, v10"] + [f"s_mov_b32 s55, {13824*r}\nbuffer_load_dwordx4 {vr(192+4*r,4)}, v12, s[40:43], s55 offen sc1" for r in range(4)]
    q = Ops()
    for k in range(4): q(f"v_add_f32 v{192+k}, v{192+k}, v{196+k}\nv_add_f32 v{200+k}, v{200+k}, v{204+k}")
    for k in range(4): q(f"v_add_f32 v{192+k}, v{192+k}, v{200+k}")
    round_pairs(q, 192, 4, 2)
    q("v_cmp_lt_u32 vcc, 143, v0\ns_nop 1\nv_cndmask_b32 v196, 0, 1.0, vcc")
    for k in range(4): q(f"v_add_f32 v{192+k}, v{192+k}, v196")
    round_pairs(q, 192, 4, 2)
    q("ds_write_b128 v10, v[192:195]")
    msum = q.ops()
    x = Ops()
    unpack8(x, 224, 232); unpack8(x, 228, 240)
    x("v_add_f32 v216, v232, v233")
    for i in range(234, 248): x(f"v_add_f32 v216, v216, v{i}")
    wave_allsum(x, 216, 217)
    x("v_mul_f32 v216, 0x3ae38e39, v216\nv_cmp_gt_u32 vcc, 8, v1\nv_mov_b32 v219, 0\ns_nop 0\nv_cndmask_b32 v218, 0, v216, vcc")
    for i in range(16): x(f"v_sub_f32 v217, v{232+i}, v{216 if i < 8 else 218}\nv_fmac_f32 v219, v217, v217")
    wave_allsum(x, 219, 217)
    x("v_mul_f32 v219, 0x3ae38e39, v219")
    round_bf16(x, 216); round_bf16(x, 219)
    x("v_add_f32 v219, 0x3727c5ac, v219"); round_bf16(x, 219)
    x("v_sqrt_f32 v219, v219\ns_nop 0"); round_bf16(x, 219)
    x("v_rcp_f32 v219, v219\ns_nop 0")
    for i in range(16): x(f"v_sub_f32 v{232+i}, v{232+i}, v216")
    round_pairs(x, 232, 16, 217)
    for i in range(16): x(f"v_mul_f32 v{232+i}, v{232+i}, v219")
    for p in range(8): x(f"v_cvt_pk_bf16_f32 v{248+p}, v{232+2*p}, v{233+2*p}")
    x("ds_write_b128 v14, v[248:251]\nds_write_b128 v14, v[252:255] offset:8192")
    xst = x.ops()
    def h1fin(u):
        h = Ops()
        h(f"ds_read_b128 v[224:227], v10 offset:{XL - ML + 8192*u}")
        for k, off in enumerate((0, 16, 2304, 2320)): h(f"ds_read_b128 {vr(192+4*k,4)}, v9 offset:{off + 2048*u}")
        h("s_waitcnt lgkmcnt(0)")
        unpack8(h, 224, 232)
        for i in range(8): h(f"v_mul_f32 v{232+i}, v{232+i}, v{200+i}")
        round_pairs(h, 232, 8, 2)
        for i in range(8): h(f"v_add_f32 v{232+i}, v{232+i}, v{192+i}")
        for p in range(4): h(f"v_cvt_pk_bf16_f32 v{228+4*u+p}, v{232+2*p}, v{233+2*p}") if u == 0 else h(f"v_cvt_pk_bf16_f32 v{240+p}, v{232+2*p}, v{233+2*p}")
        h(f"s_add_u32 s55, s62, {32768*u}\nbuffer_store_dwordx4 {vr(228 if u == 0 else 240,4)}, v13, s[24:27], s55 offen sc1")
        return h.ops()

    def reads(ks, s):
        b = SET[s]; r = []
        for nn in range(2):
            for e in range(2): r.append(f"ds_read_b64_tr_b16 {vr(b+16+4*nn+2*e,2)}, v6 offset:{ks*4352 + e*256 + nn*64}")
        for m in range(4): r.append(f"ds_read_b128 {vr(b+4*m,4)}, v5 offset:{(m>>1)*8320 + (m&1)*512 + ks*32}")
        return r
    def mfmas(s, role):
        b = SET[s]; r = []
        for m in range(4):
            for nn in range(2):
                acc = vr(ACC + 16*(2*m+nn), 16); c = vr(b+4*m, 4); w = vr(b+16+4*nn, 4)
                r.append(mf(acc, w, c, acc) if role == 0 else mf(acc, c, w, acc))
        return r
    stamp(a, 'kv_pro')
    a(f"s_waitcnt vmcnt({8 + CPF})\ns_barrier")
    stamp(a, 'kv_b0')
    for o in reads(0, 0): a(o)
    a("s_cmp_lt_u32 s3, 4\ns_cbranch_scc0 Lkv_r1")
    for role in range(2):
        a.label(f"Lkv_r{role}")
        if role == 1 and 'p1' in os.environ.get('PR', ''): a("s_setprio 1")
        if role == 0 and 'p0' in os.environ.get('PR', ''): a("s_setprio 1")
        hx = len(xst) // 2
        for t in range(8):
            pl = ['s_cmp_lg_u32 s3, 0\ns_cbranch_scc1 Lkv_npl\nbuffer_load_dword v15, v11, s[36:39], 0 offen sc1\nLkv_npl:'] if role == 0 else []
            side = {0: l2pf(2) + l2pf(3) + sloads(role), 1: gemv, 2: xst[:hx], 3: xst[hx:], 4: ['s_nop 0'] * 10 + pl + pf,
                    5: mload + ['s_nop 0'] * 40 + ['s_waitcnt vmcnt(0)'] + msum, 6: h1fin(0) + ['s_nop 0'] * 46}.get(t, [])
            if 'noval' in os.environ.get('XP', '') and t in (1, 2, 3): side = [o for o in side if 'buffer' in o or 'ds_' in o]
            if 'novm' in os.environ.get('XP', '') and t == 4: side = [o if 'buffer' not in o else o.replace('s55 offen', 's100 offen') for o in side]; a('s_mov_b32 s100, 0x7f000000')
            g0 = 8 * (int(os.environ.get('DKS', '0')) + 1) if ((role == 1 or ('nospread' not in os.environ.get('XP', ''))) and t in (4, 5, 6)) else 0
            if 1 <= t <= 4: side = side + l2pf(t + 3)
            per = (len(side) + 23 - g0) // (24 - g0)
            if t == 1: a(f"s_waitcnt vmcnt({0 if 'nospread' in os.environ.get('XP', '') and role == 1 else 4})")
            if t == 2 and role == 0:
                a("s_cmp_lg_u32 s3, 0\ns_cbranch_scc1 Lkv_nofin")
                a(f"v_lshlrev_b32 v2, 2, v1\nv_add_u32 v15, {GL}, v2")
                for w in range(8): a(f"ds_read_b32 v{192+w}, v15 offset:{256*w}")
                a("s_mul_i32 s55, s61, 13824\ns_lshr_b32 s56, s2, 2\ns_lshl_b32 s56, s56, 8\ns_add_u32 s55, s55, s56\ns_cmp_lt_u32 s2, 216\ns_cselect_b32 s55, s55, 0x7f000000\ns_waitcnt lgkmcnt(0)")
                for w in range(1, 8): a(f"v_add_f32 v192, v192, v{192+w}")
                a("buffer_store_dword v192, v2, s[40:43], s55 offen sc1\nv_mov_b32 v2, 1\ns_lshl_b32 s55, s61, 6\nv_and_b32 v11, 3, v1\nv_lshlrev_b32 v11, 6, v11")
                a("s_waitcnt vmcnt(0)\ns_mov_b64 exec, 1\nbuffer_atomic_add v2, off, s[36:39], s55 sc1\ns_mov_b64 exec, -1")
                a.label("Lkv_nofin")
            if t in (5, 6) and role == 1:
                a(f"s_cmp_lg_u32 s3, 7\ns_cbranch_scc1 Lkv_nofm{t}")
                if t == 5:
                    a(f"s_lshl_b32 s55, s2, 6\nv_lshlrev_b32 v15, 2, v1\nv_add_u32 v15, s55, v15\nv_cmp_gt_u32 vcc, 16, v1\nv_mov_b32 v2, {OOB}\ns_cmp_lt_u32 s2, 216\ns_cselect_b64 vcc, vcc, 0\ns_nop 1\nv_cndmask_b32 v15, v2, v15, vcc")
                    for r in range(4): a(f"s_mov_b32 s55, {13824*r}\nbuffer_load_dword v{216+r}, v15, s[40:43], s55 offen sc1")
                else:
                    a("v_add_f32 v216, v216, v217\nv_add_f32 v218, v218, v219\nv_add_f32 v216, v216, v218")
                    round_bf16(a, 216)
                    a("buffer_store_dword v216, v15, s[20:23], 0 offen sc1")
                a.label(f"Lkv_nofm{t}")
            if t == 7 and role == 1:
                a("s_sub_u32 s6, s3, 4\ns_cmp_ge_u32 s3, 6\ns_cbranch_scc1 Lkv_nls")
                attn_loader_setup(a)
                a.label("Lkv_nls")
                a("s_cmp_lg_u32 s3, 7\ns_cbranch_scc1 Lkv_nl7\ns_lshr_b32 s31, s2, 5\ns_sub_u32 s30, 15, s31")
                a(f"v_and_b32 v3, 1, v1\nv_mov_b32 v4, s30\nv_mov_b32 v2, s31\nv_cmp_eq_u32 vcc, 0, v3\ns_nop 1\nv_cndmask_b32 v3, v2, v4, vcc\nv_lshlrev_b32 v3, 7, v3")
                a.label("Lkv_nl7")
            for ks in range(3):
                if t == 6 and role == 0 and ks == 2:
                    a("s_cmp_lg_u32 s3, 0\ns_cbranch_scc1 Lkv_noh2")
                    for o in h1fin(1): a(o)
                    a.label("Lkv_noh2")
                if t == 7 and role == 1 and ks == 1:
                    a(f"s_cmp_lg_u32 s3, 7\ns_cbranch_scc1 Lkv_nl8\nbuffer_load_dword v244, v3, {SYNC}, 0 offen sc1\nLkv_nl8:")
                a("s_waitcnt lgkmcnt(0)")
                m = mfmas(ks & 1, role); r = reads(ks + 1, (ks + 1) & 1)
                dm = dma_ops((t - 1) & 1) if ((role == 1 or ('nospread' not in os.environ.get('XP', ''))) and ks == int(os.environ.get('DKS', '0')) and 1 <= t <= 6) else None
                for i in range(8):
                    a(m[i])
                    for o in r[2*i:2*i+2]: a(o)
                    if dm and not ('nospread' not in os.environ.get('XP', '')): a(dm[i])
                    if dm and ('nospread' not in os.environ.get('XP', '')) and i % 2 == role: a(dm[4 + i // 2])
                    k = (ks * 8 + i - g0) * per
                    if k >= 0:
                        for o in side[k:k+per]:
                            if o != 's_nop 0' or t not in (4, 5, 6): a(o)
                if dm: a(ADVD)
            d = SLOT if t % 2 == 0 else -SLOT
            a(f"v_add_u32 v5, {d & 0xffffffff}, v5\nv_add_u32 v6, {d & 0xffffffff}, v6")
            a(f"s_waitcnt vmcnt({ {0: 12 + CPF, 1: 2, 2: 2, 3: 2, 4: 5}.get(t, 0) }) lgkmcnt(0)")
            if t == 4 and role == 0:
                a("s_cmp_lg_u32 s3, 0\ns_cbranch_scc1 Lkv_mpd\ns_mov_b32 s100, 0x8000")
                a.label("Lkv_mp")
                a("v_cmp_gt_u32 vcc, 64, v15\ns_sub_u32 s100, s100, 1\ns_cbranch_vccz Lkv_mpd\ns_cmp_eq_u32 s100, 0\ns_cbranch_scc1 Lkv_mpd")
                a("buffer_load_dword v15, v11, s[36:39], 0 offen sc1\ns_waitcnt vmcnt(0)\ns_branch Lkv_mp")
                a.label("Lkv_mpd")
            if t == 7 and role == 1:
                a(f"s_cmp_lg_u32 s3, 7\ns_cbranch_scc1 Lkv_np1\nv_cmp_gt_u32 vcc, 16, v244\nv_mov_b32 v247, {GL}\ns_nop 1")
                a("s_cmp_eq_u64 vcc, 0\ns_cselect_b32 s59, 1, 0\nv_mov_b32 v248, s59\nds_write_b32 v247, v248\ns_waitcnt lgkmcnt(0)")
                a.label("Lkv_np1")
            stamp(a, f'kw{t}')
            a("s_barrier")
            stamp(a, f'kv{t}')
            if t == 7 and role == 1:
                a(f"s_cmp_ge_u32 s3, 6\ns_cbranch_scc1 Lkv_nq0\nv_mov_b32 v247, {GL}\nds_read_b32 v248, v247\ns_waitcnt lgkmcnt(0)")
                a("v_readfirstlane_b32 s51, v248\ns_cmp_eq_u32 s51, 0\ns_cbranch_scc1 Lkv_nq0")
                for i in range(2): wq_part(a); h_part(a)
                a.label("Lkv_nq0")
            if t == 6 and role == 1:
                a("s_cmp_lg_u32 s3, 7\ns_cbranch_scc1 Lkv_ns1\ns_lshr_b32 s55, s2, 4\ns_lshl_b32 s55, s55, 7")
                signal(a, 55, 2)
                a.label("Lkv_ns1")
            m = mfmas(1, role); r = reads(0, 0) if t < 7 else []; dm = dma_ops(t & 1)
            for i in range(8):
                a(m[i])
                for o in r[2*i:2*i+2]: a(o)
                if t < 6 and role == 0 and not ('nospread' not in os.environ.get('XP', '')): a(dm[i])
                if t < 6 and ('nospread' not in os.environ.get('XP', '')) and i % 2 == role: a(dm[i // 2])
            if t < 6 and role == 0 and not ('nospread' not in os.environ.get('XP', '')): a(ADVD)
        stamp(a, 'kv_end')
        def pack(k, dst):
            src = ACC + 8*k
            for p in range(4): a(f"v_cvt_pk_bf16_f32 v{dst+p}, v{src+2*p}, v{src+2*p+1}")
        if role == 1:
            a("s_cmp_ge_u32 s3, 6\ns_cbranch_scc1 Lkv_sw")
            a(f"s_lshl_b32 s55, s6, 14\ns_add_u32 s55, s55, {HAND}\nv_add_u32 v12, s55, v{V_LANE16}\ns_nop 7")
            for k in range(16):
                dst = 16 + 4 * (k % 8)
                pack(k, dst)
                a(f"ds_write_b128 v12, {vr(dst,4)} offset:{1024*k}")
            a("s_waitcnt lgkmcnt(0)\ns_barrier")
            a("s_branch Lat_load")
            a.label("Lkv_sw")
        a("v_lshlrev_b32 v7, 4, v1")
        a("s_lshl_b32 s55, s48, 19\ns_lshl_b32 s56, s49, 13\ns_add_u32 s55, s55, s56")
        a("s_and_b32 s56, s3, 1\ns_lshl_b32 s56, s56, 18\ns_add_u32 s57, s55, s56")
        if role == 1:
            a(f"s_and_b32 s55, s3, 1\ns_lshl_b32 s55, s55, 14\ns_add_u32 s55, s55, {HAND}\nv_add_u32 v2, s55, v7")
            for k in range(16): pack(k, ACC + 4*k)
            make_ws_srd(a, 20, 4, 'vf')
            a("s_cmp_lg_u32 s3, 7\ns_cbranch_scc1 Lkv_np2\ns_cmp_lg_u32 s59, 0\ns_cbranch_scc1 Lkv_np2")
            stamp(a, 'l_h1p0')
            poll(a, 3, 16, 244)
            stamp(a, 'l_h1p1')
            a.label("Lkv_np2")
            a("s_barrier")
            for k in range(16): a(f"ds_read_b128 {vr(128+4*k,4)}, v2 offset:{1024*k}")
            a("s_branch Lat_sw")
        else:
            for k in KORDER: pack(k, KREG[k])
            make_ws_srd(a, 16, 4, 'kf')
            if 'nok' in os.environ.get('XP', ''): a("s_mov_b32 s18, 0")
            a("s_lshr_b32 s56, s3, 1\ns_lshl_b32 s56, s56, 12\ns_add_u32 s57, s57, s56")
            a("v_mov_b32 v6, v7")
            a("s_branch Lat_comp")

def attn_ids(a):
    a("s_and_b32 s28, s2, 7\ns_lshr_b32 s29, s2, 3")
    a("s_and_b32 s30, s29, 3\ns_lshl_b32 s28, s28, 2\ns_add_u32 s28, s28, s30")
    if 'longfirst' in os.environ.get('XP', ''): a("s_lshr_b32 s31, s29, 2\ns_sub_u32 s30, 15, s31")
    else: a("s_lshr_b32 s30, s29, 2\ns_sub_u32 s31, 15, s30")
    a(f"v_and_b32 v8, 63, v0\nv_lshlrev_b32 v{V_LANE16}, 4, v8")

def phase_attn_compute(a):
    a.label("Lat_comp")
    a("s_setprio 1" if 'pc' in os.environ.get('PR', '') else "s_setprio 0" if os.environ.get('PR') else "")
    attn_ids(a)
    a("v_bfe_u32 v2, v8, 2, 2\nv_mul_u32_u24 v2, 1088, v2\nv_lshrrev_b32 v9, 5, v8\nv_lshl_add_u32 v2, v9, 9, v2")
    a("v_bfe_u32 v9, v8, 4, 1\nv_lshl_add_u32 v2, v9, 5, v2\nv_and_b32 v9, 3, v8\nv_lshl_add_u32 v2, v9, 3, v2")
    a(f"s_lshl_b32 s32, s3, 11\ns_add_u32 s32, s32, {WQ_BYTES}\nv_add_u32 v3, s32, v{V_LANE16}")
    a("v_and_b32 v9, 31, v8\ns_lshl_b32 s32, s3, 5\nv_add_u32 v9, s32, v9\nv_lshrrev_b32 v10, 5, v8\nv_lshlrev_b32 v10, 2, v10")
    a(f"v_sub_u32 v9, v9, v10\nv_cvt_f32_i32 v9, v9\nv_add_f32 v9, 0.5, v9\nv_mul_f32 v{V_YD}, {f32(BIG)}, v9")
    QACC = lambda qt, t: (16 + 16*t) if qt == 0 else (O + 16*t)
    QSET = [FR, FR + 24]
    for i in range(0, 64, 2): a(f"v_mov_b64 {vr(16+i,2)}, 0\nv_mov_b64 {vr(O+i,2)}, 0")
    make_ws_srd(a, 20, 4, 'ctx')
    a(f"s_mov_b32 s46, {f32(QSCALE)}\ns_mov_b32 s47, {f32(QSCALE)}")
    def qreads(ks, st):
        b = QSET[st]; r = []
        for qt in range(2): r.append(f"ds_read_b128 {vr(b+16+4*qt,4)}, v3 offset:{qt*8192 + ks*1024}")
        for t in range(4):
            for e in range(2): r.append(f"ds_read_b64_tr_b16 {vr(b+4*t+2*e,2)}, v2 offset:{ks*4352 + e*256 + t*64}")
        return r
    def qmf(st):
        b = QSET[st]
        return [mf(vr(QACC(qt, t), 16), vr(b+4*t, 4), vr(b+16+4*qt, 4), vr(QACC(qt, t), 16)) for t in range(4) for qt in range(2)]
    def front(m, r):
        out = []
        for i, x in enumerate(m):
            out.append(x); out += r[2*i:2*i+2]
        return out
    a("s_mov_b32 s40, 0")
    stamp(a, 'q_pre')
    a("s_barrier\ns_barrier")
    stamp(a, 'q_b0')
    for o in qreads(0, 0): a(o)
    for c in range(18):
        a("s_waitcnt lgkmcnt(0)")
        ops = front(qmf(0), qreads(1, 1))
        if c < 16: ops.insert(20, kstore(c))
        for o in ops: a(o)
        d = AT.SLOT if c % 5 != 4 else -4 * AT.SLOT
        a(f"v_add_u32 v2, {d & 0xffffffff}, v2\nv_add_u32 v3, {d & 0xffffffff}, v3")
        if c == 9: a("s_waitcnt vmcnt(2)")
        if c == 17: a("s_waitcnt vmcnt(0)")
        a("s_waitcnt lgkmcnt(0)")
        for o in front(qmf(1), qreads(0, 0) if c < 17 else []): a(o)
        a("s_barrier")
        stamp(a, f'q{c}')
    a(f"s_mov_b32 s40, {3*AT.SLOT}")
    stamp(a, 'q_end')
    a("v_and_b32 v8, 63, v0\nv_bfe_u32 v9, v8, 4, 1\nv_lshlrev_b32 v9, 17, v9\nv_lshrrev_b32 v10, 5, v8\nv_lshl_add_u32 v9, v10, 8, v9")
    a(f"v_and_b32 v10, 15, v8\nv_lshl_add_u32 v{V_T0}, v10, 4, v9\nv_mov_b32 v{V_T0+1}, {f32(THRESH)}")
    a(ADV[1])
    a("s_nop 7")
    for qt in (1, 0):
        for t in range(4):
            for e in range(2):
                for p in range(4):
                    s_ = QACC(qt, t) + 8*e + 2*p
                    a(f"v_pk_mul_f32 {vr(s_,2)}, {vr(s_,2)}, s[46:47]")
                for p in range(4):
                    s_ = QACC(qt, t) + 8*e + 2*p
                    a(f"v_cvt_pk_bf16_f32 v{(Q, Q2)[qt] + 4*(2*t+e) + p}, v{s_}, v{s_+1}")
        if qt == 1:
            for i in range(8): a(rd(i, KPOS[1]))
    a("s_mov_b32 s42, s30\ns_mov_b32 s43, 0")
    a.label("Lat_qk0")
    a(f"s_lshl_b32 s32, s42, 7\nv_cvt_f32_u32 v{V_Y}, s32\nv_mul_f32 v{V_Y}, {f32(BIG)}, v{V_Y}\nv_add_f32 v{V_Y}, v{V_Y}, v{V_YD}")
    a(f"v_mov_b32 v{V_NEGM}, 0")
    for o in build_ci(): a(o)
    a(ADV[0]); a(ADV[1])
    z = [f"v_mov_b64 {vr(O+i,2)}, 0" for i in range(0, 64, 2)] + [f"v_mov_b64 {vr(P[1]+i,2)}, 0" for i in range(0, 8, 2)]
    z += [f"v_mov_b32 v{V_L}, 0", f"v_mov_b32 v{LU[1]}, 0"]
    m = qk_group(0)
    for i in range(8):
        if i == 0: a("s_waitcnt lgkmcnt(5)")
        if i % 4 == 3: a(W4)
        a(m[i]); a(rd(i, KPOS[0]))
        for o in z[5*i:5*i+5]: a(o)
    a("s_nop 7\ns_nop 1")
    s = S[0]; t = V_T0 + 2; d = V_T0 + 3
    a(f"v_max3_f32 v{d}, v{s}, v{s+1}, v{s+2}")
    for r in range(3, 15, 2): a(f"v_max3_f32 v{d}, v{d}, v{s+r}, v{s+r+1}")
    a(f"v_max_f32 v{d}, v{d}, v{s+15}")
    a(f"v_mov_b32 v{t}, v{d}\ns_nop 1\nv_permlane32_swap_b32 v{d}, v{t}\ns_nop 1")
    a(f"v_max_f32 v{d}, v{d}, v{t}")
    a(f"v_sub_f32 v{V_NEGM}, 0, v{d}")
    for r in range(16): a(f"v_sub_f32 v{s+r}, v{s+r}, v{d}")
    for o in build_ci(): a(o)
    sites = []
    a(f"s_cmp_eq_u32 s43, 0\ns_cbranch_scc1 Lat_ns0\ns_lshr_b32 s32, s28, 2\ns_add_u32 s32, s32, {C_CTX}\ns_lshl_b32 s33, s30, 3\ns_add_u32 s33, s33, s32\ns_lshl_b32 s33, s33, 7\ns_waitcnt vmcnt(0)")
    signal(a, 33, V_Y)
    a.label("Lat_ns0")
    a(f"v_mov_b32 v{V_Y}, v{V_YD}")
    a("s_cmp_eq_u32 s42, 0\ns_cbranch_scc0 Lat_plain_pre")
    a(f"v_add_f32 v{V_Y}, {f32(-64*BIG)}, v{V_Y}\ns_mov_b32 s41, 1\ns_branch Lat_rebuild")
    a.label("Lat_plain_pre")
    a("s_lshl_b32 s41, s42, 1\ns_sub_u32 s41, s41, 1")
    a.label("Lat_plain")
    a("s_barrier")
    sites.append(period(a, 0, 0, VPOS[0], KPOS[1]))
    sites.append(period(a, 1, 1, VPOS[1], KPOS[0], adv=True, tail_ops=["s_sub_u32 s41, s41, 1\ns_cmp_lg_u32 s41, 0"]))
    a("s_cbranch_scc1 Lat_plain")
    a("s_mov_b32 s41, 2")
    a.label("Lat_rebuild")
    a("s_barrier")
    sites.append(period(a, 0, 2, VPOS[0], KPOS[1], rebuild=True))
    sites.append(period(a, 1, 3, VPOS[1], KPOS[0], rebuild=True, adv=True, tail_ops=["s_sub_u32 s41, s41, 1\ns_cmp_lg_u32 s41, 0"]))
    a("s_cbranch_scc1 Lat_rebuild")
    a("s_barrier")
    sites.append(period(a, 0, 4, VPOS[0], VPOS[1]))
    sites.append(period(a, 1, 5, None, VPOS[0], qk=False, adv=True))
    a("s_barrier")
    m = pv_group(1)
    mv = [f"v_mov_b64 {vr(Q+i,2)}, {vr(Q2+i,2)}" for i in range(0, 32, 2)]
    for i in range(8):
        if i % 4 == 3: a(W4)
        a(m[i]); a(rd(i, KPOS[1]))
        for o in mv[2*i:2*i+2]: a(o)
    a("s_cmp_eq_u32 s43, 0\ns_cbranch_scc1 Lat_noE\ns_waitcnt lgkmcnt(0)\ns_barrier")
    a.label("Lat_noE")
    a(f"v_add_f32 v{V_L}, v{V_L}, v{LU[1]}")
    a(f"v_mov_b32 v{t}, v{V_L}\ns_nop 1\nv_permlane32_swap_b32 v{V_L}, v{t}\ns_nop 1\nv_add_f32 v{V_L}, v{V_L}, v{t}")
    a(f"v_rcp_f32 v{T}, v{V_L}\ns_nop 0\nv_mov_b32 v{T+1}, v{T}")
    a("s_lshl_b32 s32, s42, 20\ns_lshl_b32 s33, s3, 18\ns_add_u32 s32, s32, s33\ns_lshl_b32 s33, s28, 12\ns_add_u32 s32, s32, s33")
    a("s_nop 3")
    k = 0
    for tt in range(4):
        for e in range(2):
            src = O + 16*tt + 8*e; dst = S[0] + 4 * k; k += 1
            for p in range(4): a(f"v_pk_mul_f32 {vr(src+2*p,2)}, {vr(src+2*p,2)}, {vr(T,2)}")
            for p in range(4): a(f"v_cvt_pk_bf16_f32 v{dst+p}, v{src+2*p}, v{src+2*p+1}")
            a(f"buffer_store_dwordx4 {vr(dst,4)}, v{V_T0}, s[20:23], s32 offen offset:{tt*1024 + e*512} sc1")
    a("s_cmp_lg_u32 s43, 0\ns_cbranch_scc1 Lat_cend")
    a("s_mov_b32 s43, 1\ns_mov_b32 s42, s31\ns_branch Lat_qk0")
    for site, par in sites:
        a.label(f"Lat_rs{site}")
        a(f"s_call_b64 s[44:45], Lat_rare{par}\ns_branch Lat_rb{site}")
    rare_path(a, 0); rare_path(a, 1)
    a.label("Lat_cend")
    stamp(a, 'at_end')
    a(f"s_lshr_b32 s32, s28, 2\ns_add_u32 s32, s32, {C_CTX}\ns_lshl_b32 s60, s31, 3\ns_add_u32 s60, s60, s32\ns_lshl_b32 s60, s60, 7")

def wq_part(a):
    a("s_add_u32 s32, s40, s37")
    for jj in range(4): a(f"s_add_u32 m0, s32, {1088*jj}\ns_add_u32 s33, s34, {8192*jj}\nbuffer_load_dwordx4 v2, s[8:11], s33 offen lds")
    a(f"s_add_u32 s34, s34, {32*8192}")

def h_part(a):
    a("s_add_u32 s32, s40, s38")
    for qt in range(2):
        for b in range(2):
            a(f"s_add_u32 m0, s32, {qt*8192 + b*2048}\ns_add_u32 s33, s{35+qt}, {b*36864}")
            a(f"buffer_load_dwordx4 v{V_LANE16}, s[12:15], s33 offen sc1 lds\nbuffer_load_dwordx4 v{V_LANE16}, s[12:15], s33 offen offset:1024 sc1 lds")
    a("s_add_u32 s35, s35, 2048\ns_add_u32 s36, s36, 2048")
    a(ADV[0])

def attn_loader_setup(a):
    SLOT = AT.SLOT
    make_srd(a, 8, 32, SIZES['wq'])
    a("s_load_dwordx2 s[56:57], s[0:1], 40\ns_load_dwordx2 s[58:59], s[0:1], 56\ns_load_dwordx2 s[60:61], s[0:1], 72")
    attn_ids(a)
    a("v_lshrrev_b32 v2, 4, v8\nv_lshlrev_b32 v2, 15, v2\nv_and_b32 v3, 15, v8\nv_lshl_add_u32 v2, v3, 4, v2")
    a("s_lshl_b32 s32, s6, 17\nv_add_u32 v2, s32, v2")
    a("s_lshl_b32 s34, s28, 8\ns_mul_i32 s37, s6, 4352")
    make_ws_srd(a, 12, 4, 'h1')
    a("s_lshl_b32 s32, s28, 19")
    srd_off(a, 16, 4, 32, WS['kf'][0], 512*1024); srd_off(a, 20, 4, 32, WS['vf'][0], 512*1024)
    a("s_lshl_b32 s35, s30, 1\ns_add_u32 s35, s35, s6\ns_mul_i32 s35, s35, 73728")
    a("s_lshl_b32 s36, s31, 1\ns_add_u32 s36, s36, s6\ns_mul_i32 s36, s36, 73728")
    a(f"s_lshl_b32 s38, s6, 12\ns_add_u32 s38, s38, {WQ_BYTES}\ns_lshl_b32 s39, s6, 13\ns_mov_b32 s40, 0")
    a("s_sub_u32 s44, s39, 8192\ns_sub_u32 s45, s39, 24576")
    a("s_mov_b32 s46, s44\ns_mov_b32 s47, s45\ns_mov_b32 s48, 0\ns_lshl_b32 s49, s30, 1\ns_add_u32 s49, s49, 3")

def phase_attn_loader(a):
    a.label("Lat_load")
    a("s_setprio 1" if 'pl' in os.environ.get('PR', '') else "s_setprio 0" if os.environ.get('PR') else "")
    a("s_cmp_lg_u32 s51, 0\ns_cbranch_scc1 Lat_early")
    for i in range(2): wq_part(a); h_part(a)
    a.label("Lat_early")
    for i in range(2): wq_part(a); h_part(a)
    a("s_mov_b32 s41, 14")
    a.label("Lat_lq")
    a("s_waitcnt vmcnt(24)\ns_barrier")
    wq_part(a); h_part(a)
    a("s_sub_u32 s41, s41, 1\ns_cmp_lg_u32 s41, 0\ns_cbranch_scc1 Lat_lq")
    a("s_waitcnt vmcnt(24)\ns_barrier")
    def kvload():
        for (srd, so, lo) in ((16, 46, 0), (20, 47, 16384)):
            a(f"s_add_u32 s32, s40, s39\ns_add_u32 m0, s32, {lo}\ns_add_u32 s33, s{so}, 4096")
            for j in range(4): a(f"buffer_load_dwordx4 v{V_LANE16}, {sr(srd,4)}, s{so} offen offset:{1024*j} sc1 lds")
            a(f"s_add_u32 m0, s32, {lo + 4096}\ns_nop 0")
            for j in range(4): a(f"buffer_load_dwordx4 v{V_LANE16}, {sr(srd,4)}, s33 offen offset:{1024*j} sc1 lds")
        a("s_add_u32 s46, s46, 16384\ns_add_u32 s47, s47, 16384\ns_add_u32 s48, s48, 1")
        a("s_cmp_eq_u32 s48, s49\ns_cselect_b32 s46, s44, s46")
        a("s_add_u32 s32, s49, 1\ns_add_u32 s33, s45, 16384\ns_cmp_eq_u32 s48, s32\ns_cselect_b32 s47, s33, s47")
        a(ADV[0])
    kvload()
    a("s_waitcnt vmcnt(28)\ns_barrier")
    kvload()
    a("s_waitcnt lgkmcnt(0)\ns_lshl_b32 s52, s2, 1\ns_add_u32 s52, s52, s6\ns_mul_i32 s50, s52, 9216\ns_mul_i32 s52, s52, 36864\ns_mov_b32 s41, 0")
    make_srd(a, 24, 56, 0 if 'nopf' in os.environ.get('XP', '') else SIZES['wo'])
    a.label("Lat_lpf")
    a("s_waitcnt vmcnt(32)\ns_barrier")
    kvload()
    for g in range(3):
        for j in range(3): a(f"buffer_load_dwordx4 v[8:11], v{V_LANE16}, s[24:27], s50 offen offset:{1024*j}")
        a("s_add_u32 s50, s50, 3072")
    for r in range(2):
        a("s_waitcnt vmcnt(41)\ns_barrier")
        kvload()
    a("s_add_u32 s41, s41, 1")
    for (n, ptr) in ((1, 58), (5, 60)):
        a(f"s_and_b32 s33, s{ptr+1}, 0xffff\ns_cmp_eq_u32 s41, {n}\ns_cselect_b32 s24, s{ptr}, s24\ns_cselect_b32 s25, s33, s25\ns_cselect_b32 s50, s52, s50")
    if 'nopf' not in os.environ.get('XP', ''): a(f"s_mov_b32 s26, {SIZES['w1']}")
    a("s_cmp_lt_u32 s41, 9\ns_cbranch_scc1 Lat_lpf")
    a("s_mov_b32 s41, 8")
    a.label("Lat_lkv")
    a("s_waitcnt vmcnt(32)\ns_barrier")
    kvload()
    a("s_sub_u32 s41, s41, 1\ns_cmp_lg_u32 s41, 0\ns_cbranch_scc1 Lat_lkv")
    a("s_waitcnt vmcnt(32)\ns_barrier\ns_waitcnt vmcnt(16)\ns_barrier")
    a("s_waitcnt vmcnt(0) lgkmcnt(0)\ns_barrier")
    a("s_branch Lat_ldone")

    a.label("Lat_sw")
    a("s_setprio 1" if 'pl' in os.environ.get('PR', '') else "s_setprio 0" if os.environ.get('PR') else "")
    a("s_mov_b32 s62, s57")
    a("s_load_dwordx2 s[56:57], s[0:1], 40\ns_load_dwordx2 s[58:59], s[0:1], 56\ns_load_dwordx2 s[60:61], s[0:1], 72")
    def vstore(n):
        k = n & 15; m_, nn, e = k >> 2, (k >> 1) & 1, k & 1
        reg = 64 + 4*k if n < 16 else 128 + 4*k
        a(f"s_add_u32 s55, s62, {m_*65536 + e*4096 + (2048 if n < 16 else 0)}\nbuffer_store_dwordx4 {vr(reg,4)}, v7, s[20:23], s55 offen offset:{nn*1024}" + ("" if 'wb' in os.environ.get('XP', '').split(',') else " sc1"))
    order = [n for m_ in range(4) for n in list(range(4*m_, 4*m_ + 4)) + list(range(16 + 4*m_, 16 + 4*m_ + 4))]
    a(f"s_add_u32 s32, s48, {C_KV}\ns_lshl_b32 s32, s32, 7\nv_mov_b32 v3, s32\ns_add_u32 s33, s32, {(C_KV2 - C_KV) * 128}\nv_mov_b32 v5, s33")
    a("s_waitcnt lgkmcnt(0)\ns_barrier")
    a("s_cmp_eq_u32 s3, 7\ns_cbranch_scc1 Lat_w7")
    for c in range(30):
        if c < 16 and c != 13: vstore(order[2*c]); vstore(order[2*c + 1])
        if c == 9: a("s_waitcnt vmcnt(4)")
        if c == 17: a("s_waitcnt vmcnt(0)")
        if c in (10, 18): signal(a, 32 if c == 10 else 33, 4)
        if c == 26:
            a("v_and_b32 v6, 15, v1\nv_lshlrev_b32 v6, 7, v6")
            poll(a, 6, 16, 244)
        if c in (13, 21, 29):
            if c == 29: a(f"v_add_u32 v5, {(C_KV3 - C_KV2) * 128}, v5")
            stamp(a, 'l_kvp0' if c == 13 else 'l_kvq0')
            poll(a, 3 if c == 13 else 5, 8, 244)
            stamp(a, 'l_kvp1' if c == 13 else 'l_kvq1')
            if c == 13: vstore(order[2*c]); vstore(order[2*c + 1])
        a("s_barrier")
    a("s_branch Lat_w67")
    a.label("Lat_w7")
    for c in range(30):
        if 18 <= c < 26:
            for q in range(4): vstore(order[4*(c - 18) + q])
        if c == 27:
            a(f"s_waitcnt vmcnt(0)\ns_add_u32 s33, s32, {(C_KV3 - C_KV) * 128}")
            signal(a, 33, 4)
        a("s_barrier")
    a.label("Lat_w67")
    if SENT:
        tok_ids(a)
        a(f"s_mov_b32 s33, {WS['p6'][0]}\ns_cmp_eq_u32 s3, 6\ns_cselect_b32 s32, {WS['p3'][0]}, s33")
        srd_off(a, 24, 4, 32, 0, WS['p3'][1])
        a("v_mov_b32 v8, -1\nv_mov_b32 v9, -1\nv_mov_b32 v10, -1\nv_mov_b32 v11, -1\ns_mov_b32 s50, s44\ns_mov_b32 s41, 4")
        a.label("Lat_pz")
        for g in range(3):
            a("s_barrier")
            for j in range(3): a(f"buffer_store_dwordx4 v[8:11], v7, s[24:27], s50 offen offset:{1024*j} sc1")
            a(f"s_add_u32 s50, s50, {3072 if g < 2 else 256*9216 - 6144}")
        a("s_sub_u32 s41, s41, 1\ns_cmp_lg_u32 s41, 0\ns_cbranch_scc1 Lat_pz")
        a(f"s_barrier\ns_barrier\ns_waitcnt vmcnt(0)\ns_add_u32 s32, s43, {C_PZ}\ns_lshl_b32 s32, s32, 7")
        signal(a, 32, 4)
    a(f"s_mov_b32 s41, {51 - 30 - (14 if SENT else 0)}")
    a.label("Lat_pfd")
    a("s_barrier\ns_sub_u32 s41, s41, 1\ns_cmp_lg_u32 s41, 0\ns_cbranch_scc1 Lat_pfd")
    if 'wpf' in os.environ.get('XP', ''):
        make_srd(a, 24, 56, SIZES['wo'])
        a(f"s_bfe_u32 s50, s2, 0x20001\ns_mul_i32 s50, s50, {1024*1152}\ns_lshr_b32 s32, s2, 3\ns_lshl_b32 s32, s32, 1\ns_and_b32 s33, s3, 1\ns_add_u32 s32, s32, s33")
        a("s_mul_i32 s32, s32, 18432\ns_add_u32 s50, s50, s32")
        for g in range(6):
            for j in range(3): a(f"buffer_load_dwordx4 v[8:11], v7, s[24:27], s50 offen offset:{1024*j}")
            a("s_add_u32 s50, s50, 3072")
    a("s_cmp_lg_u32 s3, 6\ns_cbranch_scc1 Lat_nc0")
    a(f"s_lshr_b32 s32, s2, 5\ns_lshl_b32 s32, s32, 3\ns_and_b32 s33, s2, 7\ns_add_u32 s32, s32, s33\ns_add_u32 s32, s32, {C_CTX}\ns_lshl_b32 s32, s32, 7\nv_mov_b32 v3, s32")
    poll(a, 3, 16, 244)
    a.label("Lat_nc0")
    a("s_barrier\ns_barrier")
    a("s_waitcnt vmcnt(0)")
    a.label("Lat_ldone")

def adv_slot(slot, nslot):
    return f"s_add_u32 s40, s40, {slot}\ns_cmp_eq_u32 s40, {slot*nslot}\ns_cselect_b32 s40, 0, s40"

G16 = {'o': dict(F=16384, W=20480, NST=16, nF=4, nW=5), 'y': dict(F=20480, W=16896, NST=18, nF=5, nW=4)}

def g16_ids(a, kind):
    if kind == 'o':
        a("s_and_b32 s28, s2, 7\ns_lshr_b32 s29, s2, 5\ns_bfe_u32 s30, s2, 0x20003\nv_and_b32 v8, 63, v0\nv_lshlrev_b32 v1, 4, v8")
        return
    a("s_bfe_u32 s28, s2, 0x20001")
    a("s_and_b32 s29, s2, 1\ns_lshl_b32 s29, s29, 3\ns_lshr_b32 s30, s2, 5\ns_add_u32 s29, s29, s30")
    a("s_bfe_u32 s30, s2, 0x20003")
    a("v_and_b32 v8, 63, v0\nv_lshlrev_b32 v1, 4, v8")

def g16_compute_setup(a, kind):
    p = G16[kind]
    g16_ids(a, kind)
    a("v_bfe_u32 v2, v8, 4, 1\nv_lshlrev_b32 v2, 2, v2\nv_bfe_u32 v9, v8, 2, 2\nv_add_u32 v2, v2, v9")
    a("v_lshrrev_b32 v9, 5, v8\nv_and_b32 v10, 3, v8")
    if kind == 'o':
        a("v_lshl_add_u32 v2, v9, 4, v2\nv_mul_u32_u24 v2, 288, v2\nv_lshl_add_u32 v2, v10, 3, v2")
        a(f"v_add_u32 v4, {p['F']}, v2\ns_lshl_b32 s35, s3, 12\nv_add_u32 v5, s35, v1")
    else:
        a("v_mul_u32_u24 v2, 1056, v2\nv_lshl_add_u32 v2, v9, 9, v2\nv_lshl_add_u32 v2, v10, 3, v2")
        a(f"s_lshl_b32 s35, s3, 6\ns_add_u32 s35, s35, {p['F']}\nv_add_u32 v4, s35, v2\nv_mov_b32 v5, v1")
    a("v_mov_b32 v2, v4\nv_mov_b32 v3, v5")
    for i in range(0, 72, 2): a(f"v_mov_b64 {vr(16+i,2)}, 0")
    make_ws_srd(a, 20, 4, 'p3' if kind == 'o' else 'p6')
    a("v_bfe_u32 v6, v8, 4, 1\nv_lshlrev_b32 v6, 1, v6\nv_lshrrev_b32 v9, 5, v8\nv_add_u32 v6, v6, v9\nv_mul_u32_u24 v6, 9216, v6\nv_and_b32 v9, 15, v8\nv_lshl_add_u32 v6, v9, 4, v6")

def g16_compute(a, kind):
    p = G16[kind]; pre = 'Lg' + kind; SLOT = p['F'] + p['W']
    ACC = 16; SET = [96, 144]
    def reads(ks, st):
        b = SET[st]; r = []
        if kind == 'o':
            for t in range(2): r.append(f"ds_read_b128 {vr(b+4*t,4)}, v3 offset:{t*2048 + ks*1024}")
            for c in range(9):
                for e in range(2): r.append(f"ds_read_b64_tr_b16 {vr(b+8+4*c+2*e,2)}, v2 offset:{(32*ks + 8*e)*288 + c*32}")
        else:
            for t in range(2):
                for e in range(2): r.append(f"ds_read_b64_tr_b16 {vr(b+4*t+2*e,2)}, v2 offset:{8*ks*1056 + e*256 + t*32}")
            for c in range(9): r.append(f"ds_read_b128 {vr(b+8+4*c,4)}, v3 offset:{c*2048 + ks*1024}")
        return r
    def mfs(st):
        b = SET[st]
        return [f"v_mfma_f32_16x16x32_bf16 {vr(ACC+4*(9*t+c),4)}, {vr(b+4*t,4)}, {vr(b+8+4*c,4)}, {vr(ACC+4*(9*t+c),4)}"
                for c in range(9) for t in range(2)]
    def kstep(m, r, extra):
        n = len(r); NL = 6 if kind == 'o' else 3
        take = [(n * (i + 1)) // 16 - (n * i) // 16 if i < 16 else 0 for i in range(18)]
        k = 0
        a(f"s_waitcnt lgkmcnt({NL})")
        for i, x in enumerate(m):
            if i == 12: a(f"s_waitcnt lgkmcnt({min(15, k)})")
            a(x)
            for o in r[k:k+take[i]]: a(o)
            k += take[i]
            for o in extra.get(i, []): a(o)
    a(f"s_mov_b32 s40, 0\ns_mov_b32 s41, {p['NST'] if kind == 'y' else 8}\ns_mov_b32 s45, {0 if kind == 'o' else 1}")
    a("s_lshl_b32 s34, s28, 8\ns_lshl_b32 s33, s29, 4\ns_add_u32 s34, s34, s33\ns_lshl_b32 s33, s3, 2\ns_add_u32 s34, s34, s33")
    a("s_mul_i32 s34, s34, 9216\ns_mul_i32 s33, s30, 2304\ns_add_u32 s34, s34, s33")
    if kind == 'y': a("s_barrier")
    a("s_barrier")
    stamp(a, kind + '_b0')
    for o in reads(0, 0): a(o)
    a(f"s_branch {pre}_cin")
    a.label(f"{pre}_cloop")
    a("s_barrier")
    a.label(f"{pre}_cin")
    kstep(mfs(0), reads(1, 1), {14: [adv_slot(SLOT, 4)], 16: ["v_add_u32 v2, s40, v4"], 17: ["v_add_u32 v3, s40, v5"]})
    kstep(mfs(1), reads(0, 0), {16: ["s_sub_u32 s41, s41, 1"], 17: ["s_cmp_lg_u32 s41, 0"]})
    a(f"s_cbranch_scc1 {pre}_cloop")
    a.label(f"{pre}_cend")
    stamp(a, kind + '_end')
    a("s_nop 4")
    for c in range(9):
        A_ = ACC + 4*c; B_ = ACC + 4*(9 + c)
        a(f"v_cvt_pk_bf16_f32 v{A_}, v{A_}, v{A_+1}\nv_cvt_pk_bf16_f32 v{A_+1}, v{A_+2}, v{A_+3}")
        a(f"v_cvt_pk_bf16_f32 v{A_+2}, v{B_}, v{B_+1}\nv_cvt_pk_bf16_f32 v{A_+3}, v{B_+2}, v{B_+3}")
    for c in range(9):
        dst = ACC + 4*c
        a(f"v_permlane16_swap_b32 v{dst}, v{dst+2}\nv_permlane16_swap_b32 v{dst+1}, v{dst+3}")
        a(f"buffer_store_dwordx4 {vr(dst,4)}, v6, s[20:23], s34 offen offset:{256*c} sc1")
    if kind == 'o':
        a(f"s_cmp_lg_u32 s45, 0\ns_cbranch_scc1 {pre}_cfin\ns_mov_b32 s45, 1\ns_mov_b32 s41, 8\ns_add_u32 s34, s34, {128*9216}")
        for i in list(range(36, 72, 2)) + list(range(0, 36, 2)): a(f"v_mov_b64 {vr(16+i,2)}, 0")
        a(f"s_branch {pre}_cloop")
        a.label(f"{pre}_cfin")
    a("s_waitcnt lgkmcnt(0)")

def g16_loader_setup(a, kind):
    p = G16[kind]
    g16_ids(a, kind)
    if kind == 'o':
        a("s_mul_i32 s32, s6, 320\ns_mov_b32 s33, 0xe38e38f")
        for jj in range(5):
            a(f"v_add_u32 v9, s32, v8\nv_add_u32 v9, {64*jj}, v9\nv_mul_hi_u32 v10, v9, s33")
            a(f"v_mul_u32_u24 v11, 18, v10\nv_sub_u32 v11, v9, v11\nv_mul_u32_u24 v10, 1152, v10\nv_lshl_add_u32 v{2+jj}, v11, 4, v10")
            a(f"v_cmp_gt_u32 vcc, 1152, v9\nv_mov_b32 v10, {OOB}\ns_nop 1\nv_cndmask_b32 v{2+jj}, v10, v{2+jj}, vcc")
        make_srd(a, 8, 56, SIZES['wo']); make_ws_srd(a, 12, 4, 'ctx')
        a(f"s_mul_i32 s34, s28, {512*1152}\ns_mul_i32 s32, s30, 288\ns_add_u32 s34, s34, s32")
        a("s_lshl_b32 s35, s29, 3\ns_lshl_b32 s32, s6, 1\ns_add_u32 s35, s35, s32\ns_lshl_b32 s35, s35, 17\ns_lshl_b32 s32, s28, 14\ns_add_u32 s35, s35, s32")
        a(f"s_mul_i32 s37, s6, 5120\ns_add_u32 s37, s37, {p['F']}\ns_lshl_b32 s38, s6, 12")
        a(f"s_lshl_b32 s32, s29, 3\ns_add_u32 s32, s32, s28\ns_add_u32 s32, s32, {C_CTX + 64}\ns_lshl_b32 s32, s32, 7\nv_mov_b32 v7, s32")
        if SENT: a(f"s_add_u32 s32, s29, {C_PZ}\ns_lshl_b32 s32, s32, 7\nv_mov_b32 v9, s32\nv_cmp_gt_u32 vcc, 32, v8\ns_nop 1\nv_cndmask_b32 v7, v9, v7, vcc")
    else:
        a("v_lshrrev_b32 v2, 4, v8\nv_lshlrev_b32 v2, 15, v2\nv_and_b32 v9, 15, v8\nv_lshl_add_u32 v2, v9, 4, v2")
        a("s_and_b32 s32, s6, 1\ns_lshl_b32 s32, s32, 14\ns_lshr_b32 s33, s6, 1\ns_lshl_b32 s33, s33, 17\ns_add_u32 s32, s32, s33\nv_add_u32 v2, s32, v2")
        make_srd(a, 8, 60, SIZES['w2']); make_ws_srd(a, 12, 4, 'u')
        a(f"s_mul_i32 s34, s28, {1152*4096}\ns_lshl_b32 s32, s29, 8\ns_add_u32 s34, s34, s32")
        a(f"s_mul_i32 s35, s30, {9*147456}\ns_mul_i32 s32, s28, {36*1024}\ns_add_u32 s35, s35, s32")
        for jj in range(5):
            a(f"s_mul_i32 s32, s6, 5\ns_add_u32 s32, s32, {jj}\ns_lshr_b32 s33, s32, 1\ns_mul_i32 s33, s33, 147456")
            a(f"s_and_b32 s36, s32, 1\ns_lshl_b32 s36, s36, 10\ns_add_u32 s33, s33, s36\ns_add_u32 s33, s33, s35")
            a(f"s_cmp_lt_u32 s32, 18\ns_cselect_b32 s{46+jj}, s33, 0x7f000000")
        a(f"s_mul_i32 s37, s6, 4224\ns_add_u32 s37, s37, {p['F']}\ns_mul_i32 s38, s6, 5120")
        a(f"s_mul_i32 s32, s28, 6\ns_mul_i32 s33, s30, 3\ns_lshr_b32 s33, s33, 1\ns_add_u32 s32, s32, s33\ns_add_u32 s32, s32, {C_U}")
        a("v_and_b32 v7, 1, v8\nv_add_u32 v7, s32, v7\nv_lshlrev_b32 v7, 7, v7")

def g16_w(a, kind):
    if kind == 'o':
        a("s_add_u32 s32, s40, s37")
        for jj in range(5): a(f"s_add_u32 m0, s32, {1024*jj}\ns_nop 0\nbuffer_load_dwordx4 v{2+jj}, s[8:11], s34 offen lds")
        a(f"s_add_u32 s34, s34, {64*1152}")
    else:
        a("s_add_u32 s32, s40, s37")
        for jj in range(4): a(f"s_add_u32 m0, s32, {1056*jj}\ns_add_u32 s33, s34, {4096*jj}\nbuffer_load_dwordx4 v2, s[8:11], s33 offen lds")
        a(f"s_add_u32 s34, s34, {64*4096}")
def g16_f(a, kind):
    if kind == 'o':
        a("s_add_u32 m0, s40, s38\ns_add_u32 s33, s35, 0x20000")
        a("buffer_load_dwordx4 v1, s[12:15], s35 offen sc1 lds\nbuffer_load_dwordx4 v1, s[12:15], s35 offen offset:1024 sc1 lds")
        a("s_add_u32 s32, s40, s38\ns_add_u32 m0, s32, 2048\ns_nop 0")
        a("buffer_load_dwordx4 v1, s[12:15], s33 offen sc1 lds\nbuffer_load_dwordx4 v1, s[12:15], s33 offen offset:1024 sc1 lds")
        a("s_add_u32 s35, s35, 2048")
    else:
        a("s_add_u32 s32, s40, s38")
        for jj in range(5):
            a(f"s_add_u32 m0, s32, {1024*jj}\ns_nop 0\nbuffer_load_dwordx4 v1, s[12:15], s{46+jj} offen sc1 lds\ns_add_u32 s{46+jj}, s{46+jj}, 2048")

def g16_loader_wpro(a, kind):
    p = G16[kind]; SLOT = p['F'] + p['W']
    for i in range(3):
        a(f"s_mov_b32 s40, {i*SLOT}"); g16_w(a, kind)

def g2_wpf(a):
    if 'wpf' not in os.environ.get('XP', ''): return
    a(f"s_mul_i32 s32, s30, {64*4096}\ns_add_u32 s32, s32, s34")
    for i in range(4):
        a(f"s_add_u32 s36, s30, {3 + 4*i}\ns_cmp_lt_u32 s36, 18\ns_cselect_b32 s36, s32, 0x7f000000")
        for jj in range(4): a(f"s_add_u32 s33, s36, {(4*i*64 + jj)*4096}\nbuffer_load_dwordx4 v[12:15], v2, s[8:11], s33 offen")

def o_loader_main(a):
    p = G16['o']; SLOT = p['F'] + p['W']
    for n in range(16):
        if n >= 3:
            a("s_waitcnt vmcnt(9)")
            if n == 8:
                a("s_cmp_lg_u32 s6, 0\ns_cbranch_scc1 Lgo_np\nv_cmp_gt_u32 vcc, 16, v244\ns_nop 1\ns_cbranch_vccz Lgo_np")
                stamp(a, 'l_op0')
                poll(a, 7, 16, 244)
                stamp(a, 'l_op1')
                a.label("Lgo_np")
            a("s_barrier")
        if n == 8: a(f"s_add_u32 s35, s35, {(64 << 17) - 16384}\ns_sub_u32 s34, s34, {8*64*1152}")
        a(f"s_mov_b32 s40, {(n % 4) * SLOT}")
        g16_w(a, 'o'); g16_f(a, 'o')
        if n == 6: a(f"s_cmp_lg_u32 s6, 0\ns_cbranch_scc1 Lgo_nl\nbuffer_load_dword v244, v7, {SYNC}, 0 offen sc1\nLgo_nl:")
    a("s_waitcnt vmcnt(9)\ns_barrier\ns_waitcnt vmcnt(0)\ns_barrier\ns_barrier")

def g16_loader_main(a, kind):
    p = G16[kind]; pre = 'Lg' + kind; SLOT = p['F'] + p['W']
    if 'gnodma' in os.environ.get('XP', ''): a("s_mov_b32 s10, 0\ns_mov_b32 s14, 0")
    stamp(a, 'l_' + kind + 'p0')
    if kind == 'y': a(f"s_cmp_lg_u32 s6, 0\ns_cbranch_scc1 {pre}_np")
    poll(a, 7, 32 if kind == 'o' else 9, 244)
    if kind == 'y':
        a.label(f"{pre}_np"); a("s_barrier")
    stamp(a, 'l_' + kind + 'p1')
    for i in range(3):
        a(f"s_mov_b32 s40, {i*SLOT}"); g16_f(a, kind)
    a(f"s_mov_b32 s40, {3*SLOT}\ns_mov_b32 s41, {p['NST'] - 3}")
    a(f"s_waitcnt vmcnt({p['nF']})\ns_branch {pre}_lb")
    a.label(f"{pre}_lloop")
    a("s_waitcnt vmcnt(9)")
    a.label(f"{pre}_lb")
    a("s_barrier")
    g16_f(a, kind); g16_w(a, kind)
    a(adv_slot(SLOT, 4))
    a(f"s_sub_u32 s41, s41, 1\ns_cmp_lg_u32 s41, 0\ns_cbranch_scc1 {pre}_lloop")
    a("s_waitcnt vmcnt(9)\ns_barrier\ns_waitcnt vmcnt(0)\ns_barrier\ns_barrier")

def tok_ids(a):
    a("s_bfe_u32 s32, s2, 0x20001\ns_lshl_b32 s32, s32, 2\ns_bfe_u32 s33, s2, 0x20003\ns_add_u32 s32, s32, s33")
    a("s_and_b32 s43, s2, 1\ns_lshl_b32 s43, s43, 3\ns_lshr_b32 s33, s2, 5\ns_add_u32 s43, s43, s33")
    a("s_lshl_b32 s42, s43, 4\ns_add_u32 s42, s42, s32\ns_mul_i32 s44, s42, 9216")
    a(f"v_mov_b32 v232, v0\nv_add_u32 v233, 512, v0\nv_cmp_gt_u32 vcc, 64, v0\nv_mov_b32 v234, 0x0ffffff0\ns_nop 1\nv_cndmask_b32 v233, v234, v233, vcc")
    a("v_lshlrev_b32 v236, 4, v232\nv_lshlrev_b32 v237, 4, v233\nv_mov_b32 v240, 0x3f80\nv_mov_b32 v241, 0x3f800000")

def partial_loads(a, srd, lab, ns):
    for u in range(2):
        if u == 1: a(f"s_cmp_lg_u32 s3, 0\ns_cbranch_scc1 {lab}a")
        a("s_mov_b32 s32, s44")
        for s in range(ns):
            a(f"buffer_load_dwordx4 {vr(96+32*u+4*s,4)}, v{236+u}, {sr(srd,4)}, s32 offen sc1")
            if s < ns - 1: a(f"s_add_u32 s32, s32, {256*9216}")
    a.label(f"{lab}a")
    a("s_waitcnt vmcnt(0)")

def partial_sum(a, u, dst, ns):
    b = 96 + 32*u
    unpack8(a, b, dst)
    for s in range(1, ns):
        for d in range(4):
            a(f"v_dot2c_f32_bf16 v{dst+2*d}, v{b+4*s+d}, v240\nv_dot2c_f32_bf16 v{dst+2*d+1}, v{b+4*s+d}, v241")
    a("s_nop 2")

def ln_row(a, x, n, t0):
    m, v, t = t0, t0 + 1, t0 + 2
    a(f"v_add_f32 v{m}, v{x}, v{x+1}")
    for i in range(2, n): a(f"v_add_f32 v{m}, v{m}, v{x+i}")
    wave_allsum(a, m, t)
    a(f"v_mul_f32 v{m}, 0x3ae38e39, v{m}\nv_mov_b32 v{v}, 0")
    for i in range(n): a(f"v_sub_f32 v{t}, v{x+i}, v{m}\nv_fmac_f32 v{v}, v{t}, v{t}")
    wave_allsum(a, v, t)
    a(f"v_mul_f32 v{v}, 0x3ae38e39, v{v}")
    round_bf16(a, m); round_bf16(a, v)
    a(f"v_add_f32 v{v}, 0x3727c5ac, v{v}"); round_bf16(a, v)
    a(f"v_sqrt_f32 v{v}, v{v}\ns_nop 0"); round_bf16(a, v)
    a(f"v_rcp_f32 v{v}, v{v}")
    for i in range(n): a(f"v_sub_f32 v{x+i}, v{x+i}, v{m}")
    for i in range(n): a(f"v_mul_f32 v{x+i}, v{x+i}, v{v}")

LN_LDS = 4 * 29696

def ln2_pre(a):
    a("s_load_dwordx2 s[46:47], s[0:1], 0")
    tok_ids(a)
    make_ws_srd(a, 48, 4, 'mod')
    a("v_lshlrev_b32 v238, 2, v232\nv_lshlrev_b32 v239, 2, v233\nv_and_b32 v235, 63, v0\nv_lshlrev_b32 v235, 2, v235")
    a(f"s_mov_b32 s32, {2*2304}\nbuffer_load_dword v208, v238, s[48:51], s32 offen sc1\nbuffer_load_dword v209, v239, s[48:51], s32 offen sc1")
    a(f"s_mov_b32 s32, {3*2304}\ns_mov_b32 s33, {4*2304}")
    for i in range(9):
        a(f"buffer_load_dword v{210+i}, v235, s[48:51], s32 offen offset:{256*i} sc1\nbuffer_load_dword v{220+i}, v235, s[48:51], s33 offen offset:{256*i} sc1")
    a("v_lshlrev_b32 v230, 1, v232\nv_lshlrev_b32 v231, 1, v233")
    a("s_waitcnt lgkmcnt(0)")
    make_srd(a, 48, 46, SIZES['x'])
    a("s_mov_b32 s32, s44")
    for t in range(8):
        for u in range(2): a(f"buffer_load_short_d16_hi v{192+8*u+t}, v{230+u}, s[48:51], s32 offen" + (f" offset:{1152*(t%3)}" if t % 3 else ""))
        if t % 3 == 2: a("s_add_u32 s32, s32, 3456")
    a(f"v_add_u32 v238, {LN_LDS}, v238\ns_mul_i32 s32, s3, 2304\ns_add_u32 s32, s32, {LN_LDS}\nv_add_u32 v239, s32, v235")

def ln2_mid(a):
    for i in range(16): a(f"v_and_b32 v{192+i}, 0xffff0000, v{192+i}")
    for i in range(9):
        a(f"v_add_f32 v{220+i}, 1.0, v{220+i}"); round_bf16(a, 220 + i)
    for u in range(2):
        a(f"v_lshrrev_b32 v{230+u}, 5, v{232+u}\nv_lshlrev_b32 v{230+u}, 17, v{230+u}\nv_and_b32 v234, 31, v{232+u}\nv_lshl_add_u32 v{230+u}, v234, 4, v{230+u}")

def ln2_body(a):
    make_ws_srd(a, 48, 4, 'p3')
    partial_loads(a, 48, "Lln_sp", 8)
    make_ws_srd(a, 48, 4, 'x1'); make_ws_srd(a, 52, 4, 'h2')
    stamp(a, 'ln_ld')
    for u in range(2):
        if u == 1: a("s_cmp_lg_u32 s3, 0\ns_cbranch_scc1 Lln_u1")
        partial_sum(a, u, 160, 8)
        for t in range(8): a(f"v_fmac_f32 v{192+8*u+t}, v{208+u}, v{160+t}")
        for p in range(4): a(f"v_cvt_pk_bf16_f32 v{168+4*u+p}, v{192+8*u+2*p}, v{193+8*u+2*p}")
        unpack8(a, 168 + 4*u, 160)
        for t in range(8): a(f"ds_write_b32 v238, v{160+t} offset:{2304*t + 2048*u}")
        a(f"buffer_store_dwordx4 {vr(168+4*u,4)}, v{236+u}, s[48:51], s44 offen sc1")
    a.label("Lln_u1")
    a("s_waitcnt lgkmcnt(0)\ns_barrier")
    for i in range(9): a(f"ds_read_b32 v{96+i}, v239 offset:{256*i}")
    a("s_waitcnt lgkmcnt(0)")
    ln_row(a, 96, 9, 108)
    for i in range(9): a(f"v_fma_f32 v{96+i}, v{96+i}, v{220+i}, v{210+i}")
    ln_row(a, 96, 9, 108)
    for i in range(9): a(f"ds_write_b32 v239, v{96+i} offset:{256*i}")
    a("s_lshl_b32 s32, s42, 9\ns_waitcnt lgkmcnt(0)\ns_barrier")
    for u in range(2):
        if u == 1: a("s_cmp_lg_u32 s3, 0\ns_cbranch_scc1 Lln_u2")
        for t in range(8): a(f"ds_read_b32 v{96+8*u+t}, v238 offset:{2304*t + 2048*u}")
        a("s_waitcnt lgkmcnt(0)")
        for p in range(4): a(f"v_cvt_pk_bf16_f32 v{112+4*u+p}, v{96+8*u+2*p}, v{97+8*u+2*p}")
        a(f"buffer_store_dwordx4 {vr(112+4*u,4)}, v{230+u}, s[52:55], s32 offen sc1")
    a.label("Lln_u2")
    stamp(a, 'ln_st')
    a("s_waitcnt vmcnt(0)\ns_barrier")

def final_pre(a):
    a("s_load_dwordx2 s[46:47], s[0:1], 80\ns_load_dwordx2 s[52:53], s[0:1], 104")
    tok_ids(a)
    make_ws_srd(a, 48, 4, 'mod')
    a("v_lshlrev_b32 v238, 2, v232\nv_lshlrev_b32 v239, 2, v233")
    a(f"s_mov_b32 s32, {5*2304}\nbuffer_load_dword v208, v238, s[48:51], s32 offen sc1\nbuffer_load_dword v209, v239, s[48:51], s32 offen sc1")
    make_ws_srd(a, 48, 4, 'x1')
    for u in range(2): a(f"buffer_load_dwordx4 {vr(192+4*u,4)}, v{236+u}, s[48:51], s44 offen sc1")
    a("v_lshlrev_b32 v230, 1, v232\nv_lshlrev_b32 v231, 1, v233")
    a("s_waitcnt lgkmcnt(0)")
    a("s_lshl_b32 s32, s42, 4\ns_add_u32 s46, s46, s32\ns_addc_u32 s47, s47, 0\ns_load_dwordx4 s[36:39], s[46:47], 0")
    make_srd(a, 24, 52, SIZES['out'])
    a("s_waitcnt lgkmcnt(0)")

def final_mid(a):
    for p in range(4): a(f"s_lshl_b32 s{48+2*p}, s{36+p}, 16\ns_and_b32 s{49+2*p}, s{36+p}, 0xffff0000")
    for u in range(2):
        unpack8(a, 192 + 4*u, 210 + 8*u)
        for t in range(8): a(f"v_fmac_f32 v{210+8*u+t}, s{48+t}, v{208+u}")

def final_body(a):
    make_ws_srd(a, 48, 4, 'p6')
    partial_loads(a, 48, "Lfi_sp", 4)
    for u in range(2):
        if u == 1: a("s_cmp_lg_u32 s3, 0\ns_cbranch_scc1 Lfi_u1")
        partial_sum(a, u, 160, 4)
        for t in range(8): a(f"v_fmac_f32 v{210+8*u+t}, v{208+u}, v{160+t}")
        for p in range(4): a(f"v_cvt_pk_bf16_f32 v{168+4*u+p}, v{210+8*u+2*p}, v{211+8*u+2*p}")
        a("s_mov_b32 s32, s44")
        for t in range(8):
            op = "buffer_store_short" if t % 2 == 0 else "buffer_store_short_d16_hi"
            a(f"{op} v{168+4*u+t//2}, v{230+u}, s[24:27], s32 offen" + (f" offset:{1152*(t%3)}" if t % 3 else ""))
            if t % 3 == 2: a("s_add_u32 s32, s32, 3456")
    a.label("Lfi_u1")

M1_W = 17408; M1_SLOT = M1_W + 12288; M1_NST = 32; M1_X = 114688
def m1_ids(a):
    a("s_and_b32 s32, s2, 7\ns_mul_i32 s32, s32, 27\ns_lshr_b32 s33, s2, 3\ns_add_u32 s32, s32, s33")
    a("s_mul_hi_u32 s28, s32, 0x2aaaaaab\ns_mul_i32 s33, s28, 6\ns_sub_u32 s29, s32, s33")
    a("v_and_b32 v8, 63, v0\nv_lshlrev_b32 v1, 4, v8")

def m1_compute(a):
    pre = 'Lm1'
    ACC = 16; SET = [112, 132]
    a("s_load_dwordx2 s[24:25], s[0:1], 64")
    m1_ids(a)
    a("v_bfe_u32 v2, v8, 2, 2\nv_mul_u32_u24 v2, 1088, v2\nv_lshrrev_b32 v9, 5, v8\nv_lshl_add_u32 v2, v9, 9, v2")
    a("v_bfe_u32 v9, v8, 4, 1\nv_lshl_add_u32 v2, v9, 5, v2\nv_and_b32 v9, 3, v8\nv_lshl_add_u32 v2, v9, 3, v2")
    a("s_and_b32 s30, s3, 1\ns_lshr_b32 s31, s3, 1")
    a("s_lshl_b32 s32, s30, 7\ns_mul_i32 s33, s31, 8704\ns_add_u32 s32, s32, s33\nv_add_u32 v4, s32, v2")
    a(f"s_lshl_b32 s32, s31, 11\ns_add_u32 s32, s32, {M1_W}\nv_add_u32 v5, s32, v1")
    a("v_mov_b32 v2, v4\nv_mov_b32 v3, v5")
    for i in range(0, 96, 2): a(f"v_mov_b64 {vr(ACC+i,2)}, 0")
    a("s_waitcnt lgkmcnt(0)")
    m1_bias(a, 3)
    def reads(ks, st):
        b = SET[st]; r = []
        for d in range(3): r.append(f"ds_read_b128 {vr(b+8+4*d,4)}, v3 offset:{d*4096 + ks*1024}")
        for t in range(2):
            for e in range(2): r.append(f"ds_read_b64_tr_b16 {vr(b+4*t+2*e,2)}, v2 offset:{ks*4352 + e*256 + t*64}")
        return r
    def mfs(st):
        b = SET[st]
        return [mf(vr(ACC+16*(3*t+d),16), vr(b+4*t,4), vr(b+8+4*d,4), vr(ACC+16*(3*t+d),16)) for t in range(2) for d in range(3)]
    def front(m, r):
        out = []
        if 'gnocomp' in os.environ.get('XP', ''): return out
        if 'gnord' in os.environ.get('XP', ''): return m
        for i, x in enumerate(m):
            out.append(x); out += r[2*i:2*i+2]
        return out
    a(f"s_mov_b32 s40, 0\ns_mov_b32 s41, {M1_NST}")
    a("s_barrier\ns_barrier")
    stamp(a, 'm1_b0')
    for o in reads(0, 0): a(o)
    a.label(f"{pre}_cloop")
    a("s_waitcnt lgkmcnt(0)")
    for o in front(mfs(0), reads(1, 1)): a(o)
    a(adv_slot(M1_SLOT, 5))
    a("v_add_u32 v2, s40, v4\nv_add_u32 v3, s40, v5")
    a("s_waitcnt lgkmcnt(0)")
    for o in front(mfs(1), reads(0, 0)): a(o)
    a(f"s_sub_u32 s41, s41, 1\ns_cmp_lg_u32 s41, 0\ns_waitcnt lgkmcnt(0)\ns_barrier\ns_cbranch_scc1 {pre}_cloop" if False else
      f"s_sub_u32 s41, s41, 1\ns_cmp_lg_u32 s41, 0\ns_barrier\ns_cbranch_scc1 {pre}_cloop")
    stamp(a, 'm1_end')
    a("s_waitcnt lgkmcnt(0)")
    m1_xaddr(a, 3)
    a(f"s_cmp_eq_u32 s31, 0\ns_cbranch_scc1 {pre}_k0")
    for kh in (1, 0):
        if kh == 0: a.label(f"{pre}_k0")
        keep = ACC + 48 * kh; send = ACC + 48 * (1 - kh)
        a("s_nop 7")
        for i in range(12): a(f"ds_write_b128 v2, {vr(send+4*i,4)} offset:{1024*i}")
        for i in range(6): a(f"ds_write_b128 v4, {vr(keep+24+4*i,4)} offset:{1024*i}")
        a("s_waitcnt lgkmcnt(0)\ns_barrier")
        for i in range(6): a(f"ds_read_b128 {vr(send+4*i,4)}, v3 offset:{1024*i}")
        m1_gelu(a, keep, send, 0)
        if kh == 1: a(f"s_branch {pre}_cdone")
    a.label(f"{pre}_cdone")

def m1_xaddr(a, sw):
    a(f"s_mul_i32 s32, s{sw}, 12288\ns_add_u32 s32, s32, {M1_X}\nv_add_u32 v2, s32, v1")
    a(f"s_xor_b32 s33, s{sw}, 2\ns_mul_i32 s33, s33, 12288\ns_add_u32 s33, s33, {M1_X}\nv_add_u32 v3, s33, v1")
    a(f"s_and_b32 s32, s{sw}, 1\ns_mul_i32 s32, s32, 6144\ns_lshr_b32 s33, s{sw}, 1\ns_mul_i32 s33, s33, 37376\ns_add_u32 s32, s32, s33\nv_add_u32 v4, s32, v1")

def m1_bias(a, sw):
    make_srd(a, 16, 24, SIZES['b1'])
    a(f"s_lshl_b32 s32, s28, 2\ns_and_b32 s33, s{sw}, 1\ns_lshl_b32 s33, s33, 1\ns_add_u32 s32, s32, s33\ns_lshr_b32 s33, s{sw}, 1\ns_add_u32 s45, s32, s33")
    a("s_lshl_b32 s32, s45, 6\nv_lshrrev_b32 v9, 5, v8\nv_lshlrev_b32 v9, 3, v9")
    for q in range(4): a(f"buffer_load_dwordx2 {vr(152+2*q,2)}, v9, s[16:19], s32 offen offset:{16*q}")
    make_ws_srd(a, 20, 4, 'u')
    a("v_bfe_u32 v9, v8, 4, 1\nv_mul_u32_u24 v9, 147456, v9\nv_lshrrev_b32 v10, 5, v8\nv_lshl_add_u32 v9, v10, 8, v9")
    a("v_and_b32 v10, 15, v8\nv_lshl_add_u32 v6, v10, 4, v9")
    a(f"s_mul_i32 s39, s29, {6*147456}\ns_lshl_b32 s33, s45, 10\ns_add_u32 s39, s39, s33")

def m1_gelu(a, keep, oth, h0):
    a("s_waitcnt vmcnt(0)" if h0 == 0 else "")
    for q in range(4):
        for h in range(2):
            a(f"v_lshlrev_b32 v{160+4*q+2*h}, 16, v{152+2*q+h}\nv_and_b32 v{161+4*q+2*h}, 0xffff0000, v{152+2*q+h}")
    c1 = -2 * math.sqrt(2 / math.pi) * math.log2(math.e); c2 = c1 * 0.044715
    a(f"v_mov_b32 v10, {f32(c1)}\nv_mov_b32 v11, {f32(c2)}")
    for i in range(3):
        d, e = (h0 + i) >> 1, (h0 + i) & 1
        a(f"s_waitcnt lgkmcnt({4 - 2*i})")
        b = keep + 8*i; o = oth + 8*i
        for r in range(8): a(f"v_add_f32 v{b+r}, v{b+r}, v{o+r}")
        for r in range(8): a(f"v_add_f32 v{b+r}, v{b+r}, v{160+8*e+r}")
        for r in range(8): a(f"v_mul_f32 v{o+r}, v{b+r}, v{b+r}")
        for r in range(8): a(f"v_fma_f32 v{o+r}, v{o+r}, v11, v10")
        for r in range(8): a(f"v_mul_f32 v{o+r}, v{o+r}, v{b+r}")
        for r in range(8): a(f"v_exp_f32 v{o+r}, v{o+r}")
        for r in range(8): a(f"v_add_f32 v{o+r}, 1.0, v{o+r}")
        for r in range(8): a(f"v_rcp_f32 v{o+r}, v{o+r}")
        for r in range(8): a(f"v_mul_f32 v{b+r}, v{b+r}, v{o+r}")
        for p in range(4): a(f"v_cvt_pk_bf16_f32 v{o+p}, v{b+2*p}, v{b+2*p+1}")
        a(f"s_add_u32 s32, s39, {d*2*147456}\nbuffer_store_dwordx4 {vr(o,4)}, v6, s[20:23], s32 offen offset:{e*512} sc1")

def m1_loader_setup(a):
    m1_ids(a)
    a("v_lshrrev_b32 v2, 4, v8\nv_mul_u32_u24 v2, 36864, v2\nv_and_b32 v9, 15, v8\nv_lshl_add_u32 v2, v9, 4, v2")
    a(f"s_mul_i32 s32, s6, {16*9216}\nv_add_u32 v2, s32, v2")
    make_srd(a, 8, 58, SIZES['w1']); make_ws_srd(a, 12, 4, 'h2')
    a("s_lshl_b32 s34, s28, 8")
    a(f"s_mul_i32 s35, s29, {3*131072}\ns_lshl_b32 s32, s6, 10\ns_add_u32 s35, s35, s32")
    a(f"s_mul_i32 s37, s6, 4352\ns_lshl_b32 s38, s6, 10\ns_add_u32 s38, s38, {M1_W}")
    a(f"s_and_b32 s32, s2, 7\ns_lshl_b32 s32, s32, 4\ns_add_u32 s32, s32, {C_H2}\nv_and_b32 v7, 15, v8\nv_add_u32 v7, s32, v7\nv_lshlrev_b32 v7, 7, v7")
def m1_w(a):
    a("s_add_u32 s32, s40, s37")
    for jj in range(4): a(f"s_add_u32 m0, s32, {1088*jj}\ns_add_u32 s33, s34, {9216*jj}\nbuffer_load_dwordx4 v2, s[8:11], s33 offen lds")
    a(f"s_add_u32 s34, s34, {64*9216}")
def m1_f(a):
    a("s_add_u32 s32, s40, s38")
    for d in range(3): a(f"s_add_u32 m0, s32, {4096*d}\ns_add_u32 s33, s35, {131072*d}\nbuffer_load_dwordx4 v1, s[12:15], s33 offen sc1 lds")
    a("s_add_u32 s35, s35, 4096")
def m1_loader_main(a):
    if 'gnodma' in os.environ.get('XP', ''): a("s_mov_b32 s10, 0\ns_mov_b32 s14, 0")
    stamp(a, 'l_h2p0')
    a("s_cmp_lg_u32 s6, 0\ns_cbranch_scc1 Lm1_np")
    poll(a, 7, 16, 244)
    a.label("Lm1_np"); a("s_barrier")
    stamp(a, 'l_h2p1')
    for i in range(4):
        a(f"s_mov_b32 s40, {i*M1_SLOT}"); m1_f(a)
    a(f"s_mov_b32 s40, {4*M1_SLOT}")
    for w in (6, 10):
        a(f"s_waitcnt vmcnt({w})\ns_barrier"); m1_f(a); m1_w(a); a(adv_slot(M1_SLOT, 5))
    a(f"s_mov_b32 s41, {M1_NST - 6}")
    a.label("Lm1_lloop")
    a("s_waitcnt vmcnt(14)\ns_barrier"); m1_f(a); m1_w(a); a(adv_slot(M1_SLOT, 5))
    a("s_sub_u32 s41, s41, 1\ns_cmp_lg_u32 s41, 0\ns_cbranch_scc1 Lm1_lloop")
    for w in (14, 7, 0, 0): a(f"s_waitcnt vmcnt({w})\ns_barrier")
    a("s_barrier")

def sig_wave4(a, soff_code, soff, lab, vtmp):
    a(f"s_cmp_lg_u32 s6, 0\ns_cbranch_scc1 {lab}")
    a(soff_code); signal(a, soff, vtmp)
    a.label(lab)

def mega():
    a = Asm(); n = NAME + '_kernel'
    a("s_cmp_ge_u32 s2, 256\ns_cbranch_scc1 Lend")
    stamp(a, 'start')
    phase_kv(a)
    phase_attn_compute(a)
    g16_compute_setup(a, 'o')
    a("s_waitcnt vmcnt(0)")
    stamp(a, 'at_dr')
    signal(a, 60, 9)
    ln2_pre(a)
    g16_compute(a, 'o')
    stamp(a, 'o_st')
    a("s_waitcnt vmcnt(18)")
    ln2_mid(a)
    if not SENT: a("s_waitcnt vmcnt(0)")
    stamp(a, 'o_dr')
    a("s_barrier")
    stamp(a, 'S')
    if not SENT: a("s_barrier")
    a.label("Lln_shared")
    stamp(a, 'R')
    ln2_body(a)
    stamp(a, 'S2')
    a("s_cmp_ge_u32 s3, 4\ns_cbranch_scc1 Ll_after_ln")
    a("s_cmp_ge_u32 s2, 216\ns_cbranch_scc1 Lc_g2")
    m1_compute(a)
    stamp(a, 'm1_st')
    a("s_waitcnt vmcnt(0)")
    stamp(a, 'm1_dr')
    a("s_barrier")
    stamp(a, 'S3')
    a.label("Lc_g2")
    g16_compute_setup(a, 'y')
    final_pre(a)
    g16_compute(a, 'y')
    stamp(a, 'y_st')
    a("s_waitcnt vmcnt(9)")
    final_mid(a)
    if not SENT: a("s_waitcnt vmcnt(0)\ns_barrier\ns_barrier")
    stamp(a, 'R4')
    a("s_branch Lfinal")
    phase_attn_loader(a)
    g16_loader_setup(a, 'o')
    a("s_barrier\ns_barrier")
    o_loader_main(a)
    ln2_pre(a)
    m1_loader_setup(a)
    a("s_waitcnt vmcnt(0)")
    ln2_mid(a)
    a("s_barrier")
    a("s_cmp_lg_u32 s6, 0\ns_cbranch_scc1 Ll_s1")
    a(f"s_lshr_b32 s32, s2, 5\ns_add_u32 s32, s32, {C_P3}\ns_lshl_b32 s32, s32, 7\nv_lshlrev_b32 v10, 10, v8\nv_mov_b32 v9, 1\ns_mov_b64 exec, 3")
    a(f"buffer_atomic_add v9, v10, {SYNC}, s32 offen sc1\ns_mov_b64 exec, -1")
    a.label("Ll_s1")
    a("s_cmp_ge_u32 s2, 216\ns_cbranch_scc1 Ll_now1")
    for i in range(4):
        a(f"s_mov_b32 s40, {i*M1_SLOT}"); m1_w(a)
    a.label("Ll_now1")
    if not SENT:
        a("s_cmp_lg_u32 s6, 0\ns_cbranch_scc1 Ll_np1")
        a(f"s_add_u32 s32, s43, {C_P3}\ns_lshl_b32 s32, s32, 7\nv_mov_b32 v10, s32")
        poll(a, 10, 32, 244)
        a.label("Ll_np1")
        a("s_barrier")
    a("s_branch Lln_shared")
    a.label("Ll_after_ln")
    a("s_cmp_lg_u32 s6, 0\ns_cbranch_scc1 Ll_s2")
    a(f"s_add_u32 s32, s43, {C_H2}\ns_lshl_b32 s32, s32, 7\nv_lshlrev_b32 v10, 11, v8\nv_mov_b32 v9, 1\ns_mov_b64 exec, 0xff")
    a(f"buffer_atomic_add v9, v10, {SYNC}, s32 offen sc1\ns_mov_b64 exec, -1")
    a.label("Ll_s2")
    a("s_cmp_ge_u32 s2, 216\ns_cbranch_scc1 Ll_nom1")
    a("s_load_dwordx2 s[24:25], s[0:1], 64\ns_waitcnt lgkmcnt(0)")
    m1_bias(a, 6)
    m1_loader_main(a)
    a(f"s_mul_hi_u32 s32, s28, 0x1c71c71d\ns_mul_i32 s32, s32, 6\ns_add_u32 s32, s32, s29\ns_add_u32 s32, s32, {C_U}\ns_lshl_b32 s63, s32, 7")
    g16_loader_setup(a, 'y')
    g16_loader_wpro(a, 'y')
    a("v_mov_b32 v12, v2")
    m1_xaddr(a, 6)
    a("v_mov_b32 v2, v12\ns_barrier")
    for i in range(3):
        a(f"ds_read_b128 {vr(16+8*i,4)}, v4 offset:{2048*i}\nds_read_b128 {vr(20+8*i,4)}, v4 offset:{2048*i + 1024}")
    a("s_waitcnt lgkmcnt(0)")
    for i in range(6): a(f"ds_read_b128 {vr(40+4*i,4)}, v3 offset:{6144 + 1024*i}")
    m1_gelu(a, 16, 40, 3)
    a("s_waitcnt vmcnt(0)\ns_barrier")
    sig_wave4(a, "", 63, "Ll_s3", 9)
    a("s_branch Ll_g2")
    a.label("Ll_nom1")
    g16_loader_setup(a, 'y')
    g16_loader_wpro(a, 'y')
    if 'fastidle' not in os.environ.get('XP', ''):
        a("s_cmp_lg_u32 s6, 0\ns_cbranch_scc1 Ll_g2\ns_mov_b32 s100, 0x2000")
        a.label("Ll_idle")
        a(f"s_sleep 32\nbuffer_load_dword v244, v7, {SYNC}, 0 offen sc1\ns_waitcnt vmcnt(0)\nv_cmp_gt_u32 vcc, 1, v244\ns_sub_u32 s100, s100, 1")
        a("s_cbranch_vccz Ll_g2\ns_cmp_lg_u32 s100, 0\ns_cbranch_scc1 Ll_idle")
    a.label("Ll_g2")
    g16_loader_main(a, 'y')
    final_pre(a)
    a("s_waitcnt vmcnt(0)")
    final_mid(a)
    if not SENT:
        a("s_barrier")
        a("s_cmp_lg_u32 s6, 0\ns_cbranch_scc1 Ll_np2")
        a(f"s_add_u32 s32, s43, {C_P6}\ns_lshl_b32 s32, s32, 7\nv_mov_b32 v10, s32")
        signal(a, 32, 9)
        poll(a, 10, 16, 244)
        a.label("Ll_np2")
        a("s_barrier")
    a.label("Lfinal")
    final_body(a)
    if STAMP:
        a(f"s_cmp_lg_u32 s3, {STAMP_WAVE}\ns_cbranch_scc1 Lend\ns_waitcnt vmcnt(0)")
        a("s_memrealtime s[92:93]\ns_waitcnt lgkmcnt(0)")
        stamp_flush(a, 15, "Lstf")
    a.label("Lend")
    a("s_endpgm")
    return n, a

def build(path):
    n, a = mega()
    txt = a.text()
    hdr = open('cdna_kernels/' + NAME + '.s.ref').read().split('\n')
    top = [l for l in hdr if l.startswith(';') and '@launch' not in l][:19]
    out = '\n'.join(top) + '\n'
    if os.environ.get('LIST'):
        out += f"; @launch kernel={n} grid=(256,1,1) block=(512,1,1) lds={LDS_TOTAL}\n"
    else:
        out += f"; @launch grid=(256,1,1) block=(512,1,1) lds={LDS_TOTAL}\n"
    if STAMP: out += '; stamps: ' + ','.join(STAMP_LIST) + '\n'
    out += '.amdgcn_target "amdgcn-amd-amdhsa--gfx950"\n' + kernel_header(n) + txt + kernel_desc(n, 256, 102)
    open(path, 'w').write(out)

if __name__ == '__main__':
    build(sys.argv[1] if len(sys.argv) > 1 else 'm.s')
```

```python
import sys, math, os
from gen_common import *
import k_attn as AT
from k_attn import (period, rare_path, build_ci, qk_group, pv_group, rd, mf, ADV, W4, KPOS, VPOS, BIG, QSCALE, THRESH, WQ_BYTES,
                    V_LANE16, V_RD, V_L, V_NEGM, V_Y, V_YD, V_T0, LU, T, CI, S, P, FR, Q, Q2, O)

OOB = "0xffffff00"
SENT = ('sent' in os.environ.get('XP', '').split(','))
KORDER = [0, 1, 2, 3, 8, 9, 10, 11, 12, 13, 14, 15, 4, 5, 6, 7]
KREG = {k: (240 + 4*k if k < 4 else 128 + 4*(k - 8) if k >= 8 else 160 + 4*(k - 4)) for k in range(16)}
def kstore(k):
    return f"s_add_u32 s55, s57, {(k >> 2) * 65536}\nbuffer_store_dwordx4 {vr(KREG[k],4)}, v6, s[16:19], s55 offen offset:{(k & 3) * 1024}" + ("" if 'wb' in os.environ.get('XP', '').split(',') else " sc1")
LDS_TOTAL = 163840

def srd_off(a, srd, sptr, soff, add, size):
    a(f"s_add_u32 s{srd+2}, s{soff}, {add}\ns_add_u32 s{srd}, s{sptr}, s{srd+2}\ns_addc_u32 s{srd+1}, s{sptr+1}, 0\ns_and_b32 s{srd+1}, s{srd+1}, 0xffff")
    a(f"s_mov_b32 s{srd+2}, {size}\ns_mov_b32 s{srd+3}, 0x20000")

def phase_kv(a):
    A_BYTES = 32 * 1040; W_BYTES = 16 * 1088; SLOT = A_BYTES + 2 * W_BYTES
    GL = 2 * SLOT
    ML = GL + 2048
    XL = ML + 8192
    HAND = 131072
    ACC = 64; SET = [16, 40]
    NT = ' nt' if 'ntw' in os.environ.get('XP', '') else ''
    NT2 = ' nt' if 'ntg' in os.environ.get('XP', '') else ''
    a("s_load_dwordx8 s[28:35], s[0:1], 0\ns_load_dwordx2 s[36:37], s[0:1], 32\ns_load_dwordx4 s[40:43], s[0:1], 88\ns_load_dwordx4 s[44:47], s[0:1], 112")
    a("v_and_b32 v1, 63, v0\nv_lshrrev_b32 v2, 6, v0\ns_nop 1\nv_readfirstlane_b32 s3, v2")
    a("s_and_b32 s48, s2, 7\ns_lshr_b32 s49, s2, 3")
    a("s_and_b32 s55, s49, 3\ns_lshl_b32 s48, s48, 2\ns_add_u32 s48, s48, s55\ns_lshr_b32 s49, s49, 2")
    a("v_bfe_u32 v3, v1, 3, 2\nv_lshlrev_b32 v3, 13, v3\nv_lshrrev_b32 v4, 5, v1\nv_lshl_add_u32 v3, v4, 18, v3\nv_and_b32 v4, 7, v1\nv_lshl_add_u32 v3, v4, 4, v3")
    a("s_and_b32 s55, s3, 1\ns_lshl_b32 s55, s55, 12\ns_lshr_b32 s56, s3, 1\ns_lshl_b32 s56, s56, 19\ns_add_u32 s55, s55, s56")
    a("v_add_u32 v3, s55, v3")
    a("v_lshrrev_b32 v4, 4, v1\nv_lshlrev_b32 v4, 15, v4\nv_and_b32 v5, 15, v1\nv_lshl_add_u32 v4, v5, 4, v4")
    a("s_and_b32 s55, s3, 3\ns_lshl_b32 s55, s55, 17\nv_add_u32 v4, s55, v4")
    a("s_lshl_b32 s50, s49, 15\ns_lshl_b32 s51, s48, 8\ns_mul_i32 s52, s3, 4160")
    a(f"s_mul_i32 s53, s3, 4352\ns_add_u32 s53, s53, {A_BYTES}")
    a("s_and_b32 s61, s2, 3\ns_mul_i32 s55, s61, 144\nv_lshrrev_b32 v8, 3, v0\nv_add_u32 v8, s55, v8\nv_mul_u32_u24 v245, 6912, v8\nv_and_b32 v2, 7, v0")
    a("v_lshl_add_u32 v245, v2, 4, v245\ns_lshr_b32 s55, s2, 2\ns_lshl_b32 s55, s55, 7\nv_add_u32 v245, s55, v245\nv_lshlrev_b32 v8, 1, v8")
    a("s_lshl_b32 s60, s2, 3\ns_add_u32 s60, s60, s3\ns_mul_i32 s55, s60, 1152\nv_lshlrev_b32 v10, 4, v1\nv_add_u32 v10, s55, v10")
    a(f"v_cmp_gt_u32 vcc, 8, v1\nv_mov_b32 v15, {OOB}\nv_add_u32 v11, 1024, v10\nv_cndmask_b32 v11, v15, v11, vcc")
    a("s_waitcnt lgkmcnt(0)")
    a("s_mov_b32 s4, s46\ns_mov_b32 s5, s47")
    make_srd(a, 8, 30, SIZES['ckv'])
    a("s_cmp_lt_u32 s3, 4\ns_cselect_b32 s34, s34, s36\ns_cselect_b32 s35, s35, s37")
    make_srd(a, 12, 34, SIZES['wuk'])
    def dma_ops(slot):
        ops = []
        for jj in range(4):
            ops.append(f"s_add_u32 m0, s52, {slot*SLOT + 16*jj}\ns_nop 0\nbuffer_load_dwordx4 v3, s[8:11], s50 offen offset:{1024*jj} lds")
        for jj in range(4):
            ops.append(f"s_add_u32 m0, s53, {slot*SLOT + 1088*jj}\ns_add_u32 s55, s51, {8192*jj}\nbuffer_load_dwordx4 v4, s[12:15], s55 offen{NT} lds")
        return ops
    ADVD = f"s_add_u32 s50, s50, 128\ns_add_u32 s51, s51, {64*8192}"
    for st in range(2):
        for o in dma_ops(st): a(o)
        a(ADVD)
    CPF = 0 if 'nocpf' in os.environ.get('XP', '') else 1
    if CPF:
        a("s_getpc_b64 s[16:17]")
        a.label("Lpc")
        a("s_and_b32 s17, s17, 0xffff\ns_mov_b32 s18, Lend-Lpc\ns_mov_b32 s19, 0x20000")
        a("s_lshr_b32 s55, s2, 3\ns_lshl_b32 s55, s55, 3\ns_add_u32 s55, s55, s3\ns_lshl_b32 s55, s55, 9\nv_lshlrev_b32 v2, 3, v1")
        a("buffer_load_dwordx2 v[220:221], v2, s[16:19], s55 offen")
    a("s_lshl_b32 s63, s49, 15\ns_and_b32 s55, s48, 3\ns_lshl_b32 s55, s55, 10\ns_add_u32 s63, s63, s55")
    a("s_and_b32 s7, s49, 3\ns_lshl_b32 s7, s7, 13\ns_lshl_b32 s55, s48, 8\ns_add_u32 s7, s7, s55")
    a("s_bfe_u32 s55, s3, 0x10001\ns_lshr_b32 s56, s49, 2\ns_cmp_eq_u32 s55, s56\ns_cselect_b32 s7, s7, 0x7f000000")
    if 'nol2' in os.environ.get('XP', ''): a("s_mov_b32 s7, 0x7f000000\ns_mov_b32 s63, 0x7f000000")
    def l2pf(t):
        return [f"buffer_load_dwordx4 v[220:223], v3, s[8:11], s63 offen offset:{128*t}",
                f"s_add_u32 s56, s7, {t*64*8192}\nbuffer_load_dwordx4 v[220:223], v4, s[12:15], s56 offen{NT}"]
    l = Ops()
    make_srd(l, 16, 40, SIZES['c']); make_srd(l, 20, 42, SIZES['wmod']); make_srd(l, 24, 28, SIZES['x'])
    l("s_cmp_lt_u32 s2, 216\ns_cselect_b32 s22, s22, 0")
    l(f"s_mov_b32 s59, 0x7f000000\ns_cmp_lt_u32 s3, 2\ns_cselect_b32 s58, {128*6912}, s59\ns_cselect_b32 s59, 256, s59\ns_mov_b32 s55, {64*6912}")
    for i, (so, sc) in enumerate((('0', '0 offen'), ('s55', '0 offen offset:128'), ('s58', 's59 offen'))):
        l(f"buffer_load_dwordx4 {vr(192+4*i,4)}, v245, s[20:23], {so} offen{NT2}")
        l(f"buffer_load_ushort v{204+i}, v8, s[16:19], {sc}")
    l(f"buffer_load_dwordx4 v[224:227], v10, s[24:27], 0 offen\nbuffer_load_dwordx4 v[228:231], v11, s[24:27], 0 offen")
    make_ws_srd(l, 96, 4, 'sync')
    l(f"v_lshlrev_b32 v2, 2, v1\ns_lshl_b32 s55, s2, 8\nv_add_u32 v2, s55, v2\nv_mov_b32 v243, 0")
    l.lines.append("ZSTORE")
    make_srd(l, 36, 44, 256); make_ws_srd(l, 40, 4, 'modp'); make_srd(l, 16, 32, SIZES['wq']); make_ws_srd(l, 24, 4, 'h1'); make_ws_srd(l, 20, 4, 'mod')
    def sloads(role):
        return [(f"s_cmp_lg_u32 s3, 0\ns_cbranch_scc1 Lkv_nz\nbuffer_store_dword v243, v2, {SYNC}, 0 offen sc1\nLkv_nz:" if role == 0 else "s_nop 0")
                if o == "ZSTORE" else o for o in l.ops()]
    a("v_and_b32 v5, 7, v1\nv_mul_u32_u24 v5, 1040, v5\nv_bfe_u32 v6, v1, 3, 2\nv_lshl_add_u32 v5, v6, 7, v5")
    a("v_lshrrev_b32 v6, 5, v1\nv_lshl_add_u32 v5, v6, 4, v5")
    a("s_and_b32 s55, s3, 1\ns_mul_i32 s55, s55, 16640\nv_add_u32 v5, s55, v5")
    a("v_bfe_u32 v6, v1, 2, 2\nv_mul_u32_u24 v6, 1088, v6\nv_lshrrev_b32 v7, 5, v1\nv_lshl_add_u32 v6, v7, 9, v6")
    a("v_bfe_u32 v7, v1, 4, 1\nv_lshl_add_u32 v6, v7, 5, v6\nv_and_b32 v7, 3, v1\nv_lshl_add_u32 v6, v7, 3, v6")
    a(f"s_lshr_b32 s55, s3, 2\ns_mul_i32 s55, s55, {W_BYTES}\ns_bfe_u32 s56, s3, 0x10001\ns_lshl_b32 s56, s56, 7")
    a(f"s_add_u32 s55, s55, s56\ns_add_u32 s55, s55, {A_BYTES}\nv_add_u32 v6, s55, v6")
    a(f"v_lshrrev_b32 v9, 3, v0\nv_lshlrev_b32 v13, 9, v9\nv_lshlrev_b32 v9, 5, v9\nv_add_u32 v9, {ML}, v9\nv_lshlrev_b32 v12, 4, v0\nv_cmp_gt_u32 vcc, 288, v0\ns_nop 1\nv_cndmask_b32 v12, v15, v12, vcc")
    a("s_lshr_b32 s55, s2, 2\ns_mul_i32 s55, s55, 36864\ns_and_b32 s56, s2, 3\ns_lshl_b32 s56, s56, 7\ns_add_u32 s62, s55, s56")
    a(f"v_and_b32 v14, 7, v0\nv_lshl_add_u32 v13, v14, 4, v13\ns_lshl_b32 s55, s3, 4\ns_add_u32 s55, s55, {XL}\nv_lshlrev_b32 v14, 7, v1\nv_add_u32 v14, s55, v14")
    a(f"s_lshl_b32 s55, s3, 8\ns_add_u32 s55, s55, {GL}\nv_lshlrev_b32 v7, 5, v1\nv_add_u32 v7, s55, v7")
    for i in range(0, 128, 2): a(f"v_mov_b64 {vr(ACC+i,2)}, 0")

    pf = ["s_mul_i32 s55, s60, 2304\nv_lshlrev_b32 v2, 4, v1"] + [f"buffer_load_dwordx4 v[220:223], v2, s[16:19], s55 offen offset:{1024*i}" for i in range(3)]
    g = Ops()
    for i in range(3):
        c = 204 + i
        g(f"v_lshlrev_b32 v{c}, 16, v{c}\nv_mul_f32 v216, 0xbfb8aa3b, v{c}\nv_exp_f32 v216, v216\ns_nop 0\nv_add_f32 v216, 1.0, v216\nv_rcp_f32 v216, v216\ns_nop 0\nv_mul_f32 v{c}, v{c}, v216")
        round_bf16(g, c)
        for d in range(4):
            w = 192 + 4*i + d
            op = "v_mul_f32" if i == 0 else "v_fmac_f32"
            g(f"v_lshlrev_b32 v216, 16, v{w}\nv_and_b32 v217, 0xffff0000, v{w}\n{op} v{208+2*d}, v{c}, v216\n{op} v{209+2*d}, v{c}, v217")
    g("s_nop 1")
    for k in range(8): g(f"v_add_f32_dpp v{208+k}, v{208+k}, v{208+k} row_ror:8 row_mask:0xf bank_mask:0xf")
    for sw in ("v_permlane16_swap_b32", "v_permlane32_swap_b32"):
        for k in range(8): g(f"v_mov_b32 v{192+k}, v{208+k}")
        g("s_nop 0")
        for k in range(8): g(f"{sw} v{208+k}, v{192+k}")
        for k in range(8): g(f"v_add_f32 v{208+k}, v{208+k}, v{192+k}")
    gemv = g.ops() + ["s_mov_b64 exec, 0xff\nds_write_b128 v7, v[208:211]\nds_write_b128 v7, v[212:215] offset:16\ns_mov_b64 exec, -1"]
    mload = [f"v_lshlrev_b32 v10, 4, v0\nv_add_u32 v10, {ML}, v10"] + [f"s_mov_b32 s55, {13824*r}\nbuffer_load_dwordx4 {vr(192+4*r,4)}, v12, s[40:43], s55 offen sc1" for r in range(4)]
    q = Ops()
    for k in range(4): q(f"v_add_f32 v{192+k}, v{192+k}, v{196+k}\nv_add_f32 v{200+k}, v{200+k}, v{204+k}")
    for k in range(4): q(f"v_add_f32 v{192+k}, v{192+k}, v{200+k}")
    round_pairs(q, 192, 4, 2)
    q("v_cmp_lt_u32 vcc, 143, v0\ns_nop 1\nv_cndmask_b32 v196, 0, 1.0, vcc")
    for k in range(4): q(f"v_add_f32 v{192+k}, v{192+k}, v196")
    round_pairs(q, 192, 4, 2)
    q("ds_write_b128 v10, v[192:195]")
    msum = q.ops()
    x = Ops()
    unpack8(x, 224, 232); unpack8(x, 228, 240)
    x("v_add_f32 v216, v232, v233")
    for i in range(234, 248): x(f"v_add_f32 v216, v216, v{i}")
    wave_allsum(x, 216, 217)
    x("v_mul_f32 v216, 0x3ae38e39, v216\nv_cmp_gt_u32 vcc, 8, v1\nv_mov_b32 v219, 0\ns_nop 0\nv_cndmask_b32 v218, 0, v216, vcc")
    for i in range(16): x(f"v_sub_f32 v217, v{232+i}, v{216 if i < 8 else 218}\nv_fmac_f32 v219, v217, v217")
    wave_allsum(x, 219, 217)
    x("v_mul_f32 v219, 0x3ae38e39, v219")
    round_bf16(x, 216); round_bf16(x, 219)
    x("v_add_f32 v219, 0x3727c5ac, v219"); round_bf16(x, 219)
    x("v_sqrt_f32 v219, v219\ns_nop 0"); round_bf16(x, 219)
    x("v_rcp_f32 v219, v219\ns_nop 0")
    for i in range(16): x(f"v_sub_f32 v{232+i}, v{232+i}, v216")
    round_pairs(x, 232, 16, 217)
    for i in range(16): x(f"v_mul_f32 v{232+i}, v{232+i}, v219")
    for p in range(8): x(f"v_cvt_pk_bf16_f32 v{248+p}, v{232+2*p}, v{233+2*p}")
    x("ds_write_b128 v14, v[248:251]\nds_write_b128 v14, v[252:255] offset:8192")
    xst = x.ops()
    def h1fin(u):
        h = Ops()
        h(f"ds_read_b128 v[224:227], v10 offset:{XL - ML + 8192*u}")
        for k, off in enumerate((0, 16, 2304, 2320)): h(f"ds_read_b128 {vr(192+4*k,4)}, v9 offset:{off + 2048*u}")
        h("s_waitcnt lgkmcnt(0)")
        unpack8(h, 224, 232)
        for i in range(8): h(f"v_mul_f32 v{232+i}, v{232+i}, v{200+i}")
        round_pairs(h, 232, 8, 2)
        for i in range(8): h(f"v_add_f32 v{232+i}, v{232+i}, v{192+i}")
        for p in range(4): h(f"v_cvt_pk_bf16_f32 v{228+4*u+p}, v{232+2*p}, v{233+2*p}") if u == 0 else h(f"v_cvt_pk_bf16_f32 v{240+p}, v{232+2*p}, v{233+2*p}")
        h(f"s_add_u32 s55, s62, {32768*u}\nbuffer_store_dwordx4 {vr(228 if u == 0 else 240,4)}, v13, s[24:27], s55 offen sc1")
        return h.ops()

    def reads(ks, s):
        b = SET[s]; r = []
        for nn in range(2):
            for e in range(2): r.append(f"ds_read_b64_tr_b16 {vr(b+16+4*nn+2*e,2)}, v6 offset:{ks*4352 + e*256 + nn*64}")
        for m in range(4): r.append(f"ds_read_b128 {vr(b+4*m,4)}, v5 offset:{(m>>1)*8320 + (m&1)*512 + ks*32}")
        return r
    def mfmas(s, role):
        b = SET[s]; r = []
        for m in range(4):
            for nn in range(2):
                acc = vr(ACC + 16*(2*m+nn), 16); c = vr(b+4*m, 4); w = vr(b+16+4*nn, 4)
                r.append(mf(acc, w, c, acc) if role == 0 else mf(acc, c, w, acc))
        return r
    stamp(a, 'kv_pro')
    a(f"s_waitcnt vmcnt({8 + CPF})\ns_barrier")
    stamp(a, 'kv_b0')
    for o in reads(0, 0): a(o)
    a("s_cmp_lt_u32 s3, 4\ns_cbranch_scc0 Lkv_r1")
    for role in range(2):
        a.label(f"Lkv_r{role}")
        if role == 1 and 'p1' in os.environ.get('PR', ''): a("s_setprio 1")
        if role == 0 and 'p0' in os.environ.get('PR', ''): a("s_setprio 1")
        hx = len(xst) // 2
        for t in range(8):
            pl = ['s_cmp_lg_u32 s3, 0\ns_cbranch_scc1 Lkv_npl\nbuffer_load_dword v15, v11, s[36:39], 0 offen sc1\nLkv_npl:'] if role == 0 else []
            side = {0: l2pf(2) + l2pf(3) + sloads(role), 1: gemv, 2: xst[:hx], 3: xst[hx:], 4: ['s_nop 0'] * 10 + pl + pf,
                    5: mload + ['s_nop 0'] * 40 + ['s_waitcnt vmcnt(0)'] + msum, 6: h1fin(0) + ['s_nop 0'] * 46}.get(t, [])
            if 'noval' in os.environ.get('XP', '') and t in (1, 2, 3): side = [o for o in side if 'buffer' in o or 'ds_' in o]
            if 'novm' in os.environ.get('XP', '') and t == 4: side = [o if 'buffer' not in o else o.replace('s55 offen', 's100 offen') for o in side]; a('s_mov_b32 s100, 0x7f000000')
            g0 = 8 * (int(os.environ.get('DKS', '0')) + 1) if ((role == 1 or ('nospread' not in os.environ.get('XP', ''))) and t in (4, 5, 6)) else 0
            if 1 <= t <= 4: side = side + l2pf(t + 3)
            per = (len(side) + 23 - g0) // (24 - g0)
            if t == 1: a(f"s_waitcnt vmcnt({0 if 'nospread' in os.environ.get('XP', '') and role == 1 else 4})")
            if t == 2 and role == 0:
                a("s_cmp_lg_u32 s3, 0\ns_cbranch_scc1 Lkv_nofin")
                a(f"v_lshlrev_b32 v2, 2, v1\nv_add_u32 v15, {GL}, v2")
                for w in range(8): a(f"ds_read_b32 v{192+w}, v15 offset:{256*w}")
                a("s_mul_i32 s55, s61, 13824\ns_lshr_b32 s56, s2, 2\ns_lshl_b32 s56, s56, 8\ns_add_u32 s55, s55, s56\ns_cmp_lt_u32 s2, 216\ns_cselect_b32 s55, s55, 0x7f000000\ns_waitcnt lgkmcnt(0)")
                for w in range(1, 8): a(f"v_add_f32 v192, v192, v{192+w}")
                a("buffer_store_dword v192, v2, s[40:43], s55 offen sc1\nv_mov_b32 v2, 1\ns_lshl_b32 s55, s61, 6\nv_and_b32 v11, 3, v1\nv_lshlrev_b32 v11, 6, v11")
                a("s_waitcnt vmcnt(0)\ns_mov_b64 exec, 1\nbuffer_atomic_add v2, off, s[36:39], s55 sc1\ns_mov_b64 exec, -1")
                a.label("Lkv_nofin")
            if t in (5, 6) and role == 1:
                a(f"s_cmp_lg_u32 s3, 7\ns_cbranch_scc1 Lkv_nofm{t}")
                if t == 5:
                    a(f"s_lshl_b32 s55, s2, 6\nv_lshlrev_b32 v15, 2, v1\nv_add_u32 v15, s55, v15\nv_cmp_gt_u32 vcc, 16, v1\nv_mov_b32 v2, {OOB}\ns_cmp_lt_u32 s2, 216\ns_cselect_b64 vcc, vcc, 0\ns_nop 1\nv_cndmask_b32 v15, v2, v15, vcc")
                    for r in range(4): a(f"s_mov_b32 s55, {13824*r}\nbuffer_load_dword v{216+r}, v15, s[40:43], s55 offen sc1")
                else:
                    a("v_add_f32 v216, v216, v217\nv_add_f32 v218, v218, v219\nv_add_f32 v216, v216, v218")
                    round_bf16(a, 216)
                    a("buffer_store_dword v216, v15, s[20:23], 0 offen sc1")
                a.label(f"Lkv_nofm{t}")
            if t == 7 and role == 1:
                a("s_sub_u32 s6, s3, 4\ns_cmp_ge_u32 s3, 6\ns_cbranch_scc1 Lkv_nls")
                attn_loader_setup(a)
                a.label("Lkv_nls")
                a("s_cmp_lg_u32 s3, 7\ns_cbranch_scc1 Lkv_nl7\ns_lshr_b32 s31, s2, 5\ns_sub_u32 s30, 15, s31")
                a(f"v_and_b32 v3, 1, v1\nv_mov_b32 v4, s30\nv_mov_b32 v2, s31\nv_cmp_eq_u32 vcc, 0, v3\ns_nop 1\nv_cndmask_b32 v3, v2, v4, vcc\nv_lshlrev_b32 v3, 7, v3")
                a.label("Lkv_nl7")
            for ks in range(3):
                if t == 6 and role == 0 and ks == 2:
                    a("s_cmp_lg_u32 s3, 0\ns_cbranch_scc1 Lkv_noh2")
                    for o in h1fin(1): a(o)
                    a.label("Lkv_noh2")
                if t == 7 and role == 1 and ks == 1:
                    a(f"s_cmp_lg_u32 s3, 7\ns_cbranch_scc1 Lkv_nl8\nbuffer_load_dword v244, v3, {SYNC}, 0 offen sc1\nLkv_nl8:")
                a("s_waitcnt lgkmcnt(0)")
                m = mfmas(ks & 1, role); r = reads(ks + 1, (ks + 1) & 1)
                dm = dma_ops((t - 1) & 1) if ((role == 1 or ('nospread' not in os.environ.get('XP', ''))) and ks == int(os.environ.get('DKS', '0')) and 1 <= t <= 6) else None
                for i in range(8):
                    a(m[i])
                    for o in r[2*i:2*i+2]: a(o)
                    if dm and not ('nospread' not in os.environ.get('XP', '')): a(dm[i])
                    if dm and ('nospread' not in os.environ.get('XP', '')) and i % 2 == role: a(dm[4 + i // 2])
                    k = (ks * 8 + i - g0) * per
                    if k >= 0:
                        for o in side[k:k+per]:
                            if o != 's_nop 0' or t not in (4, 5, 6): a(o)
                if dm: a(ADVD)
            d = SLOT if t % 2 == 0 else -SLOT
            a(f"v_add_u32 v5, {d & 0xffffffff}, v5\nv_add_u32 v6, {d & 0xffffffff}, v6")
            a(f"s_waitcnt vmcnt({ {0: 12 + CPF, 1: 2, 2: 2, 3: 2, 4: 5}.get(t, 0) }) lgkmcnt(0)")
            if t == 4 and role == 0:
                a("s_cmp_lg_u32 s3, 0\ns_cbranch_scc1 Lkv_mpd\ns_mov_b32 s100, 0x8000")
                a.label("Lkv_mp")
                a("v_cmp_gt_u32 vcc, 64, v15\ns_sub_u32 s100, s100, 1\ns_cbranch_vccz Lkv_mpd\ns_cmp_eq_u32 s100, 0\ns_cbranch_scc1 Lkv_mpd")
                a("buffer_load_dword v15, v11, s[36:39], 0 offen sc1\ns_waitcnt vmcnt(0)\ns_branch Lkv_mp")
                a.label("Lkv_mpd")
            if t == 7 and role == 1:
                a(f"s_cmp_lg_u32 s3, 7\ns_cbranch_scc1 Lkv_np1\nv_cmp_gt_u32 vcc, 16, v244\nv_mov_b32 v247, {GL}\ns_nop 1")
                a("s_cmp_eq_u64 vcc, 0\ns_cselect_b32 s59, 1, 0\nv_mov_b32 v248, s59\nds_write_b32 v247, v248\ns_waitcnt lgkmcnt(0)")
                a.label("Lkv_np1")
            stamp(a, f'kw{t}')
            a("s_barrier")
            stamp(a, f'kv{t}')
            if t == 7 and role == 1:
                a(f"s_cmp_ge_u32 s3, 6\ns_cbranch_scc1 Lkv_nq0\nv_mov_b32 v247, {GL}\nds_read_b32 v248, v247\ns_waitcnt lgkmcnt(0)")
                a("v_readfirstlane_b32 s51, v248\ns_cmp_eq_u32 s51, 0\ns_cbranch_scc1 Lkv_nq0")
                for i in range(2): wq_part(a); h_part(a)
                a.label("Lkv_nq0")
            if t == 6 and role == 1:
                a("s_cmp_lg_u32 s3, 7\ns_cbranch_scc1 Lkv_ns1\ns_lshr_b32 s55, s2, 4\ns_lshl_b32 s55, s55, 7")
                signal(a, 55, 2)
                a.label("Lkv_ns1")
            m = mfmas(1, role); r = reads(0, 0) if t < 7 else []; dm = dma_ops(t & 1)
            for i in range(8):
                a(m[i])
                for o in r[2*i:2*i+2]: a(o)
                if t < 6 and role == 0 and not ('nospread' not in os.environ.get('XP', '')): a(dm[i])
                if t < 6 and ('nospread' not in os.environ.get('XP', '')) and i % 2 == role: a(dm[i // 2])
            if t < 6 and role == 0 and not ('nospread' not in os.environ.get('XP', '')): a(ADVD)
        stamp(a, 'kv_end')
        def pack(k, dst):
            src = ACC + 8*k
            for p in range(4): a(f"v_cvt_pk_bf16_f32 v{dst+p}, v{src+2*p}, v{src+2*p+1}")
        if role == 1:
            a("s_cmp_ge_u32 s3, 6\ns_cbranch_scc1 Lkv_sw")
            a(f"s_lshl_b32 s55, s6, 14\ns_add_u32 s55, s55, {HAND}\nv_add_u32 v12, s55, v{V_LANE16}\ns_nop 7")
            for k in range(16):
                dst = 16 + 4 * (k % 8)
                pack(k, dst)
                a(f"ds_write_b128 v12, {vr(dst,4)} offset:{1024*k}")
            a("s_waitcnt lgkmcnt(0)\ns_barrier")
            a("s_branch Lat_load")
            a.label("Lkv_sw")
        a("v_lshlrev_b32 v7, 4, v1")
        a("s_lshl_b32 s55, s48, 19\ns_lshl_b32 s56, s49, 13\ns_add_u32 s55, s55, s56")
        a("s_and_b32 s56, s3, 1\ns_lshl_b32 s56, s56, 18\ns_add_u32 s57, s55, s56")
        if role == 1:
            a(f"s_and_b32 s55, s3, 1\ns_lshl_b32 s55, s55, 14\ns_add_u32 s55, s55, {HAND}\nv_add_u32 v2, s55, v7")
            for k in range(16): pack(k, ACC + 4*k)
            make_ws_srd(a, 20, 4, 'vf')
            a("s_cmp_lg_u32 s3, 7\ns_cbranch_scc1 Lkv_np2\ns_cmp_lg_u32 s59, 0\ns_cbranch_scc1 Lkv_np2")
            stamp(a, 'l_h1p0')
            poll(a, 3, 16, 244)
            stamp(a, 'l_h1p1')
            a.label("Lkv_np2")
            a("s_barrier")
            for k in range(16): a(f"ds_read_b128 {vr(128+4*k,4)}, v2 offset:{1024*k}")
            a("s_branch Lat_sw")
        else:
            for k in KORDER: pack(k, KREG[k])
            make_ws_srd(a, 16, 4, 'kf')
            if 'nok' in os.environ.get('XP', ''): a("s_mov_b32 s18, 0")
            a("s_lshr_b32 s56, s3, 1\ns_lshl_b32 s56, s56, 12\ns_add_u32 s57, s57, s56")
            a("v_mov_b32 v6, v7")
            a("s_branch Lat_comp")

def attn_ids(a):
    a("s_and_b32 s28, s2, 7\ns_lshr_b32 s29, s2, 3")
    a("s_and_b32 s30, s29, 3\ns_lshl_b32 s28, s28, 2\ns_add_u32 s28, s28, s30")
    if 'longfirst' in os.environ.get('XP', ''): a("s_lshr_b32 s31, s29, 2\ns_sub_u32 s30, 15, s31")
    else: a("s_lshr_b32 s30, s29, 2\ns_sub_u32 s31, 15, s30")
    a(f"v_and_b32 v8, 63, v0\nv_lshlrev_b32 v{V_LANE16}, 4, v8")

def phase_attn_compute(a):
    a.label("Lat_comp")
    a("s_setprio 1" if 'pc' in os.environ.get('PR', '') else "s_setprio 0" if os.environ.get('PR') else "")
    attn_ids(a)
    a("v_bfe_u32 v2, v8, 2, 2\nv_mul_u32_u24 v2, 1088, v2\nv_lshrrev_b32 v9, 5, v8\nv_lshl_add_u32 v2, v9, 9, v2")
    a("v_bfe_u32 v9, v8, 4, 1\nv_lshl_add_u32 v2, v9, 5, v2\nv_and_b32 v9, 3, v8\nv_lshl_add_u32 v2, v9, 3, v2")
    a(f"s_lshl_b32 s32, s3, 11\ns_add_u32 s32, s32, {WQ_BYTES}\nv_add_u32 v3, s32, v{V_LANE16}")
    a("v_and_b32 v9, 31, v8\ns_lshl_b32 s32, s3, 5\nv_add_u32 v9, s32, v9\nv_lshrrev_b32 v10, 5, v8\nv_lshlrev_b32 v10, 2, v10")
    a(f"v_sub_u32 v9, v9, v10\nv_cvt_f32_i32 v9, v9\nv_add_f32 v9, 0.5, v9\nv_mul_f32 v{V_YD}, {f32(BIG)}, v9")
    QACC = lambda qt, t: (16 + 16*t) if qt == 0 else (O + 16*t)
    QSET = [FR, FR + 24]
    for i in range(0, 64, 2): a(f"v_mov_b64 {vr(16+i,2)}, 0\nv_mov_b64 {vr(O+i,2)}, 0")
    make_ws_srd(a, 20, 4, 'ctx')
    a(f"s_mov_b32 s46, {f32(QSCALE)}\ns_mov_b32 s47, {f32(QSCALE)}")
    def qreads(ks, st):
        b = QSET[st]; r = []
        for qt in range(2): r.append(f"ds_read_b128 {vr(b+16+4*qt,4)}, v3 offset:{qt*8192 + ks*1024}")
        for t in range(4):
            for e in range(2): r.append(f"ds_read_b64_tr_b16 {vr(b+4*t+2*e,2)}, v2 offset:{ks*4352 + e*256 + t*64}")
        return r
    def qmf(st):
        b = QSET[st]
        return [mf(vr(QACC(qt, t), 16), vr(b+4*t, 4), vr(b+16+4*qt, 4), vr(QACC(qt, t), 16)) for t in range(4) for qt in range(2)]
    def front(m, r):
        out = []
        for i, x in enumerate(m):
            out.append(x); out += r[2*i:2*i+2]
        return out
    a("s_mov_b32 s40, 0")
    stamp(a, 'q_pre')
    a("s_barrier\ns_barrier")
    stamp(a, 'q_b0')
    for o in qreads(0, 0): a(o)
    for c in range(18):
        a("s_waitcnt lgkmcnt(0)")
        ops = front(qmf(0), qreads(1, 1))
        if c < 16: ops.insert(20, kstore(c))
        for o in ops: a(o)
        d = AT.SLOT if c % 5 != 4 else -4 * AT.SLOT
        a(f"v_add_u32 v2, {d & 0xffffffff}, v2\nv_add_u32 v3, {d & 0xffffffff}, v3")
        if c == 9: a("s_waitcnt vmcnt(2)")
        if c == 17: a("s_waitcnt vmcnt(0)")
        a("s_waitcnt lgkmcnt(0)")
        for o in front(qmf(1), qreads(0, 0) if c < 17 else []): a(o)
        a("s_barrier")
        stamp(a, f'q{c}')
    a(f"s_mov_b32 s40, {3*AT.SLOT}")
    stamp(a, 'q_end')
    a("v_and_b32 v8, 63, v0\nv_bfe_u32 v9, v8, 4, 1\nv_lshlrev_b32 v9, 17, v9\nv_lshrrev_b32 v10, 5, v8\nv_lshl_add_u32 v9, v10, 8, v9")
    a(f"v_and_b32 v10, 15, v8\nv_lshl_add_u32 v{V_T0}, v10, 4, v9\nv_mov_b32 v{V_T0+1}, {f32(THRESH)}")
    a(ADV[1])
    a("s_nop 7")
    for qt in (1, 0):
        for t in range(4):
            for e in range(2):
                for p in range(4):
                    s_ = QACC(qt, t) + 8*e + 2*p
                    a(f"v_pk_mul_f32 {vr(s_,2)}, {vr(s_,2)}, s[46:47]")
                for p in range(4):
                    s_ = QACC(qt, t) + 8*e + 2*p
                    a(f"v_cvt_pk_bf16_f32 v{(Q, Q2)[qt] + 4*(2*t+e) + p}, v{s_}, v{s_+1}")
        if qt == 1:
            for i in range(8): a(rd(i, KPOS[1]))
    a("s_mov_b32 s42, s30\ns_mov_b32 s43, 0")
    a.label("Lat_qk0")
    a(f"s_lshl_b32 s32, s42, 7\nv_cvt_f32_u32 v{V_Y}, s32\nv_mul_f32 v{V_Y}, {f32(BIG)}, v{V_Y}\nv_add_f32 v{V_Y}, v{V_Y}, v{V_YD}")
    a(f"v_mov_b32 v{V_NEGM}, 0")
    for o in build_ci(): a(o)
    a(ADV[0]); a(ADV[1])
    z = [f"v_mov_b64 {vr(O+i,2)}, 0" for i in range(0, 64, 2)] + [f"v_mov_b64 {vr(P[1]+i,2)}, 0" for i in range(0, 8, 2)]
    z += [f"v_mov_b32 v{V_L}, 0", f"v_mov_b32 v{LU[1]}, 0"]
    m = qk_group(0)
    for i in range(8):
        if i == 0: a("s_waitcnt lgkmcnt(5)")
        if i % 4 == 3: a(W4)
        a(m[i]); a(rd(i, KPOS[0]))
        for o in z[5*i:5*i+5]: a(o)
    a("s_nop 7\ns_nop 1")
    s = S[0]; t = V_T0 + 2; d = V_T0 + 3
    a(f"v_max3_f32 v{d}, v{s}, v{s+1}, v{s+2}")
    for r in range(3, 15, 2): a(f"v_max3_f32 v{d}, v{d}, v{s+r}, v{s+r+1}")
    a(f"v_max_f32 v{d}, v{d}, v{s+15}")
    a(f"v_mov_b32 v{t}, v{d}\ns_nop 1\nv_permlane32_swap_b32 v{d}, v{t}\ns_nop 1")
    a(f"v_max_f32 v{d}, v{d}, v{t}")
    a(f"v_sub_f32 v{V_NEGM}, 0, v{d}")
    for r in range(16): a(f"v_sub_f32 v{s+r}, v{s+r}, v{d}")
    for o in build_ci(): a(o)
    sites = []
    a(f"s_cmp_eq_u32 s43, 0\ns_cbranch_scc1 Lat_ns0\ns_lshr_b32 s32, s28, 2\ns_add_u32 s32, s32, {C_CTX}\ns_lshl_b32 s33, s30, 3\ns_add_u32 s33, s33, s32\ns_lshl_b32 s33, s33, 7\ns_waitcnt vmcnt(0)")
    signal(a, 33, V_Y)
    a.label("Lat_ns0")
    a(f"v_mov_b32 v{V_Y}, v{V_YD}")
    a("s_cmp_eq_u32 s42, 0\ns_cbranch_scc0 Lat_plain_pre")
    a(f"v_add_f32 v{V_Y}, {f32(-64*BIG)}, v{V_Y}\ns_mov_b32 s41, 1\ns_branch Lat_rebuild")
    a.label("Lat_plain_pre")
    a("s_lshl_b32 s41, s42, 1\ns_sub_u32 s41, s41, 1")
    a.label("Lat_plain")
    a("s_barrier")
    sites.append(period(a, 0, 0, VPOS[0], KPOS[1]))
    sites.append(period(a, 1, 1, VPOS[1], KPOS[0], adv=True, tail_ops=["s_sub_u32 s41, s41, 1\ns_cmp_lg_u32 s41, 0"]))
    a("s_cbranch_scc1 Lat_plain")
    a("s_mov_b32 s41, 2")
    a.label("Lat_rebuild")
    a("s_barrier")
    sites.append(period(a, 0, 2, VPOS[0], KPOS[1], rebuild=True))
    sites.append(period(a, 1, 3, VPOS[1], KPOS[0], rebuild=True, adv=True, tail_ops=["s_sub_u32 s41, s41, 1\ns_cmp_lg_u32 s41, 0"]))
    a("s_cbranch_scc1 Lat_rebuild")
    a("s_barrier")
    sites.append(period(a, 0, 4, VPOS[0], VPOS[1]))
    sites.append(period(a, 1, 5, None, VPOS[0], qk=False, adv=True))
    a("s_barrier")
    m = pv_group(1)
    mv = [f"v_mov_b64 {vr(Q+i,2)}, {vr(Q2+i,2)}" for i in range(0, 32, 2)]
    for i in range(8):
        if i % 4 == 3: a(W4)
        a(m[i]); a(rd(i, KPOS[1]))
        for o in mv[2*i:2*i+2]: a(o)
    a("s_cmp_eq_u32 s43, 0\ns_cbranch_scc1 Lat_noE\ns_waitcnt lgkmcnt(0)\ns_barrier")
    a.label("Lat_noE")
    a(f"v_add_f32 v{V_L}, v{V_L}, v{LU[1]}")
    a(f"v_mov_b32 v{t}, v{V_L}\ns_nop 1\nv_permlane32_swap_b32 v{V_L}, v{t}\ns_nop 1\nv_add_f32 v{V_L}, v{V_L}, v{t}")
    a(f"v_rcp_f32 v{T}, v{V_L}\ns_nop 0\nv_mov_b32 v{T+1}, v{T}")
    a("s_lshl_b32 s32, s42, 20\ns_lshl_b32 s33, s3, 18\ns_add_u32 s32, s32, s33\ns_lshl_b32 s33, s28, 12\ns_add_u32 s32, s32, s33")
    a("s_nop 3")
    k = 0
    for tt in range(4):
        for e in range(2):
            src = O + 16*tt + 8*e; dst = S[0] + 4 * k; k += 1
            for p in range(4): a(f"v_pk_mul_f32 {vr(src+2*p,2)}, {vr(src+2*p,2)}, {vr(T,2)}")
            for p in range(4): a(f"v_cvt_pk_bf16_f32 v{dst+p}, v{src+2*p}, v{src+2*p+1}")
            a(f"buffer_store_dwordx4 {vr(dst,4)}, v{V_T0}, s[20:23], s32 offen offset:{tt*1024 + e*512} sc1")
    a("s_cmp_lg_u32 s43, 0\ns_cbranch_scc1 Lat_cend")
    a("s_mov_b32 s43, 1\ns_mov_b32 s42, s31\ns_branch Lat_qk0")
    for site, par in sites:
        a.label(f"Lat_rs{site}")
        a(f"s_call_b64 s[44:45], Lat_rare{par}\ns_branch Lat_rb{site}")
    rare_path(a, 0); rare_path(a, 1)
    a.label("Lat_cend")
    stamp(a, 'at_end')
    a(f"s_lshr_b32 s32, s28, 2\ns_add_u32 s32, s32, {C_CTX}\ns_lshl_b32 s60, s31, 3\ns_add_u32 s60, s60, s32\ns_lshl_b32 s60, s60, 7")

def wq_part(a):
    a("s_add_u32 s32, s40, s37")
    for jj in range(4): a(f"s_add_u32 m0, s32, {1088*jj}\ns_add_u32 s33, s34, {8192*jj}\nbuffer_load_dwordx4 v2, s[8:11], s33 offen lds")
    a(f"s_add_u32 s34, s34, {32*8192}")

def h_part(a):
    a("s_add_u32 s32, s40, s38")
    for qt in range(2):
        for b in range(2):
            a(f"s_add_u32 m0, s32, {qt*8192 + b*2048}\ns_add_u32 s33, s{35+qt}, {b*36864}")
            a(f"buffer_load_dwordx4 v{V_LANE16}, s[12:15], s33 offen sc1 lds\nbuffer_load_dwordx4 v{V_LANE16}, s[12:15], s33 offen offset:1024 sc1 lds")
    a("s_add_u32 s35, s35, 2048\ns_add_u32 s36, s36, 2048")
    a(ADV[0])

def attn_loader_setup(a):
    SLOT = AT.SLOT
    make_srd(a, 8, 32, SIZES['wq'])
    a("s_load_dwordx2 s[56:57], s[0:1], 40\ns_load_dwordx2 s[58:59], s[0:1], 56\ns_load_dwordx2 s[60:61], s[0:1], 72")
    attn_ids(a)
    a("v_lshrrev_b32 v2, 4, v8\nv_lshlrev_b32 v2, 15, v2\nv_and_b32 v3, 15, v8\nv_lshl_add_u32 v2, v3, 4, v2")
    a("s_lshl_b32 s32, s6, 17\nv_add_u32 v2, s32, v2")
    a("s_lshl_b32 s34, s28, 8\ns_mul_i32 s37, s6, 4352")
    make_ws_srd(a, 12, 4, 'h1')
    a("s_lshl_b32 s32, s28, 19")
    srd_off(a, 16, 4, 32, WS['kf'][0], 512*1024); srd_off(a, 20, 4, 32, WS['vf'][0], 512*1024)
    a("s_lshl_b32 s35, s30, 1\ns_add_u32 s35, s35, s6\ns_mul_i32 s35, s35, 73728")
    a("s_lshl_b32 s36, s31, 1\ns_add_u32 s36, s36, s6\ns_mul_i32 s36, s36, 73728")
    a(f"s_lshl_b32 s38, s6, 12\ns_add_u32 s38, s38, {WQ_BYTES}\ns_lshl_b32 s39, s6, 13\ns_mov_b32 s40, 0")
    a("s_sub_u32 s44, s39, 8192\ns_sub_u32 s45, s39, 24576")
    a("s_mov_b32 s46, s44\ns_mov_b32 s47, s45\ns_mov_b32 s48, 0\ns_lshl_b32 s49, s30, 1\ns_add_u32 s49, s49, 3")

def phase_attn_loader(a):
    a.label("Lat_load")
    a("s_setprio 1" if 'pl' in os.environ.get('PR', '') else "s_setprio 0" if os.environ.get('PR') else "")
    a("s_cmp_lg_u32 s51, 0\ns_cbranch_scc1 Lat_early")
    for i in range(2): wq_part(a); h_part(a)
    a.label("Lat_early")
    for i in range(2): wq_part(a); h_part(a)
    a("s_mov_b32 s41, 14")
    a.label("Lat_lq")
    a("s_waitcnt vmcnt(24)\ns_barrier")
    wq_part(a); h_part(a)
    a("s_sub_u32 s41, s41, 1\ns_cmp_lg_u32 s41, 0\ns_cbranch_scc1 Lat_lq")
    a("s_waitcnt vmcnt(24)\ns_barrier")
    def kvload():
        for (srd, so, lo) in ((16, 46, 0), (20, 47, 16384)):
            a(f"s_add_u32 s32, s40, s39\ns_add_u32 m0, s32, {lo}\ns_add_u32 s33, s{so}, 4096")
            for j in range(4): a(f"buffer_load_dwordx4 v{V_LANE16}, {sr(srd,4)}, s{so} offen offset:{1024*j} sc1 lds")
            a(f"s_add_u32 m0, s32, {lo + 4096}\ns_nop 0")
            for j in range(4): a(f"buffer_load_dwordx4 v{V_LANE16}, {sr(srd,4)}, s33 offen offset:{1024*j} sc1 lds")
        a("s_add_u32 s46, s46, 16384\ns_add_u32 s47, s47, 16384\ns_add_u32 s48, s48, 1")
        a("s_cmp_eq_u32 s48, s49\ns_cselect_b32 s46, s44, s46")
        a("s_add_u32 s32, s49, 1\ns_add_u32 s33, s45, 16384\ns_cmp_eq_u32 s48, s32\ns_cselect_b32 s47, s33, s47")
        a(ADV[0])
    kvload()
    a("s_waitcnt vmcnt(28)\ns_barrier")
    kvload()
    a("s_waitcnt lgkmcnt(0)\ns_lshl_b32 s52, s2, 1\ns_add_u32 s52, s52, s6\ns_mul_i32 s50, s52, 9216\ns_mul_i32 s52, s52, 36864\ns_mov_b32 s41, 0")
    make_srd(a, 24, 56, 0 if 'nopf' in os.environ.get('XP', '') else SIZES['wo'])
    a.label("Lat_lpf")
    a("s_waitcnt vmcnt(32)\ns_barrier")
    kvload()
    for g in range(3):
        for j in range(3): a(f"buffer_load_dwordx4 v[8:11], v{V_LANE16}, s[24:27], s50 offen offset:{1024*j}")
        a("s_add_u32 s50, s50, 3072")
    for r in range(2):
        a("s_waitcnt vmcnt(41)\ns_barrier")
        kvload()
    a("s_add_u32 s41, s41, 1")
    for (n, ptr) in ((1, 58), (5, 60)):
        a(f"s_and_b32 s33, s{ptr+1}, 0xffff\ns_cmp_eq_u32 s41, {n}\ns_cselect_b32 s24, s{ptr}, s24\ns_cselect_b32 s25, s33, s25\ns_cselect_b32 s50, s52, s50")
    if 'nopf' not in os.environ.get('XP', ''): a(f"s_mov_b32 s26, {SIZES['w1']}")
    a("s_cmp_lt_u32 s41, 9\ns_cbranch_scc1 Lat_lpf")
    a("s_mov_b32 s41, 8")
    a.label("Lat_lkv")
    a("s_waitcnt vmcnt(32)\ns_barrier")
    kvload()
    a("s_sub_u32 s41, s41, 1\ns_cmp_lg_u32 s41, 0\ns_cbranch_scc1 Lat_lkv")
    a("s_waitcnt vmcnt(32)\ns_barrier\ns_waitcnt vmcnt(16)\ns_barrier")
    a("s_waitcnt vmcnt(0) lgkmcnt(0)\ns_barrier")
    a("s_branch Lat_ldone")

    a.label("Lat_sw")
    a("s_setprio 1" if 'pl' in os.environ.get('PR', '') else "s_setprio 0" if os.environ.get('PR') else "")
    a("s_mov_b32 s62, s57")
    a("s_load_dwordx2 s[56:57], s[0:1], 40\ns_load_dwordx2 s[58:59], s[0:1], 56\ns_load_dwordx2 s[60:61], s[0:1], 72")
    def vstore(n):
        k = n & 15; m_, nn, e = k >> 2, (k >> 1) & 1, k & 1
        reg = 64 + 4*k if n < 16 else 128 + 4*k
        a(f"s_add_u32 s55, s62, {m_*65536 + e*4096 + (2048 if n < 16 else 0)}\nbuffer_store_dwordx4 {vr(reg,4)}, v7, s[20:23], s55 offen offset:{nn*1024}" + ("" if 'wb' in os.environ.get('XP', '').split(',') else " sc1"))
    order = [n for m_ in range(4) for n in list(range(4*m_, 4*m_ + 4)) + list(range(16 + 4*m_, 16 + 4*m_ + 4))]
    a(f"s_add_u32 s32, s48, {C_KV}\ns_lshl_b32 s32, s32, 7\nv_mov_b32 v3, s32\ns_add_u32 s33, s32, {(C_KV2 - C_KV) * 128}\nv_mov_b32 v5, s33")
    a("s_waitcnt lgkmcnt(0)\ns_barrier")
    a("s_cmp_eq_u32 s3, 7\ns_cbranch_scc1 Lat_w7")
    for c in range(30):
        if c < 16 and c != 13: vstore(order[2*c]); vstore(order[2*c + 1])
        if c == 9: a("s_waitcnt vmcnt(4)")
        if c == 17: a("s_waitcnt vmcnt(0)")
        if c in (10, 18): signal(a, 32 if c == 10 else 33, 4)
        if c == 26:
            a("v_and_b32 v6, 15, v1\nv_lshlrev_b32 v6, 7, v6")
            poll(a, 6, 16, 244)
        if c in (13, 21, 29):
            if c == 29: a(f"v_add_u32 v5, {(C_KV3 - C_KV2) * 128}, v5")
            stamp(a, 'l_kvp0' if c == 13 else 'l_kvq0')
            poll(a, 3 if c == 13 else 5, 8, 244)
            stamp(a, 'l_kvp1' if c == 13 else 'l_kvq1')
            if c == 13: vstore(order[2*c]); vstore(order[2*c + 1])
        a("s_barrier")
    a("s_branch Lat_w67")
    a.label("Lat_w7")
    for c in range(30):
        if 18 <= c < 26:
            for q in range(4): vstore(order[4*(c - 18) + q])
        if c == 27:
            a(f"s_waitcnt vmcnt(0)\ns_add_u32 s33, s32, {(C_KV3 - C_KV) * 128}")
            signal(a, 33, 4)
        a("s_barrier")
    a.label("Lat_w67")
    if SENT:
        tok_ids(a)
        a(f"s_mov_b32 s33, {WS['p6'][0]}\ns_cmp_eq_u32 s3, 6\ns_cselect_b32 s32, {WS['p3'][0]}, s33")
        srd_off(a, 24, 4, 32, 0, WS['p3'][1])
        a("v_mov_b32 v8, -1\nv_mov_b32 v9, -1\nv_mov_b32 v10, -1\nv_mov_b32 v11, -1\ns_mov_b32 s50, s44\ns_mov_b32 s41, 4")
        a.label("Lat_pz")
        for g in range(3):
            a("s_barrier")
            for j in range(3): a(f"buffer_store_dwordx4 v[8:11], v7, s[24:27], s50 offen offset:{1024*j} sc1")
            a(f"s_add_u32 s50, s50, {3072 if g < 2 else 256*9216 - 6144}")
        a("s_sub_u32 s41, s41, 1\ns_cmp_lg_u32 s41, 0\ns_cbranch_scc1 Lat_pz")
        a(f"s_barrier\ns_barrier\ns_waitcnt vmcnt(0)\ns_add_u32 s32, s43, {C_PZ}\ns_lshl_b32 s32, s32, 7")
        signal(a, 32, 4)
    a(f"s_mov_b32 s41, {51 - 30 - (14 if SENT else 0)}")
    a.label("Lat_pfd")
    a("s_barrier\ns_sub_u32 s41, s41, 1\ns_cmp_lg_u32 s41, 0\ns_cbranch_scc1 Lat_pfd")
    if 'wpf' in os.environ.get('XP', ''):
        make_srd(a, 24, 56, SIZES['wo'])
        a(f"s_bfe_u32 s50, s2, 0x20001\ns_mul_i32 s50, s50, {1024*1152}\ns_lshr_b32 s32, s2, 3\ns_lshl_b32 s32, s32, 1\ns_and_b32 s33, s3, 1\ns_add_u32 s32, s32, s33")
        a("s_mul_i32 s32, s32, 18432\ns_add_u32 s50, s50, s32")
        for g in range(6):
            for j in range(3): a(f"buffer_load_dwordx4 v[8:11], v7, s[24:27], s50 offen offset:{1024*j}")
            a("s_add_u32 s50, s50, 3072")
    a("s_cmp_lg_u32 s3, 6\ns_cbranch_scc1 Lat_nc0")
    a(f"s_lshr_b32 s32, s2, 5\ns_lshl_b32 s32, s32, 3\ns_and_b32 s33, s2, 7\ns_add_u32 s32, s32, s33\ns_add_u32 s32, s32, {C_CTX}\ns_lshl_b32 s32, s32, 7\nv_mov_b32 v3, s32")
    poll(a, 3, 16, 244)
    a.label("Lat_nc0")
    a("s_barrier\ns_barrier")
    a("s_waitcnt vmcnt(0)")
    a.label("Lat_ldone")

def adv_slot(slot, nslot):
    return f"s_add_u32 s40, s40, {slot}\ns_cmp_eq_u32 s40, {slot*nslot}\ns_cselect_b32 s40, 0, s40"

G16 = {'o': dict(F=16384, W=20480, NST=16, nF=4, nW=5), 'y': dict(F=20480, W=16896, NST=18, nF=5, nW=4)}

def g16_ids(a, kind):
    if kind == 'o':
        a("s_and_b32 s28, s2, 7\ns_lshr_b32 s29, s2, 5\ns_bfe_u32 s30, s2, 0x20003\nv_and_b32 v8, 63, v0\nv_lshlrev_b32 v1, 4, v8")
        return
    a("s_bfe_u32 s28, s2, 0x20001")
    a("s_and_b32 s29, s2, 1\ns_lshl_b32 s29, s29, 3\ns_lshr_b32 s30, s2, 5\ns_add_u32 s29, s29, s30")
    a("s_bfe_u32 s30, s2, 0x20003")
    a("v_and_b32 v8, 63, v0\nv_lshlrev_b32 v1, 4, v8")

def g16_compute_setup(a, kind):
    p = G16[kind]
    g16_ids(a, kind)
    a("v_bfe_u32 v2, v8, 4, 1\nv_lshlrev_b32 v2, 2, v2\nv_bfe_u32 v9, v8, 2, 2\nv_add_u32 v2, v2, v9")
    a("v_lshrrev_b32 v9, 5, v8\nv_and_b32 v10, 3, v8")
    if kind == 'o':
        a("v_lshl_add_u32 v2, v9, 4, v2\nv_mul_u32_u24 v2, 288, v2\nv_lshl_add_u32 v2, v10, 3, v2")
        a(f"v_add_u32 v4, {p['F']}, v2\ns_lshl_b32 s35, s3, 12\nv_add_u32 v5, s35, v1")
    else:
        a("v_mul_u32_u24 v2, 1056, v2\nv_lshl_add_u32 v2, v9, 9, v2\nv_lshl_add_u32 v2, v10, 3, v2")
        a(f"s_lshl_b32 s35, s3, 6\ns_add_u32 s35, s35, {p['F']}\nv_add_u32 v4, s35, v2\nv_mov_b32 v5, v1")
    a("v_mov_b32 v2, v4\nv_mov_b32 v3, v5")
    for i in range(0, 72, 2): a(f"v_mov_b64 {vr(16+i,2)}, 0")
    make_ws_srd(a, 20, 4, 'p3' if kind == 'o' else 'p6')
    a("v_bfe_u32 v6, v8, 4, 1\nv_lshlrev_b32 v6, 1, v6\nv_lshrrev_b32 v9, 5, v8\nv_add_u32 v6, v6, v9\nv_mul_u32_u24 v6, 9216, v6\nv_and_b32 v9, 15, v8\nv_lshl_add_u32 v6, v9, 4, v6")

def g16_compute(a, kind):
    p = G16[kind]; pre = 'Lg' + kind; SLOT = p['F'] + p['W']
    ACC = 16; SET = [96, 144]
    def reads(ks, st):
        b = SET[st]; r = []
        if kind == 'o':
            for t in range(2): r.append(f"ds_read_b128 {vr(b+4*t,4)}, v3 offset:{t*2048 + ks*1024}")
            for c in range(9):
                for e in range(2): r.append(f"ds_read_b64_tr_b16 {vr(b+8+4*c+2*e,2)}, v2 offset:{(32*ks + 8*e)*288 + c*32}")
        else:
            for t in range(2):
                for e in range(2): r.append(f"ds_read_b64_tr_b16 {vr(b+4*t+2*e,2)}, v2 offset:{8*ks*1056 + e*256 + t*32}")
            for c in range(9): r.append(f"ds_read_b128 {vr(b+8+4*c,4)}, v3 offset:{c*2048 + ks*1024}")
        return r
    def mfs(st):
        b = SET[st]
        return [f"v_mfma_f32_16x16x32_bf16 {vr(ACC+4*(9*t+c),4)}, {vr(b+4*t,4)}, {vr(b+8+4*c,4)}, {vr(ACC+4*(9*t+c),4)}"
                for c in range(9) for t in range(2)]
    def kstep(m, r, extra):
        n = len(r); NL = 6 if kind == 'o' else 3
        take = [(n * (i + 1)) // 16 - (n * i) // 16 if i < 16 else 0 for i in range(18)]
        k = 0
        a(f"s_waitcnt lgkmcnt({NL})")
        for i, x in enumerate(m):
            if i == 12: a(f"s_waitcnt lgkmcnt({min(15, k)})")
            a(x)
            for o in r[k:k+take[i]]: a(o)
            k += take[i]
            for o in extra.get(i, []): a(o)
    a(f"s_mov_b32 s40, 0\ns_mov_b32 s41, {p['NST'] if kind == 'y' else 8}\ns_mov_b32 s45, {0 if kind == 'o' else 1}")
    a("s_lshl_b32 s34, s28, 8\ns_lshl_b32 s33, s29, 4\ns_add_u32 s34, s34, s33\ns_lshl_b32 s33, s3, 2\ns_add_u32 s34, s34, s33")
    a("s_mul_i32 s34, s34, 9216\ns_mul_i32 s33, s30, 2304\ns_add_u32 s34, s34, s33")
    if kind == 'y': a("s_barrier")
    a("s_barrier")
    stamp(a, kind + '_b0')
    for o in reads(0, 0): a(o)
    a(f"s_branch {pre}_cin")
    a.label(f"{pre}_cloop")
    a("s_barrier")
    a.label(f"{pre}_cin")
    kstep(mfs(0), reads(1, 1), {14: [adv_slot(SLOT, 4)], 16: ["v_add_u32 v2, s40, v4"], 17: ["v_add_u32 v3, s40, v5"]})
    kstep(mfs(1), reads(0, 0), {16: ["s_sub_u32 s41, s41, 1"], 17: ["s_cmp_lg_u32 s41, 0"],
                                 13: ["s_cmp_lg_u32 s41, 5\ns_cbranch_scc1 Lgo_nd\ns_waitcnt vmcnt(0)\nLgo_nd:"] if kind == 'o' else []})
    a(f"s_cbranch_scc1 {pre}_cloop")
    a.label(f"{pre}_cend")
    stamp(a, kind + '_end')
    a("s_nop 4")
    for c in range(9):
        A_ = ACC + 4*c; B_ = ACC + 4*(9 + c)
        a(f"v_cvt_pk_bf16_f32 v{A_}, v{A_}, v{A_+1}\nv_cvt_pk_bf16_f32 v{A_+1}, v{A_+2}, v{A_+3}")
        a(f"v_cvt_pk_bf16_f32 v{A_+2}, v{B_}, v{B_+1}\nv_cvt_pk_bf16_f32 v{A_+3}, v{B_+2}, v{B_+3}")
    for c in range(9):
        dst = ACC + 4*c
        a(f"v_permlane16_swap_b32 v{dst}, v{dst+2}\nv_permlane16_swap_b32 v{dst+1}, v{dst+3}")
        a(f"buffer_store_dwordx4 {vr(dst,4)}, v6, s[20:23], s34 offen offset:{256*c} sc1")
    if kind == 'o':
        a(f"s_cmp_lg_u32 s45, 0\ns_cbranch_scc1 {pre}_cfin\ns_mov_b32 s45, 1\ns_mov_b32 s41, 8\ns_add_u32 s34, s34, {128*9216}")
        for i in list(range(36, 72, 2)) + list(range(0, 36, 2)): a(f"v_mov_b64 {vr(16+i,2)}, 0")
        a(f"s_branch {pre}_cloop")
        a.label(f"{pre}_cfin")
    a("s_waitcnt lgkmcnt(0)")

def g16_loader_setup(a, kind):
    p = G16[kind]
    g16_ids(a, kind)
    if kind == 'o':
        a("s_mul_i32 s32, s6, 320\ns_mov_b32 s33, 0xe38e38f")
        for jj in range(5):
            a(f"v_add_u32 v9, s32, v8\nv_add_u32 v9, {64*jj}, v9\nv_mul_hi_u32 v10, v9, s33")
            a(f"v_mul_u32_u24 v11, 18, v10\nv_sub_u32 v11, v9, v11\nv_mul_u32_u24 v10, 1152, v10\nv_lshl_add_u32 v{2+jj}, v11, 4, v10")
            a(f"v_cmp_gt_u32 vcc, 1152, v9\nv_mov_b32 v10, {OOB}\ns_nop 1\nv_cndmask_b32 v{2+jj}, v10, v{2+jj}, vcc")
        make_srd(a, 8, 56, SIZES['wo']); make_ws_srd(a, 12, 4, 'ctx')
        a(f"s_mul_i32 s34, s28, {512*1152}\ns_mul_i32 s32, s30, 288\ns_add_u32 s34, s34, s32")
        a("s_lshl_b32 s35, s29, 3\ns_lshl_b32 s32, s6, 1\ns_add_u32 s35, s35, s32\ns_lshl_b32 s35, s35, 17\ns_lshl_b32 s32, s28, 14\ns_add_u32 s35, s35, s32")
        a(f"s_mul_i32 s37, s6, 5120\ns_add_u32 s37, s37, {p['F']}\ns_lshl_b32 s38, s6, 12")
        a(f"s_lshl_b32 s32, s29, 3\ns_add_u32 s32, s32, s28\ns_add_u32 s32, s32, {C_CTX + 64}\ns_lshl_b32 s32, s32, 7\nv_mov_b32 v7, s32")
        if SENT: a(f"s_add_u32 s32, s29, {C_PZ}\ns_lshl_b32 s32, s32, 7\nv_mov_b32 v9, s32\nv_cmp_gt_u32 vcc, 32, v8\ns_nop 1\nv_cndmask_b32 v7, v9, v7, vcc")
    else:
        a("v_lshrrev_b32 v2, 4, v8\nv_lshlrev_b32 v2, 15, v2\nv_and_b32 v9, 15, v8\nv_lshl_add_u32 v2, v9, 4, v2")
        a("s_and_b32 s32, s6, 1\ns_lshl_b32 s32, s32, 14\ns_lshr_b32 s33, s6, 1\ns_lshl_b32 s33, s33, 17\ns_add_u32 s32, s32, s33\nv_add_u32 v2, s32, v2")
        make_srd(a, 8, 60, SIZES['w2']); make_ws_srd(a, 12, 4, 'u')
        a(f"s_mul_i32 s34, s28, {1152*4096}\ns_lshl_b32 s32, s29, 8\ns_add_u32 s34, s34, s32")
        a(f"s_mul_i32 s35, s30, {9*147456}\ns_mul_i32 s32, s28, {36*1024}\ns_add_u32 s35, s35, s32")
        for jj in range(5):
            a(f"s_mul_i32 s32, s6, 5\ns_add_u32 s32, s32, {jj}\ns_lshr_b32 s33, s32, 1\ns_mul_i32 s33, s33, 147456")
            a(f"s_and_b32 s36, s32, 1\ns_lshl_b32 s36, s36, 10\ns_add_u32 s33, s33, s36\ns_add_u32 s33, s33, s35")
            a(f"s_cmp_lt_u32 s32, 18\ns_cselect_b32 s{46+jj}, s33, 0x7f000000")
        a(f"s_mul_i32 s37, s6, 4224\ns_add_u32 s37, s37, {p['F']}\ns_mul_i32 s38, s6, 5120")
        a(f"s_mul_i32 s32, s28, 6\ns_mul_i32 s33, s30, 3\ns_lshr_b32 s33, s33, 1\ns_add_u32 s32, s32, s33\ns_add_u32 s32, s32, {C_U}")
        a("v_and_b32 v7, 1, v8\nv_add_u32 v7, s32, v7\nv_lshlrev_b32 v7, 7, v7")

def g16_w(a, kind):
    if kind == 'o':
        a("s_add_u32 s32, s40, s37")
        for jj in range(5): a(f"s_add_u32 m0, s32, {1024*jj}\ns_nop 0\nbuffer_load_dwordx4 v{2+jj}, s[8:11], s34 offen lds")
        a(f"s_add_u32 s34, s34, {64*1152}")
    else:
        a("s_add_u32 s32, s40, s37")
        for jj in range(4): a(f"s_add_u32 m0, s32, {1056*jj}\ns_add_u32 s33, s34, {4096*jj}\nbuffer_load_dwordx4 v2, s[8:11], s33 offen lds")
        a(f"s_add_u32 s34, s34, {64*4096}")
def g16_f(a, kind):
    if kind == 'o':
        a("s_add_u32 m0, s40, s38\ns_add_u32 s33, s35, 0x20000")
        a("buffer_load_dwordx4 v1, s[12:15], s35 offen sc1 lds\nbuffer_load_dwordx4 v1, s[12:15], s35 offen offset:1024 sc1 lds")
        a("s_add_u32 s32, s40, s38\ns_add_u32 m0, s32, 2048\ns_nop 0")
        a("buffer_load_dwordx4 v1, s[12:15], s33 offen sc1 lds\nbuffer_load_dwordx4 v1, s[12:15], s33 offen offset:1024 sc1 lds")
        a("s_add_u32 s35, s35, 2048")
    else:
        a("s_add_u32 s32, s40, s38")
        for jj in range(5):
            a(f"s_add_u32 m0, s32, {1024*jj}\ns_nop 0\nbuffer_load_dwordx4 v1, s[12:15], s{46+jj} offen sc1 lds\ns_add_u32 s{46+jj}, s{46+jj}, 2048")

def g16_loader_wpro(a, kind):
    p = G16[kind]; SLOT = p['F'] + p['W']
    for i in range(3):
        a(f"s_mov_b32 s40, {i*SLOT}"); g16_w(a, kind)

def g2_wpf(a):
    if 'wpf' not in os.environ.get('XP', ''): return
    a(f"s_mul_i32 s32, s30, {64*4096}\ns_add_u32 s32, s32, s34")
    for i in range(4):
        a(f"s_add_u32 s36, s30, {3 + 4*i}\ns_cmp_lt_u32 s36, 18\ns_cselect_b32 s36, s32, 0x7f000000")
        for jj in range(4): a(f"s_add_u32 s33, s36, {(4*i*64 + jj)*4096}\nbuffer_load_dwordx4 v[12:15], v2, s[8:11], s33 offen")

def o_loader_main(a):
    p = G16['o']; SLOT = p['F'] + p['W']
    for n in range(16):
        if n >= 3:
            a("s_waitcnt vmcnt(9)")
            if n == 8:
                a("s_cmp_lg_u32 s6, 0\ns_cbranch_scc1 Lgo_np\nv_cmp_gt_u32 vcc, 16, v244\ns_nop 1\ns_cbranch_vccz Lgo_np")
                stamp(a, 'l_op0')
                poll(a, 7, 16, 244)
                stamp(a, 'l_op1')
                a.label("Lgo_np")
            a("s_barrier")
        if n == 8: a(f"s_add_u32 s35, s35, {(64 << 17) - 16384}\ns_sub_u32 s34, s34, {8*64*1152}")
        a(f"s_mov_b32 s40, {(n % 4) * SLOT}")
        g16_w(a, 'o'); g16_f(a, 'o')
        if n == 6: a(f"s_cmp_lg_u32 s6, 0\ns_cbranch_scc1 Lgo_nl\nbuffer_load_dword v244, v7, {SYNC}, 0 offen sc1\nLgo_nl:")
    sig_wave4(a, f"s_add_u32 s32, s29, {C_P3}\ns_lshl_b32 s32, s32, 7", 32, "Lgo_ns", 9)
    a("s_waitcnt vmcnt(9)\ns_barrier\ns_waitcnt vmcnt(0)\ns_barrier\ns_barrier")

def g16_loader_main(a, kind):
    p = G16[kind]; pre = 'Lg' + kind; SLOT = p['F'] + p['W']
    if 'gnodma' in os.environ.get('XP', ''): a("s_mov_b32 s10, 0\ns_mov_b32 s14, 0")
    stamp(a, 'l_' + kind + 'p0')
    if kind == 'y': a(f"s_cmp_lg_u32 s6, 0\ns_cbranch_scc1 {pre}_np")
    poll(a, 7, 32 if kind == 'o' else 9, 244)
    if kind == 'y':
        a.label(f"{pre}_np"); a("s_barrier")
    stamp(a, 'l_' + kind + 'p1')
    for i in range(3):
        a(f"s_mov_b32 s40, {i*SLOT}"); g16_f(a, kind)
    a(f"s_mov_b32 s40, {3*SLOT}\ns_mov_b32 s41, {p['NST'] - 3}")
    a(f"s_waitcnt vmcnt({p['nF']})\ns_branch {pre}_lb")
    a.label(f"{pre}_lloop")
    a("s_waitcnt vmcnt(9)")
    a.label(f"{pre}_lb")
    a("s_barrier")
    g16_f(a, kind); g16_w(a, kind)
    a(adv_slot(SLOT, 4))
    a(f"s_sub_u32 s41, s41, 1\ns_cmp_lg_u32 s41, 0\ns_cbranch_scc1 {pre}_lloop")
    a("s_waitcnt vmcnt(9)\ns_barrier\ns_waitcnt vmcnt(0)\ns_barrier\ns_barrier")

def tok_ids(a):
    a("s_bfe_u32 s32, s2, 0x20001\ns_lshl_b32 s32, s32, 2\ns_bfe_u32 s33, s2, 0x20003\ns_add_u32 s32, s32, s33")
    a("s_and_b32 s43, s2, 1\ns_lshl_b32 s43, s43, 3\ns_lshr_b32 s33, s2, 5\ns_add_u32 s43, s43, s33")
    a("s_lshl_b32 s42, s43, 4\ns_add_u32 s42, s42, s32\ns_mul_i32 s44, s42, 9216")
    a(f"v_mov_b32 v232, v0\nv_add_u32 v233, 512, v0\nv_cmp_gt_u32 vcc, 64, v0\nv_mov_b32 v234, 0x0ffffff0\ns_nop 1\nv_cndmask_b32 v233, v234, v233, vcc")
    a("v_lshlrev_b32 v236, 4, v232\nv_lshlrev_b32 v237, 4, v233\nv_mov_b32 v240, 0x3f80\nv_mov_b32 v241, 0x3f800000")

def partial_loads(a, srd, lab, ns):
    for u in range(2):
        if u == 1: a(f"s_cmp_lg_u32 s3, 0\ns_cbranch_scc1 {lab}a")
        a("s_mov_b32 s32, s44")
        for s in range(ns):
            a(f"buffer_load_dwordx4 {vr(96+32*u+4*s,4)}, v{236+u}, {sr(srd,4)}, s32 offen sc1")
            if s < ns - 1: a(f"s_add_u32 s32, s32, {256*9216}")
    a.label(f"{lab}a")
    a("s_waitcnt vmcnt(0)")

def partial_sum(a, u, dst, ns):
    b = 96 + 32*u
    unpack8(a, b, dst)
    for s in range(1, ns):
        for d in range(4):
            a(f"v_dot2c_f32_bf16 v{dst+2*d}, v{b+4*s+d}, v240\nv_dot2c_f32_bf16 v{dst+2*d+1}, v{b+4*s+d}, v241")
    a("s_nop 2")

def ln_row(a, x, n, t0):
    m, v, t = t0, t0 + 1, t0 + 2
    a(f"v_add_f32 v{m}, v{x}, v{x+1}")
    for i in range(2, n): a(f"v_add_f32 v{m}, v{m}, v{x+i}")
    wave_allsum(a, m, t)
    a(f"v_mul_f32 v{m}, 0x3ae38e39, v{m}\nv_mov_b32 v{v}, 0")
    for i in range(n): a(f"v_sub_f32 v{t}, v{x+i}, v{m}\nv_fmac_f32 v{v}, v{t}, v{t}")
    wave_allsum(a, v, t)
    a(f"v_mul_f32 v{v}, 0x3ae38e39, v{v}")
    round_bf16(a, m); round_bf16(a, v)
    a(f"v_add_f32 v{v}, 0x3727c5ac, v{v}"); round_bf16(a, v)
    a(f"v_sqrt_f32 v{v}, v{v}\ns_nop 0"); round_bf16(a, v)
    a(f"v_rcp_f32 v{v}, v{v}")
    for i in range(n): a(f"v_sub_f32 v{x+i}, v{x+i}, v{m}")
    for i in range(n): a(f"v_mul_f32 v{x+i}, v{x+i}, v{v}")

LN_LDS = 4 * 29696

def ln2_pre(a):
    a("s_load_dwordx2 s[46:47], s[0:1], 0")
    tok_ids(a)
    make_ws_srd(a, 48, 4, 'mod')
    a("v_lshlrev_b32 v238, 2, v232\nv_lshlrev_b32 v239, 2, v233\nv_and_b32 v235, 63, v0\nv_lshlrev_b32 v235, 2, v235")
    a(f"s_mov_b32 s32, {2*2304}\nbuffer_load_dword v208, v238, s[48:51], s32 offen sc1\nbuffer_load_dword v209, v239, s[48:51], s32 offen sc1")
    a(f"s_mov_b32 s32, {3*2304}\ns_mov_b32 s33, {4*2304}")
    for i in range(9):
        a(f"buffer_load_dword v{210+i}, v235, s[48:51], s32 offen offset:{256*i} sc1\nbuffer_load_dword v{220+i}, v235, s[48:51], s33 offen offset:{256*i} sc1")
    a("v_lshlrev_b32 v230, 1, v232\nv_lshlrev_b32 v231, 1, v233")
    a("s_waitcnt lgkmcnt(0)")
    make_srd(a, 48, 46, SIZES['x'])
    a("s_mov_b32 s32, s44")
    for t in range(8):
        for u in range(2): a(f"buffer_load_short_d16_hi v{192+8*u+t}, v{230+u}, s[48:51], s32 offen" + (f" offset:{1152*(t%3)}" if t % 3 else ""))
        if t % 3 == 2: a("s_add_u32 s32, s32, 3456")
    a(f"v_add_u32 v238, {LN_LDS}, v238\ns_mul_i32 s32, s3, 2304\ns_add_u32 s32, s32, {LN_LDS}\nv_add_u32 v239, s32, v235")

def ln2_mid(a):
    for i in range(16): a(f"v_and_b32 v{192+i}, 0xffff0000, v{192+i}")
    for i in range(9):
        a(f"v_add_f32 v{220+i}, 1.0, v{220+i}"); round_bf16(a, 220 + i)
    for u in range(2):
        a(f"v_lshrrev_b32 v{230+u}, 5, v{232+u}\nv_lshlrev_b32 v{230+u}, 17, v{230+u}\nv_and_b32 v234, 31, v{232+u}\nv_lshl_add_u32 v{230+u}, v234, 4, v{230+u}")

def ln2_body(a):
    make_ws_srd(a, 48, 4, 'p3')
    partial_loads(a, 48, "Lln_sp", 8)
    make_ws_srd(a, 48, 4, 'x1'); make_ws_srd(a, 52, 4, 'h2')
    stamp(a, 'ln_ld')
    for u in range(2):
        if u == 1: a("s_cmp_lg_u32 s3, 0\ns_cbranch_scc1 Lln_u1")
        partial_sum(a, u, 160, 8)
        for t in range(8): a(f"v_fmac_f32 v{192+8*u+t}, v{208+u}, v{160+t}")
        for p in range(4): a(f"v_cvt_pk_bf16_f32 v{168+4*u+p}, v{192+8*u+2*p}, v{193+8*u+2*p}")
        unpack8(a, 168 + 4*u, 160)
        for t in range(8): a(f"ds_write_b32 v238, v{160+t} offset:{2304*t + 2048*u}")
        a(f"buffer_store_dwordx4 {vr(168+4*u,4)}, v{236+u}, s[48:51], s44 offen sc1")
    a.label("Lln_u1")
    a("s_waitcnt lgkmcnt(0)\ns_barrier")
    a("s_cmp_eq_u32 s3, 4\ns_cselect_b32 s36, 1, 0\ns_cmp_ge_u32 s43, 8\ns_cselect_b32 s36, s36, 0\ns_cmp_lt_u32 s2, 216\ns_cselect_b32 s36, s36, 0")
    a(f"s_cmp_eq_u32 s36, 0\ns_cbranch_scc1 Lln_n1\nbuffer_load_dword v247, v7, {SYNC}, 0 offen sc1\nLln_n1:")
    for i in range(9): a(f"ds_read_b32 v{96+i}, v239 offset:{256*i}")
    a("s_waitcnt lgkmcnt(0)")
    ln_row(a, 96, 9, 108)
    for i in range(9): a(f"v_fma_f32 v{96+i}, v{96+i}, v{220+i}, v{210+i}")
    ln_row(a, 96, 9, 108)
    for i in range(9): a(f"ds_write_b32 v239, v{96+i} offset:{256*i}")
    a("s_cmp_eq_u32 s36, 0\ns_cbranch_scc1 Lln_n2\ns_waitcnt vmcnt(0)\nv_cmp_gt_u32 vcc, 16, v247\ns_nop 1\ns_cbranch_vccz Lln_n2")
    poll(a, 7, 16, 244)
    a.label("Lln_n2")
    a("s_waitcnt lgkmcnt(0)\ns_barrier")
    a("s_cmp_lt_u32 s3, 4\ns_cbranch_scc1 Lln_nf\ns_cmp_ge_u32 s2, 216\ns_cbranch_scc1 Lln_nf\ns_cmp_lt_u32 s43, 8\ns_cbranch_scc1 Lln_nf")
    for i in range(4):
        a(f"s_mov_b32 s40, {i*M1_SLOT}"); m1_f(a)
    a.label("Lln_nf")
    a("s_lshl_b32 s32, s42, 9")
    for u in range(2):
        if u == 1: a("s_cmp_lg_u32 s3, 0\ns_cbranch_scc1 Lln_u2")
        for t in range(8): a(f"ds_read_b32 v{96+8*u+t}, v238 offset:{2304*t + 2048*u}")
        a("s_waitcnt lgkmcnt(0)")
        for p in range(4): a(f"v_cvt_pk_bf16_f32 v{112+4*u+p}, v{96+8*u+2*p}, v{97+8*u+2*p}")
        a(f"buffer_store_dwordx4 {vr(112+4*u,4)}, v{230+u}, s[52:55], s32 offen sc1")
    a.label("Lln_u2")
    stamp(a, 'ln_st')

def h2_signal(a):
    a(f"s_add_u32 s32, s43, {C_H2}\ns_lshl_b32 s32, s32, 7\nv_lshlrev_b32 v10, 11, v8\nv_mov_b32 v9, 1\ns_mov_b64 exec, 0xff")
    a(f"buffer_atomic_add v9, v10, {SYNC}, s32 offen sc1\ns_mov_b64 exec, -1")

def final_pre(a):
    a("s_load_dwordx2 s[46:47], s[0:1], 80\ns_load_dwordx2 s[52:53], s[0:1], 104")
    tok_ids(a)
    make_ws_srd(a, 48, 4, 'mod')
    a("v_lshlrev_b32 v238, 2, v232\nv_lshlrev_b32 v239, 2, v233")
    a(f"s_mov_b32 s32, {5*2304}\nbuffer_load_dword v208, v238, s[48:51], s32 offen sc1\nbuffer_load_dword v209, v239, s[48:51], s32 offen sc1")
    make_ws_srd(a, 48, 4, 'x1')
    for u in range(2): a(f"buffer_load_dwordx4 {vr(192+4*u,4)}, v{236+u}, s[48:51], s44 offen sc1")
    a("v_lshlrev_b32 v230, 1, v232\nv_lshlrev_b32 v231, 1, v233")
    a("s_waitcnt lgkmcnt(0)")
    a("s_lshl_b32 s32, s42, 4\ns_add_u32 s46, s46, s32\ns_addc_u32 s47, s47, 0\ns_load_dwordx4 s[36:39], s[46:47], 0")
    make_srd(a, 24, 52, SIZES['out'])
    a("s_waitcnt lgkmcnt(0)")

def final_mid(a):
    for p in range(4): a(f"s_lshl_b32 s{48+2*p}, s{36+p}, 16\ns_and_b32 s{49+2*p}, s{36+p}, 0xffff0000")
    for u in range(2):
        unpack8(a, 192 + 4*u, 210 + 8*u)
        for t in range(8): a(f"v_fmac_f32 v{210+8*u+t}, s{48+t}, v{208+u}")

def final_body(a):
    make_ws_srd(a, 48, 4, 'p6')
    partial_loads(a, 48, "Lfi_sp", 4)
    for u in range(2):
        if u == 1: a("s_cmp_lg_u32 s3, 0\ns_cbranch_scc1 Lfi_u1")
        partial_sum(a, u, 160, 4)
        for t in range(8): a(f"v_fmac_f32 v{210+8*u+t}, v{208+u}, v{160+t}")
        for p in range(4): a(f"v_cvt_pk_bf16_f32 v{168+4*u+p}, v{210+8*u+2*p}, v{211+8*u+2*p}")
        a("s_mov_b32 s32, s44")
        for t in range(8):
            op = "buffer_store_short" if t % 2 == 0 else "buffer_store_short_d16_hi"
            a(f"{op} v{168+4*u+t//2}, v{230+u}, s[24:27], s32 offen" + (f" offset:{1152*(t%3)}" if t % 3 else ""))
            if t % 3 == 2: a("s_add_u32 s32, s32, 3456")
    a.label("Lfi_u1")

M1_W = 17408; M1_SLOT = M1_W + 12288; M1_NST = 32; M1_X = 114688
def m1_ids(a):
    a("s_and_b32 s32, s2, 7\ns_mul_i32 s32, s32, 27\ns_lshr_b32 s33, s2, 3\ns_add_u32 s32, s32, s33")
    a("s_mul_hi_u32 s28, s32, 0x2aaaaaab\ns_mul_i32 s33, s28, 6\ns_sub_u32 s29, s32, s33")
    a("v_and_b32 v8, 63, v0\nv_lshlrev_b32 v1, 4, v8")

def m1_compute(a):
    pre = 'Lm1'
    ACC = 16; SET = [112, 132]
    a("s_load_dwordx2 s[24:25], s[0:1], 64")
    m1_ids(a)
    a("v_bfe_u32 v2, v8, 2, 2\nv_mul_u32_u24 v2, 1088, v2\nv_lshrrev_b32 v9, 5, v8\nv_lshl_add_u32 v2, v9, 9, v2")
    a("v_bfe_u32 v9, v8, 4, 1\nv_lshl_add_u32 v2, v9, 5, v2\nv_and_b32 v9, 3, v8\nv_lshl_add_u32 v2, v9, 3, v2")
    a("s_and_b32 s30, s3, 1\ns_lshr_b32 s31, s3, 1")
    a("s_lshl_b32 s32, s30, 7\ns_mul_i32 s33, s31, 8704\ns_add_u32 s32, s32, s33\nv_add_u32 v4, s32, v2")
    a(f"s_lshl_b32 s32, s31, 11\ns_add_u32 s32, s32, {M1_W}\nv_add_u32 v5, s32, v1")
    a("v_mov_b32 v2, v4\nv_mov_b32 v3, v5")
    for i in range(0, 96, 2): a(f"v_mov_b64 {vr(ACC+i,2)}, 0")
    a("s_waitcnt lgkmcnt(0)")
    m1_bias(a, 3)
    def reads(ks, st):
        b = SET[st]; r = []
        for d in range(3): r.append(f"ds_read_b128 {vr(b+8+4*d,4)}, v3 offset:{d*4096 + ks*1024}")
        for t in range(2):
            for e in range(2): r.append(f"ds_read_b64_tr_b16 {vr(b+4*t+2*e,2)}, v2 offset:{ks*4352 + e*256 + t*64}")
        return r
    def mfs(st):
        b = SET[st]
        return [mf(vr(ACC+16*(3*t+d),16), vr(b+4*t,4), vr(b+8+4*d,4), vr(ACC+16*(3*t+d),16)) for t in range(2) for d in range(3)]
    def front(m, r):
        out = []
        if 'gnocomp' in os.environ.get('XP', ''): return out
        if 'gnord' in os.environ.get('XP', ''): return m
        for i, x in enumerate(m):
            out.append(x); out += r[2*i:2*i+2]
        return out
    a(f"s_mov_b32 s40, 0\ns_mov_b32 s41, {M1_NST}")
    a("s_barrier")
    stamp(a, 'm1_b0')
    for o in reads(0, 0): a(o)
    a.label(f"{pre}_cloop")
    a("s_waitcnt lgkmcnt(0)")
    for o in front(mfs(0), reads(1, 1)): a(o)
    a(adv_slot(M1_SLOT, 5))
    a("v_add_u32 v2, s40, v4\nv_add_u32 v3, s40, v5")
    a("s_waitcnt lgkmcnt(0)")
    for o in front(mfs(1), reads(0, 0)): a(o)
    a(f"s_sub_u32 s41, s41, 1\ns_cmp_lg_u32 s41, 0\ns_waitcnt vmcnt(0)\ns_barrier\ns_cbranch_scc1 {pre}_cloop")
    stamp(a, 'm1_end')
    a("s_waitcnt lgkmcnt(0)")
    m1_xaddr(a, 3)
    a(f"s_cmp_eq_u32 s31, 0\ns_cbranch_scc1 {pre}_k0")
    for kh in (1, 0):
        if kh == 0: a.label(f"{pre}_k0")
        keep = ACC + 48 * kh; send = ACC + 48 * (1 - kh)
        a("s_nop 7")
        for i in range(12): a(f"ds_write_b128 v2, {vr(send+4*i,4)} offset:{1024*i}")
        for i in range(6): a(f"ds_write_b128 v4, {vr(keep+24+4*i,4)} offset:{1024*i}")
        a("s_waitcnt lgkmcnt(0)\ns_barrier")
        for i in range(6): a(f"ds_read_b128 {vr(send+4*i,4)}, v3 offset:{1024*i}")
        m1_gelu(a, keep, send, 0)
        if kh == 1: a(f"s_branch {pre}_cdone")
    a.label(f"{pre}_cdone")

def m1_xaddr(a, sw):
    a(f"s_mul_i32 s32, s{sw}, 12288\ns_add_u32 s32, s32, {M1_X}\nv_add_u32 v2, s32, v1")
    a(f"s_xor_b32 s33, s{sw}, 2\ns_mul_i32 s33, s33, 12288\ns_add_u32 s33, s33, {M1_X}\nv_add_u32 v3, s33, v1")
    a(f"s_and_b32 s32, s{sw}, 1\ns_mul_i32 s32, s32, 6144\ns_lshr_b32 s33, s{sw}, 1\ns_mul_i32 s33, s33, 37376\ns_add_u32 s32, s32, s33\nv_add_u32 v4, s32, v1")

def m1_bias(a, sw):
    make_srd(a, 16, 24, SIZES['b1'])
    a(f"s_lshl_b32 s32, s28, 2\ns_and_b32 s33, s{sw}, 1\ns_lshl_b32 s33, s33, 1\ns_add_u32 s32, s32, s33\ns_lshr_b32 s33, s{sw}, 1\ns_add_u32 s45, s32, s33")
    a("s_lshl_b32 s32, s45, 6\nv_lshrrev_b32 v9, 5, v8\nv_lshlrev_b32 v9, 3, v9")
    for q in range(4): a(f"buffer_load_dwordx2 {vr(152+2*q,2)}, v9, s[16:19], s32 offen offset:{16*q}")
    make_ws_srd(a, 20, 4, 'u')
    a("v_bfe_u32 v9, v8, 4, 1\nv_mul_u32_u24 v9, 147456, v9\nv_lshrrev_b32 v10, 5, v8\nv_lshl_add_u32 v9, v10, 8, v9")
    a("v_and_b32 v10, 15, v8\nv_lshl_add_u32 v6, v10, 4, v9")
    a(f"s_mul_i32 s39, s29, {6*147456}\ns_lshl_b32 s33, s45, 10\ns_add_u32 s39, s39, s33")

def m1_gelu(a, keep, oth, h0):
    a("s_waitcnt vmcnt(0)" if h0 == 0 else "")
    for q in range(4):
        for h in range(2):
            a(f"v_lshlrev_b32 v{160+4*q+2*h}, 16, v{152+2*q+h}\nv_and_b32 v{161+4*q+2*h}, 0xffff0000, v{152+2*q+h}")
    c1 = -2 * math.sqrt(2 / math.pi) * math.log2(math.e); c2 = c1 * 0.044715
    a(f"v_mov_b32 v10, {f32(c1)}\nv_mov_b32 v11, {f32(c2)}")
    for i in range(3):
        d, e = (h0 + i) >> 1, (h0 + i) & 1
        a(f"s_waitcnt lgkmcnt({4 - 2*i})")
        b = keep + 8*i; o = oth + 8*i
        for r in range(8): a(f"v_add_f32 v{b+r}, v{b+r}, v{o+r}")
        for r in range(8): a(f"v_add_f32 v{b+r}, v{b+r}, v{160+8*e+r}")
        for r in range(8): a(f"v_mul_f32 v{o+r}, v{b+r}, v{b+r}")
        for r in range(8): a(f"v_fma_f32 v{o+r}, v{o+r}, v11, v10")
        for r in range(8): a(f"v_mul_f32 v{o+r}, v{o+r}, v{b+r}")
        for r in range(8): a(f"v_exp_f32 v{o+r}, v{o+r}")
        for r in range(8): a(f"v_add_f32 v{o+r}, 1.0, v{o+r}")
        for r in range(8): a(f"v_rcp_f32 v{o+r}, v{o+r}")
        for r in range(8): a(f"v_mul_f32 v{b+r}, v{b+r}, v{o+r}")
        for p in range(4): a(f"v_cvt_pk_bf16_f32 v{o+p}, v{b+2*p}, v{b+2*p+1}")
        a(f"s_add_u32 s32, s39, {d*2*147456}\nbuffer_store_dwordx4 {vr(o,4)}, v6, s[20:23], s32 offen offset:{e*512} sc1")

def m1_loader_setup(a):
    m1_ids(a)
    a("v_lshrrev_b32 v2, 4, v8\nv_mul_u32_u24 v2, 36864, v2\nv_and_b32 v9, 15, v8\nv_lshl_add_u32 v2, v9, 4, v2")
    a(f"s_mul_i32 s32, s6, {16*9216}\nv_add_u32 v2, s32, v2")
    make_srd(a, 8, 58, SIZES['w1']); make_ws_srd(a, 12, 4, 'h2')
    a("s_lshl_b32 s34, s28, 8")
    a(f"s_mul_i32 s35, s29, {3*131072}\ns_lshl_b32 s32, s6, 10\ns_add_u32 s35, s35, s32")
    a(f"s_mul_i32 s37, s6, 4352\ns_lshl_b32 s38, s6, 10\ns_add_u32 s38, s38, {M1_W}")
    a(f"s_and_b32 s32, s2, 7\ns_lshl_b32 s32, s32, 4\ns_add_u32 s32, s32, {C_H2}\nv_and_b32 v7, 7, v8\nv_add_u32 v7, s32, v7\nv_lshlrev_b32 v7, 7, v7")
def m1_w(a):
    a("s_add_u32 s32, s40, s37")
    for jj in range(4): a(f"s_add_u32 m0, s32, {1088*jj}\ns_add_u32 s33, s34, {9216*jj}\nbuffer_load_dwordx4 v2, s[8:11], s33 offen lds")
    a(f"s_add_u32 s34, s34, {64*9216}")
def m1_f(a):
    a("s_add_u32 s32, s40, s38")
    for d in range(3): a(f"s_add_u32 m0, s32, {4096*d}\ns_add_u32 s33, s35, {131072*d}\nbuffer_load_dwordx4 v1, s[12:15], s33 offen sc1 lds")
    a("s_add_u32 s35, s35, 4096")
def m1_loader_main(a):
    def st(w): a(f"s_waitcnt vmcnt({w})\ns_barrier"); m1_f(a); m1_w(a); a(adv_slot(M1_SLOT, 5))
    a(f"s_mov_b32 s40, {4*M1_SLOT}")
    st(6)
    a("s_waitcnt vmcnt(7)\ns_barrier")
    a("s_cmp_lg_u32 s6, 0\ns_cbranch_scc1 Lm1_ns\ns_cmp_lt_u32 s43, 8\ns_cbranch_scc1 Lm1_ns")
    h2_signal(a)
    a.label("Lm1_ns")
    m1_f(a); m1_w(a); a(adv_slot(M1_SLOT, 5))
    a("s_mov_b32 s41, 8\nv_add_u32 v7, 1024, v7")
    a.label("Lm1_lloop0")
    st(14)
    a("s_sub_u32 s41, s41, 1\ns_cmp_lg_u32 s41, 0\ns_cbranch_scc1 Lm1_lloop0")
    a(f"s_cmp_lg_u32 s6, 0\ns_cbranch_scc1 Lm1_nl\nbuffer_load_dword v244, v7, {SYNC}, 0 offen sc1\nLm1_nl:")
    st(14); st(14)
    a("s_cmp_lg_u32 s6, 0\ns_cbranch_scc1 Lm1_np\ns_waitcnt vmcnt(14)\nv_cmp_gt_u32 vcc, 16, v244\ns_nop 1\ns_cbranch_vccz Lm1_np")
    poll(a, 7, 16, 244)
    a.label("Lm1_np")
    a("s_mov_b32 s41, 16")
    a.label("Lm1_lloop")
    st(14)
    a("s_sub_u32 s41, s41, 1\ns_cmp_lg_u32 s41, 0\ns_cbranch_scc1 Lm1_lloop")
    for w in (14, 7, 0, 0): a(f"s_waitcnt vmcnt({w})\ns_barrier")
    a("s_barrier")

def sig_wave4(a, soff_code, soff, lab, vtmp):
    a(f"s_cmp_lg_u32 s6, 0\ns_cbranch_scc1 {lab}")
    a(soff_code); signal(a, soff, vtmp)
    a.label(lab)

def mega():
    a = Asm(); n = NAME + '_kernel'
    a("s_cmp_ge_u32 s2, 256\ns_cbranch_scc1 Lend")
    stamp(a, 'start')
    phase_kv(a)
    phase_attn_compute(a)
    g16_compute_setup(a, 'o')
    a("s_waitcnt vmcnt(0)")
    stamp(a, 'at_dr')
    signal(a, 60, 9)
    ln2_pre(a)
    g16_compute(a, 'o')
    stamp(a, 'o_st')
    a("s_waitcnt vmcnt(18)")
    ln2_mid(a)
    if not SENT: a("s_waitcnt vmcnt(0)")
    stamp(a, 'o_dr')
    a("s_barrier")
    stamp(a, 'S')
    if not SENT: a("s_barrier")
    a.label("Lln_shared")
    stamp(a, 'R')
    ln2_body(a)
    stamp(a, 'S2')
    a("s_cmp_ge_u32 s3, 4\ns_cbranch_scc1 Ll_after_ln")
    a("s_cmp_lt_u32 s2, 216\ns_cbranch_scc1 Lc_g1\ns_waitcnt vmcnt(0)\ns_barrier\ns_branch Lc_g2")
    a.label("Lc_g1")
    a("s_cmp_ge_u32 s43, 8\ns_cbranch_scc1 Lc_g1b\ns_waitcnt vmcnt(0)\ns_barrier\ns_barrier")
    a.label("Lc_g1b")
    m1_compute(a)
    stamp(a, 'm1_st')
    a("s_waitcnt vmcnt(0)")
    stamp(a, 'm1_dr')
    a("s_barrier")
    stamp(a, 'S3')
    a.label("Lc_g2")
    g16_compute_setup(a, 'y')
    final_pre(a)
    g16_compute(a, 'y')
    stamp(a, 'y_st')
    a("s_waitcnt vmcnt(9)")
    final_mid(a)
    if not SENT: a("s_waitcnt vmcnt(0)\ns_barrier\ns_barrier")
    stamp(a, 'R4')
    a("s_branch Lfinal")
    phase_attn_loader(a)
    g16_loader_setup(a, 'o')
    a("s_barrier\ns_barrier")
    o_loader_main(a)
    ln2_pre(a)
    m1_loader_setup(a)
    a("s_load_dwordx2 s[24:25], s[0:1], 64\ns_waitcnt lgkmcnt(0)")
    m1_bias(a, 6)
    a("s_waitcnt vmcnt(0)")
    ln2_mid(a)
    a("s_barrier")
    sig_wave4(a, f"s_lshr_b32 s32, s2, 5\ns_add_u32 s32, s32, {C_P3 + 8}\ns_lshl_b32 s32, s32, 7", 32, "Ll_s1", 9)
    a("s_cmp_ge_u32 s2, 216\ns_cbranch_scc1 Ll_now1")
    for i in range(4):
        a(f"s_mov_b32 s40, {i*M1_SLOT}"); m1_w(a)
    a.label("Ll_now1")
    if not SENT:
        a("s_cmp_lg_u32 s6, 0\ns_cbranch_scc1 Ll_np1")
        a(f"s_add_u32 s32, s43, {C_P3}\ns_lshl_b32 s32, s32, 7\nv_mov_b32 v10, s32")
        poll(a, 10, 32, 244)
        a.label("Ll_np1")
        a("s_barrier")
    a("s_branch Lln_shared")
    a.label("Ll_after_ln")
    a("s_cmp_ge_u32 s2, 216\ns_cbranch_scc1 Ll_nom1")
    a("s_cmp_ge_u32 s43, 8\ns_cbranch_scc1 Ll_late\ns_waitcnt vmcnt(0)\ns_barrier\ns_cmp_lg_u32 s6, 0\ns_cbranch_scc1 Ll_s2")
    h2_signal(a)
    stamp(a, 'l_h2p0')
    poll(a, 7, 16, 244)
    stamp(a, 'l_h2p1')
    a.label("Ll_s2")
    a("s_barrier")
    for i in range(4):
        a(f"s_mov_b32 s40, {i*M1_SLOT}"); m1_f(a)
    a.label("Ll_late")
    m1_loader_main(a)
    a(f"s_mul_hi_u32 s32, s28, 0x1c71c71d\ns_mul_i32 s32, s32, 6\ns_add_u32 s32, s32, s29\ns_add_u32 s32, s32, {C_U}\ns_lshl_b32 s63, s32, 7")
    g16_loader_setup(a, 'y')
    g16_loader_wpro(a, 'y')
    a("v_mov_b32 v12, v2")
    m1_xaddr(a, 6)
    a("v_mov_b32 v2, v12\ns_barrier")
    for i in range(3):
        a(f"ds_read_b128 {vr(16+8*i,4)}, v4 offset:{2048*i}\nds_read_b128 {vr(20+8*i,4)}, v4 offset:{2048*i + 1024}")
    a("s_waitcnt lgkmcnt(0)")
    for i in range(6): a(f"ds_read_b128 {vr(40+4*i,4)}, v3 offset:{6144 + 1024*i}")
    m1_gelu(a, 16, 40, 3)
    a("s_waitcnt vmcnt(0)\ns_barrier")
    sig_wave4(a, "", 63, "Ll_s3", 9)
    a("s_branch Ll_g2")
    a.label("Ll_nom1")
    a("s_waitcnt vmcnt(0)\ns_barrier\ns_cmp_lg_u32 s6, 0\ns_cbranch_scc1 Ll_nh")
    h2_signal(a)
    a.label("Ll_nh")
    g16_loader_setup(a, 'y')
    g16_loader_wpro(a, 'y')
    if 'fastidle' not in os.environ.get('XP', ''):
        a("s_cmp_lg_u32 s6, 0\ns_cbranch_scc1 Ll_g2\ns_mov_b32 s100, 0x2000")
        a.label("Ll_idle")
        a(f"s_sleep 32\nbuffer_load_dword v244, v7, {SYNC}, 0 offen sc1\ns_waitcnt vmcnt(0)\nv_cmp_gt_u32 vcc, 1, v244\ns_sub_u32 s100, s100, 1")
        a("s_cbranch_vccz Ll_g2\ns_cmp_lg_u32 s100, 0\ns_cbranch_scc1 Ll_idle")
    a.label("Ll_g2")
    g16_loader_main(a, 'y')
    final_pre(a)
    a("s_waitcnt vmcnt(0)")
    final_mid(a)
    if not SENT:
        a("s_barrier")
        a("s_cmp_lg_u32 s6, 0\ns_cbranch_scc1 Ll_np2")
        a(f"s_add_u32 s32, s43, {C_P6}\ns_lshl_b32 s32, s32, 7\nv_mov_b32 v10, s32")
        signal(a, 32, 9)
        poll(a, 10, 16, 244)
        a.label("Ll_np2")
        a("s_barrier")
    a.label("Lfinal")
    final_body(a)
    if STAMP:
        a(f"s_cmp_lg_u32 s3, {STAMP_WAVE}\ns_cbranch_scc1 Lend\ns_waitcnt vmcnt(0)")
        a("s_memrealtime s[92:93]\ns_waitcnt lgkmcnt(0)")
        stamp_flush(a, 15, "Lstf")
    a.label("Lend")
    a("s_endpgm")
    return n, a

def build(path):
    n, a = mega()
    txt = a.text()
    hdr = open('cdna_kernels/' + NAME + '.s.ref').read().split('\n')
    top = [l for l in hdr if l.startswith(';') and '@launch' not in l][:19]
    out = '\n'.join(top) + '\n'
    if os.environ.get('LIST'):
        out += f"; @launch kernel={n} grid=(256,1,1) block=(512,1,1) lds={LDS_TOTAL}\n"
    else:
        out += f"; @launch grid=(256,1,1) block=(512,1,1) lds={LDS_TOTAL}\n"
    if STAMP: out += '; stamps: ' + ','.join(STAMP_LIST) + '\n'
    out += '.amdgcn_target "amdgcn-amd-amdhsa--gfx950"\n' + kernel_header(n) + txt + kernel_desc(n, 256, 102)
    open(path, 'w').write(out)

if __name__ == '__main__':
    build(sys.argv[1] if len(sys.argv) > 1 else 'm.s')
```

```python
import sys, math, os
from gen_common import *
import k_attn as AT
from k_attn import (period, rare_path, build_ci, qk_group, pv_group, rd, mf, ADV, W4, KPOS, VPOS, BIG, QSCALE, THRESH, WQ_BYTES,
                    V_LANE16, V_RD, V_L, V_NEGM, V_Y, V_YD, V_T0, LU, T, CI, S, P, FR, Q, Q2, O)

OOB = "0xffffff00"
KPRIO = 'xkprio' not in os.environ.get('XP', '')
WF = 4 if 'afirst' not in os.environ.get('XP', '') else 0
SENT = ('sent' in os.environ.get('XP', '').split(','))
KORDER = [0, 1, 2, 3, 8, 9, 10, 11, 12, 13, 14, 15, 4, 5, 6, 7]
KREG = {k: (240 + 4*k if k < 4 else 128 + 4*(k - 8) if k >= 8 else 160 + 4*(k - 4)) for k in range(16)}
def kstore(k):
    return f"s_add_u32 s55, s57, {(k >> 2) * 65536}\nbuffer_store_dwordx4 {vr(KREG[k],4)}, v6, s[16:19], s55 offen offset:{(k & 3) * 1024}" + ("" if 'wb' in os.environ.get('XP', '').split(',') else " sc1")
LDS_TOTAL = 163840

def srd_off(a, srd, sptr, soff, add, size):
    a(f"s_add_u32 s{srd+2}, s{soff}, {add}\ns_add_u32 s{srd}, s{sptr}, s{srd+2}\ns_addc_u32 s{srd+1}, s{sptr+1}, 0\ns_and_b32 s{srd+1}, s{srd+1}, 0xffff")
    a(f"s_mov_b32 s{srd+2}, {size}\ns_mov_b32 s{srd+3}, 0x20000")

def phase_kv(a):
    A_BYTES = 32 * 1040; W_BYTES = 16 * 1088; SLOT = A_BYTES + 2 * W_BYTES
    GL = 2 * SLOT
    ML = GL + 2048
    XL = ML + 8192
    HAND = 131072
    ACC = 64; SET = [16, 40]
    NT = ' nt' if 'ntw' in os.environ.get('XP', '') else ''
    NT2 = ' nt' if 'ntg' in os.environ.get('XP', '') else ''
    a("s_load_dwordx8 s[28:35], s[0:1], 0\ns_load_dwordx2 s[36:37], s[0:1], 32\ns_load_dwordx4 s[40:43], s[0:1], 88\ns_load_dwordx4 s[44:47], s[0:1], 112")
    a("v_and_b32 v1, 63, v0\nv_lshrrev_b32 v2, 6, v0\ns_nop 1\nv_readfirstlane_b32 s3, v2")
    a("s_and_b32 s48, s2, 7\ns_lshr_b32 s49, s2, 3")
    a("s_and_b32 s55, s49, 3\ns_lshl_b32 s48, s48, 2\ns_add_u32 s48, s48, s55\ns_lshr_b32 s49, s49, 2")
    a("v_bfe_u32 v3, v1, 3, 2\nv_lshlrev_b32 v3, 13, v3\nv_lshrrev_b32 v4, 5, v1\nv_lshl_add_u32 v3, v4, 18, v3\nv_and_b32 v4, 7, v1\nv_lshl_add_u32 v3, v4, 4, v3")
    a("s_and_b32 s55, s3, 1\ns_lshl_b32 s55, s55, 12\ns_lshr_b32 s56, s3, 1\ns_lshl_b32 s56, s56, 19\ns_add_u32 s55, s55, s56")
    a("v_add_u32 v3, s55, v3")
    a("v_lshrrev_b32 v4, 4, v1\nv_lshlrev_b32 v4, 15, v4\nv_and_b32 v5, 15, v1\nv_lshl_add_u32 v4, v5, 4, v4")
    a("s_and_b32 s55, s3, 3\ns_lshl_b32 s55, s55, 17\nv_add_u32 v4, s55, v4")
    a("s_lshl_b32 s50, s49, 15\ns_lshl_b32 s51, s48, 8\ns_mul_i32 s52, s3, 4160")
    a(f"s_mul_i32 s53, s3, 4352\ns_add_u32 s53, s53, {A_BYTES}")
    a("s_and_b32 s61, s2, 3\ns_mul_i32 s55, s61, 144\nv_lshrrev_b32 v8, 3, v0\nv_add_u32 v8, s55, v8\nv_mul_u32_u24 v245, 6912, v8\nv_and_b32 v2, 7, v0")
    a("v_lshl_add_u32 v245, v2, 4, v245\ns_lshr_b32 s55, s2, 2\ns_lshl_b32 s55, s55, 7\nv_add_u32 v245, s55, v245\nv_lshlrev_b32 v8, 1, v8")
    a("s_lshl_b32 s60, s2, 3\ns_add_u32 s60, s60, s3\ns_mul_i32 s55, s60, 1152\nv_lshlrev_b32 v10, 4, v1\nv_add_u32 v10, s55, v10")
    a(f"v_cmp_gt_u32 vcc, 8, v1\nv_mov_b32 v15, {OOB}\nv_add_u32 v11, 1024, v10\nv_cndmask_b32 v11, v15, v11, vcc")
    a("s_waitcnt lgkmcnt(0)")
    a("s_mov_b32 s4, s46\ns_mov_b32 s5, s47")
    make_srd(a, 8, 30, SIZES['ckv'])
    a("s_cmp_lt_u32 s3, 4\ns_cselect_b32 s34, s34, s36\ns_cselect_b32 s35, s35, s37")
    make_srd(a, 12, 34, SIZES['wuk'])
    def dma_ops(slot):
        ops = []
        for jj in range(4):
            ops.append(f"s_add_u32 m0, s52, {slot*SLOT + 16*jj}\ns_nop 0\nbuffer_load_dwordx4 v3, s[8:11], s50 offen offset:{1024*jj} lds")
        for jj in range(4):
            ops.append(f"s_add_u32 m0, s53, {slot*SLOT + 1088*jj}\ns_add_u32 s55, s51, {8192*jj}\nbuffer_load_dwordx4 v4, s[12:15], s55 offen{NT} lds")
        return ops
    ADVD = f"s_add_u32 s50, s50, 128\ns_add_u32 s51, s51, {64*8192}"
    for st in range(2):
        for o in dma_ops(st): a(o)
        a(ADVD)
    CPF = 0 if 'nocpf' in os.environ.get('XP', '') else 1
    if CPF:
        a("s_getpc_b64 s[16:17]")
        a.label("Lpc")
        a("s_and_b32 s17, s17, 0xffff\ns_mov_b32 s18, Lend-Lpc\ns_mov_b32 s19, 0x20000")
        a("s_lshr_b32 s55, s2, 3\ns_lshl_b32 s55, s55, 3\ns_add_u32 s55, s55, s3\ns_lshl_b32 s55, s55, 9\nv_lshlrev_b32 v2, 3, v1")
        a("buffer_load_dwordx2 v[220:221], v2, s[16:19], s55 offen")
    a("s_lshl_b32 s63, s49, 15\ns_and_b32 s55, s48, 3\ns_lshl_b32 s55, s55, 10\ns_add_u32 s63, s63, s55")
    a("s_and_b32 s7, s49, 3\ns_lshl_b32 s7, s7, 13\ns_lshl_b32 s55, s48, 8\ns_add_u32 s7, s7, s55")
    a("s_bfe_u32 s55, s3, 0x10001\ns_lshr_b32 s56, s49, 2\ns_cmp_eq_u32 s55, s56\ns_cselect_b32 s7, s7, 0x7f000000")
    if 'nol2' in os.environ.get('XP', ''): a("s_mov_b32 s7, 0x7f000000\ns_mov_b32 s63, 0x7f000000")
    def l2pf(t):
        return [f"buffer_load_dwordx4 v[220:223], v3, s[8:11], s63 offen offset:{128*t}",
                f"s_add_u32 s56, s7, {t*64*8192}\nbuffer_load_dwordx4 v[220:223], v4, s[12:15], s56 offen{NT}"]
    l = Ops()
    make_srd(l, 16, 40, SIZES['c']); make_srd(l, 20, 42, SIZES['wmod']); make_srd(l, 24, 28, SIZES['x'])
    l("s_cmp_lt_u32 s2, 216\ns_cselect_b32 s22, s22, 0")
    l(f"s_mov_b32 s59, 0x7f000000\ns_cmp_lt_u32 s3, 2\ns_cselect_b32 s58, {128*6912}, s59\ns_cselect_b32 s59, 256, s59\ns_mov_b32 s55, {64*6912}")
    for i, (so, sc) in enumerate((('0', '0 offen'), ('s55', '0 offen offset:128'), ('s58', 's59 offen'))):
        l(f"buffer_load_dwordx4 {vr(192+4*i,4)}, v245, s[20:23], {so} offen{NT2}")
        l(f"buffer_load_ushort v{204+i}, v8, s[16:19], {sc}")
    l(f"buffer_load_dwordx4 v[224:227], v10, s[24:27], 0 offen\nbuffer_load_dwordx4 v[228:231], v11, s[24:27], 0 offen")
    make_ws_srd(l, 96, 4, 'sync')
    l(f"v_lshlrev_b32 v2, 2, v1\ns_lshl_b32 s55, s2, 8\nv_add_u32 v2, s55, v2\nv_mov_b32 v243, 0")
    l.lines.append("ZSTORE")
    make_srd(l, 36, 44, 256); make_ws_srd(l, 40, 4, 'modp'); make_srd(l, 16, 32, SIZES['wq']); make_ws_srd(l, 24, 4, 'h1'); make_ws_srd(l, 20, 4, 'mod')
    def sloads(role):
        return [(f"s_cmp_lg_u32 s3, 0\ns_cbranch_scc1 Lkv_nz\nbuffer_store_dword v243, v2, {SYNC}, 0 offen sc1\nLkv_nz:" if role == 0 else "s_nop 0")
                if o == "ZSTORE" else o for o in l.ops()]
    a("v_and_b32 v5, 7, v1\nv_mul_u32_u24 v5, 1040, v5\nv_bfe_u32 v6, v1, 3, 2\nv_lshl_add_u32 v5, v6, 7, v5")
    a("v_lshrrev_b32 v6, 5, v1\nv_lshl_add_u32 v5, v6, 4, v5")
    a("s_and_b32 s55, s3, 1\ns_mul_i32 s55, s55, 16640\nv_add_u32 v5, s55, v5")
    a("v_bfe_u32 v6, v1, 2, 2\nv_mul_u32_u24 v6, 1088, v6\nv_lshrrev_b32 v7, 5, v1\nv_lshl_add_u32 v6, v7, 9, v6")
    a("v_bfe_u32 v7, v1, 4, 1\nv_lshl_add_u32 v6, v7, 5, v6\nv_and_b32 v7, 3, v1\nv_lshl_add_u32 v6, v7, 3, v6")
    a(f"s_lshr_b32 s55, s3, 2\ns_mul_i32 s55, s55, {W_BYTES}\ns_bfe_u32 s56, s3, 0x10001\ns_lshl_b32 s56, s56, 7")
    a(f"s_add_u32 s55, s55, s56\ns_add_u32 s55, s55, {A_BYTES}\nv_add_u32 v6, s55, v6")
    a(f"v_lshrrev_b32 v9, 3, v0\nv_lshlrev_b32 v13, 9, v9\nv_lshlrev_b32 v9, 5, v9\nv_add_u32 v9, {ML}, v9\nv_lshlrev_b32 v12, 4, v0\nv_cmp_gt_u32 vcc, 288, v0\ns_nop 1\nv_cndmask_b32 v12, v15, v12, vcc")
    a("s_lshr_b32 s55, s2, 2\ns_mul_i32 s55, s55, 36864\ns_and_b32 s56, s2, 3\ns_lshl_b32 s56, s56, 7\ns_add_u32 s62, s55, s56")
    a(f"v_and_b32 v14, 7, v0\nv_lshl_add_u32 v13, v14, 4, v13\ns_lshl_b32 s55, s3, 4\ns_add_u32 s55, s55, {XL}\nv_lshlrev_b32 v14, 7, v1\nv_add_u32 v14, s55, v14")
    a(f"s_lshl_b32 s55, s3, 8\ns_add_u32 s55, s55, {GL}\nv_lshlrev_b32 v7, 5, v1\nv_add_u32 v7, s55, v7")
    for i in range(0, 128, 2): a(f"v_mov_b64 {vr(ACC+i,2)}, 0")

    pf = ["s_mul_i32 s55, s60, 2304\nv_lshlrev_b32 v2, 4, v1"] + [f"buffer_load_dwordx4 v[220:223], v2, s[16:19], s55 offen offset:{1024*i}" for i in range(3)]
    g = Ops()
    for i in range(3):
        c = 204 + i
        g(f"v_lshlrev_b32 v{c}, 16, v{c}\nv_mul_f32 v216, 0xbfb8aa3b, v{c}\nv_exp_f32 v216, v216\ns_nop 0\nv_add_f32 v216, 1.0, v216\nv_rcp_f32 v216, v216\ns_nop 0\nv_mul_f32 v{c}, v{c}, v216")
        round_bf16(g, c)
        for d in range(4):
            w = 192 + 4*i + d
            op = "v_mul_f32" if i == 0 else "v_fmac_f32"
            g(f"v_lshlrev_b32 v216, 16, v{w}\nv_and_b32 v217, 0xffff0000, v{w}\n{op} v{208+2*d}, v{c}, v216\n{op} v{209+2*d}, v{c}, v217")
    g("s_nop 1")
    for k in range(8): g(f"v_add_f32_dpp v{208+k}, v{208+k}, v{208+k} row_ror:8 row_mask:0xf bank_mask:0xf")
    for sw in ("v_permlane16_swap_b32", "v_permlane32_swap_b32"):
        for k in range(8): g(f"v_mov_b32 v{192+k}, v{208+k}")
        g("s_nop 0")
        for k in range(8): g(f"{sw} v{208+k}, v{192+k}")
        for k in range(8): g(f"v_add_f32 v{208+k}, v{208+k}, v{192+k}")
    gemv = g.ops() + ["s_mov_b64 exec, 0xff\nds_write_b128 v7, v[208:211]\nds_write_b128 v7, v[212:215] offset:16\ns_mov_b64 exec, -1"]
    mload = [f"v_lshlrev_b32 v10, 4, v0\nv_add_u32 v10, {ML}, v10"] + [f"s_mov_b32 s55, {13824*r}\nbuffer_load_dwordx4 {vr(192+4*r,4)}, v12, s[40:43], s55 offen sc1" for r in range(4)]
    q = Ops()
    for k in range(4): q(f"v_add_f32 v{192+k}, v{192+k}, v{196+k}\nv_add_f32 v{200+k}, v{200+k}, v{204+k}")
    for k in range(4): q(f"v_add_f32 v{192+k}, v{192+k}, v{200+k}")
    round_pairs(q, 192, 4, 2)
    q("v_cmp_lt_u32 vcc, 143, v0\ns_nop 1\nv_cndmask_b32 v196, 0, 1.0, vcc")
    for k in range(4): q(f"v_add_f32 v{192+k}, v{192+k}, v196")
    round_pairs(q, 192, 4, 2)
    q("ds_write_b128 v10, v[192:195]")
    msum = q.ops()
    x = Ops()
    unpack8(x, 224, 232); unpack8(x, 228, 240)
    x("v_add_f32 v216, v232, v233")
    for i in range(234, 248): x(f"v_add_f32 v216, v216, v{i}")
    wave_allsum(x, 216, 217)
    x("v_mul_f32 v216, 0x3ae38e39, v216\nv_cmp_gt_u32 vcc, 8, v1\nv_mov_b32 v219, 0\ns_nop 0\nv_cndmask_b32 v218, 0, v216, vcc")
    for i in range(16): x(f"v_sub_f32 v217, v{232+i}, v{216 if i < 8 else 218}\nv_fmac_f32 v219, v217, v217")
    wave_allsum(x, 219, 217)
    x("v_mul_f32 v219, 0x3ae38e39, v219")
    round_bf16(x, 216); round_bf16(x, 219)
    x("v_add_f32 v219, 0x3727c5ac, v219"); round_bf16(x, 219)
    x("v_sqrt_f32 v219, v219\ns_nop 0"); round_bf16(x, 219)
    x("v_rcp_f32 v219, v219\ns_nop 0")
    for i in range(16): x(f"v_sub_f32 v{232+i}, v{232+i}, v216")
    round_pairs(x, 232, 16, 217)
    for i in range(16): x(f"v_mul_f32 v{232+i}, v{232+i}, v219")
    for p in range(8): x(f"v_cvt_pk_bf16_f32 v{248+p}, v{232+2*p}, v{233+2*p}")
    x("ds_write_b128 v14, v[248:251]\nds_write_b128 v14, v[252:255] offset:8192")
    xst = x.ops()
    def h1fin(u):
        h = Ops()
        h(f"ds_read_b128 v[224:227], v10 offset:{XL - ML + 8192*u}")
        for k, off in enumerate((0, 16, 2304, 2320)): h(f"ds_read_b128 {vr(192+4*k,4)}, v9 offset:{off + 2048*u}")
        h("s_waitcnt lgkmcnt(0)")
        unpack8(h, 224, 232)
        for i in range(8): h(f"v_mul_f32 v{232+i}, v{232+i}, v{200+i}")
        round_pairs(h, 232, 8, 2)
        for i in range(8): h(f"v_add_f32 v{232+i}, v{232+i}, v{192+i}")
        for p in range(4): h(f"v_cvt_pk_bf16_f32 v{228+4*u+p}, v{232+2*p}, v{233+2*p}") if u == 0 else h(f"v_cvt_pk_bf16_f32 v{240+p}, v{232+2*p}, v{233+2*p}")
        h(f"s_add_u32 s55, s62, {32768*u}\nbuffer_store_dwordx4 {vr(228 if u == 0 else 240,4)}, v13, s[24:27], s55 offen sc1")
        return h.ops()

    def reads(ks, s):
        b = SET[s]; r = []
        for nn in range(2):
            for e in range(2): r.append(f"ds_read_b64_tr_b16 {vr(b+16+4*nn+2*e,2)}, v6 offset:{ks*4352 + e*256 + nn*64}")
        for m in range(4): r.append(f"ds_read_b128 {vr(b+4*m,4)}, v5 offset:{(m>>1)*8320 + (m&1)*512 + ks*32}")
        return r
    def mfmas(s, role):
        b = SET[s]; r = []
        for m in range(4):
            for nn in range(2):
                acc = vr(ACC + 16*(2*m+nn), 16); c = vr(b+4*m, 4); w = vr(b+16+4*nn, 4)
                r.append(mf(acc, w, c, acc) if role == 0 else mf(acc, c, w, acc))
        return r
    stamp(a, 'kv_pro')
    a(f"s_waitcnt vmcnt({8 + CPF})\ns_barrier")
    stamp(a, 'kv_b0')
    for o in reads(0, 0): a(o)
    a("s_cmp_lt_u32 s3, 4\ns_cbranch_scc0 Lkv_r1")
    for role in range(2):
        a.label(f"Lkv_r{role}")
        if role == 1 and 'p1' in os.environ.get('PR', ''): a("s_setprio 1")
        if role == 0 and 'p0' in os.environ.get('PR', ''): a("s_setprio 1")
        hx = len(xst) // 2
        for t in range(8):
            pl = ['s_cmp_lg_u32 s3, 0\ns_cbranch_scc1 Lkv_npl\nbuffer_load_dword v15, v11, s[36:39], 0 offen sc1\nLkv_npl:'] if role == 0 else []
            side = {0: l2pf(2) + l2pf(3) + sloads(role), 1: gemv, 2: xst[:hx], 3: xst[hx:], 4: ['s_nop 0'] * 10 + pl + pf,
                    5: mload + ['s_nop 0'] * 40 + ['s_waitcnt vmcnt(0)'] + msum, 6: h1fin(0) + ['s_nop 0'] * 46}.get(t, [])
            if 'noval' in os.environ.get('XP', '') and t in (1, 2, 3): side = [o for o in side if 'buffer' in o or 'ds_' in o]
            if 'novm' in os.environ.get('XP', '') and t == 4: side = [o if 'buffer' not in o else o.replace('s55 offen', 's100 offen') for o in side]; a('s_mov_b32 s100, 0x7f000000')
            g0 = 8 * (int(os.environ.get('DKS', '0')) + 1) if ((role == 1 or ('nospread' not in os.environ.get('XP', ''))) and t in (4, 5, 6)) else 0
            if 1 <= t <= 4: side = side + l2pf(t + 3)
            per = (len(side) + 23 - g0) // (24 - g0)
            if t == 1: a(f"s_waitcnt vmcnt({0 if 'nospread' in os.environ.get('XP', '') and role == 1 else 4})")
            if t == 2 and role == 0:
                a("s_cmp_lg_u32 s3, 0\ns_cbranch_scc1 Lkv_nofin")
                a(f"v_lshlrev_b32 v2, 2, v1\nv_add_u32 v15, {GL}, v2")
                for w in range(8): a(f"ds_read_b32 v{192+w}, v15 offset:{256*w}")
                a("s_mul_i32 s55, s61, 13824\ns_lshr_b32 s56, s2, 2\ns_lshl_b32 s56, s56, 8\ns_add_u32 s55, s55, s56\ns_cmp_lt_u32 s2, 216\ns_cselect_b32 s55, s55, 0x7f000000\ns_waitcnt lgkmcnt(0)")
                for w in range(1, 8): a(f"v_add_f32 v192, v192, v{192+w}")
                a("buffer_store_dword v192, v2, s[40:43], s55 offen sc1\nv_mov_b32 v2, 1\ns_lshl_b32 s55, s61, 6\nv_and_b32 v11, 3, v1\nv_lshlrev_b32 v11, 6, v11")
                a("s_waitcnt vmcnt(0)\ns_mov_b64 exec, 1\nbuffer_atomic_add v2, off, s[36:39], s55 sc1\ns_mov_b64 exec, -1")
                a.label("Lkv_nofin")
            if t in (5, 6) and role == 1:
                a(f"s_cmp_lg_u32 s3, 7\ns_cbranch_scc1 Lkv_nofm{t}")
                if t == 5:
                    a(f"s_lshl_b32 s55, s2, 6\nv_lshlrev_b32 v15, 2, v1\nv_add_u32 v15, s55, v15\nv_cmp_gt_u32 vcc, 16, v1\nv_mov_b32 v2, {OOB}\ns_cmp_lt_u32 s2, 216\ns_cselect_b64 vcc, vcc, 0\ns_nop 1\nv_cndmask_b32 v15, v2, v15, vcc")
                    for r in range(4): a(f"s_mov_b32 s55, {13824*r}\nbuffer_load_dword v{216+r}, v15, s[40:43], s55 offen sc1")
                else:
                    a("v_add_f32 v216, v216, v217\nv_add_f32 v218, v218, v219\nv_add_f32 v216, v216, v218")
                    round_bf16(a, 216)
                    a("buffer_store_dword v216, v15, s[20:23], 0 offen sc1")
                a.label(f"Lkv_nofm{t}")
            if t == 7 and role == 1:
                a("s_sub_u32 s6, s3, 4\ns_cmp_ge_u32 s3, 6\ns_cbranch_scc1 Lkv_nls")
                attn_loader_setup(a)
                a.label("Lkv_nls")
                a("s_cmp_lg_u32 s3, 7\ns_cbranch_scc1 Lkv_nl7\ns_lshr_b32 s31, s2, 5\ns_sub_u32 s30, 15, s31")
                a(f"v_and_b32 v3, 1, v1\nv_mov_b32 v4, s30\nv_mov_b32 v2, s31\nv_cmp_eq_u32 vcc, 0, v3\ns_nop 1\nv_cndmask_b32 v3, v2, v4, vcc\nv_lshlrev_b32 v3, 7, v3")
                a.label("Lkv_nl7")
            for ks in range(3):
                if t == 6 and role == 0 and ks == 2:
                    a("s_cmp_lg_u32 s3, 0\ns_cbranch_scc1 Lkv_noh2")
                    for o in h1fin(1): a(o)
                    a.label("Lkv_noh2")
                if t == 7 and role == 1 and ks == 1:
                    a(f"s_cmp_lg_u32 s3, 7\ns_cbranch_scc1 Lkv_nl8\nbuffer_load_dword v244, v3, {SYNC}, 0 offen sc1\nLkv_nl8:")
                if KPRIO: a(f"s_setprio {2 - ks}")
                a("s_waitcnt lgkmcnt(0)")
                m = mfmas(ks & 1, role); r = reads(ks + 1, (ks + 1) & 1)
                dm = dma_ops((t - 1) & 1) if ((role == 1 or ('nospread' not in os.environ.get('XP', ''))) and ks == int(os.environ.get('DKS', '0')) and 1 <= t <= 6) else None
                for i in range(8):
                    a(m[i])
                    for o in r[2*i:2*i+2]: a(o)
                    if dm and not ('nospread' not in os.environ.get('XP', '')): a(dm[i])
                    if dm and ('nospread' not in os.environ.get('XP', '')) and i % 2 == role: a(dm[(4 - WF) + i // 2])
                    k = (ks * 8 + i - g0) * per
                    if k >= 0:
                        for o in side[k:k+per]:
                            if o != 's_nop 0' or t not in (4, 5, 6): a(o)
                if dm: a(ADVD)
            d = SLOT if t % 2 == 0 else -SLOT
            a(f"v_add_u32 v5, {d & 0xffffffff}, v5\nv_add_u32 v6, {d & 0xffffffff}, v6")
            a(f"s_waitcnt vmcnt({ {0: 12 + CPF, 1: 2, 2: 2, 3: 2, 4: 5}.get(t, 0) }) lgkmcnt(0)")
            if t == 4 and role == 0:
                a("s_cmp_lg_u32 s3, 0\ns_cbranch_scc1 Lkv_mpd\ns_mov_b32 s100, 0x8000")
                a.label("Lkv_mp")
                a("v_cmp_gt_u32 vcc, 64, v15\ns_sub_u32 s100, s100, 1\ns_cbranch_vccz Lkv_mpd\ns_cmp_eq_u32 s100, 0\ns_cbranch_scc1 Lkv_mpd")
                a("buffer_load_dword v15, v11, s[36:39], 0 offen sc1\ns_waitcnt vmcnt(0)\ns_branch Lkv_mp")
                a.label("Lkv_mpd")
            if t == 7 and role == 1:
                a(f"s_cmp_lg_u32 s3, 7\ns_cbranch_scc1 Lkv_np1\nv_cmp_gt_u32 vcc, 16, v244\nv_mov_b32 v247, {GL}\ns_nop 1")
                a("s_cmp_eq_u64 vcc, 0\ns_cselect_b32 s59, 1, 0\nv_mov_b32 v248, s59\nds_write_b32 v247, v248\ns_waitcnt lgkmcnt(0)")
                a.label("Lkv_np1")
            stamp(a, f'kw{t}')
            a("s_barrier")
            stamp(a, f'kv{t}')
            if t == 7 and role == 1:
                a(f"s_cmp_ge_u32 s3, 6\ns_cbranch_scc1 Lkv_nq0\nv_mov_b32 v247, {GL}\nds_read_b32 v248, v247\ns_waitcnt lgkmcnt(0)")
                a("v_readfirstlane_b32 s51, v248\ns_cmp_eq_u32 s51, 0\ns_cbranch_scc1 Lkv_nq0")
                for i in range(2): wq_part(a); h_part(a)
                a.label("Lkv_nq0")
            if t == 6 and role == 1:
                a("s_cmp_lg_u32 s3, 7\ns_cbranch_scc1 Lkv_ns1\ns_lshr_b32 s55, s2, 4\ns_lshl_b32 s55, s55, 7")
                signal(a, 55, 2)
                a.label("Lkv_ns1")
            if KPRIO: a("s_setprio 3")
            m = mfmas(1, role); r = reads(0, 0) if t < 7 else []; dm = dma_ops(t & 1)
            for i in range(8):
                a(m[i])
                for o in r[2*i:2*i+2]: a(o)
                if t < 6 and role == 0 and not ('nospread' not in os.environ.get('XP', '')): a(dm[i])
                if t < 6 and ('nospread' not in os.environ.get('XP', '')) and i % 2 == role: a(dm[WF + i // 2])
            if t < 6 and role == 0 and not ('nospread' not in os.environ.get('XP', '')): a(ADVD)
        stamp(a, 'kv_end')
        if KPRIO: a("s_setprio 0")
        def pack(k, dst):
            src = ACC + 8*k
            for p in range(4): a(f"v_cvt_pk_bf16_f32 v{dst+p}, v{src+2*p}, v{src+2*p+1}")
        if role == 1:
            a("s_cmp_ge_u32 s3, 6\ns_cbranch_scc1 Lkv_sw")
            a(f"s_lshl_b32 s55, s6, 14\ns_add_u32 s55, s55, {HAND}\nv_add_u32 v12, s55, v{V_LANE16}\ns_nop 7")
            for k in range(16):
                dst = 16 + 4 * (k % 8)
                pack(k, dst)
                a(f"ds_write_b128 v12, {vr(dst,4)} offset:{1024*k}")
            a("s_waitcnt lgkmcnt(0)\ns_barrier")
            a("s_branch Lat_load")
            a.label("Lkv_sw")
        a("v_lshlrev_b32 v7, 4, v1")
        a("s_lshl_b32 s55, s48, 19\ns_lshl_b32 s56, s49, 13\ns_add_u32 s55, s55, s56")
        a("s_and_b32 s56, s3, 1\ns_lshl_b32 s56, s56, 18\ns_add_u32 s57, s55, s56")
        if role == 1:
            a(f"s_and_b32 s55, s3, 1\ns_lshl_b32 s55, s55, 14\ns_add_u32 s55, s55, {HAND}\nv_add_u32 v2, s55, v7")
            for k in range(16): pack(k, ACC + 4*k)
            make_ws_srd(a, 20, 4, 'vf')
            a("s_cmp_lg_u32 s3, 7\ns_cbranch_scc1 Lkv_np2\ns_cmp_lg_u32 s59, 0\ns_cbranch_scc1 Lkv_np2")
            stamp(a, 'l_h1p0')
            poll(a, 3, 16, 244)
            stamp(a, 'l_h1p1')
            a.label("Lkv_np2")
            a("s_barrier")
            for k in range(16): a(f"ds_read_b128 {vr(128+4*k,4)}, v2 offset:{1024*k}")
            a("s_branch Lat_sw")
        else:
            for k in KORDER: pack(k, KREG[k])
            make_ws_srd(a, 16, 4, 'kf')
            if 'nok' in os.environ.get('XP', ''): a("s_mov_b32 s18, 0")
            a("s_lshr_b32 s56, s3, 1\ns_lshl_b32 s56, s56, 12\ns_add_u32 s57, s57, s56")
            a("v_mov_b32 v6, v7")
            a("s_branch Lat_comp")

def attn_ids(a):
    a("s_and_b32 s28, s2, 7\ns_lshr_b32 s29, s2, 3")
    a("s_and_b32 s30, s29, 3\ns_lshl_b32 s28, s28, 2\ns_add_u32 s28, s28, s30")
    if 'longfirst' in os.environ.get('XP', ''): a("s_lshr_b32 s31, s29, 2\ns_sub_u32 s30, 15, s31")
    else: a("s_lshr_b32 s30, s29, 2\ns_sub_u32 s31, 15, s30")
    a(f"v_and_b32 v8, 63, v0\nv_lshlrev_b32 v{V_LANE16}, 4, v8")

def phase_attn_compute(a):
    a.label("Lat_comp")
    a("s_setprio 1" if 'pc' in os.environ.get('PR', '') else "s_setprio 0" if os.environ.get('PR') else "")
    attn_ids(a)
    a("v_bfe_u32 v2, v8, 2, 2\nv_mul_u32_u24 v2, 1088, v2\nv_lshrrev_b32 v9, 5, v8\nv_lshl_add_u32 v2, v9, 9, v2")
    a("v_bfe_u32 v9, v8, 4, 1\nv_lshl_add_u32 v2, v9, 5, v2\nv_and_b32 v9, 3, v8\nv_lshl_add_u32 v2, v9, 3, v2")
    a(f"s_lshl_b32 s32, s3, 11\ns_add_u32 s32, s32, {WQ_BYTES}\nv_add_u32 v3, s32, v{V_LANE16}")
    a("v_and_b32 v9, 31, v8\ns_lshl_b32 s32, s3, 5\nv_add_u32 v9, s32, v9\nv_lshrrev_b32 v10, 5, v8\nv_lshlrev_b32 v10, 2, v10")
    a(f"v_sub_u32 v9, v9, v10\nv_cvt_f32_i32 v9, v9\nv_add_f32 v9, 0.5, v9\nv_mul_f32 v{V_YD}, {f32(BIG)}, v9")
    QACC = lambda qt, t: (16 + 16*t) if qt == 0 else (O + 16*t)
    QSET = [FR, FR + 24]
    for i in range(0, 64, 2): a(f"v_mov_b64 {vr(16+i,2)}, 0\nv_mov_b64 {vr(O+i,2)}, 0")
    make_ws_srd(a, 20, 4, 'ctx')
    a(f"s_mov_b32 s46, {f32(QSCALE)}\ns_mov_b32 s47, {f32(QSCALE)}")
    def qreads(ks, st):
        b = QSET[st]; r = []
        for qt in range(2): r.append(f"ds_read_b128 {vr(b+16+4*qt,4)}, v3 offset:{qt*8192 + ks*1024}")
        for t in range(4):
            for e in range(2): r.append(f"ds_read_b64_tr_b16 {vr(b+4*t+2*e,2)}, v2 offset:{ks*4352 + e*256 + t*64}")
        return r
    def qmf(st):
        b = QSET[st]
        return [mf(vr(QACC(qt, t), 16), vr(b+4*t, 4), vr(b+16+4*qt, 4), vr(QACC(qt, t), 16)) for t in range(4) for qt in range(2)]
    def front(m, r):
        out = []
        for i, x in enumerate(m):
            out.append(x); out += r[2*i:2*i+2]
        return out
    a("s_mov_b32 s40, 0")
    stamp(a, 'q_pre')
    a("s_barrier\ns_barrier")
    stamp(a, 'q_b0')
    for o in qreads(0, 0): a(o)
    for c in range(18):
        a("s_waitcnt lgkmcnt(0)")
        ops = front(qmf(0), qreads(1, 1))
        if c < 16: ops.insert(20, kstore(c))
        for o in ops: a(o)
        d = AT.SLOT if c % 5 != 4 else -4 * AT.SLOT
        a(f"v_add_u32 v2, {d & 0xffffffff}, v2\nv_add_u32 v3, {d & 0xffffffff}, v3")
        if c == 9: a("s_waitcnt vmcnt(2)")
        if c == 17: a("s_waitcnt vmcnt(0)")
        a("s_waitcnt lgkmcnt(0)")
        for o in front(qmf(1), qreads(0, 0) if c < 17 else []): a(o)
        a("s_barrier")
        stamp(a, f'q{c}')
    a(f"s_mov_b32 s40, {3*AT.SLOT}")
    stamp(a, 'q_end')
    a("v_and_b32 v8, 63, v0\nv_bfe_u32 v9, v8, 4, 1\nv_lshlrev_b32 v9, 17, v9\nv_lshrrev_b32 v10, 5, v8\nv_lshl_add_u32 v9, v10, 8, v9")
    a(f"v_and_b32 v10, 15, v8\nv_lshl_add_u32 v{V_T0}, v10, 4, v9\nv_mov_b32 v{V_T0+1}, {f32(THRESH)}")
    a(ADV[1])
    a("s_nop 7")
    for qt in (1, 0):
        for t in range(4):
            for e in range(2):
                for p in range(4):
                    s_ = QACC(qt, t) + 8*e + 2*p
                    a(f"v_pk_mul_f32 {vr(s_,2)}, {vr(s_,2)}, s[46:47]")
                for p in range(4):
                    s_ = QACC(qt, t) + 8*e + 2*p
                    a(f"v_cvt_pk_bf16_f32 v{(Q, Q2)[qt] + 4*(2*t+e) + p}, v{s_}, v{s_+1}")
        if qt == 1:
            for i in range(8): a(rd(i, KPOS[1]))
    a("s_mov_b32 s42, s30\ns_mov_b32 s43, 0")
    a.label("Lat_qk0")
    a(f"s_lshl_b32 s32, s42, 7\nv_cvt_f32_u32 v{V_Y}, s32\nv_mul_f32 v{V_Y}, {f32(BIG)}, v{V_Y}\nv_add_f32 v{V_Y}, v{V_Y}, v{V_YD}")
    a(f"v_mov_b32 v{V_NEGM}, 0")
    for o in build_ci(): a(o)
    a(ADV[0]); a(ADV[1])
    z = [f"v_mov_b64 {vr(O+i,2)}, 0" for i in range(0, 64, 2)] + [f"v_mov_b64 {vr(P[1]+i,2)}, 0" for i in range(0, 8, 2)]
    z += [f"v_mov_b32 v{V_L}, 0", f"v_mov_b32 v{LU[1]}, 0"]
    m = qk_group(0)
    for i in range(8):
        if i == 0: a("s_waitcnt lgkmcnt(5)")
        if i % 4 == 3: a(W4)
        a(m[i]); a(rd(i, KPOS[0]))
        for o in z[5*i:5*i+5]: a(o)
    a("s_nop 7\ns_nop 1")
    s = S[0]; t = V_T0 + 2; d = V_T0 + 3
    a(f"v_max3_f32 v{d}, v{s}, v{s+1}, v{s+2}")
    for r in range(3, 15, 2): a(f"v_max3_f32 v{d}, v{d}, v{s+r}, v{s+r+1}")
    a(f"v_max_f32 v{d}, v{d}, v{s+15}")
    a(f"v_mov_b32 v{t}, v{d}\ns_nop 1\nv_permlane32_swap_b32 v{d}, v{t}\ns_nop 1")
    a(f"v_max_f32 v{d}, v{d}, v{t}")
    a(f"v_sub_f32 v{V_NEGM}, 0, v{d}")
    for r in range(16): a(f"v_sub_f32 v{s+r}, v{s+r}, v{d}")
    for o in build_ci(): a(o)
    sites = []
    a(f"s_cmp_eq_u32 s43, 0\ns_cbranch_scc1 Lat_ns0\ns_lshr_b32 s32, s28, 2\ns_add_u32 s32, s32, {C_CTX}\ns_lshl_b32 s33, s30, 3\ns_add_u32 s33, s33, s32\ns_lshl_b32 s33, s33, 7\ns_waitcnt vmcnt(0)")
    signal(a, 33, V_Y)
    a.label("Lat_ns0")
    a(f"v_mov_b32 v{V_Y}, v{V_YD}")
    a("s_cmp_eq_u32 s42, 0\ns_cbranch_scc0 Lat_plain_pre")
    a(f"v_add_f32 v{V_Y}, {f32(-64*BIG)}, v{V_Y}\ns_mov_b32 s41, 1\ns_branch Lat_rebuild")
    a.label("Lat_plain_pre")
    a("s_lshl_b32 s41, s42, 1\ns_sub_u32 s41, s41, 1")
    a.label("Lat_plain")
    a("s_barrier")
    sites.append(period(a, 0, 0, VPOS[0], KPOS[1]))
    sites.append(period(a, 1, 1, VPOS[1], KPOS[0], adv=True, tail_ops=["s_sub_u32 s41, s41, 1\ns_cmp_lg_u32 s41, 0"]))
    a("s_cbranch_scc1 Lat_plain")
    a("s_mov_b32 s41, 2")
    a.label("Lat_rebuild")
    a("s_barrier")
    sites.append(period(a, 0, 2, VPOS[0], KPOS[1], rebuild=True))
    sites.append(period(a, 1, 3, VPOS[1], KPOS[0], rebuild=True, adv=True, tail_ops=["s_sub_u32 s41, s41, 1\ns_cmp_lg_u32 s41, 0"]))
    a("s_cbranch_scc1 Lat_rebuild")
    a("s_barrier")
    sites.append(period(a, 0, 4, VPOS[0], VPOS[1]))
    sites.append(period(a, 1, 5, None, VPOS[0], qk=False, adv=True))
    a("s_barrier")
    m = pv_group(1)
    mv = [f"v_mov_b64 {vr(Q+i,2)}, {vr(Q2+i,2)}" for i in range(0, 32, 2)]
    for i in range(8):
        if i % 4 == 3: a(W4)
        a(m[i]); a(rd(i, KPOS[1]))
        for o in mv[2*i:2*i+2]: a(o)
    a("s_cmp_eq_u32 s43, 0\ns_cbranch_scc1 Lat_noE\ns_waitcnt lgkmcnt(0)\ns_barrier")
    a.label("Lat_noE")
    a(f"v_add_f32 v{V_L}, v{V_L}, v{LU[1]}")
    a(f"v_mov_b32 v{t}, v{V_L}\ns_nop 1\nv_permlane32_swap_b32 v{V_L}, v{t}\ns_nop 1\nv_add_f32 v{V_L}, v{V_L}, v{t}")
    a(f"v_rcp_f32 v{T}, v{V_L}\ns_nop 0\nv_mov_b32 v{T+1}, v{T}")
    a("s_lshl_b32 s32, s42, 20\ns_lshl_b32 s33, s3, 18\ns_add_u32 s32, s32, s33\ns_lshl_b32 s33, s28, 12\ns_add_u32 s32, s32, s33")
    a("s_nop 3")
    k = 0
    for tt in range(4):
        for e in range(2):
            src = O + 16*tt + 8*e; dst = S[0] + 4 * k; k += 1
            for p in range(4): a(f"v_pk_mul_f32 {vr(src+2*p,2)}, {vr(src+2*p,2)}, {vr(T,2)}")
            for p in range(4): a(f"v_cvt_pk_bf16_f32 v{dst+p}, v{src+2*p}, v{src+2*p+1}")
            a(f"buffer_store_dwordx4 {vr(dst,4)}, v{V_T0}, s[20:23], s32 offen offset:{tt*1024 + e*512} sc1")
    a("s_cmp_lg_u32 s43, 0\ns_cbranch_scc1 Lat_cend")
    a("s_mov_b32 s43, 1\ns_mov_b32 s42, s31\ns_branch Lat_qk0")
    for site, par in sites:
        a.label(f"Lat_rs{site}")
        a(f"s_call_b64 s[44:45], Lat_rare{par}\ns_branch Lat_rb{site}")
    rare_path(a, 0); rare_path(a, 1)
    a.label("Lat_cend")
    stamp(a, 'at_end')
    a(f"s_lshr_b32 s32, s28, 2\ns_add_u32 s32, s32, {C_CTX}\ns_lshl_b32 s60, s31, 3\ns_add_u32 s60, s60, s32\ns_lshl_b32 s60, s60, 7")

def wq_part(a):
    a("s_add_u32 s32, s40, s37")
    for jj in range(4): a(f"s_add_u32 m0, s32, {1088*jj}\ns_add_u32 s33, s34, {8192*jj}\nbuffer_load_dwordx4 v2, s[8:11], s33 offen lds")
    a(f"s_add_u32 s34, s34, {32*8192}")

def h_part(a):
    a("s_add_u32 s32, s40, s38")
    for qt in range(2):
        for b in range(2):
            a(f"s_add_u32 m0, s32, {qt*8192 + b*2048}\ns_add_u32 s33, s{35+qt}, {b*36864}")
            a(f"buffer_load_dwordx4 v{V_LANE16}, s[12:15], s33 offen sc1 lds\nbuffer_load_dwordx4 v{V_LANE16}, s[12:15], s33 offen offset:1024 sc1 lds")
    a("s_add_u32 s35, s35, 2048\ns_add_u32 s36, s36, 2048")
    a(ADV[0])

def attn_loader_setup(a):
    SLOT = AT.SLOT
    make_srd(a, 8, 32, SIZES['wq'])
    a("s_load_dwordx2 s[56:57], s[0:1], 40\ns_load_dwordx2 s[58:59], s[0:1], 56\ns_load_dwordx2 s[60:61], s[0:1], 72")
    attn_ids(a)
    a("v_lshrrev_b32 v2, 4, v8\nv_lshlrev_b32 v2, 15, v2\nv_and_b32 v3, 15, v8\nv_lshl_add_u32 v2, v3, 4, v2")
    a("s_lshl_b32 s32, s6, 17\nv_add_u32 v2, s32, v2")
    a("s_lshl_b32 s34, s28, 8\ns_mul_i32 s37, s6, 4352")
    make_ws_srd(a, 12, 4, 'h1')
    a("s_lshl_b32 s32, s28, 19")
    srd_off(a, 16, 4, 32, WS['kf'][0], 512*1024); srd_off(a, 20, 4, 32, WS['vf'][0], 512*1024)
    a("s_lshl_b32 s35, s30, 1\ns_add_u32 s35, s35, s6\ns_mul_i32 s35, s35, 73728")
    a("s_lshl_b32 s36, s31, 1\ns_add_u32 s36, s36, s6\ns_mul_i32 s36, s36, 73728")
    a(f"s_lshl_b32 s38, s6, 12\ns_add_u32 s38, s38, {WQ_BYTES}\ns_lshl_b32 s39, s6, 13\ns_mov_b32 s40, 0")
    a("s_sub_u32 s44, s39, 8192\ns_sub_u32 s45, s39, 24576")
    a("s_mov_b32 s46, s44\ns_mov_b32 s47, s45\ns_mov_b32 s48, 0\ns_lshl_b32 s49, s30, 1\ns_add_u32 s49, s49, 3")

def phase_attn_loader(a):
    a.label("Lat_load")
    a("s_setprio 1" if 'pl' in os.environ.get('PR', '') else "s_setprio 0" if os.environ.get('PR') else "")
    a("s_cmp_lg_u32 s51, 0\ns_cbranch_scc1 Lat_early")
    for i in range(2): wq_part(a); h_part(a)
    a.label("Lat_early")
    for i in range(2): wq_part(a); h_part(a)
    a("s_mov_b32 s41, 14")
    a.label("Lat_lq")
    a("s_waitcnt vmcnt(24)\ns_barrier")
    wq_part(a); h_part(a)
    a("s_sub_u32 s41, s41, 1\ns_cmp_lg_u32 s41, 0\ns_cbranch_scc1 Lat_lq")
    a("s_waitcnt vmcnt(24)\ns_barrier")
    def kvload():
        for (srd, so, lo) in ((16, 46, 0), (20, 47, 16384)):
            a(f"s_add_u32 s32, s40, s39\ns_add_u32 m0, s32, {lo}\ns_add_u32 s33, s{so}, 4096")
            for j in range(4): a(f"buffer_load_dwordx4 v{V_LANE16}, {sr(srd,4)}, s{so} offen offset:{1024*j} sc1 lds")
            a(f"s_add_u32 m0, s32, {lo + 4096}\ns_nop 0")
            for j in range(4): a(f"buffer_load_dwordx4 v{V_LANE16}, {sr(srd,4)}, s33 offen offset:{1024*j} sc1 lds")
        a("s_add_u32 s46, s46, 16384\ns_add_u32 s47, s47, 16384\ns_add_u32 s48, s48, 1")
        a("s_cmp_eq_u32 s48, s49\ns_cselect_b32 s46, s44, s46")
        a("s_add_u32 s32, s49, 1\ns_add_u32 s33, s45, 16384\ns_cmp_eq_u32 s48, s32\ns_cselect_b32 s47, s33, s47")
        a(ADV[0])
    kvload()
    a("s_waitcnt vmcnt(28)\ns_barrier")
    kvload()
    a("s_waitcnt lgkmcnt(0)\ns_lshl_b32 s52, s2, 1\ns_add_u32 s52, s52, s6\ns_mul_i32 s50, s52, 9216\ns_mul_i32 s52, s52, 36864\ns_mov_b32 s41, 0")
    make_srd(a, 24, 56, 0 if 'nopf' in os.environ.get('XP', '') else SIZES['wo'])
    a.label("Lat_lpf")
    a("s_waitcnt vmcnt(32)\ns_barrier")
    kvload()
    for g in range(3):
        for j in range(3): a(f"buffer_load_dwordx4 v[8:11], v{V_LANE16}, s[24:27], s50 offen offset:{1024*j}")
        a("s_add_u32 s50, s50, 3072")
    for r in range(2):
        a("s_waitcnt vmcnt(41)\ns_barrier")
        kvload()
    a("s_add_u32 s41, s41, 1")
    for (n, ptr) in ((1, 58), (5, 60)):
        a(f"s_and_b32 s33, s{ptr+1}, 0xffff\ns_cmp_eq_u32 s41, {n}\ns_cselect_b32 s24, s{ptr}, s24\ns_cselect_b32 s25, s33, s25\ns_cselect_b32 s50, s52, s50")
    if 'nopf' not in os.environ.get('XP', ''): a(f"s_mov_b32 s26, {SIZES['w1']}")
    a("s_cmp_lt_u32 s41, 9\ns_cbranch_scc1 Lat_lpf")
    a("s_mov_b32 s41, 8")
    a.label("Lat_lkv")
    a("s_waitcnt vmcnt(32)\ns_barrier")
    kvload()
    a("s_sub_u32 s41, s41, 1\ns_cmp_lg_u32 s41, 0\ns_cbranch_scc1 Lat_lkv")
    a("s_waitcnt vmcnt(32)\ns_barrier\ns_waitcnt vmcnt(16)\ns_barrier")
    a("s_waitcnt vmcnt(0) lgkmcnt(0)\ns_barrier")
    a("s_branch Lat_ldone")

    a.label("Lat_sw")
    a("s_setprio 1" if 'pl' in os.environ.get('PR', '') else "s_setprio 0" if os.environ.get('PR') else "")
    a("s_mov_b32 s62, s57")
    a("s_load_dwordx2 s[56:57], s[0:1], 40\ns_load_dwordx2 s[58:59], s[0:1], 56\ns_load_dwordx2 s[60:61], s[0:1], 72")
    def vstore(n):
        k = n & 15; m_, nn, e = k >> 2, (k >> 1) & 1, k & 1
        reg = 64 + 4*k if n < 16 else 128 + 4*k
        a(f"s_add_u32 s55, s62, {m_*65536 + e*4096 + (2048 if n < 16 else 0)}\nbuffer_store_dwordx4 {vr(reg,4)}, v7, s[20:23], s55 offen offset:{nn*1024}" + ("" if 'wb' in os.environ.get('XP', '').split(',') else " sc1"))
    order = [n for m_ in range(4) for n in list(range(4*m_, 4*m_ + 4)) + list(range(16 + 4*m_, 16 + 4*m_ + 4))]
    a(f"s_add_u32 s32, s48, {C_KV}\ns_lshl_b32 s32, s32, 7\nv_mov_b32 v3, s32\ns_add_u32 s33, s32, {(C_KV2 - C_KV) * 128}\nv_mov_b32 v5, s33")
    a("s_waitcnt lgkmcnt(0)\ns_barrier")
    a("s_cmp_eq_u32 s3, 7\ns_cbranch_scc1 Lat_w7")
    for c in range(30):
        if c < 16 and c != 13: vstore(order[2*c]); vstore(order[2*c + 1])
        if c == 9: a("s_waitcnt vmcnt(4)")
        if c == 17: a("s_waitcnt vmcnt(0)")
        if c in (10, 18): signal(a, 32 if c == 10 else 33, 4)
        if c == 26:
            a("v_and_b32 v6, 15, v1\nv_lshlrev_b32 v6, 7, v6")
            poll(a, 6, 16, 244)
        if c in (13, 21, 29):
            if c == 29: a(f"v_add_u32 v5, {(C_KV3 - C_KV2) * 128}, v5")
            stamp(a, 'l_kvp0' if c == 13 else 'l_kvq0')
            poll(a, 3 if c == 13 else 5, 8, 244)
            stamp(a, 'l_kvp1' if c == 13 else 'l_kvq1')
            if c == 13: vstore(order[2*c]); vstore(order[2*c + 1])
        a("s_barrier")
    a("s_branch Lat_w67")
    a.label("Lat_w7")
    for c in range(30):
        if 18 <= c < 26:
            for q in range(4): vstore(order[4*(c - 18) + q])
        if c == 27:
            a(f"s_waitcnt vmcnt(0)\ns_add_u32 s33, s32, {(C_KV3 - C_KV) * 128}")
            signal(a, 33, 4)
        a("s_barrier")
    a.label("Lat_w67")
    if SENT:
        tok_ids(a)
        a(f"s_mov_b32 s33, {WS['p6'][0]}\ns_cmp_eq_u32 s3, 6\ns_cselect_b32 s32, {WS['p3'][0]}, s33")
        srd_off(a, 24, 4, 32, 0, WS['p3'][1])
        a("v_mov_b32 v8, -1\nv_mov_b32 v9, -1\nv_mov_b32 v10, -1\nv_mov_b32 v11, -1\ns_mov_b32 s50, s44\ns_mov_b32 s41, 4")
        a.label("Lat_pz")
        for g in range(3):
            a("s_barrier")
            for j in range(3): a(f"buffer_store_dwordx4 v[8:11], v7, s[24:27], s50 offen offset:{1024*j} sc1")
            a(f"s_add_u32 s50, s50, {3072 if g < 2 else 256*9216 - 6144}")
        a("s_sub_u32 s41, s41, 1\ns_cmp_lg_u32 s41, 0\ns_cbranch_scc1 Lat_pz")
        a(f"s_barrier\ns_barrier\ns_waitcnt vmcnt(0)\ns_add_u32 s32, s43, {C_PZ}\ns_lshl_b32 s32, s32, 7")
        signal(a, 32, 4)
    a(f"s_mov_b32 s41, {51 - 30 - (14 if SENT else 0)}")
    a.label("Lat_pfd")
    a("s_barrier\ns_sub_u32 s41, s41, 1\ns_cmp_lg_u32 s41, 0\ns_cbranch_scc1 Lat_pfd")
    if 'wpf' in os.environ.get('XP', ''):
        make_srd(a, 24, 56, SIZES['wo'])
        a(f"s_bfe_u32 s50, s2, 0x20001\ns_mul_i32 s50, s50, {1024*1152}\ns_lshr_b32 s32, s2, 3\ns_lshl_b32 s32, s32, 1\ns_and_b32 s33, s3, 1\ns_add_u32 s32, s32, s33")
        a("s_mul_i32 s32, s32, 18432\ns_add_u32 s50, s50, s32")
        for g in range(6):
            for j in range(3): a(f"buffer_load_dwordx4 v[8:11], v7, s[24:27], s50 offen offset:{1024*j}")
            a("s_add_u32 s50, s50, 3072")
    a("s_cmp_lg_u32 s3, 6\ns_cbranch_scc1 Lat_nc0")
    a(f"s_lshr_b32 s32, s2, 5\ns_lshl_b32 s32, s32, 3\ns_and_b32 s33, s2, 7\ns_add_u32 s32, s32, s33\ns_add_u32 s32, s32, {C_CTX}\ns_lshl_b32 s32, s32, 7\nv_mov_b32 v3, s32")
    poll(a, 3, 16, 244)
    a.label("Lat_nc0")
    a("s_barrier\ns_barrier")
    a("s_waitcnt vmcnt(0)")
    a.label("Lat_ldone")

def adv_slot(slot, nslot):
    return f"s_add_u32 s40, s40, {slot}\ns_cmp_eq_u32 s40, {slot*nslot}\ns_cselect_b32 s40, 0, s40"

G16 = {'o': dict(F=16384, W=20480, NST=16, nF=4, nW=5), 'y': dict(F=20480, W=16896, NST=18, nF=5, nW=4)}

def g16_ids(a, kind):
    if kind == 'o':
        a("s_and_b32 s28, s2, 7\ns_lshr_b32 s29, s2, 5\ns_bfe_u32 s30, s2, 0x20003\nv_and_b32 v8, 63, v0\nv_lshlrev_b32 v1, 4, v8")
        return
    a("s_bfe_u32 s28, s2, 0x20001")
    a("s_and_b32 s29, s2, 1\ns_lshl_b32 s29, s29, 3\ns_lshr_b32 s30, s2, 5\ns_add_u32 s29, s29, s30")
    a("s_bfe_u32 s30, s2, 0x20003")
    a("v_and_b32 v8, 63, v0\nv_lshlrev_b32 v1, 4, v8")

def g16_compute_setup(a, kind):
    p = G16[kind]
    g16_ids(a, kind)
    a("v_bfe_u32 v2, v8, 4, 1\nv_lshlrev_b32 v2, 2, v2\nv_bfe_u32 v9, v8, 2, 2\nv_add_u32 v2, v2, v9")
    a("v_lshrrev_b32 v9, 5, v8\nv_and_b32 v10, 3, v8")
    if kind == 'o':
        a("v_lshl_add_u32 v2, v9, 4, v2\nv_mul_u32_u24 v2, 288, v2\nv_lshl_add_u32 v2, v10, 3, v2")
        a(f"v_add_u32 v4, {p['F']}, v2\ns_lshl_b32 s35, s3, 12\nv_add_u32 v5, s35, v1")
    else:
        a("v_mul_u32_u24 v2, 1056, v2\nv_lshl_add_u32 v2, v9, 9, v2\nv_lshl_add_u32 v2, v10, 3, v2")
        a(f"s_lshl_b32 s35, s3, 6\ns_add_u32 s35, s35, {p['F']}\nv_add_u32 v4, s35, v2\nv_mov_b32 v5, v1")
    a("v_mov_b32 v2, v4\nv_mov_b32 v3, v5")
    for i in range(0, 72, 2): a(f"v_mov_b64 {vr(16+i,2)}, 0")
    make_ws_srd(a, 20, 4, 'p3' if kind == 'o' else 'p6')
    a("v_bfe_u32 v6, v8, 4, 1\nv_lshlrev_b32 v6, 1, v6\nv_lshrrev_b32 v9, 5, v8\nv_add_u32 v6, v6, v9\nv_mul_u32_u24 v6, 9216, v6\nv_and_b32 v9, 15, v8\nv_lshl_add_u32 v6, v9, 4, v6")

def g16_compute(a, kind):
    p = G16[kind]; pre = 'Lg' + kind; SLOT = p['F'] + p['W']
    ACC = 16; SET = [96, 144]
    def reads(ks, st):
        b = SET[st]; r = []
        if kind == 'o':
            for t in range(2): r.append(f"ds_read_b128 {vr(b+4*t,4)}, v3 offset:{t*2048 + ks*1024}")
            for c in range(9):
                for e in range(2): r.append(f"ds_read_b64_tr_b16 {vr(b+8+4*c+2*e,2)}, v2 offset:{(32*ks + 8*e)*288 + c*32}")
        else:
            for t in range(2):
                for e in range(2): r.append(f"ds_read_b64_tr_b16 {vr(b+4*t+2*e,2)}, v2 offset:{8*ks*1056 + e*256 + t*32}")
            for c in range(9): r.append(f"ds_read_b128 {vr(b+8+4*c,4)}, v3 offset:{c*2048 + ks*1024}")
        return r
    def mfs(st):
        b = SET[st]
        return [f"v_mfma_f32_16x16x32_bf16 {vr(ACC+4*(9*t+c),4)}, {vr(b+4*t,4)}, {vr(b+8+4*c,4)}, {vr(ACC+4*(9*t+c),4)}"
                for c in range(9) for t in range(2)]
    def kstep(m, r, extra):
        n = len(r); NL = 6 if kind == 'o' else 3
        take = [(n * (i + 1)) // 16 - (n * i) // 16 if i < 16 else 0 for i in range(18)]
        k = 0
        a(f"s_waitcnt lgkmcnt({NL})")
        for i, x in enumerate(m):
            if i == 12: a(f"s_waitcnt lgkmcnt({min(15, k)})")
            a(x)
            for o in r[k:k+take[i]]: a(o)
            k += take[i]
            for o in extra.get(i, []): a(o)
    a(f"s_mov_b32 s40, 0\ns_mov_b32 s41, {p['NST'] if kind == 'y' else 8}\ns_mov_b32 s45, {0 if kind == 'o' else 1}")
    a("s_lshl_b32 s34, s28, 8\ns_lshl_b32 s33, s29, 4\ns_add_u32 s34, s34, s33\ns_lshl_b32 s33, s3, 2\ns_add_u32 s34, s34, s33")
    a("s_mul_i32 s34, s34, 9216\ns_mul_i32 s33, s30, 2304\ns_add_u32 s34, s34, s33")
    if kind == 'y': a("s_barrier")
    a("s_barrier")
    stamp(a, kind + '_b0')
    for o in reads(0, 0): a(o)
    a(f"s_branch {pre}_cin")
    a.label(f"{pre}_cloop")
    a("s_barrier")
    a.label(f"{pre}_cin")
    kstep(mfs(0), reads(1, 1), {14: [adv_slot(SLOT, 4)], 16: ["v_add_u32 v2, s40, v4"], 17: ["v_add_u32 v3, s40, v5"]})
    kstep(mfs(1), reads(0, 0), {16: ["s_sub_u32 s41, s41, 1"], 17: ["s_cmp_lg_u32 s41, 0"],
                                 13: ["s_cmp_lg_u32 s41, 5\ns_cbranch_scc1 Lgo_nd\ns_waitcnt vmcnt(0)\nLgo_nd:"] if kind == 'o' else []})
    a(f"s_cbranch_scc1 {pre}_cloop")
    a.label(f"{pre}_cend")
    stamp(a, kind + '_end')
    a("s_nop 4")
    for c in range(9):
        A_ = ACC + 4*c; B_ = ACC + 4*(9 + c)
        a(f"v_cvt_pk_bf16_f32 v{A_}, v{A_}, v{A_+1}\nv_cvt_pk_bf16_f32 v{A_+1}, v{A_+2}, v{A_+3}")
        a(f"v_cvt_pk_bf16_f32 v{A_+2}, v{B_}, v{B_+1}\nv_cvt_pk_bf16_f32 v{A_+3}, v{B_+2}, v{B_+3}")
    for c in range(9):
        dst = ACC + 4*c
        a(f"v_permlane16_swap_b32 v{dst}, v{dst+2}\nv_permlane16_swap_b32 v{dst+1}, v{dst+3}")
        a(f"buffer_store_dwordx4 {vr(dst,4)}, v6, s[20:23], s34 offen offset:{256*c} sc1")
    if kind == 'o':
        a(f"s_cmp_lg_u32 s45, 0\ns_cbranch_scc1 {pre}_cfin\ns_mov_b32 s45, 1\ns_mov_b32 s41, 8\ns_add_u32 s34, s34, {128*9216}")
        for i in list(range(36, 72, 2)) + list(range(0, 36, 2)): a(f"v_mov_b64 {vr(16+i,2)}, 0")
        a(f"s_branch {pre}_cloop")
        a.label(f"{pre}_cfin")
    a("s_waitcnt lgkmcnt(0)")

def g16_loader_setup(a, kind):
    p = G16[kind]
    g16_ids(a, kind)
    if kind == 'o':
        a("s_mul_i32 s32, s6, 320\ns_mov_b32 s33, 0xe38e38f")
        for jj in range(5):
            a(f"v_add_u32 v9, s32, v8\nv_add_u32 v9, {64*jj}, v9\nv_mul_hi_u32 v10, v9, s33")
            a(f"v_mul_u32_u24 v11, 18, v10\nv_sub_u32 v11, v9, v11\nv_mul_u32_u24 v10, 1152, v10\nv_lshl_add_u32 v{2+jj}, v11, 4, v10")
            a(f"v_cmp_gt_u32 vcc, 1152, v9\nv_mov_b32 v10, {OOB}\ns_nop 1\nv_cndmask_b32 v{2+jj}, v10, v{2+jj}, vcc")
        make_srd(a, 8, 56, SIZES['wo']); make_ws_srd(a, 12, 4, 'ctx')
        a(f"s_mul_i32 s34, s28, {512*1152}\ns_mul_i32 s32, s30, 288\ns_add_u32 s34, s34, s32")
        a("s_lshl_b32 s35, s29, 3\ns_lshl_b32 s32, s6, 1\ns_add_u32 s35, s35, s32\ns_lshl_b32 s35, s35, 17\ns_lshl_b32 s32, s28, 14\ns_add_u32 s35, s35, s32")
        a(f"s_mul_i32 s37, s6, 5120\ns_add_u32 s37, s37, {p['F']}\ns_lshl_b32 s38, s6, 12")
        a(f"s_lshl_b32 s32, s29, 3\ns_add_u32 s32, s32, s28\ns_add_u32 s32, s32, {C_CTX + 64}\ns_lshl_b32 s32, s32, 7\nv_mov_b32 v7, s32")
        if SENT: a(f"s_add_u32 s32, s29, {C_PZ}\ns_lshl_b32 s32, s32, 7\nv_mov_b32 v9, s32\nv_cmp_gt_u32 vcc, 32, v8\ns_nop 1\nv_cndmask_b32 v7, v9, v7, vcc")
    else:
        a("v_lshrrev_b32 v2, 4, v8\nv_lshlrev_b32 v2, 15, v2\nv_and_b32 v9, 15, v8\nv_lshl_add_u32 v2, v9, 4, v2")
        a("s_and_b32 s32, s6, 1\ns_lshl_b32 s32, s32, 14\ns_lshr_b32 s33, s6, 1\ns_lshl_b32 s33, s33, 17\ns_add_u32 s32, s32, s33\nv_add_u32 v2, s32, v2")
        make_srd(a, 8, 60, SIZES['w2']); make_ws_srd(a, 12, 4, 'u')
        a(f"s_mul_i32 s34, s28, {1152*4096}\ns_lshl_b32 s32, s29, 8\ns_add_u32 s34, s34, s32")
        a(f"s_mul_i32 s35, s30, {9*147456}\ns_mul_i32 s32, s28, {36*1024}\ns_add_u32 s35, s35, s32")
        for jj in range(5):
            a(f"s_mul_i32 s32, s6, 5\ns_add_u32 s32, s32, {jj}\ns_lshr_b32 s33, s32, 1\ns_mul_i32 s33, s33, 147456")
            a(f"s_and_b32 s36, s32, 1\ns_lshl_b32 s36, s36, 10\ns_add_u32 s33, s33, s36\ns_add_u32 s33, s33, s35")
            a(f"s_cmp_lt_u32 s32, 18\ns_cselect_b32 s{46+jj}, s33, 0x7f000000")
        a(f"s_mul_i32 s37, s6, 4224\ns_add_u32 s37, s37, {p['F']}\ns_mul_i32 s38, s6, 5120")
        a(f"s_mul_i32 s32, s28, 6\ns_mul_i32 s33, s30, 3\ns_lshr_b32 s33, s33, 1\ns_add_u32 s32, s32, s33\ns_add_u32 s32, s32, {C_U}")
        a("v_and_b32 v7, 1, v8\nv_add_u32 v7, s32, v7\nv_lshlrev_b32 v7, 7, v7")

def g16_w(a, kind):
    if kind == 'o':
        a("s_add_u32 s32, s40, s37")
        for jj in range(5): a(f"s_add_u32 m0, s32, {1024*jj}\ns_nop 0\nbuffer_load_dwordx4 v{2+jj}, s[8:11], s34 offen lds")
        a(f"s_add_u32 s34, s34, {64*1152}")
    else:
        a("s_add_u32 s32, s40, s37")
        for jj in range(4): a(f"s_add_u32 m0, s32, {1056*jj}\ns_add_u32 s33, s34, {4096*jj}\nbuffer_load_dwordx4 v2, s[8:11], s33 offen lds")
        a(f"s_add_u32 s34, s34, {64*4096}")
def g16_f(a, kind):
    if kind == 'o':
        a("s_add_u32 m0, s40, s38\ns_add_u32 s33, s35, 0x20000")
        a("buffer_load_dwordx4 v1, s[12:15], s35 offen sc1 lds\nbuffer_load_dwordx4 v1, s[12:15], s35 offen offset:1024 sc1 lds")
        a("s_add_u32 s32, s40, s38\ns_add_u32 m0, s32, 2048\ns_nop 0")
        a("buffer_load_dwordx4 v1, s[12:15], s33 offen sc1 lds\nbuffer_load_dwordx4 v1, s[12:15], s33 offen offset:1024 sc1 lds")
        a("s_add_u32 s35, s35, 2048")
    else:
        a("s_add_u32 s32, s40, s38")
        for jj in range(5):
            a(f"s_add_u32 m0, s32, {1024*jj}\ns_nop 0\nbuffer_load_dwordx4 v1, s[12:15], s{46+jj} offen sc1 lds\ns_add_u32 s{46+jj}, s{46+jj}, 2048")

def g16_loader_wpro(a, kind):
    p = G16[kind]; SLOT = p['F'] + p['W']
    for i in range(3):
        a(f"s_mov_b32 s40, {i*SLOT}"); g16_w(a, kind)

def g2_wpf(a):
    if 'wpf' not in os.environ.get('XP', ''): return
    a(f"s_mul_i32 s32, s30, {64*4096}\ns_add_u32 s32, s32, s34")
    for i in range(4):
        a(f"s_add_u32 s36, s30, {3 + 4*i}\ns_cmp_lt_u32 s36, 18\ns_cselect_b32 s36, s32, 0x7f000000")
        for jj in range(4): a(f"s_add_u32 s33, s36, {(4*i*64 + jj)*4096}\nbuffer_load_dwordx4 v[12:15], v2, s[8:11], s33 offen")

def o_loader_main(a):
    p = G16['o']; SLOT = p['F'] + p['W']
    for n in range(16):
        if n >= 3:
            a("s_waitcnt vmcnt(9)")
            if n == 8:
                a("s_cmp_lg_u32 s6, 0\ns_cbranch_scc1 Lgo_np\nv_cmp_gt_u32 vcc, 16, v244\ns_nop 1\ns_cbranch_vccz Lgo_np")
                stamp(a, 'l_op0')
                poll(a, 7, 16, 244)
                stamp(a, 'l_op1')
                a.label("Lgo_np")
            a("s_barrier")
        if n == 8: a(f"s_add_u32 s35, s35, {(64 << 17) - 16384}\ns_sub_u32 s34, s34, {8*64*1152}")
        a(f"s_mov_b32 s40, {(n % 4) * SLOT}")
        g16_w(a, 'o'); g16_f(a, 'o')
        if n == 6: a(f"s_cmp_lg_u32 s6, 0\ns_cbranch_scc1 Lgo_nl\nbuffer_load_dword v244, v7, {SYNC}, 0 offen sc1\nLgo_nl:")
    sig_wave4(a, f"s_add_u32 s32, s29, {C_P3}\ns_lshl_b32 s32, s32, 7", 32, "Lgo_ns", 9)
    a("s_waitcnt vmcnt(9)\ns_barrier\ns_waitcnt vmcnt(0)\ns_barrier\ns_barrier")

def g16_loader_main(a, kind):
    p = G16[kind]; pre = 'Lg' + kind; SLOT = p['F'] + p['W']
    if 'gnodma' in os.environ.get('XP', ''): a("s_mov_b32 s10, 0\ns_mov_b32 s14, 0")
    stamp(a, 'l_' + kind + 'p0')
    if kind == 'y': a(f"s_cmp_lg_u32 s6, 0\ns_cbranch_scc1 {pre}_np")
    poll(a, 7, 32 if kind == 'o' else 9, 244)
    if kind == 'y':
        a.label(f"{pre}_np"); a("s_barrier")
    stamp(a, 'l_' + kind + 'p1')
    for i in range(3):
        a(f"s_mov_b32 s40, {i*SLOT}"); g16_f(a, kind)
    a(f"s_mov_b32 s40, {3*SLOT}\ns_mov_b32 s41, {p['NST'] - 3}")
    a(f"s_waitcnt vmcnt({p['nF']})\ns_branch {pre}_lb")
    a.label(f"{pre}_lloop")
    a("s_waitcnt vmcnt(9)")
    a.label(f"{pre}_lb")
    a("s_barrier")
    g16_f(a, kind); g16_w(a, kind)
    a(adv_slot(SLOT, 4))
    a(f"s_sub_u32 s41, s41, 1\ns_cmp_lg_u32 s41, 0\ns_cbranch_scc1 {pre}_lloop")
    a("s_waitcnt vmcnt(9)\ns_barrier\ns_waitcnt vmcnt(0)\ns_barrier\ns_barrier")

def tok_ids(a):
    a("s_bfe_u32 s32, s2, 0x20001\ns_lshl_b32 s32, s32, 2\ns_bfe_u32 s33, s2, 0x20003\ns_add_u32 s32, s32, s33")
    a("s_and_b32 s43, s2, 1\ns_lshl_b32 s43, s43, 3\ns_lshr_b32 s33, s2, 5\ns_add_u32 s43, s43, s33")
    a("s_lshl_b32 s42, s43, 4\ns_add_u32 s42, s42, s32\ns_mul_i32 s44, s42, 9216")
    a(f"v_mov_b32 v232, v0\nv_add_u32 v233, 512, v0\nv_cmp_gt_u32 vcc, 64, v0\nv_mov_b32 v234, 0x0ffffff0\ns_nop 1\nv_cndmask_b32 v233, v234, v233, vcc")
    a("v_lshlrev_b32 v236, 4, v232\nv_lshlrev_b32 v237, 4, v233\nv_mov_b32 v240, 0x3f80\nv_mov_b32 v241, 0x3f800000")

def partial_loads(a, srd, lab, ns):
    for u in range(2):
        if u == 1: a(f"s_cmp_lg_u32 s3, 0\ns_cbranch_scc1 {lab}a")
        a("s_mov_b32 s32, s44")
        for s in range(ns):
            a(f"buffer_load_dwordx4 {vr(96+32*u+4*s,4)}, v{236+u}, {sr(srd,4)}, s32 offen sc1")
            if s < ns - 1: a(f"s_add_u32 s32, s32, {256*9216}")
    a.label(f"{lab}a")
    a("s_waitcnt vmcnt(0)")

def partial_sum(a, u, dst, ns):
    b = 96 + 32*u
    unpack8(a, b, dst)
    for s in range(1, ns):
        for d in range(4):
            a(f"v_dot2c_f32_bf16 v{dst+2*d}, v{b+4*s+d}, v240\nv_dot2c_f32_bf16 v{dst+2*d+1}, v{b+4*s+d}, v241")
    a("s_nop 2")

def ln_row(a, x, n, t0):
    m, v, t = t0, t0 + 1, t0 + 2
    a(f"v_add_f32 v{m}, v{x}, v{x+1}")
    for i in range(2, n): a(f"v_add_f32 v{m}, v{m}, v{x+i}")
    wave_allsum(a, m, t)
    a(f"v_mul_f32 v{m}, 0x3ae38e39, v{m}\nv_mov_b32 v{v}, 0")
    for i in range(n): a(f"v_sub_f32 v{t}, v{x+i}, v{m}\nv_fmac_f32 v{v}, v{t}, v{t}")
    wave_allsum(a, v, t)
    a(f"v_mul_f32 v{v}, 0x3ae38e39, v{v}")
    round_bf16(a, m); round_bf16(a, v)
    a(f"v_add_f32 v{v}, 0x3727c5ac, v{v}"); round_bf16(a, v)
    a(f"v_sqrt_f32 v{v}, v{v}\ns_nop 0"); round_bf16(a, v)
    a(f"v_rcp_f32 v{v}, v{v}")
    for i in range(n): a(f"v_sub_f32 v{x+i}, v{x+i}, v{m}")
    for i in range(n): a(f"v_mul_f32 v{x+i}, v{x+i}, v{v}")

LN_LDS = 4 * 29696

def ln2_pre(a):
    a("s_load_dwordx2 s[46:47], s[0:1], 0")
    tok_ids(a)
    make_ws_srd(a, 48, 4, 'mod')
    a("v_lshlrev_b32 v238, 2, v232\nv_lshlrev_b32 v239, 2, v233\nv_and_b32 v235, 63, v0\nv_lshlrev_b32 v235, 2, v235")
    a(f"s_mov_b32 s32, {2*2304}\nbuffer_load_dword v208, v238, s[48:51], s32 offen sc1\nbuffer_load_dword v209, v239, s[48:51], s32 offen sc1")
    a(f"s_mov_b32 s32, {3*2304}\ns_mov_b32 s33, {4*2304}")
    for i in range(9):
        a(f"buffer_load_dword v{210+i}, v235, s[48:51], s32 offen offset:{256*i} sc1\nbuffer_load_dword v{220+i}, v235, s[48:51], s33 offen offset:{256*i} sc1")
    a("v_lshlrev_b32 v230, 1, v232\nv_lshlrev_b32 v231, 1, v233")
    a("s_waitcnt lgkmcnt(0)")
    make_srd(a, 48, 46, SIZES['x'])
    a("s_mov_b32 s32, s44")
    for t in range(8):
        for u in range(2): a(f"buffer_load_short_d16_hi v{192+8*u+t}, v{230+u}, s[48:51], s32 offen" + (f" offset:{1152*(t%3)}" if t % 3 else ""))
        if t % 3 == 2: a("s_add_u32 s32, s32, 3456")
    a(f"v_add_u32 v238, {LN_LDS}, v238\ns_mul_i32 s32, s3, 2304\ns_add_u32 s32, s32, {LN_LDS}\nv_add_u32 v239, s32, v235")

def ln2_mid(a):
    for i in range(16): a(f"v_and_b32 v{192+i}, 0xffff0000, v{192+i}")
    for i in range(9):
        a(f"v_add_f32 v{220+i}, 1.0, v{220+i}"); round_bf16(a, 220 + i)
    for u in range(2):
        a(f"v_lshrrev_b32 v{230+u}, 5, v{232+u}\nv_lshlrev_b32 v{230+u}, 17, v{230+u}\nv_and_b32 v234, 31, v{232+u}\nv_lshl_add_u32 v{230+u}, v234, 4, v{230+u}")

def ln2_body(a):
    make_ws_srd(a, 48, 4, 'p3')
    partial_loads(a, 48, "Lln_sp", 8)
    make_ws_srd(a, 48, 4, 'x1'); make_ws_srd(a, 52, 4, 'h2')
    stamp(a, 'ln_ld')
    for u in range(2):
        if u == 1: a("s_cmp_lg_u32 s3, 0\ns_cbranch_scc1 Lln_u1")
        partial_sum(a, u, 160, 8)
        for t in range(8): a(f"v_fmac_f32 v{192+8*u+t}, v{208+u}, v{160+t}")
        for p in range(4): a(f"v_cvt_pk_bf16_f32 v{168+4*u+p}, v{192+8*u+2*p}, v{193+8*u+2*p}")
        unpack8(a, 168 + 4*u, 160)
        for t in range(8): a(f"ds_write_b32 v238, v{160+t} offset:{2304*t + 2048*u}")
        a(f"buffer_store_dwordx4 {vr(168+4*u,4)}, v{236+u}, s[48:51], s44 offen sc1")
    a.label("Lln_u1")
    a("s_waitcnt lgkmcnt(0)\ns_barrier")
    a("s_cmp_eq_u32 s3, 4\ns_cselect_b32 s36, 1, 0\ns_cmp_ge_u32 s43, 8\ns_cselect_b32 s36, s36, 0\ns_cmp_lt_u32 s2, 216\ns_cselect_b32 s36, s36, 0")
    a(f"s_cmp_eq_u32 s36, 0\ns_cbranch_scc1 Lln_n1\nbuffer_load_dword v247, v7, {SYNC}, 0 offen sc1\nLln_n1:")
    for i in range(9): a(f"ds_read_b32 v{96+i}, v239 offset:{256*i}")
    a("s_waitcnt lgkmcnt(0)")
    ln_row(a, 96, 9, 108)
    for i in range(9): a(f"v_fma_f32 v{96+i}, v{96+i}, v{220+i}, v{210+i}")
    ln_row(a, 96, 9, 108)
    for i in range(9): a(f"ds_write_b32 v239, v{96+i} offset:{256*i}")
    a("s_cmp_eq_u32 s36, 0\ns_cbranch_scc1 Lln_n2\ns_waitcnt vmcnt(0)\nv_cmp_gt_u32 vcc, 16, v247\ns_nop 1\ns_cbranch_vccz Lln_n2")
    poll(a, 7, 16, 244)
    a.label("Lln_n2")
    a("s_waitcnt lgkmcnt(0)\ns_barrier")
    a("s_cmp_lt_u32 s3, 4\ns_cbranch_scc1 Lln_nf\ns_cmp_ge_u32 s2, 216\ns_cbranch_scc1 Lln_nf\ns_cmp_lt_u32 s43, 8\ns_cbranch_scc1 Lln_nf")
    for i in range(4):
        a(f"s_mov_b32 s40, {i*M1_SLOT}"); m1_f(a)
    a.label("Lln_nf")
    a("s_lshl_b32 s32, s42, 9")
    for u in range(2):
        if u == 1: a("s_cmp_lg_u32 s3, 0\ns_cbranch_scc1 Lln_u2")
        for t in range(8): a(f"ds_read_b32 v{96+8*u+t}, v238 offset:{2304*t + 2048*u}")
        a("s_waitcnt lgkmcnt(0)")
        for p in range(4): a(f"v_cvt_pk_bf16_f32 v{112+4*u+p}, v{96+8*u+2*p}, v{97+8*u+2*p}")
        a(f"buffer_store_dwordx4 {vr(112+4*u,4)}, v{230+u}, s[52:55], s32 offen sc1")
    a.label("Lln_u2")
    stamp(a, 'ln_st')

def h2_signal(a):
    a(f"s_add_u32 s32, s43, {C_H2}\ns_lshl_b32 s32, s32, 7\nv_lshlrev_b32 v10, 11, v8\nv_mov_b32 v9, 1\ns_mov_b64 exec, 0xff")
    a(f"buffer_atomic_add v9, v10, {SYNC}, s32 offen sc1\ns_mov_b64 exec, -1")

def final_pre(a):
    a("s_load_dwordx2 s[46:47], s[0:1], 80\ns_load_dwordx2 s[52:53], s[0:1], 104")
    tok_ids(a)
    make_ws_srd(a, 48, 4, 'mod')
    a("v_lshlrev_b32 v238, 2, v232\nv_lshlrev_b32 v239, 2, v233")
    a(f"s_mov_b32 s32, {5*2304}\nbuffer_load_dword v208, v238, s[48:51], s32 offen sc1\nbuffer_load_dword v209, v239, s[48:51], s32 offen sc1")
    make_ws_srd(a, 48, 4, 'x1')
    for u in range(2): a(f"buffer_load_dwordx4 {vr(192+4*u,4)}, v{236+u}, s[48:51], s44 offen sc1")
    a("v_lshlrev_b32 v230, 1, v232\nv_lshlrev_b32 v231, 1, v233")
    a("s_waitcnt lgkmcnt(0)")
    a("s_lshl_b32 s32, s42, 4\ns_add_u32 s46, s46, s32\ns_addc_u32 s47, s47, 0\ns_load_dwordx4 s[36:39], s[46:47], 0")
    make_srd(a, 24, 52, SIZES['out'])
    a("s_waitcnt lgkmcnt(0)")

def final_mid(a):
    for p in range(4): a(f"s_lshl_b32 s{48+2*p}, s{36+p}, 16\ns_and_b32 s{49+2*p}, s{36+p}, 0xffff0000")
    for u in range(2):
        unpack8(a, 192 + 4*u, 210 + 8*u)
        for t in range(8): a(f"v_fmac_f32 v{210+8*u+t}, s{48+t}, v{208+u}")

def final_body(a):
    make_ws_srd(a, 48, 4, 'p6')
    partial_loads(a, 48, "Lfi_sp", 4)
    for u in range(2):
        if u == 1: a("s_cmp_lg_u32 s3, 0\ns_cbranch_scc1 Lfi_u1")
        partial_sum(a, u, 160, 4)
        for t in range(8): a(f"v_fmac_f32 v{210+8*u+t}, v{208+u}, v{160+t}")
        for p in range(4): a(f"v_cvt_pk_bf16_f32 v{168+4*u+p}, v{210+8*u+2*p}, v{211+8*u+2*p}")
        a("s_mov_b32 s32, s44")
        for t in range(8):
            op = "buffer_store_short" if t % 2 == 0 else "buffer_store_short_d16_hi"
            a(f"{op} v{168+4*u+t//2}, v{230+u}, s[24:27], s32 offen" + (f" offset:{1152*(t%3)}" if t % 3 else ""))
            if t % 3 == 2: a("s_add_u32 s32, s32, 3456")
    a.label("Lfi_u1")

M1_W = 17408; M1_SLOT = M1_W + 12288; M1_NST = 32; M1_X = 114688
def m1_ids(a):
    a("s_and_b32 s32, s2, 7\ns_mul_i32 s32, s32, 27\ns_lshr_b32 s33, s2, 3\ns_add_u32 s32, s32, s33")
    a("s_mul_hi_u32 s28, s32, 0x2aaaaaab\ns_mul_i32 s33, s28, 6\ns_sub_u32 s29, s32, s33")
    a("v_and_b32 v8, 63, v0\nv_lshlrev_b32 v1, 4, v8")

def m1_compute(a):
    pre = 'Lm1'
    ACC = 16; SET = [64, 96]
    a("s_load_dwordx2 s[24:25], s[0:1], 64")
    m1_ids(a)
    a("v_bfe_u32 v2, v8, 2, 2\nv_mul_u32_u24 v2, 1088, v2\nv_lshrrev_b32 v9, 5, v8\nv_lshl_add_u32 v2, v9, 9, v2")
    a("v_bfe_u32 v9, v8, 4, 1\nv_lshl_add_u32 v2, v9, 5, v2\nv_and_b32 v9, 3, v8\nv_lshl_add_u32 v2, v9, 3, v2")
    a(f"s_lshl_b32 s32, s3, 6\nv_add_u32 v4, s32, v2\nv_add_u32 v5, {M1_W}, v1")
    a("v_mov_b32 v2, v4\nv_mov_b32 v3, v5")
    for i in range(0, 48, 2): a(f"v_mov_b64 {vr(ACC+i,2)}, 0")
    a("s_waitcnt lgkmcnt(0)")
    m1_bias(a, 3)
    def reads(hs, st):
        r = []
        for k in range(2):
            b = SET[st] + 16*k; ks = 2*hs + k
            for e in range(2): r.append(f"ds_read_b64_tr_b16 {vr(b+2*e,2)}, v2 offset:{ks*4352 + e*256}")
            for d in range(3): r.append(f"ds_read_b128 {vr(b+4+4*d,4)}, v3 offset:{d*4096 + ks*1024}")
        return r
    def mfs(st):
        return [mf(vr(ACC+16*d,16), vr(SET[st]+16*k,4), vr(SET[st]+16*k+4+4*d,4), vr(ACC+16*d,16)) for k in range(2) for d in range(3)]
    def half(m, r, extra):
        a("s_waitcnt lgkmcnt(5)")
        for i, x in enumerate(m):
            if i == 3: a("s_waitcnt lgkmcnt(6)")
            a(x)
            for o in r[2*i:2*i+2]: a(o)
            for o in extra.get(i, []): a(o)
    a(f"s_mov_b32 s40, 0\ns_mov_b32 s41, {M1_NST}")
    a("s_barrier")
    stamp(a, 'm1_b0')
    for o in reads(0, 0): a(o)
    a.label(f"{pre}_cloop")
    half(mfs(0), reads(1, 1), {3: [adv_slot(M1_SLOT, 5)], 5: ["v_add_u32 v2, s40, v4\nv_add_u32 v3, s40, v5"]})
    half(mfs(1), reads(0, 0), {5: ["s_sub_u32 s41, s41, 1\ns_cmp_lg_u32 s41, 0\ns_waitcnt vmcnt(0)"]})
    a(f"s_barrier\ns_cbranch_scc1 {pre}_cloop")
    stamp(a, 'm1_end')
    m1_xaddr(a, 3)
    a("s_waitcnt lgkmcnt(0)\ns_nop 3")
    for i in range(6): a(f"ds_write_b128 v4, {vr(ACC+24+4*i,4)} offset:{1024*i}")
    a("s_waitcnt lgkmcnt(0)\ns_barrier")
    m1_gelu(a, ACC, 64, 0)

def m1_xaddr(a, sw):
    a(f"s_mul_i32 s32, s{sw}, 6144\ns_add_u32 s32, s32, {M1_X}\nv_add_u32 v4, s32, v1")

def m1_bias(a, sw):
    make_srd(a, 16, 24, SIZES['b1'])
    a(f"s_lshl_b32 s32, s28, 2\ns_add_u32 s45, s32, s{sw}")
    a("s_lshl_b32 s32, s45, 6\nv_lshrrev_b32 v9, 5, v8\nv_lshlrev_b32 v9, 3, v9")
    for q in range(4): a(f"buffer_load_dwordx2 {vr(152+2*q,2)}, v9, s[16:19], s32 offen offset:{16*q}")
    make_ws_srd(a, 20, 4, 'u')
    a("v_bfe_u32 v9, v8, 4, 1\nv_mul_u32_u24 v9, 147456, v9\nv_lshrrev_b32 v10, 5, v8\nv_lshl_add_u32 v9, v10, 8, v9")
    a("v_and_b32 v10, 15, v8\nv_lshl_add_u32 v6, v10, 4, v9")
    a(f"s_mul_i32 s39, s29, {6*147456}\ns_lshl_b32 s33, s45, 10\ns_add_u32 s39, s39, s33")

def m1_gelu(a, keep, oth, h0):
    a("s_waitcnt vmcnt(0)" if h0 == 0 else "")
    for q in range(4):
        for h in range(2):
            a(f"v_lshlrev_b32 v{160+4*q+2*h}, 16, v{152+2*q+h}\nv_and_b32 v{161+4*q+2*h}, 0xffff0000, v{152+2*q+h}")
    c1 = -2 * math.sqrt(2 / math.pi) * math.log2(math.e); c2 = c1 * 0.044715
    a(f"v_mov_b32 v10, {f32(c1)}\nv_mov_b32 v11, {f32(c2)}")
    for i in range(3):
        d, e = (h0 + i) >> 1, (h0 + i) & 1
        if h0: a(f"s_waitcnt lgkmcnt({4 - 2*i})")
        b = keep + 8*i; o = oth + 8*i
        for r in range(8): a(f"v_add_f32 v{b+r}, v{b+r}, v{160+8*e+r}")
        for r in range(8): a(f"v_mul_f32 v{o+r}, v{b+r}, v{b+r}")
        for r in range(8): a(f"v_fma_f32 v{o+r}, v{o+r}, v11, v10")
        for r in range(8): a(f"v_mul_f32 v{o+r}, v{o+r}, v{b+r}")
        for r in range(8): a(f"v_exp_f32 v{o+r}, v{o+r}")
        for r in range(8): a(f"v_add_f32 v{o+r}, 1.0, v{o+r}")
        for r in range(8): a(f"v_rcp_f32 v{o+r}, v{o+r}")
        for r in range(8): a(f"v_mul_f32 v{b+r}, v{b+r}, v{o+r}")
        for p in range(4): a(f"v_cvt_pk_bf16_f32 v{o+p}, v{b+2*p}, v{b+2*p+1}")
        a(f"s_add_u32 s32, s39, {d*2*147456}\nbuffer_store_dwordx4 {vr(o,4)}, v6, s[20:23], s32 offen offset:{e*512} sc1")

def m1_loader_setup(a):
    m1_ids(a)
    a("v_lshrrev_b32 v2, 4, v8\nv_mul_u32_u24 v2, 36864, v2\nv_and_b32 v9, 15, v8\nv_lshl_add_u32 v2, v9, 4, v2")
    a(f"s_mul_i32 s32, s6, {16*9216}\nv_add_u32 v2, s32, v2")
    make_srd(a, 8, 58, SIZES['w1']); make_ws_srd(a, 12, 4, 'h2')
    a("s_lshl_b32 s34, s28, 8")
    a(f"s_mul_i32 s35, s29, {3*131072}\ns_lshl_b32 s32, s6, 10\ns_add_u32 s35, s35, s32")
    a(f"s_mul_i32 s37, s6, 4352\ns_lshl_b32 s38, s6, 10\ns_add_u32 s38, s38, {M1_W}")
    a(f"s_and_b32 s32, s2, 7\ns_lshl_b32 s32, s32, 4\ns_add_u32 s32, s32, {C_H2}\nv_and_b32 v7, 7, v8\nv_add_u32 v7, s32, v7\nv_lshlrev_b32 v7, 7, v7")
def m1_w(a):
    a("s_add_u32 s32, s40, s37")
    for jj in range(4): a(f"s_add_u32 m0, s32, {1088*jj}\ns_add_u32 s33, s34, {9216*jj}\nbuffer_load_dwordx4 v2, s[8:11], s33 offen lds")
    a(f"s_add_u32 s34, s34, {64*9216}")
def m1_f(a):
    a("s_add_u32 s32, s40, s38")
    for d in range(3): a(f"s_add_u32 m0, s32, {4096*d}\ns_add_u32 s33, s35, {131072*d}\nbuffer_load_dwordx4 v1, s[12:15], s33 offen sc1 lds")
    a("s_add_u32 s35, s35, 4096")
def m1_loader_main(a):
    def st(w): a(f"s_waitcnt vmcnt({w})\ns_barrier"); m1_f(a); m1_w(a); a(adv_slot(M1_SLOT, 5))
    a(f"s_mov_b32 s40, {4*M1_SLOT}")
    st(6)
    a("s_waitcnt vmcnt(7)\ns_barrier")
    a("s_cmp_lg_u32 s6, 0\ns_cbranch_scc1 Lm1_ns\ns_cmp_lt_u32 s43, 8\ns_cbranch_scc1 Lm1_ns")
    h2_signal(a)
    a.label("Lm1_ns")
    m1_f(a); m1_w(a); a(adv_slot(M1_SLOT, 5))
    a("s_mov_b32 s41, 8\nv_add_u32 v7, 1024, v7")
    a.label("Lm1_lloop0")
    st(14)
    a("s_sub_u32 s41, s41, 1\ns_cmp_lg_u32 s41, 0\ns_cbranch_scc1 Lm1_lloop0")
    a(f"s_cmp_lg_u32 s6, 0\ns_cbranch_scc1 Lm1_nl\nbuffer_load_dword v244, v7, {SYNC}, 0 offen sc1\nLm1_nl:")
    st(14); st(14)
    a("s_cmp_lg_u32 s6, 0\ns_cbranch_scc1 Lm1_np\ns_waitcnt vmcnt(14)\nv_cmp_gt_u32 vcc, 16, v244\ns_nop 1\ns_cbranch_vccz Lm1_np")
    poll(a, 7, 16, 244)
    a.label("Lm1_np")
    a("s_mov_b32 s41, 16")
    a.label("Lm1_lloop")
    st(14)
    a("s_sub_u32 s41, s41, 1\ns_cmp_lg_u32 s41, 0\ns_cbranch_scc1 Lm1_lloop")
    for w in (14, 7, 0, 0): a(f"s_waitcnt vmcnt({w})\ns_barrier")
    a("s_barrier")

def sig_wave4(a, soff_code, soff, lab, vtmp):
    a(f"s_cmp_lg_u32 s6, 0\ns_cbranch_scc1 {lab}")
    a(soff_code); signal(a, soff, vtmp)
    a.label(lab)

def mega():
    a = Asm(); n = NAME + '_kernel'
    a("s_cmp_ge_u32 s2, 256\ns_cbranch_scc1 Lend")
    stamp(a, 'start')
    phase_kv(a)
    phase_attn_compute(a)
    g16_compute_setup(a, 'o')
    a("s_waitcnt vmcnt(0)")
    stamp(a, 'at_dr')
    signal(a, 60, 9)
    ln2_pre(a)
    g16_compute(a, 'o')
    stamp(a, 'o_st')
    a("s_waitcnt vmcnt(18)")
    ln2_mid(a)
    if not SENT: a("s_waitcnt vmcnt(0)")
    stamp(a, 'o_dr')
    a("s_barrier")
    stamp(a, 'S')
    if not SENT: a("s_barrier")
    a.label("Lln_shared")
    stamp(a, 'R')
    ln2_body(a)
    stamp(a, 'S2')
    a("s_cmp_ge_u32 s3, 4\ns_cbranch_scc1 Ll_after_ln")
    a("s_cmp_lt_u32 s2, 216\ns_cbranch_scc1 Lc_g1\ns_waitcnt vmcnt(0)\ns_barrier\ns_branch Lc_g2")
    a.label("Lc_g1")
    a("s_cmp_ge_u32 s43, 8\ns_cbranch_scc1 Lc_g1b\ns_waitcnt vmcnt(0)\ns_barrier\ns_barrier")
    a.label("Lc_g1b")
    m1_compute(a)
    stamp(a, 'm1_st')
    a("s_waitcnt vmcnt(0)")
    stamp(a, 'm1_dr')
    a("s_barrier")
    stamp(a, 'S3')
    a.label("Lc_g2")
    g16_compute_setup(a, 'y')
    final_pre(a)
    g16_compute(a, 'y')
    stamp(a, 'y_st')
    a("s_waitcnt vmcnt(9)")
    final_mid(a)
    if not SENT: a("s_waitcnt vmcnt(0)\ns_barrier\ns_barrier")
    stamp(a, 'R4')
    a("s_branch Lfinal")
    phase_attn_loader(a)
    g16_loader_setup(a, 'o')
    a("s_barrier\ns_barrier")
    o_loader_main(a)
    ln2_pre(a)
    m1_loader_setup(a)
    a("s_load_dwordx2 s[24:25], s[0:1], 64\ns_waitcnt lgkmcnt(0)")
    m1_bias(a, 6)
    a("s_waitcnt vmcnt(0)")
    ln2_mid(a)
    a("s_barrier")
    sig_wave4(a, f"s_lshr_b32 s32, s2, 5\ns_add_u32 s32, s32, {C_P3 + 8}\ns_lshl_b32 s32, s32, 7", 32, "Ll_s1", 9)
    a("s_cmp_ge_u32 s2, 216\ns_cbranch_scc1 Ll_now1")
    for i in range(4):
        a(f"s_mov_b32 s40, {i*M1_SLOT}"); m1_w(a)
    a.label("Ll_now1")
    if not SENT:
        a("s_cmp_lg_u32 s6, 0\ns_cbranch_scc1 Ll_np1")
        a(f"s_add_u32 s32, s43, {C_P3}\ns_lshl_b32 s32, s32, 7\nv_mov_b32 v10, s32")
        poll(a, 10, 32, 244)
        a.label("Ll_np1")
        a("s_barrier")
    a("s_branch Lln_shared")
    a.label("Ll_after_ln")
    a("s_cmp_ge_u32 s2, 216\ns_cbranch_scc1 Ll_nom1")
    a("s_cmp_ge_u32 s43, 8\ns_cbranch_scc1 Ll_late\ns_waitcnt vmcnt(0)\ns_barrier\ns_cmp_lg_u32 s6, 0\ns_cbranch_scc1 Ll_s2")
    h2_signal(a)
    stamp(a, 'l_h2p0')
    poll(a, 7, 16, 244)
    stamp(a, 'l_h2p1')
    a.label("Ll_s2")
    a("s_barrier")
    for i in range(4):
        a(f"s_mov_b32 s40, {i*M1_SLOT}"); m1_f(a)
    a.label("Ll_late")
    m1_loader_main(a)
    a(f"s_mul_hi_u32 s32, s28, 0x1c71c71d\ns_mul_i32 s32, s32, 6\ns_add_u32 s32, s32, s29\ns_add_u32 s32, s32, {C_U}\ns_lshl_b32 s63, s32, 7")
    g16_loader_setup(a, 'y')
    g16_loader_wpro(a, 'y')
    m1_xaddr(a, 6)
    a("s_barrier")
    for i in range(6): a(f"ds_read_b128 {vr(16+4*i,4)}, v4 offset:{1024*i}")
    m1_gelu(a, 16, 40, 3)
    a("s_waitcnt vmcnt(0)\ns_barrier")
    sig_wave4(a, "", 63, "Ll_s3", 9)
    a("s_branch Ll_g2")
    a.label("Ll_nom1")
    a("s_waitcnt vmcnt(0)\ns_barrier\ns_cmp_lg_u32 s6, 0\ns_cbranch_scc1 Ll_nh")
    h2_signal(a)
    a.label("Ll_nh")
    g16_loader_setup(a, 'y')
    g16_loader_wpro(a, 'y')
    if 'fastidle' not in os.environ.get('XP', ''):
        a("s_cmp_lg_u32 s6, 0\ns_cbranch_scc1 Ll_g2\ns_mov_b32 s100, 0x2000")
        a.label("Ll_idle")
        a(f"s_sleep 32\nbuffer_load_dword v244, v7, {SYNC}, 0 offen sc1\ns_waitcnt vmcnt(0)\nv_cmp_gt_u32 vcc, 1, v244\ns_sub_u32 s100, s100, 1")
        a("s_cbranch_vccz Ll_g2\ns_cmp_lg_u32 s100, 0\ns_cbranch_scc1 Ll_idle")
    a.label("Ll_g2")
    g16_loader_main(a, 'y')
    final_pre(a)
    a("s_waitcnt vmcnt(0)")
    final_mid(a)
    if not SENT:
        a("s_barrier")
        a("s_cmp_lg_u32 s6, 0\ns_cbranch_scc1 Ll_np2")
        a(f"s_add_u32 s32, s43, {C_P6}\ns_lshl_b32 s32, s32, 7\nv_mov_b32 v10, s32")
        signal(a, 32, 9)
        poll(a, 10, 16, 244)
        a.label("Ll_np2")
        a("s_barrier")
    a.label("Lfinal")
    final_body(a)
    if STAMP:
        a(f"s_cmp_lg_u32 s3, {STAMP_WAVE}\ns_cbranch_scc1 Lend\ns_waitcnt vmcnt(0)")
        a("s_memrealtime s[92:93]\ns_waitcnt lgkmcnt(0)")
        stamp_flush(a, 15, "Lstf")
    a.label("Lend")
    a("s_endpgm")
    return n, a

def build(path):
    n, a = mega()
    txt = a.text()
    hdr = open('cdna_kernels/' + NAME + '.s.ref').read().split('\n')
    top = [l for l in hdr if l.startswith(';') and '@launch' not in l][:19]
    out = '\n'.join(top) + '\n'
    if os.environ.get('LIST'):
        out += f"; @launch kernel={n} grid=(256,1,1) block=(512,1,1) lds={LDS_TOTAL}\n"
    else:
        out += f"; @launch grid=(256,1,1) block=(512,1,1) lds={LDS_TOTAL}\n"
    if STAMP: out += '; stamps: ' + ','.join(STAMP_LIST) + '\n'
    out += '.amdgcn_target "amdgcn-amd-amdhsa--gfx950"\n' + kernel_header(n) + txt + kernel_desc(n, 256, 102)
    open(path, 'w').write(out)

if __name__ == '__main__':
    build(sys.argv[1] if len(sys.argv) > 1 else 'm.s')
```

```python
import sys, math, os
from gen_common import *
import k_attn as AT
from k_attn import (period, rare_path, build_ci, qk_group, pv_group, rd, mf, ADV, W4, KPOS, VPOS, BIG, QSCALE, THRESH, WQ_BYTES,
                    V_LANE16, V_RD, V_L, V_NEGM, V_Y, V_YD, V_T0, LU, T, CI, S, P, FR, Q, Q2, O)

OOB = "0xffffff00"
OUT16 = ' sc1' if 'out16s' in os.environ.get('XP', '') else ' ' if 'out16' in os.environ.get('XP', '') else ' nt' if 'outnt' in os.environ.get('XP', '') else ''
KPRIO = 'xkprio' not in os.environ.get('XP', '')
WF = 4 if 'afirst' not in os.environ.get('XP', '') else 0
SENT = ('sent' in os.environ.get('XP', '').split(','))
KORDER = [0, 1, 2, 3, 8, 9, 10, 11, 12, 13, 14, 15, 4, 5, 6, 7]
KREG = {k: (240 + 4*k if k < 4 else 128 + 4*(k - 8) if k >= 8 else 160 + 4*(k - 4)) for k in range(16)}
def kstore(k):
    return f"s_add_u32 s55, s57, {(k >> 2) * 65536}\nbuffer_store_dwordx4 {vr(KREG[k],4)}, v6, s[16:19], s55 offen offset:{(k & 3) * 1024}" + ("" if 'wb' in os.environ.get('XP', '').split(',') else " sc1")
LDS_TOTAL = 163840

def srd_off(a, srd, sptr, soff, add, size):
    a(f"s_add_u32 s{srd+2}, s{soff}, {add}\ns_add_u32 s{srd}, s{sptr}, s{srd+2}\ns_addc_u32 s{srd+1}, s{sptr+1}, 0\ns_and_b32 s{srd+1}, s{srd+1}, 0xffff")
    a(f"s_mov_b32 s{srd+2}, {size}\ns_mov_b32 s{srd+3}, 0x20000")

def phase_kv(a):
    A_BYTES = 32 * 1040; W_BYTES = 16 * 1088; SLOT = A_BYTES + 2 * W_BYTES
    GL = 2 * SLOT
    ML = GL + 2048
    XL = ML + 8192
    HAND = 131072
    ACC = 64; SET = [16, 40]
    NT = ' nt' if 'ntw' in os.environ.get('XP', '') else ''
    NT2 = ' nt' if 'ntg' in os.environ.get('XP', '') else ''
    a("s_load_dwordx8 s[28:35], s[0:1], 0\ns_load_dwordx2 s[36:37], s[0:1], 32\ns_load_dwordx4 s[40:43], s[0:1], 88\ns_load_dwordx4 s[44:47], s[0:1], 112")
    a("v_and_b32 v1, 63, v0\nv_lshrrev_b32 v2, 6, v0\ns_nop 1\nv_readfirstlane_b32 s3, v2")
    a("s_and_b32 s48, s2, 7\ns_lshr_b32 s49, s2, 3")
    a("s_and_b32 s55, s49, 3\ns_lshl_b32 s48, s48, 2\ns_add_u32 s48, s48, s55\ns_lshr_b32 s49, s49, 2")
    a("v_bfe_u32 v3, v1, 3, 2\nv_lshlrev_b32 v3, 13, v3\nv_lshrrev_b32 v4, 5, v1\nv_lshl_add_u32 v3, v4, 18, v3\nv_and_b32 v4, 7, v1\nv_lshl_add_u32 v3, v4, 4, v3")
    a("s_and_b32 s55, s3, 1\ns_lshl_b32 s55, s55, 12\ns_lshr_b32 s56, s3, 1\ns_lshl_b32 s56, s56, 19\ns_add_u32 s55, s55, s56")
    a("v_add_u32 v3, s55, v3")
    a("v_lshrrev_b32 v4, 4, v1\nv_lshlrev_b32 v4, 15, v4\nv_and_b32 v5, 15, v1\nv_lshl_add_u32 v4, v5, 4, v4")
    a("s_and_b32 s55, s3, 3\ns_lshl_b32 s55, s55, 17\nv_add_u32 v4, s55, v4")
    a("s_lshl_b32 s50, s49, 15\ns_lshl_b32 s51, s48, 8\ns_mul_i32 s52, s3, 4160")
    a(f"s_mul_i32 s53, s3, 4352\ns_add_u32 s53, s53, {A_BYTES}")
    a("s_and_b32 s61, s2, 3\ns_mul_i32 s55, s61, 144\nv_lshrrev_b32 v8, 3, v0\nv_add_u32 v8, s55, v8\nv_mul_u32_u24 v245, 6912, v8\nv_and_b32 v2, 7, v0")
    a("v_lshl_add_u32 v245, v2, 4, v245\ns_lshr_b32 s55, s2, 2\ns_lshl_b32 s55, s55, 7\nv_add_u32 v245, s55, v245\nv_lshlrev_b32 v8, 1, v8")
    a("s_lshl_b32 s60, s2, 3\ns_add_u32 s60, s60, s3\ns_mul_i32 s55, s60, 1152\nv_lshlrev_b32 v10, 4, v1\nv_add_u32 v10, s55, v10")
    a(f"v_cmp_gt_u32 vcc, 8, v1\nv_mov_b32 v15, {OOB}\nv_add_u32 v11, 1024, v10\nv_cndmask_b32 v11, v15, v11, vcc")
    a("s_waitcnt lgkmcnt(0)")
    a("s_mov_b32 s4, s46\ns_mov_b32 s5, s47")
    make_srd(a, 8, 30, SIZES['ckv'])
    a("s_cmp_lt_u32 s3, 4\ns_cselect_b32 s34, s34, s36\ns_cselect_b32 s35, s35, s37")
    make_srd(a, 12, 34, SIZES['wuk'])
    def dma_ops(slot):
        ops = []
        for jj in range(4):
            ops.append(f"s_add_u32 m0, s52, {slot*SLOT + 16*jj}\ns_nop 0\nbuffer_load_dwordx4 v3, s[8:11], s50 offen offset:{1024*jj} lds")
        for jj in range(4):
            ops.append(f"s_add_u32 m0, s53, {slot*SLOT + 1088*jj}\ns_add_u32 s55, s51, {8192*jj}\nbuffer_load_dwordx4 v4, s[12:15], s55 offen{NT} lds")
        return ops
    ADVD = f"s_add_u32 s50, s50, 128\ns_add_u32 s51, s51, {64*8192}"
    for st in range(2):
        for o in dma_ops(st): a(o)
        a(ADVD)
    CPF = 0 if 'nocpf' in os.environ.get('XP', '') else 1
    if CPF:
        a("s_getpc_b64 s[16:17]")
        a.label("Lpc")
        a("s_and_b32 s17, s17, 0xffff\ns_mov_b32 s18, Lend-Lpc\ns_mov_b32 s19, 0x20000")
        a("s_lshr_b32 s55, s2, 3\ns_lshl_b32 s55, s55, 3\ns_add_u32 s55, s55, s3\ns_lshl_b32 s55, s55, 9\nv_lshlrev_b32 v2, 3, v1")
        a("buffer_load_dwordx2 v[220:221], v2, s[16:19], s55 offen")
    a("s_lshl_b32 s63, s49, 15\ns_and_b32 s55, s48, 3\ns_lshl_b32 s55, s55, 10\ns_add_u32 s63, s63, s55")
    a("s_and_b32 s7, s49, 3\ns_lshl_b32 s7, s7, 13\ns_lshl_b32 s55, s48, 8\ns_add_u32 s7, s7, s55")
    a("s_bfe_u32 s55, s3, 0x10001\ns_lshr_b32 s56, s49, 2\ns_cmp_eq_u32 s55, s56\ns_cselect_b32 s7, s7, 0x7f000000")
    if 'nol2' in os.environ.get('XP', ''): a("s_mov_b32 s7, 0x7f000000\ns_mov_b32 s63, 0x7f000000")
    def l2pf(t):
        return [f"buffer_load_dwordx4 v[220:223], v3, s[8:11], s63 offen offset:{128*t}",
                f"s_add_u32 s56, s7, {t*64*8192}\nbuffer_load_dwordx4 v[220:223], v4, s[12:15], s56 offen{NT}"]
    l = Ops()
    make_srd(l, 16, 40, SIZES['c']); make_srd(l, 20, 42, SIZES['wmod']); make_srd(l, 24, 28, SIZES['x'])
    l("s_cmp_lt_u32 s2, 216\ns_cselect_b32 s22, s22, 0")
    l(f"s_mov_b32 s59, 0x7f000000\ns_cmp_lt_u32 s3, 2\ns_cselect_b32 s58, {128*6912}, s59\ns_cselect_b32 s59, 256, s59\ns_mov_b32 s55, {64*6912}")
    for i, (so, sc) in enumerate((('0', '0 offen'), ('s55', '0 offen offset:128'), ('s58', 's59 offen'))):
        l(f"buffer_load_dwordx4 {vr(192+4*i,4)}, v245, s[20:23], {so} offen{NT2}")
        l(f"buffer_load_ushort v{204+i}, v8, s[16:19], {sc}")
    l(f"buffer_load_dwordx4 v[224:227], v10, s[24:27], 0 offen\nbuffer_load_dwordx4 v[228:231], v11, s[24:27], 0 offen")
    make_ws_srd(l, 96, 4, 'sync')
    l(f"v_lshlrev_b32 v2, 2, v1\ns_lshl_b32 s55, s2, 8\nv_add_u32 v2, s55, v2\nv_mov_b32 v243, 0")
    l.lines.append("ZSTORE")
    make_srd(l, 36, 44, 256); make_ws_srd(l, 40, 4, 'modp'); make_srd(l, 16, 32, SIZES['wq']); make_ws_srd(l, 24, 4, 'h1'); make_ws_srd(l, 20, 4, 'mod')
    def sloads(role):
        return [(f"s_cmp_lg_u32 s3, 0\ns_cbranch_scc1 Lkv_nz\nbuffer_store_dword v243, v2, {SYNC}, 0 offen sc1\nLkv_nz:" if role == 0 else "s_nop 0")
                if o == "ZSTORE" else o for o in l.ops()]
    a("v_and_b32 v5, 7, v1\nv_mul_u32_u24 v5, 1040, v5\nv_bfe_u32 v6, v1, 3, 2\nv_lshl_add_u32 v5, v6, 7, v5")
    a("v_lshrrev_b32 v6, 5, v1\nv_lshl_add_u32 v5, v6, 4, v5")
    a("s_and_b32 s55, s3, 1\ns_mul_i32 s55, s55, 16640\nv_add_u32 v5, s55, v5")
    a("v_bfe_u32 v6, v1, 2, 2\nv_mul_u32_u24 v6, 1088, v6\nv_lshrrev_b32 v7, 5, v1\nv_lshl_add_u32 v6, v7, 9, v6")
    a("v_bfe_u32 v7, v1, 4, 1\nv_lshl_add_u32 v6, v7, 5, v6\nv_and_b32 v7, 3, v1\nv_lshl_add_u32 v6, v7, 3, v6")
    a(f"s_lshr_b32 s55, s3, 2\ns_mul_i32 s55, s55, {W_BYTES}\ns_bfe_u32 s56, s3, 0x10001\ns_lshl_b32 s56, s56, 7")
    a(f"s_add_u32 s55, s55, s56\ns_add_u32 s55, s55, {A_BYTES}\nv_add_u32 v6, s55, v6")
    a(f"v_lshrrev_b32 v9, 3, v0\nv_lshlrev_b32 v13, 9, v9\nv_lshlrev_b32 v9, 5, v9\nv_add_u32 v9, {ML}, v9\nv_lshlrev_b32 v12, 4, v0\nv_cmp_gt_u32 vcc, 288, v0\ns_nop 1\nv_cndmask_b32 v12, v15, v12, vcc")
    a("s_lshr_b32 s55, s2, 2\ns_mul_i32 s55, s55, 36864\ns_and_b32 s56, s2, 3\ns_lshl_b32 s56, s56, 7\ns_add_u32 s62, s55, s56")
    a(f"v_and_b32 v14, 7, v0\nv_lshl_add_u32 v13, v14, 4, v13\ns_lshl_b32 s55, s3, 4\ns_add_u32 s55, s55, {XL}\nv_lshlrev_b32 v14, 7, v1\nv_add_u32 v14, s55, v14")
    a(f"s_lshl_b32 s55, s3, 8\ns_add_u32 s55, s55, {GL}\nv_lshlrev_b32 v7, 5, v1\nv_add_u32 v7, s55, v7")
    for i in range(0, 128, 2): a(f"v_mov_b64 {vr(ACC+i,2)}, 0")

    pf = ["s_mul_i32 s55, s60, 2304\nv_lshlrev_b32 v2, 4, v1"] + [f"buffer_load_dwordx4 v[220:223], v2, s[16:19], s55 offen offset:{1024*i}" for i in range(3)]
    g = Ops()
    for i in range(3):
        c = 204 + i
        g(f"v_lshlrev_b32 v{c}, 16, v{c}\nv_mul_f32 v216, 0xbfb8aa3b, v{c}\nv_exp_f32 v216, v216\ns_nop 0\nv_add_f32 v216, 1.0, v216\nv_rcp_f32 v216, v216\ns_nop 0\nv_mul_f32 v{c}, v{c}, v216")
        round_bf16(g, c)
        for d in range(4):
            w = 192 + 4*i + d
            op = "v_mul_f32" if i == 0 else "v_fmac_f32"
            g(f"v_lshlrev_b32 v216, 16, v{w}\nv_and_b32 v217, 0xffff0000, v{w}\n{op} v{208+2*d}, v{c}, v216\n{op} v{209+2*d}, v{c}, v217")
    g("s_nop 1")
    for k in range(8): g(f"v_add_f32_dpp v{208+k}, v{208+k}, v{208+k} row_ror:8 row_mask:0xf bank_mask:0xf")
    for sw in ("v_permlane16_swap_b32", "v_permlane32_swap_b32"):
        for k in range(8): g(f"v_mov_b32 v{192+k}, v{208+k}")
        g("s_nop 0")
        for k in range(8): g(f"{sw} v{208+k}, v{192+k}")
        for k in range(8): g(f"v_add_f32 v{208+k}, v{208+k}, v{192+k}")
    gemv = g.ops() + ["s_mov_b64 exec, 0xff\nds_write_b128 v7, v[208:211]\nds_write_b128 v7, v[212:215] offset:16\ns_mov_b64 exec, -1"]
    mload = [f"v_lshlrev_b32 v10, 4, v0\nv_add_u32 v10, {ML}, v10"] + [f"s_mov_b32 s55, {13824*r}\nbuffer_load_dwordx4 {vr(192+4*r,4)}, v12, s[40:43], s55 offen sc1" for r in range(4)]
    q = Ops()
    for k in range(4): q(f"v_add_f32 v{192+k}, v{192+k}, v{196+k}\nv_add_f32 v{200+k}, v{200+k}, v{204+k}")
    for k in range(4): q(f"v_add_f32 v{192+k}, v{192+k}, v{200+k}")
    round_pairs(q, 192, 4, 2)
    q("v_cmp_lt_u32 vcc, 143, v0\ns_nop 1\nv_cndmask_b32 v196, 0, 1.0, vcc")
    for k in range(4): q(f"v_add_f32 v{192+k}, v{192+k}, v196")
    round_pairs(q, 192, 4, 2)
    q("ds_write_b128 v10, v[192:195]")
    msum = q.ops()
    x = Ops()
    unpack8(x, 224, 232); unpack8(x, 228, 240)
    x("v_add_f32 v216, v232, v233")
    for i in range(234, 248): x(f"v_add_f32 v216, v216, v{i}")
    wave_allsum(x, 216, 217)
    x("v_mul_f32 v216, 0x3ae38e39, v216\nv_cmp_gt_u32 vcc, 8, v1\nv_mov_b32 v219, 0\ns_nop 0\nv_cndmask_b32 v218, 0, v216, vcc")
    for i in range(16): x(f"v_sub_f32 v217, v{232+i}, v{216 if i < 8 else 218}\nv_fmac_f32 v219, v217, v217")
    wave_allsum(x, 219, 217)
    x("v_mul_f32 v219, 0x3ae38e39, v219")
    round_bf16(x, 216); round_bf16(x, 219)
    x("v_add_f32 v219, 0x3727c5ac, v219"); round_bf16(x, 219)
    x("v_sqrt_f32 v219, v219\ns_nop 0"); round_bf16(x, 219)
    x("v_rcp_f32 v219, v219\ns_nop 0")
    for i in range(16): x(f"v_sub_f32 v{232+i}, v{232+i}, v216")
    round_pairs(x, 232, 16, 217)
    for i in range(16): x(f"v_mul_f32 v{232+i}, v{232+i}, v219")
    for p in range(8): x(f"v_cvt_pk_bf16_f32 v{248+p}, v{232+2*p}, v{233+2*p}")
    x("ds_write_b128 v14, v[248:251]\nds_write_b128 v14, v[252:255] offset:8192")
    xst = x.ops()
    def h1fin(u):
        h = Ops()
        h(f"ds_read_b128 v[224:227], v10 offset:{XL - ML + 8192*u}")
        for k, off in enumerate((0, 16, 2304, 2320)): h(f"ds_read_b128 {vr(192+4*k,4)}, v9 offset:{off + 2048*u}")
        h("s_waitcnt lgkmcnt(0)")
        unpack8(h, 224, 232)
        for i in range(8): h(f"v_mul_f32 v{232+i}, v{232+i}, v{200+i}")
        round_pairs(h, 232, 8, 2)
        for i in range(8): h(f"v_add_f32 v{232+i}, v{232+i}, v{192+i}")
        for p in range(4): h(f"v_cvt_pk_bf16_f32 v{228+4*u+p}, v{232+2*p}, v{233+2*p}") if u == 0 else h(f"v_cvt_pk_bf16_f32 v{240+p}, v{232+2*p}, v{233+2*p}")
        h(f"s_add_u32 s55, s62, {32768*u}\nbuffer_store_dwordx4 {vr(228 if u == 0 else 240,4)}, v13, s[24:27], s55 offen sc1")
        return h.ops()

    def reads(ks, s):
        b = SET[s]; r = []
        for nn in range(2):
            for e in range(2): r.append(f"ds_read_b64_tr_b16 {vr(b+16+4*nn+2*e,2)}, v6 offset:{ks*4352 + e*256 + nn*64}")
        for m in range(4): r.append(f"ds_read_b128 {vr(b+4*m,4)}, v5 offset:{(m>>1)*8320 + (m&1)*512 + ks*32}")
        return r
    def mfmas(s, role):
        b = SET[s]; r = []
        for m in range(4):
            for nn in range(2):
                acc = vr(ACC + 16*(2*m+nn), 16); c = vr(b+4*m, 4); w = vr(b+16+4*nn, 4)
                r.append(mf(acc, w, c, acc) if role == 0 else mf(acc, c, w, acc))
        return r
    stamp(a, 'kv_pro')
    a(f"s_waitcnt vmcnt({8 + CPF})\ns_barrier")
    stamp(a, 'kv_b0')
    for o in reads(0, 0): a(o)
    a("s_cmp_lt_u32 s3, 4\ns_cbranch_scc0 Lkv_r1")
    for role in range(2):
        a.label(f"Lkv_r{role}")
        if role == 1 and 'p1' in os.environ.get('PR', ''): a("s_setprio 1")
        if role == 0 and 'p0' in os.environ.get('PR', ''): a("s_setprio 1")
        hx = len(xst) // 2
        for t in range(8):
            pl = ['s_cmp_lg_u32 s3, 0\ns_cbranch_scc1 Lkv_npl\nbuffer_load_dword v15, v11, s[36:39], 0 offen sc1\nLkv_npl:'] if role == 0 else []
            side = {0: l2pf(2) + l2pf(3) + sloads(role), 1: gemv, 2: xst[:hx], 3: xst[hx:], 4: ['s_nop 0'] * 10 + pl + pf,
                    5: mload + ['s_nop 0'] * 40 + ['s_waitcnt vmcnt(0)'] + msum, 6: h1fin(0) + ['s_nop 0'] * 46}.get(t, [])
            if 'noval' in os.environ.get('XP', '') and t in (1, 2, 3): side = [o for o in side if 'buffer' in o or 'ds_' in o]
            if 'novm' in os.environ.get('XP', '') and t == 4: side = [o if 'buffer' not in o else o.replace('s55 offen', 's100 offen') for o in side]; a('s_mov_b32 s100, 0x7f000000')
            g0 = 8 * (int(os.environ.get('DKS', '0')) + 1) if ((role == 1 or ('nospread' not in os.environ.get('XP', ''))) and t in (4, 5, 6)) else 0
            if 1 <= t <= 4: side = side + l2pf(t + 3)
            per = (len(side) + 23 - g0) // (24 - g0)
            if t == 1: a(f"s_waitcnt vmcnt({0 if 'nospread' in os.environ.get('XP', '') and role == 1 else 4})")
            if t == 2 and role == 0:
                a("s_cmp_lg_u32 s3, 0\ns_cbranch_scc1 Lkv_nofin")
                a(f"v_lshlrev_b32 v2, 2, v1\nv_add_u32 v15, {GL}, v2")
                for w in range(8): a(f"ds_read_b32 v{192+w}, v15 offset:{256*w}")
                a("s_mul_i32 s55, s61, 13824\ns_lshr_b32 s56, s2, 2\ns_lshl_b32 s56, s56, 8\ns_add_u32 s55, s55, s56\ns_cmp_lt_u32 s2, 216\ns_cselect_b32 s55, s55, 0x7f000000\ns_waitcnt lgkmcnt(0)")
                for w in range(1, 8): a(f"v_add_f32 v192, v192, v{192+w}")
                a("buffer_store_dword v192, v2, s[40:43], s55 offen sc1\nv_mov_b32 v2, 1\ns_lshl_b32 s55, s61, 6\nv_and_b32 v11, 3, v1\nv_lshlrev_b32 v11, 6, v11")
                a("s_waitcnt vmcnt(0)\ns_mov_b64 exec, 1\nbuffer_atomic_add v2, off, s[36:39], s55 sc1\ns_mov_b64 exec, -1")
                a.label("Lkv_nofin")
            if t in (5, 6) and role == 1:
                a(f"s_cmp_lg_u32 s3, 7\ns_cbranch_scc1 Lkv_nofm{t}")
                if t == 5:
                    a(f"s_lshl_b32 s55, s2, 6\nv_lshlrev_b32 v15, 2, v1\nv_add_u32 v15, s55, v15\nv_cmp_gt_u32 vcc, 16, v1\nv_mov_b32 v2, {OOB}\ns_cmp_lt_u32 s2, 216\ns_cselect_b64 vcc, vcc, 0\ns_nop 1\nv_cndmask_b32 v15, v2, v15, vcc")
                    for r in range(4): a(f"s_mov_b32 s55, {13824*r}\nbuffer_load_dword v{216+r}, v15, s[40:43], s55 offen sc1")
                else:
                    a("v_add_f32 v216, v216, v217\nv_add_f32 v218, v218, v219\nv_add_f32 v216, v216, v218")
                    round_bf16(a, 216)
                    a("buffer_store_dword v216, v15, s[20:23], 0 offen sc1")
                a.label(f"Lkv_nofm{t}")
            if t == 7 and role == 1:
                a("s_sub_u32 s6, s3, 4\ns_cmp_ge_u32 s3, 6\ns_cbranch_scc1 Lkv_nls")
                attn_loader_setup(a)
                a.label("Lkv_nls")
                a("s_cmp_lg_u32 s3, 7\ns_cbranch_scc1 Lkv_nl7\ns_lshr_b32 s31, s2, 5\ns_sub_u32 s30, 15, s31")
                a(f"v_and_b32 v3, 1, v1\nv_mov_b32 v4, s30\nv_mov_b32 v2, s31\nv_cmp_eq_u32 vcc, 0, v3\ns_nop 1\nv_cndmask_b32 v3, v2, v4, vcc\nv_lshlrev_b32 v3, 7, v3")
                a.label("Lkv_nl7")
            for ks in range(3):
                if t == 6 and role == 0 and ks == 2:
                    a("s_cmp_lg_u32 s3, 0\ns_cbranch_scc1 Lkv_noh2")
                    for o in h1fin(1): a(o)
                    a.label("Lkv_noh2")
                if t == 7 and role == 1 and ks == 1:
                    a(f"s_cmp_lg_u32 s3, 7\ns_cbranch_scc1 Lkv_nl8\nbuffer_load_dword v244, v3, {SYNC}, 0 offen sc1\nLkv_nl8:")
                if KPRIO: a(f"s_setprio {2 - ks}")
                a("s_waitcnt lgkmcnt(0)")
                m = mfmas(ks & 1, role); r = reads(ks + 1, (ks + 1) & 1)
                dm = dma_ops((t - 1) & 1) if ((role == 1 or ('nospread' not in os.environ.get('XP', ''))) and ks == int(os.environ.get('DKS', '0')) and 1 <= t <= 6) else None
                for i in range(8):
                    a(m[i])
                    for o in r[2*i:2*i+2]: a(o)
                    if dm and not ('nospread' not in os.environ.get('XP', '')): a(dm[i])
                    if dm and ('nospread' not in os.environ.get('XP', '')) and i % 2 == role: a(dm[(4 - WF) + i // 2])
                    k = (ks * 8 + i - g0) * per
                    if k >= 0:
                        for o in side[k:k+per]:
                            if o != 's_nop 0' or t not in (4, 5, 6): a(o)
                if dm: a(ADVD)
            d = SLOT if t % 2 == 0 else -SLOT
            a(f"v_add_u32 v5, {d & 0xffffffff}, v5\nv_add_u32 v6, {d & 0xffffffff}, v6")
            a(f"s_waitcnt vmcnt({ {0: 12 + CPF, 1: 2, 2: 2, 3: 2, 4: 5}.get(t, 0) }) lgkmcnt(0)")
            if t == 4 and role == 0:
                a("s_cmp_lg_u32 s3, 0\ns_cbranch_scc1 Lkv_mpd\ns_mov_b32 s100, 0x8000")
                a.label("Lkv_mp")
                a("v_cmp_gt_u32 vcc, 64, v15\ns_sub_u32 s100, s100, 1\ns_cbranch_vccz Lkv_mpd\ns_cmp_eq_u32 s100, 0\ns_cbranch_scc1 Lkv_mpd")
                a("buffer_load_dword v15, v11, s[36:39], 0 offen sc1\ns_waitcnt vmcnt(0)\ns_branch Lkv_mp")
                a.label("Lkv_mpd")
            if t == 7 and role == 1:
                a(f"s_cmp_lg_u32 s3, 7\ns_cbranch_scc1 Lkv_np1\nv_cmp_gt_u32 vcc, 16, v244\nv_mov_b32 v247, {GL}\ns_nop 1")
                a("s_cmp_eq_u64 vcc, 0\ns_cselect_b32 s59, 1, 0\nv_mov_b32 v248, s59\nds_write_b32 v247, v248\ns_waitcnt lgkmcnt(0)")
                a.label("Lkv_np1")
            stamp(a, f'kw{t}')
            a("s_barrier")
            stamp(a, f'kv{t}')
            if t == 7 and role == 1:
                a(f"s_cmp_ge_u32 s3, 6\ns_cbranch_scc1 Lkv_nq0\nv_mov_b32 v247, {GL}\nds_read_b32 v248, v247\ns_waitcnt lgkmcnt(0)")
                a("v_readfirstlane_b32 s51, v248\ns_cmp_eq_u32 s51, 0\ns_cbranch_scc1 Lkv_nq0")
                for i in range(2): wq_part(a); h_part(a)
                a.label("Lkv_nq0")
            if t == 6 and role == 1:
                a("s_cmp_lg_u32 s3, 7\ns_cbranch_scc1 Lkv_ns1\ns_lshr_b32 s55, s2, 4\ns_lshl_b32 s55, s55, 7")
                signal(a, 55, 2)
                a.label("Lkv_ns1")
            if KPRIO: a("s_setprio 3")
            m = mfmas(1, role); r = reads(0, 0) if t < 7 else []; dm = dma_ops(t & 1)
            for i in range(8):
                a(m[i])
                for o in r[2*i:2*i+2]: a(o)
                if t < 6 and role == 0 and not ('nospread' not in os.environ.get('XP', '')): a(dm[i])
                if t < 6 and ('nospread' not in os.environ.get('XP', '')) and i % 2 == role: a(dm[WF + i // 2])
            if t < 6 and role == 0 and not ('nospread' not in os.environ.get('XP', '')): a(ADVD)
        stamp(a, 'kv_end')
        if KPRIO: a("s_setprio 0")
        def pack(k, dst):
            src = ACC + 8*k
            for p in range(4): a(f"v_cvt_pk_bf16_f32 v{dst+p}, v{src+2*p}, v{src+2*p+1}")
        if role == 1:
            a("s_cmp_ge_u32 s3, 6\ns_cbranch_scc1 Lkv_sw")
            a(f"s_lshl_b32 s55, s6, 14\ns_add_u32 s55, s55, {HAND}\nv_add_u32 v12, s55, v{V_LANE16}\ns_nop 7")
            for k in range(16):
                dst = 16 + 4 * (k % 8)
                pack(k, dst)
                a(f"ds_write_b128 v12, {vr(dst,4)} offset:{1024*k}")
            a("s_waitcnt lgkmcnt(0)\ns_barrier")
            a("s_branch Lat_load")
            a.label("Lkv_sw")
        a("v_lshlrev_b32 v7, 4, v1")
        a("s_lshl_b32 s55, s48, 19\ns_lshl_b32 s56, s49, 13\ns_add_u32 s55, s55, s56")
        a("s_and_b32 s56, s3, 1\ns_lshl_b32 s56, s56, 18\ns_add_u32 s57, s55, s56")
        if role == 1:
            a(f"s_and_b32 s55, s3, 1\ns_lshl_b32 s55, s55, 14\ns_add_u32 s55, s55, {HAND}\nv_add_u32 v2, s55, v7")
            for k in range(16): pack(k, ACC + 4*k)
            make_ws_srd(a, 20, 4, 'vf')
            a("s_cmp_lg_u32 s3, 7\ns_cbranch_scc1 Lkv_np2\ns_cmp_lg_u32 s59, 0\ns_cbranch_scc1 Lkv_np2")
            stamp(a, 'l_h1p0')
            poll(a, 3, 16, 244)
            stamp(a, 'l_h1p1')
            a.label("Lkv_np2")
            a("s_barrier")
            for k in range(16): a(f"ds_read_b128 {vr(128+4*k,4)}, v2 offset:{1024*k}")
            a("s_branch Lat_sw")
        else:
            for k in KORDER: pack(k, KREG[k])
            make_ws_srd(a, 16, 4, 'kf')
            if 'nok' in os.environ.get('XP', ''): a("s_mov_b32 s18, 0")
            a("s_lshr_b32 s56, s3, 1\ns_lshl_b32 s56, s56, 12\ns_add_u32 s57, s57, s56")
            a("v_mov_b32 v6, v7")
            a("s_branch Lat_comp")

def attn_ids(a):
    a("s_and_b32 s28, s2, 7\ns_lshr_b32 s29, s2, 3")
    a("s_and_b32 s30, s29, 3\ns_lshl_b32 s28, s28, 2\ns_add_u32 s28, s28, s30")
    if 'longfirst' in os.environ.get('XP', ''): a("s_lshr_b32 s31, s29, 2\ns_sub_u32 s30, 15, s31")
    else: a("s_lshr_b32 s30, s29, 2\ns_sub_u32 s31, 15, s30")
    a(f"v_and_b32 v8, 63, v0\nv_lshlrev_b32 v{V_LANE16}, 4, v8")

def phase_attn_compute(a):
    a.label("Lat_comp")
    a("s_setprio 1" if 'pc' in os.environ.get('PR', '') else "s_setprio 0" if os.environ.get('PR') else "")
    attn_ids(a)
    a("v_bfe_u32 v2, v8, 2, 2\nv_mul_u32_u24 v2, 1088, v2\nv_lshrrev_b32 v9, 5, v8\nv_lshl_add_u32 v2, v9, 9, v2")
    a("v_bfe_u32 v9, v8, 4, 1\nv_lshl_add_u32 v2, v9, 5, v2\nv_and_b32 v9, 3, v8\nv_lshl_add_u32 v2, v9, 3, v2")
    a(f"s_lshl_b32 s32, s3, 11\ns_add_u32 s32, s32, {WQ_BYTES}\nv_add_u32 v3, s32, v{V_LANE16}")
    a("v_and_b32 v9, 31, v8\ns_lshl_b32 s32, s3, 5\nv_add_u32 v9, s32, v9\nv_lshrrev_b32 v10, 5, v8\nv_lshlrev_b32 v10, 2, v10")
    a(f"v_sub_u32 v9, v9, v10\nv_cvt_f32_i32 v9, v9\nv_add_f32 v9, 0.5, v9\nv_mul_f32 v{V_YD}, {f32(BIG)}, v9")
    QACC = lambda qt, t: (16 + 16*t) if qt == 0 else (O + 16*t)
    QSET = [FR, FR + 24]
    for i in range(0, 64, 2): a(f"v_mov_b64 {vr(16+i,2)}, 0\nv_mov_b64 {vr(O+i,2)}, 0")
    make_ws_srd(a, 20, 4, 'ctx')
    a(f"s_mov_b32 s46, {f32(QSCALE)}\ns_mov_b32 s47, {f32(QSCALE)}")
    def qreads(ks, st):
        b = QSET[st]; r = []
        for qt in range(2): r.append(f"ds_read_b128 {vr(b+16+4*qt,4)}, v3 offset:{qt*8192 + ks*1024}")
        for t in range(4):
            for e in range(2): r.append(f"ds_read_b64_tr_b16 {vr(b+4*t+2*e,2)}, v2 offset:{ks*4352 + e*256 + t*64}")
        return r
    def qmf(st):
        b = QSET[st]
        return [mf(vr(QACC(qt, t), 16), vr(b+4*t, 4), vr(b+16+4*qt, 4), vr(QACC(qt, t), 16)) for t in range(4) for qt in range(2)]
    def front(m, r):
        out = []
        for i, x in enumerate(m):
            out.append(x); out += r[2*i:2*i+2]
        return out
    a("s_mov_b32 s40, 0")
    stamp(a, 'q_pre')
    a("s_barrier\ns_barrier")
    stamp(a, 'q_b0')
    for o in qreads(0, 0): a(o)
    for c in range(18):
        a("s_waitcnt lgkmcnt(0)")
        ops = front(qmf(0), qreads(1, 1))
        if c < 16: ops.insert(20, kstore(c))
        for o in ops: a(o)
        d = AT.SLOT if c % 5 != 4 else -4 * AT.SLOT
        a(f"v_add_u32 v2, {d & 0xffffffff}, v2\nv_add_u32 v3, {d & 0xffffffff}, v3")
        if c == 9: a("s_waitcnt vmcnt(2)")
        if c == 17: a("s_waitcnt vmcnt(0)")
        a("s_waitcnt lgkmcnt(0)")
        for o in front(qmf(1), qreads(0, 0) if c < 17 else []): a(o)
        a("s_barrier")
        stamp(a, f'q{c}')
    a(f"s_mov_b32 s40, {3*AT.SLOT}")
    stamp(a, 'q_end')
    a("v_and_b32 v8, 63, v0\nv_bfe_u32 v9, v8, 4, 1\nv_lshlrev_b32 v9, 17, v9\nv_lshrrev_b32 v10, 5, v8\nv_lshl_add_u32 v9, v10, 8, v9")
    a(f"v_and_b32 v10, 15, v8\nv_lshl_add_u32 v{V_T0}, v10, 4, v9\nv_mov_b32 v{V_T0+1}, {f32(THRESH)}")
    a(ADV[1])
    a("s_nop 7")
    for qt in (1, 0):
        for t in range(4):
            for e in range(2):
                for p in range(4):
                    s_ = QACC(qt, t) + 8*e + 2*p
                    a(f"v_pk_mul_f32 {vr(s_,2)}, {vr(s_,2)}, s[46:47]")
                for p in range(4):
                    s_ = QACC(qt, t) + 8*e + 2*p
                    a(f"v_cvt_pk_bf16_f32 v{(Q, Q2)[qt] + 4*(2*t+e) + p}, v{s_}, v{s_+1}")
        if qt == 1:
            for i in range(8): a(rd(i, KPOS[1]))
    a("s_mov_b32 s42, s30\ns_mov_b32 s43, 0")
    a.label("Lat_qk0")
    a(f"s_lshl_b32 s32, s42, 7\nv_cvt_f32_u32 v{V_Y}, s32\nv_mul_f32 v{V_Y}, {f32(BIG)}, v{V_Y}\nv_add_f32 v{V_Y}, v{V_Y}, v{V_YD}")
    a(f"v_mov_b32 v{V_NEGM}, 0")
    for o in build_ci(): a(o)
    a(ADV[0]); a(ADV[1])
    z = [f"v_mov_b64 {vr(O+i,2)}, 0" for i in range(0, 64, 2)] + [f"v_mov_b64 {vr(P[1]+i,2)}, 0" for i in range(0, 8, 2)]
    z += [f"v_mov_b32 v{V_L}, 0", f"v_mov_b32 v{LU[1]}, 0"]
    m = qk_group(0)
    for i in range(8):
        if i == 0: a("s_waitcnt lgkmcnt(5)")
        if i % 4 == 3: a(W4)
        a(m[i]); a(rd(i, KPOS[0]))
        for o in z[5*i:5*i+5]: a(o)
    a("s_nop 7\ns_nop 1")
    s = S[0]; t = V_T0 + 2; d = V_T0 + 3
    a(f"v_max3_f32 v{d}, v{s}, v{s+1}, v{s+2}")
    for r in range(3, 15, 2): a(f"v_max3_f32 v{d}, v{d}, v{s+r}, v{s+r+1}")
    a(f"v_max_f32 v{d}, v{d}, v{s+15}")
    a(f"v_mov_b32 v{t}, v{d}\ns_nop 1\nv_permlane32_swap_b32 v{d}, v{t}\ns_nop 1")
    a(f"v_max_f32 v{d}, v{d}, v{t}")
    a(f"v_sub_f32 v{V_NEGM}, 0, v{d}")
    for r in range(16): a(f"v_sub_f32 v{s+r}, v{s+r}, v{d}")
    for o in build_ci(): a(o)
    sites = []
    a(f"s_cmp_eq_u32 s43, 0\ns_cbranch_scc1 Lat_ns0\ns_lshr_b32 s32, s28, 2\ns_add_u32 s32, s32, {C_CTX}\ns_lshl_b32 s33, s30, 3\ns_add_u32 s33, s33, s32\ns_lshl_b32 s33, s33, 7\ns_waitcnt vmcnt(0)")
    signal(a, 33, V_Y)
    a.label("Lat_ns0")
    a(f"v_mov_b32 v{V_Y}, v{V_YD}")
    a("s_cmp_eq_u32 s42, 0\ns_cbranch_scc0 Lat_plain_pre")
    a(f"v_add_f32 v{V_Y}, {f32(-64*BIG)}, v{V_Y}\ns_mov_b32 s41, 1\ns_branch Lat_rebuild")
    a.label("Lat_plain_pre")
    a("s_lshl_b32 s41, s42, 1\ns_sub_u32 s41, s41, 1")
    a.label("Lat_plain")
    a("s_barrier")
    sites.append(period(a, 0, 0, VPOS[0], KPOS[1]))
    sites.append(period(a, 1, 1, VPOS[1], KPOS[0], adv=True, tail_ops=["s_sub_u32 s41, s41, 1\ns_cmp_lg_u32 s41, 0"]))
    a("s_cbranch_scc1 Lat_plain")
    a("s_mov_b32 s41, 2")
    a.label("Lat_rebuild")
    a("s_barrier")
    sites.append(period(a, 0, 2, VPOS[0], KPOS[1], rebuild=True))
    sites.append(period(a, 1, 3, VPOS[1], KPOS[0], rebuild=True, adv=True, tail_ops=["s_sub_u32 s41, s41, 1\ns_cmp_lg_u32 s41, 0"]))
    a("s_cbranch_scc1 Lat_rebuild")
    a("s_barrier")
    sites.append(period(a, 0, 4, VPOS[0], VPOS[1]))
    sites.append(period(a, 1, 5, None, VPOS[0], qk=False, adv=True))
    a("s_barrier")
    m = pv_group(1)
    mv = [f"v_mov_b64 {vr(Q+i,2)}, {vr(Q2+i,2)}" for i in range(0, 32, 2)]
    for i in range(8):
        if i % 4 == 3: a(W4)
        a(m[i]); a(rd(i, KPOS[1]))
        for o in mv[2*i:2*i+2]: a(o)
    a("s_cmp_eq_u32 s43, 0\ns_cbranch_scc1 Lat_noE\ns_waitcnt lgkmcnt(0)\ns_barrier")
    a.label("Lat_noE")
    a(f"v_add_f32 v{V_L}, v{V_L}, v{LU[1]}")
    a(f"v_mov_b32 v{t}, v{V_L}\ns_nop 1\nv_permlane32_swap_b32 v{V_L}, v{t}\ns_nop 1\nv_add_f32 v{V_L}, v{V_L}, v{t}")
    a(f"v_rcp_f32 v{T}, v{V_L}\ns_nop 0\nv_mov_b32 v{T+1}, v{T}")
    a("s_lshl_b32 s32, s42, 20\ns_lshl_b32 s33, s3, 18\ns_add_u32 s32, s32, s33\ns_lshl_b32 s33, s28, 12\ns_add_u32 s32, s32, s33")
    a("s_nop 3")
    k = 0
    for tt in range(4):
        for e in range(2):
            src = O + 16*tt + 8*e; dst = S[0] + 4 * k; k += 1
            for p in range(4): a(f"v_pk_mul_f32 {vr(src+2*p,2)}, {vr(src+2*p,2)}, {vr(T,2)}")
            for p in range(4): a(f"v_cvt_pk_bf16_f32 v{dst+p}, v{src+2*p}, v{src+2*p+1}")
            a(f"buffer_store_dwordx4 {vr(dst,4)}, v{V_T0}, s[20:23], s32 offen offset:{tt*1024 + e*512} sc1")
    a("s_cmp_lg_u32 s43, 0\ns_cbranch_scc1 Lat_cend")
    a("s_mov_b32 s43, 1\ns_mov_b32 s42, s31\ns_branch Lat_qk0")
    for site, par in sites:
        a.label(f"Lat_rs{site}")
        a(f"s_call_b64 s[44:45], Lat_rare{par}\ns_branch Lat_rb{site}")
    rare_path(a, 0); rare_path(a, 1)
    a.label("Lat_cend")
    stamp(a, 'at_end')
    a(f"s_lshr_b32 s32, s28, 2\ns_add_u32 s32, s32, {C_CTX}\ns_lshl_b32 s60, s31, 3\ns_add_u32 s60, s60, s32\ns_lshl_b32 s60, s60, 7")

def wq_part(a):
    a("s_add_u32 s32, s40, s37")
    for jj in range(4): a(f"s_add_u32 m0, s32, {1088*jj}\ns_add_u32 s33, s34, {8192*jj}\nbuffer_load_dwordx4 v2, s[8:11], s33 offen lds")
    a(f"s_add_u32 s34, s34, {32*8192}")

def h_part(a):
    a("s_add_u32 s32, s40, s38")
    for qt in range(2):
        for b in range(2):
            a(f"s_add_u32 m0, s32, {qt*8192 + b*2048}\ns_add_u32 s33, s{35+qt}, {b*36864}")
            a(f"buffer_load_dwordx4 v{V_LANE16}, s[12:15], s33 offen sc1 lds\nbuffer_load_dwordx4 v{V_LANE16}, s[12:15], s33 offen offset:1024 sc1 lds")
    a("s_add_u32 s35, s35, 2048\ns_add_u32 s36, s36, 2048")
    a(ADV[0])

def attn_loader_setup(a):
    SLOT = AT.SLOT
    make_srd(a, 8, 32, SIZES['wq'])
    a("s_load_dwordx2 s[56:57], s[0:1], 40\ns_load_dwordx2 s[58:59], s[0:1], 56\ns_load_dwordx2 s[60:61], s[0:1], 72")
    attn_ids(a)
    a("v_lshrrev_b32 v2, 4, v8\nv_lshlrev_b32 v2, 15, v2\nv_and_b32 v3, 15, v8\nv_lshl_add_u32 v2, v3, 4, v2")
    a("s_lshl_b32 s32, s6, 17\nv_add_u32 v2, s32, v2")
    a("s_lshl_b32 s34, s28, 8\ns_mul_i32 s37, s6, 4352")
    make_ws_srd(a, 12, 4, 'h1')
    a("s_lshl_b32 s32, s28, 19")
    srd_off(a, 16, 4, 32, WS['kf'][0], 512*1024); srd_off(a, 20, 4, 32, WS['vf'][0], 512*1024)
    a("s_lshl_b32 s35, s30, 1\ns_add_u32 s35, s35, s6\ns_mul_i32 s35, s35, 73728")
    a("s_lshl_b32 s36, s31, 1\ns_add_u32 s36, s36, s6\ns_mul_i32 s36, s36, 73728")
    a(f"s_lshl_b32 s38, s6, 12\ns_add_u32 s38, s38, {WQ_BYTES}\ns_lshl_b32 s39, s6, 13\ns_mov_b32 s40, 0")
    a("s_sub_u32 s44, s39, 8192\ns_sub_u32 s45, s39, 24576")
    a("s_mov_b32 s46, s44\ns_mov_b32 s47, s45\ns_mov_b32 s48, 0\ns_lshl_b32 s49, s30, 1\ns_add_u32 s49, s49, 3")

def phase_attn_loader(a):
    a.label("Lat_load")
    a("s_setprio 1" if 'pl' in os.environ.get('PR', '') else "s_setprio 0" if os.environ.get('PR') else "")
    a("s_cmp_lg_u32 s51, 0\ns_cbranch_scc1 Lat_early")
    for i in range(2): wq_part(a); h_part(a)
    a.label("Lat_early")
    for i in range(2): wq_part(a); h_part(a)
    a("s_mov_b32 s41, 14")
    a.label("Lat_lq")
    a("s_waitcnt vmcnt(24)\ns_barrier")
    wq_part(a); h_part(a)
    a("s_sub_u32 s41, s41, 1\ns_cmp_lg_u32 s41, 0\ns_cbranch_scc1 Lat_lq")
    a("s_waitcnt vmcnt(24)\ns_barrier")
    def kvload():
        for (srd, so, lo) in ((16, 46, 0), (20, 47, 16384)):
            a(f"s_add_u32 s32, s40, s39\ns_add_u32 m0, s32, {lo}\ns_add_u32 s33, s{so}, 4096")
            for j in range(4): a(f"buffer_load_dwordx4 v{V_LANE16}, {sr(srd,4)}, s{so} offen offset:{1024*j} sc1 lds")
            a(f"s_add_u32 m0, s32, {lo + 4096}\ns_nop 0")
            for j in range(4): a(f"buffer_load_dwordx4 v{V_LANE16}, {sr(srd,4)}, s33 offen offset:{1024*j} sc1 lds")
        a("s_add_u32 s46, s46, 16384\ns_add_u32 s47, s47, 16384\ns_add_u32 s48, s48, 1")
        a("s_cmp_eq_u32 s48, s49\ns_cselect_b32 s46, s44, s46")
        a("s_add_u32 s32, s49, 1\ns_add_u32 s33, s45, 16384\ns_cmp_eq_u32 s48, s32\ns_cselect_b32 s47, s33, s47")
        a(ADV[0])
    kvload()
    a("s_waitcnt vmcnt(28)\ns_barrier")
    kvload()
    a("s_waitcnt lgkmcnt(0)\ns_lshl_b32 s52, s2, 1\ns_add_u32 s52, s52, s6\ns_mul_i32 s50, s52, 9216\ns_mul_i32 s52, s52, 36864\ns_mov_b32 s41, 0")
    make_srd(a, 24, 56, 0 if 'nopf' in os.environ.get('XP', '') else SIZES['wo'])
    a.label("Lat_lpf")
    a("s_waitcnt vmcnt(32)\ns_barrier")
    kvload()
    for g in range(3):
        for j in range(3): a(f"buffer_load_dwordx4 v[8:11], v{V_LANE16}, s[24:27], s50 offen offset:{1024*j}")
        a("s_add_u32 s50, s50, 3072")
    for r in range(2):
        a("s_waitcnt vmcnt(41)\ns_barrier")
        kvload()
    a("s_add_u32 s41, s41, 1")
    for (n, ptr) in ((1, 58), (5, 60)):
        a(f"s_and_b32 s33, s{ptr+1}, 0xffff\ns_cmp_eq_u32 s41, {n}\ns_cselect_b32 s24, s{ptr}, s24\ns_cselect_b32 s25, s33, s25\ns_cselect_b32 s50, s52, s50")
    if 'nopf' not in os.environ.get('XP', ''): a(f"s_mov_b32 s26, {SIZES['w1']}")
    a("s_cmp_lt_u32 s41, 9\ns_cbranch_scc1 Lat_lpf")
    a("s_mov_b32 s41, 8")
    a.label("Lat_lkv")
    a("s_waitcnt vmcnt(32)\ns_barrier")
    kvload()
    a("s_sub_u32 s41, s41, 1\ns_cmp_lg_u32 s41, 0\ns_cbranch_scc1 Lat_lkv")
    a("s_waitcnt vmcnt(32)\ns_barrier\ns_waitcnt vmcnt(16)\ns_barrier")
    a("s_waitcnt vmcnt(0) lgkmcnt(0)\ns_barrier")
    a("s_branch Lat_ldone")

    a.label("Lat_sw")
    a("s_setprio 1" if 'pl' in os.environ.get('PR', '') else "s_setprio 0" if os.environ.get('PR') else "")
    a("s_mov_b32 s62, s57")
    a("s_load_dwordx2 s[56:57], s[0:1], 40\ns_load_dwordx2 s[58:59], s[0:1], 56\ns_load_dwordx2 s[60:61], s[0:1], 72")
    def vstore(n):
        k = n & 15; m_, nn, e = k >> 2, (k >> 1) & 1, k & 1
        reg = 64 + 4*k if n < 16 else 128 + 4*k
        a(f"s_add_u32 s55, s62, {m_*65536 + e*4096 + (2048 if n < 16 else 0)}\nbuffer_store_dwordx4 {vr(reg,4)}, v7, s[20:23], s55 offen offset:{nn*1024}" + ("" if 'wb' in os.environ.get('XP', '').split(',') else " sc1"))
    order = [n for m_ in range(4) for n in list(range(4*m_, 4*m_ + 4)) + list(range(16 + 4*m_, 16 + 4*m_ + 4))]
    a(f"s_add_u32 s32, s48, {C_KV}\ns_lshl_b32 s32, s32, 7\nv_mov_b32 v3, s32\ns_add_u32 s33, s32, {(C_KV2 - C_KV) * 128}\nv_mov_b32 v5, s33")
    a("s_waitcnt lgkmcnt(0)\ns_barrier")
    a("s_cmp_eq_u32 s3, 7\ns_cbranch_scc1 Lat_w7")
    for c in range(30):
        if c < 16 and c != 13: vstore(order[2*c]); vstore(order[2*c + 1])
        if c == 9: a("s_waitcnt vmcnt(4)")
        if c == 17: a("s_waitcnt vmcnt(0)")
        if c in (10, 18): signal(a, 32 if c == 10 else 33, 4)
        if c == 26:
            a("v_and_b32 v6, 15, v1\nv_lshlrev_b32 v6, 7, v6")
            poll(a, 6, 16, 244)
        if c in (13, 21, 29):
            if c == 29: a(f"v_add_u32 v5, {(C_KV3 - C_KV2) * 128}, v5")
            stamp(a, 'l_kvp0' if c == 13 else 'l_kvq0')
            poll(a, 3 if c == 13 else 5, 8, 244)
            stamp(a, 'l_kvp1' if c == 13 else 'l_kvq1')
            if c == 13: vstore(order[2*c]); vstore(order[2*c + 1])
        a("s_barrier")
    a("s_branch Lat_w67")
    a.label("Lat_w7")
    for c in range(30):
        if 18 <= c < 26:
            for q in range(4): vstore(order[4*(c - 18) + q])
        if c == 27:
            a(f"s_waitcnt vmcnt(0)\ns_add_u32 s33, s32, {(C_KV3 - C_KV) * 128}")
            signal(a, 33, 4)
        a("s_barrier")
    a.label("Lat_w67")
    if SENT:
        tok_ids(a)
        a(f"s_mov_b32 s33, {WS['p6'][0]}\ns_cmp_eq_u32 s3, 6\ns_cselect_b32 s32, {WS['p3'][0]}, s33")
        srd_off(a, 24, 4, 32, 0, WS['p3'][1])
        a("v_mov_b32 v8, -1\nv_mov_b32 v9, -1\nv_mov_b32 v10, -1\nv_mov_b32 v11, -1\ns_mov_b32 s50, s44\ns_mov_b32 s41, 4")
        a.label("Lat_pz")
        for g in range(3):
            a("s_barrier")
            for j in range(3): a(f"buffer_store_dwordx4 v[8:11], v7, s[24:27], s50 offen offset:{1024*j} sc1")
            a(f"s_add_u32 s50, s50, {3072 if g < 2 else 256*9216 - 6144}")
        a("s_sub_u32 s41, s41, 1\ns_cmp_lg_u32 s41, 0\ns_cbranch_scc1 Lat_pz")
        a(f"s_barrier\ns_barrier\ns_waitcnt vmcnt(0)\ns_add_u32 s32, s43, {C_PZ}\ns_lshl_b32 s32, s32, 7")
        signal(a, 32, 4)
    a(f"s_mov_b32 s41, {51 - 30 - (14 if SENT else 0)}")
    a.label("Lat_pfd")
    a("s_barrier\ns_sub_u32 s41, s41, 1\ns_cmp_lg_u32 s41, 0\ns_cbranch_scc1 Lat_pfd")
    if 'wpf' in os.environ.get('XP', ''):
        make_srd(a, 24, 56, SIZES['wo'])
        a(f"s_bfe_u32 s50, s2, 0x20001\ns_mul_i32 s50, s50, {1024*1152}\ns_lshr_b32 s32, s2, 3\ns_lshl_b32 s32, s32, 1\ns_and_b32 s33, s3, 1\ns_add_u32 s32, s32, s33")
        a("s_mul_i32 s32, s32, 18432\ns_add_u32 s50, s50, s32")
        for g in range(6):
            for j in range(3): a(f"buffer_load_dwordx4 v[8:11], v7, s[24:27], s50 offen offset:{1024*j}")
            a("s_add_u32 s50, s50, 3072")
    a("s_cmp_lg_u32 s3, 6\ns_cbranch_scc1 Lat_nc0")
    a(f"s_lshr_b32 s32, s2, 5\ns_lshl_b32 s32, s32, 3\ns_and_b32 s33, s2, 7\ns_add_u32 s32, s32, s33\ns_add_u32 s32, s32, {C_CTX}\ns_lshl_b32 s32, s32, 7\nv_mov_b32 v3, s32")
    poll(a, 3, 16, 244)
    a.label("Lat_nc0")
    a("s_barrier\ns_barrier")
    a("s_waitcnt vmcnt(0)")
    a.label("Lat_ldone")

def adv_slot(slot, nslot):
    return f"s_add_u32 s40, s40, {slot}\ns_cmp_eq_u32 s40, {slot*nslot}\ns_cselect_b32 s40, 0, s40"

G16 = {'o': dict(F=16384, W=20480, NST=16, nF=4, nW=5), 'y': dict(F=20480, W=16896, NST=18, nF=5, nW=4)}

def g16_ids(a, kind):
    if kind == 'o':
        a("s_and_b32 s28, s2, 7\ns_lshr_b32 s29, s2, 5\ns_bfe_u32 s30, s2, 0x20003\nv_and_b32 v8, 63, v0\nv_lshlrev_b32 v1, 4, v8")
        return
    a("s_bfe_u32 s28, s2, 0x20001")
    a("s_and_b32 s29, s2, 1\ns_lshl_b32 s29, s29, 3\ns_lshr_b32 s30, s2, 5\ns_add_u32 s29, s29, s30")
    a("s_bfe_u32 s30, s2, 0x20003")
    a("v_and_b32 v8, 63, v0\nv_lshlrev_b32 v1, 4, v8")

def g16_compute_setup(a, kind):
    p = G16[kind]
    g16_ids(a, kind)
    a("v_bfe_u32 v2, v8, 4, 1\nv_lshlrev_b32 v2, 2, v2\nv_bfe_u32 v9, v8, 2, 2\nv_add_u32 v2, v2, v9")
    a("v_lshrrev_b32 v9, 5, v8\nv_and_b32 v10, 3, v8")
    if kind == 'o':
        a("v_lshl_add_u32 v2, v9, 4, v2\nv_mul_u32_u24 v2, 288, v2\nv_lshl_add_u32 v2, v10, 3, v2")
        a(f"v_add_u32 v4, {p['F']}, v2\ns_lshl_b32 s35, s3, 12\nv_add_u32 v5, s35, v1")
    else:
        a("v_mul_u32_u24 v2, 1056, v2\nv_lshl_add_u32 v2, v9, 9, v2\nv_lshl_add_u32 v2, v10, 3, v2")
        a(f"s_lshl_b32 s35, s3, 6\ns_add_u32 s35, s35, {p['F']}\nv_add_u32 v4, s35, v2\nv_mov_b32 v5, v1")
    a("v_mov_b32 v2, v4\nv_mov_b32 v3, v5")
    for i in range(0, 72, 2): a(f"v_mov_b64 {vr(16+i,2)}, 0")
    make_ws_srd(a, 20, 4, 'p3' if kind == 'o' else 'p6')
    a("v_bfe_u32 v6, v8, 4, 1\nv_lshlrev_b32 v6, 1, v6\nv_lshrrev_b32 v9, 5, v8\nv_add_u32 v6, v6, v9\nv_mul_u32_u24 v6, 9216, v6\nv_and_b32 v9, 15, v8\nv_lshl_add_u32 v6, v9, 4, v6")

def g16_compute(a, kind):
    p = G16[kind]; pre = 'Lg' + kind; SLOT = p['F'] + p['W']
    ACC = 16; SET = [96, 144]
    def reads(ks, st):
        b = SET[st]; r = []
        if kind == 'o':
            for t in range(2): r.append(f"ds_read_b128 {vr(b+4*t,4)}, v3 offset:{t*2048 + ks*1024}")
            for c in range(9):
                for e in range(2): r.append(f"ds_read_b64_tr_b16 {vr(b+8+4*c+2*e,2)}, v2 offset:{(32*ks + 8*e)*288 + c*32}")
        else:
            for t in range(2):
                for e in range(2): r.append(f"ds_read_b64_tr_b16 {vr(b+4*t+2*e,2)}, v2 offset:{8*ks*1056 + e*256 + t*32}")
            for c in range(9): r.append(f"ds_read_b128 {vr(b+8+4*c,4)}, v3 offset:{c*2048 + ks*1024}")
        return r
    def mfs(st):
        b = SET[st]
        return [f"v_mfma_f32_16x16x32_bf16 {vr(ACC+4*(9*t+c),4)}, {vr(b+4*t,4)}, {vr(b+8+4*c,4)}, {vr(ACC+4*(9*t+c),4)}"
                for c in range(9) for t in range(2)]
    def kstep(m, r, extra):
        n = len(r); NL = 6 if kind == 'o' else 3
        take = [(n * (i + 1)) // 16 - (n * i) // 16 if i < 16 else 0 for i in range(18)]
        k = 0
        a(f"s_waitcnt lgkmcnt({NL})")
        for i, x in enumerate(m):
            if i == 12: a(f"s_waitcnt lgkmcnt({min(15, k)})")
            a(x)
            for o in r[k:k+take[i]]: a(o)
            k += take[i]
            for o in extra.get(i, []): a(o)
    a(f"s_mov_b32 s40, 0\ns_mov_b32 s41, {p['NST'] if kind == 'y' else 8}\ns_mov_b32 s45, {0 if kind == 'o' else 1}")
    a("s_lshl_b32 s34, s28, 8\ns_lshl_b32 s33, s29, 4\ns_add_u32 s34, s34, s33\ns_lshl_b32 s33, s3, 2\ns_add_u32 s34, s34, s33")
    a("s_mul_i32 s34, s34, 9216\ns_mul_i32 s33, s30, 2304\ns_add_u32 s34, s34, s33")
    if kind == 'y': a("s_barrier")
    a("s_barrier")
    stamp(a, kind + '_b0')
    for o in reads(0, 0): a(o)
    a(f"s_branch {pre}_cin")
    a.label(f"{pre}_cloop")
    a("s_barrier")
    a.label(f"{pre}_cin")
    kstep(mfs(0), reads(1, 1), {14: [adv_slot(SLOT, 4)], 16: ["v_add_u32 v2, s40, v4"], 17: ["v_add_u32 v3, s40, v5"]})
    kstep(mfs(1), reads(0, 0), {16: ["s_sub_u32 s41, s41, 1"], 17: ["s_cmp_lg_u32 s41, 0"],
                                 13: ["s_cmp_lg_u32 s41, 5\ns_cbranch_scc1 Lgo_nd\ns_waitcnt vmcnt(0)\nLgo_nd:"] if kind == 'o' else []})
    a(f"s_cbranch_scc1 {pre}_cloop")
    a.label(f"{pre}_cend")
    stamp(a, kind + '_end')
    a("s_nop 4")
    for c in range(9):
        A_ = ACC + 4*c; B_ = ACC + 4*(9 + c)
        a(f"v_cvt_pk_bf16_f32 v{A_}, v{A_}, v{A_+1}\nv_cvt_pk_bf16_f32 v{A_+1}, v{A_+2}, v{A_+3}")
        a(f"v_cvt_pk_bf16_f32 v{A_+2}, v{B_}, v{B_+1}\nv_cvt_pk_bf16_f32 v{A_+3}, v{B_+2}, v{B_+3}")
    for c in range(9):
        dst = ACC + 4*c
        a(f"v_permlane16_swap_b32 v{dst}, v{dst+2}\nv_permlane16_swap_b32 v{dst+1}, v{dst+3}")
        a(f"buffer_store_dwordx4 {vr(dst,4)}, v6, s[20:23], s34 offen offset:{256*c} sc1")
    if kind == 'o':
        a(f"s_cmp_lg_u32 s45, 0\ns_cbranch_scc1 {pre}_cfin\ns_mov_b32 s45, 1\ns_mov_b32 s41, 8\ns_add_u32 s34, s34, {128*9216}")
        for i in list(range(36, 72, 2)) + list(range(0, 36, 2)): a(f"v_mov_b64 {vr(16+i,2)}, 0")
        a(f"s_branch {pre}_cloop")
        a.label(f"{pre}_cfin")
    a("s_waitcnt lgkmcnt(0)")

def g16_loader_setup(a, kind):
    p = G16[kind]
    g16_ids(a, kind)
    if kind == 'o':
        a("s_mul_i32 s32, s6, 320\ns_mov_b32 s33, 0xe38e38f")
        for jj in range(5):
            a(f"v_add_u32 v9, s32, v8\nv_add_u32 v9, {64*jj}, v9\nv_mul_hi_u32 v10, v9, s33")
            a(f"v_mul_u32_u24 v11, 18, v10\nv_sub_u32 v11, v9, v11\nv_mul_u32_u24 v10, 1152, v10\nv_lshl_add_u32 v{2+jj}, v11, 4, v10")
            a(f"v_cmp_gt_u32 vcc, 1152, v9\nv_mov_b32 v10, {OOB}\ns_nop 1\nv_cndmask_b32 v{2+jj}, v10, v{2+jj}, vcc")
        make_srd(a, 8, 56, SIZES['wo']); make_ws_srd(a, 12, 4, 'ctx')
        a(f"s_mul_i32 s34, s28, {512*1152}\ns_mul_i32 s32, s30, 288\ns_add_u32 s34, s34, s32")
        a("s_lshl_b32 s35, s29, 3\ns_lshl_b32 s32, s6, 1\ns_add_u32 s35, s35, s32\ns_lshl_b32 s35, s35, 17\ns_lshl_b32 s32, s28, 14\ns_add_u32 s35, s35, s32")
        a(f"s_mul_i32 s37, s6, 5120\ns_add_u32 s37, s37, {p['F']}\ns_lshl_b32 s38, s6, 12")
        a(f"s_lshl_b32 s32, s29, 3\ns_add_u32 s32, s32, s28\ns_add_u32 s32, s32, {C_CTX + 64}\ns_lshl_b32 s32, s32, 7\nv_mov_b32 v7, s32")
        if SENT: a(f"s_add_u32 s32, s29, {C_PZ}\ns_lshl_b32 s32, s32, 7\nv_mov_b32 v9, s32\nv_cmp_gt_u32 vcc, 32, v8\ns_nop 1\nv_cndmask_b32 v7, v9, v7, vcc")
    else:
        a("v_lshrrev_b32 v2, 4, v8\nv_lshlrev_b32 v2, 15, v2\nv_and_b32 v9, 15, v8\nv_lshl_add_u32 v2, v9, 4, v2")
        a("s_and_b32 s32, s6, 1\ns_lshl_b32 s32, s32, 14\ns_lshr_b32 s33, s6, 1\ns_lshl_b32 s33, s33, 17\ns_add_u32 s32, s32, s33\nv_add_u32 v2, s32, v2")
        make_srd(a, 8, 60, SIZES['w2']); make_ws_srd(a, 12, 4, 'u')
        a(f"s_mul_i32 s34, s28, {1152*4096}\ns_lshl_b32 s32, s29, 8\ns_add_u32 s34, s34, s32")
        a(f"s_mul_i32 s35, s30, {9*147456}\ns_mul_i32 s32, s28, {36*1024}\ns_add_u32 s35, s35, s32")
        for jj in range(5):
            a(f"s_mul_i32 s32, s6, 5\ns_add_u32 s32, s32, {jj}\ns_lshr_b32 s33, s32, 1\ns_mul_i32 s33, s33, 147456")
            a(f"s_and_b32 s36, s32, 1\ns_lshl_b32 s36, s36, 10\ns_add_u32 s33, s33, s36\ns_add_u32 s33, s33, s35")
            a(f"s_cmp_lt_u32 s32, 18\ns_cselect_b32 s{46+jj}, s33, 0x7f000000")
        a(f"s_mul_i32 s37, s6, 4224\ns_add_u32 s37, s37, {p['F']}\ns_mul_i32 s38, s6, 5120")
        a(f"s_mul_i32 s32, s28, 6\ns_mul_i32 s33, s30, 3\ns_lshr_b32 s33, s33, 1\ns_add_u32 s32, s32, s33\ns_add_u32 s32, s32, {C_U}")
        a("v_and_b32 v7, 1, v8\nv_add_u32 v7, s32, v7\nv_lshlrev_b32 v7, 7, v7")

def g16_w(a, kind):
    if kind == 'o':
        a("s_add_u32 s32, s40, s37")
        for jj in range(5): a(f"s_add_u32 m0, s32, {1024*jj}\ns_nop 0\nbuffer_load_dwordx4 v{2+jj}, s[8:11], s34 offen lds")
        a(f"s_add_u32 s34, s34, {64*1152}")
    else:
        a("s_add_u32 s32, s40, s37")
        for jj in range(4): a(f"s_add_u32 m0, s32, {1056*jj}\ns_add_u32 s33, s34, {4096*jj}\nbuffer_load_dwordx4 v2, s[8:11], s33 offen lds")
        a(f"s_add_u32 s34, s34, {64*4096}")
def g16_f(a, kind):
    if kind == 'o':
        a("s_add_u32 m0, s40, s38\ns_add_u32 s33, s35, 0x20000")
        a("buffer_load_dwordx4 v1, s[12:15], s35 offen sc1 lds\nbuffer_load_dwordx4 v1, s[12:15], s35 offen offset:1024 sc1 lds")
        a("s_add_u32 s32, s40, s38\ns_add_u32 m0, s32, 2048\ns_nop 0")
        a("buffer_load_dwordx4 v1, s[12:15], s33 offen sc1 lds\nbuffer_load_dwordx4 v1, s[12:15], s33 offen offset:1024 sc1 lds")
        a("s_add_u32 s35, s35, 2048")
    else:
        a("s_add_u32 s32, s40, s38")
        for jj in range(5):
            a(f"s_add_u32 m0, s32, {1024*jj}\ns_nop 0\nbuffer_load_dwordx4 v1, s[12:15], s{46+jj} offen sc1 lds\ns_add_u32 s{46+jj}, s{46+jj}, 2048")

def g16_loader_wpro(a, kind):
    p = G16[kind]; SLOT = p['F'] + p['W']
    for i in range(3):
        a(f"s_mov_b32 s40, {i*SLOT}"); g16_w(a, kind)

def g2_wpf(a):
    if 'wpf' not in os.environ.get('XP', ''): return
    a(f"s_mul_i32 s32, s30, {64*4096}\ns_add_u32 s32, s32, s34")
    for i in range(4):
        a(f"s_add_u32 s36, s30, {3 + 4*i}\ns_cmp_lt_u32 s36, 18\ns_cselect_b32 s36, s32, 0x7f000000")
        for jj in range(4): a(f"s_add_u32 s33, s36, {(4*i*64 + jj)*4096}\nbuffer_load_dwordx4 v[12:15], v2, s[8:11], s33 offen")

def o_loader_main(a):
    p = G16['o']; SLOT = p['F'] + p['W']
    for n in range(16):
        if n >= 3:
            a("s_waitcnt vmcnt(9)")
            if n == 8:
                a("s_cmp_lg_u32 s6, 0\ns_cbranch_scc1 Lgo_np\nv_cmp_gt_u32 vcc, 16, v244\ns_nop 1\ns_cbranch_vccz Lgo_np")
                stamp(a, 'l_op0')
                poll(a, 7, 16, 244)
                stamp(a, 'l_op1')
                a.label("Lgo_np")
            a("s_barrier")
        if n == 8: a(f"s_add_u32 s35, s35, {(64 << 17) - 16384}\ns_sub_u32 s34, s34, {8*64*1152}")
        a(f"s_mov_b32 s40, {(n % 4) * SLOT}")
        g16_w(a, 'o'); g16_f(a, 'o')
        if n == 6: a(f"s_cmp_lg_u32 s6, 0\ns_cbranch_scc1 Lgo_nl\nbuffer_load_dword v244, v7, {SYNC}, 0 offen sc1\nLgo_nl:")
    sig_wave4(a, f"s_add_u32 s32, s29, {C_P3}\ns_lshl_b32 s32, s32, 7", 32, "Lgo_ns", 9)
    a("s_waitcnt vmcnt(9)\ns_barrier\ns_waitcnt vmcnt(0)\ns_barrier\ns_barrier")

def g16_loader_main(a, kind):
    p = G16[kind]; pre = 'Lg' + kind; SLOT = p['F'] + p['W']
    if 'gnodma' in os.environ.get('XP', ''): a("s_mov_b32 s10, 0\ns_mov_b32 s14, 0")
    stamp(a, 'l_' + kind + 'p0')
    if kind == 'y': a(f"s_cmp_lg_u32 s6, 0\ns_cbranch_scc1 {pre}_np")
    poll(a, 7, 32 if kind == 'o' else 9, 244)
    if kind == 'y':
        a.label(f"{pre}_np"); a("s_barrier")
    stamp(a, 'l_' + kind + 'p1')
    for i in range(3):
        a(f"s_mov_b32 s40, {i*SLOT}"); g16_f(a, kind)
    a(f"s_mov_b32 s40, {3*SLOT}\ns_mov_b32 s41, {p['NST'] - 3}")
    a(f"s_waitcnt vmcnt({p['nF']})\ns_branch {pre}_lb")
    a.label(f"{pre}_lloop")
    a("s_waitcnt vmcnt(9)")
    a.label(f"{pre}_lb")
    a("s_barrier")
    g16_f(a, kind); g16_w(a, kind)
    a(adv_slot(SLOT, 4))
    a(f"s_sub_u32 s41, s41, 1\ns_cmp_lg_u32 s41, 0\ns_cbranch_scc1 {pre}_lloop")
    a("s_waitcnt vmcnt(9)\ns_barrier\ns_waitcnt vmcnt(0)\ns_barrier\ns_barrier")

def tok_ids(a):
    a("s_bfe_u32 s32, s2, 0x20001\ns_lshl_b32 s32, s32, 2\ns_bfe_u32 s33, s2, 0x20003\ns_add_u32 s32, s32, s33")
    a("s_and_b32 s43, s2, 1\ns_lshl_b32 s43, s43, 3\ns_lshr_b32 s33, s2, 5\ns_add_u32 s43, s43, s33")
    a("s_lshl_b32 s42, s43, 4\ns_add_u32 s42, s42, s32\ns_mul_i32 s44, s42, 9216")
    a(f"v_mov_b32 v232, v0\nv_add_u32 v233, 512, v0\nv_cmp_gt_u32 vcc, 64, v0\nv_mov_b32 v234, 0x0ffffff0\ns_nop 1\nv_cndmask_b32 v233, v234, v233, vcc")
    a("v_lshlrev_b32 v236, 4, v232\nv_lshlrev_b32 v237, 4, v233\nv_mov_b32 v240, 0x3f80\nv_mov_b32 v241, 0x3f800000")

def partial_loads(a, srd, lab, ns):
    for u in range(2):
        if u == 1: a(f"s_cmp_lg_u32 s3, 0\ns_cbranch_scc1 {lab}a")
        a("s_mov_b32 s32, s44")
        for s in range(ns):
            a(f"buffer_load_dwordx4 {vr(96+32*u+4*s,4)}, v{236+u}, {sr(srd,4)}, s32 offen sc1")
            if s < ns - 1: a(f"s_add_u32 s32, s32, {256*9216}")
    a.label(f"{lab}a")
    a("s_waitcnt vmcnt(0)")

def partial_sum(a, u, dst, ns):
    b = 96 + 32*u
    unpack8(a, b, dst)
    for s in range(1, ns):
        for d in range(4):
            a(f"v_dot2c_f32_bf16 v{dst+2*d}, v{b+4*s+d}, v240\nv_dot2c_f32_bf16 v{dst+2*d+1}, v{b+4*s+d}, v241")
    a("s_nop 2")

def ln_row(a, x, n, t0):
    m, v, t = t0, t0 + 1, t0 + 2
    a(f"v_add_f32 v{m}, v{x}, v{x+1}")
    for i in range(2, n): a(f"v_add_f32 v{m}, v{m}, v{x+i}")
    wave_allsum(a, m, t)
    a(f"v_mul_f32 v{m}, 0x3ae38e39, v{m}\nv_mov_b32 v{v}, 0")
    for i in range(n): a(f"v_sub_f32 v{t}, v{x+i}, v{m}\nv_fmac_f32 v{v}, v{t}, v{t}")
    wave_allsum(a, v, t)
    a(f"v_mul_f32 v{v}, 0x3ae38e39, v{v}")
    round_bf16(a, m); round_bf16(a, v)
    a(f"v_add_f32 v{v}, 0x3727c5ac, v{v}"); round_bf16(a, v)
    a(f"v_sqrt_f32 v{v}, v{v}\ns_nop 0"); round_bf16(a, v)
    a(f"v_rcp_f32 v{v}, v{v}")
    for i in range(n): a(f"v_sub_f32 v{x+i}, v{x+i}, v{m}")
    for i in range(n): a(f"v_mul_f32 v{x+i}, v{x+i}, v{v}")

LN_LDS = 4 * 29696

def ln2_pre(a):
    a("s_load_dwordx2 s[46:47], s[0:1], 0")
    tok_ids(a)
    make_ws_srd(a, 48, 4, 'mod')
    a("v_lshlrev_b32 v238, 2, v232\nv_lshlrev_b32 v239, 2, v233\nv_and_b32 v235, 63, v0\nv_lshlrev_b32 v235, 2, v235")
    a(f"s_mov_b32 s32, {2*2304}\nbuffer_load_dword v208, v238, s[48:51], s32 offen sc1\nbuffer_load_dword v209, v239, s[48:51], s32 offen sc1")
    a(f"s_mov_b32 s32, {3*2304}\ns_mov_b32 s33, {4*2304}")
    for i in range(9):
        a(f"buffer_load_dword v{210+i}, v235, s[48:51], s32 offen offset:{256*i} sc1\nbuffer_load_dword v{220+i}, v235, s[48:51], s33 offen offset:{256*i} sc1")
    a("v_lshlrev_b32 v230, 1, v232\nv_lshlrev_b32 v231, 1, v233")
    a("s_waitcnt lgkmcnt(0)")
    make_srd(a, 48, 46, SIZES['x'])
    a("s_mov_b32 s32, s44")
    for t in range(8):
        for u in range(2): a(f"buffer_load_short_d16_hi v{192+8*u+t}, v{230+u}, s[48:51], s32 offen" + (f" offset:{1152*(t%3)}" if t % 3 else ""))
        if t % 3 == 2: a("s_add_u32 s32, s32, 3456")
    a(f"v_add_u32 v238, {LN_LDS}, v238\ns_mul_i32 s32, s3, 2304\ns_add_u32 s32, s32, {LN_LDS}\nv_add_u32 v239, s32, v235")

def ln2_mid(a):
    for i in range(16): a(f"v_and_b32 v{192+i}, 0xffff0000, v{192+i}")
    for i in range(9):
        a(f"v_add_f32 v{220+i}, 1.0, v{220+i}"); round_bf16(a, 220 + i)
    for u in range(2):
        a(f"v_lshrrev_b32 v{230+u}, 5, v{232+u}\nv_lshlrev_b32 v{230+u}, 17, v{230+u}\nv_and_b32 v234, 31, v{232+u}\nv_lshl_add_u32 v{230+u}, v234, 4, v{230+u}")

def ln2_body(a):
    make_ws_srd(a, 48, 4, 'p3')
    partial_loads(a, 48, "Lln_sp", 8)
    make_ws_srd(a, 48, 4, 'x1'); make_ws_srd(a, 52, 4, 'h2')
    stamp(a, 'ln_ld')
    for u in range(2):
        if u == 1: a("s_cmp_lg_u32 s3, 0\ns_cbranch_scc1 Lln_u1")
        partial_sum(a, u, 160, 8)
        for t in range(8): a(f"v_fmac_f32 v{192+8*u+t}, v{208+u}, v{160+t}")
        for p in range(4): a(f"v_cvt_pk_bf16_f32 v{168+4*u+p}, v{192+8*u+2*p}, v{193+8*u+2*p}")
        unpack8(a, 168 + 4*u, 160)
        for t in range(8): a(f"ds_write_b32 v238, v{160+t} offset:{2304*t + 2048*u}")
        a(f"buffer_store_dwordx4 {vr(168+4*u,4)}, v{236+u}, s[48:51], s44 offen sc1")
    a.label("Lln_u1")
    a("s_waitcnt lgkmcnt(0)\ns_barrier")
    a("s_cmp_eq_u32 s3, 4\ns_cselect_b32 s36, 1, 0\ns_cmp_ge_u32 s43, 8\ns_cselect_b32 s36, s36, 0\ns_cmp_lt_u32 s2, 216\ns_cselect_b32 s36, s36, 0")
    a(f"s_cmp_eq_u32 s36, 0\ns_cbranch_scc1 Lln_n1\nbuffer_load_dword v247, v7, {SYNC}, 0 offen sc1\nLln_n1:")
    for i in range(9): a(f"ds_read_b32 v{96+i}, v239 offset:{256*i}")
    a("s_waitcnt lgkmcnt(0)")
    ln_row(a, 96, 9, 108)
    for i in range(9): a(f"v_fma_f32 v{96+i}, v{96+i}, v{220+i}, v{210+i}")
    ln_row(a, 96, 9, 108)
    for i in range(9): a(f"ds_write_b32 v239, v{96+i} offset:{256*i}")
    a("s_cmp_eq_u32 s36, 0\ns_cbranch_scc1 Lln_n2\ns_waitcnt vmcnt(0)\nv_cmp_gt_u32 vcc, 16, v247\ns_nop 1\ns_cbranch_vccz Lln_n2")
    poll(a, 7, 16, 244)
    a.label("Lln_n2")
    a("s_waitcnt lgkmcnt(0)\ns_barrier")
    a("s_cmp_lt_u32 s3, 4\ns_cbranch_scc1 Lln_nf\ns_cmp_ge_u32 s2, 216\ns_cbranch_scc1 Lln_nf\ns_cmp_lt_u32 s43, 8\ns_cbranch_scc1 Lln_nf")
    for i in range(4):
        a(f"s_mov_b32 s40, {i*M1_SLOT}"); m1_f(a)
    a.label("Lln_nf")
    a("s_lshl_b32 s32, s42, 9")
    for u in range(2):
        if u == 1: a("s_cmp_lg_u32 s3, 0\ns_cbranch_scc1 Lln_u2")
        for t in range(8): a(f"ds_read_b32 v{96+8*u+t}, v238 offset:{2304*t + 2048*u}")
        a("s_waitcnt lgkmcnt(0)")
        for p in range(4): a(f"v_cvt_pk_bf16_f32 v{112+4*u+p}, v{96+8*u+2*p}, v{97+8*u+2*p}")
        a(f"buffer_store_dwordx4 {vr(112+4*u,4)}, v{230+u}, s[52:55], s32 offen sc1")
    a.label("Lln_u2")
    stamp(a, 'ln_st')

def h2_signal(a):
    a(f"s_add_u32 s32, s43, {C_H2}\ns_lshl_b32 s32, s32, 7\nv_lshlrev_b32 v10, 11, v8\nv_mov_b32 v9, 1\ns_mov_b64 exec, 0xff")
    a(f"buffer_atomic_add v9, v10, {SYNC}, s32 offen sc1\ns_mov_b64 exec, -1")

def final_pre(a):
    a("s_load_dwordx2 s[46:47], s[0:1], 80\ns_load_dwordx2 s[52:53], s[0:1], 104")
    tok_ids(a)
    make_ws_srd(a, 48, 4, 'mod')
    a("v_lshlrev_b32 v238, 2, v232\nv_lshlrev_b32 v239, 2, v233")
    a(f"s_mov_b32 s32, {5*2304}\nbuffer_load_dword v208, v238, s[48:51], s32 offen sc1\nbuffer_load_dword v209, v239, s[48:51], s32 offen sc1")
    make_ws_srd(a, 48, 4, 'x1')
    for u in range(2): a(f"buffer_load_dwordx4 {vr(192+4*u,4)}, v{236+u}, s[48:51], s44 offen sc1")
    a("v_lshlrev_b32 v230, 1, v232\nv_lshlrev_b32 v231, 1, v233")
    a("s_waitcnt lgkmcnt(0)")
    a("s_lshl_b32 s32, s42, 4\ns_add_u32 s46, s46, s32\ns_addc_u32 s47, s47, 0\ns_load_dwordx4 s[36:39], s[46:47], 0")
    make_srd(a, 24, 52, SIZES['out'])
    a("s_waitcnt lgkmcnt(0)")

def final_mid(a):
    for p in range(4): a(f"s_lshl_b32 s{48+2*p}, s{36+p}, 16\ns_and_b32 s{49+2*p}, s{36+p}, 0xffff0000")
    for u in range(2):
        unpack8(a, 192 + 4*u, 210 + 8*u)
        for t in range(8): a(f"v_fmac_f32 v{210+8*u+t}, s{48+t}, v{208+u}")

def final_body(a):
    make_ws_srd(a, 48, 4, 'p6')
    partial_loads(a, 48, "Lfi_sp", 4)
    for u in range(2):
        if u == 1: a("s_cmp_lg_u32 s3, 0\ns_cbranch_scc1 Lfi_u1")
        partial_sum(a, u, 160, 4)
        for t in range(8): a(f"v_fmac_f32 v{210+8*u+t}, v{208+u}, v{160+t}")
        for p in range(4): a(f"v_cvt_pk_bf16_f32 v{168+4*u+p}, v{210+8*u+2*p}, v{211+8*u+2*p}")
        if OUT16:
            for t in range(8):
                op = "ds_write_b16" if t % 2 == 0 else "ds_write_b16_d16_hi"
                a(f"{op} v230, v{168+4*u+t//2} offset:{1152*t + 1024*u}")
        else:
            a("s_mov_b32 s32, s44")
            for t in range(8):
                op = "buffer_store_short" if t % 2 == 0 else "buffer_store_short_d16_hi"
                a(f"{op} v{168+4*u+t//2}, v{230+u}, s[24:27], s32 offen" + (f" offset:{1152*(t%3)}" if t % 3 else ""))
                if t % 3 == 2: a("s_add_u32 s32, s32, 3456")
    a.label("Lfi_u1")
    if OUT16:
        a("s_waitcnt lgkmcnt(0)\ns_barrier\nds_read_b128 v[96:99], v236\nds_read_b128 v[100:103], v236 offset:8192\ns_waitcnt lgkmcnt(0)")
        a(f"buffer_store_dwordx4 v[96:99], v236, s[24:27], s44 offen{OUT16}\nbuffer_store_dwordx4 v[100:103], v237, s[24:27], s44 offen{OUT16}")

M1_W = 17408; M1_SLOT = M1_W + 12288; M1_NST = 32; M1_X = 114688
def m1_ids(a):
    a("s_and_b32 s32, s2, 7\ns_mul_i32 s32, s32, 27\ns_lshr_b32 s33, s2, 3\ns_add_u32 s32, s32, s33")
    a("s_mul_hi_u32 s28, s32, 0x2aaaaaab\ns_mul_i32 s33, s28, 6\ns_sub_u32 s29, s32, s33")
    a("v_and_b32 v8, 63, v0\nv_lshlrev_b32 v1, 4, v8")

def m1_compute(a):
    pre = 'Lm1'
    ACC = 16; SET = [64, 96]
    a("s_load_dwordx2 s[24:25], s[0:1], 64")
    m1_ids(a)
    a("v_bfe_u32 v2, v8, 2, 2\nv_mul_u32_u24 v2, 1088, v2\nv_lshrrev_b32 v9, 5, v8\nv_lshl_add_u32 v2, v9, 9, v2")
    a("v_bfe_u32 v9, v8, 4, 1\nv_lshl_add_u32 v2, v9, 5, v2\nv_and_b32 v9, 3, v8\nv_lshl_add_u32 v2, v9, 3, v2")
    a(f"s_lshl_b32 s32, s3, 6\nv_add_u32 v4, s32, v2\nv_add_u32 v5, {M1_W}, v1")
    a("v_mov_b32 v2, v4\nv_mov_b32 v3, v5")
    for i in range(0, 48, 2): a(f"v_mov_b64 {vr(ACC+i,2)}, 0")
    a("s_waitcnt lgkmcnt(0)")
    m1_bias(a, 3)
    def reads(hs, st):
        r = []
        for k in range(2):
            b = SET[st] + 16*k; ks = 2*hs + k
            for e in range(2): r.append(f"ds_read_b64_tr_b16 {vr(b+2*e,2)}, v2 offset:{ks*4352 + e*256}")
            for d in range(3): r.append(f"ds_read_b128 {vr(b+4+4*d,4)}, v3 offset:{d*4096 + ks*1024}")
        return r
    def mfs(st):
        return [mf(vr(ACC+16*d,16), vr(SET[st]+16*k,4), vr(SET[st]+16*k+4+4*d,4), vr(ACC+16*d,16)) for k in range(2) for d in range(3)]
    def half(m, r, extra):
        a("s_waitcnt lgkmcnt(5)")
        for i, x in enumerate(m):
            if i == 3: a("s_waitcnt lgkmcnt(6)")
            a(x)
            for o in r[2*i:2*i+2]: a(o)
            for o in extra.get(i, []): a(o)
    a(f"s_mov_b32 s40, 0\ns_mov_b32 s41, {M1_NST}")
    a("s_barrier")
    stamp(a, 'm1_b0')
    for o in reads(0, 0): a(o)
    a.label(f"{pre}_cloop")
    half(mfs(0), reads(1, 1), {3: [adv_slot(M1_SLOT, 5)], 5: ["v_add_u32 v2, s40, v4\nv_add_u32 v3, s40, v5"]})
    half(mfs(1), reads(0, 0), {5: ["s_sub_u32 s41, s41, 1\ns_cmp_lg_u32 s41, 0\ns_waitcnt vmcnt(0)"]})
    a(f"s_barrier\ns_cbranch_scc1 {pre}_cloop")
    stamp(a, 'm1_end')
    m1_xaddr(a, 3)
    a("s_waitcnt lgkmcnt(0)\ns_nop 3")
    for i in range(6): a(f"ds_write_b128 v4, {vr(ACC+24+4*i,4)} offset:{1024*i}")
    a("s_waitcnt lgkmcnt(0)\ns_barrier")
    m1_gelu(a, ACC, 64, 0)

def m1_xaddr(a, sw):
    a(f"s_mul_i32 s32, s{sw}, 6144\ns_add_u32 s32, s32, {M1_X}\nv_add_u32 v4, s32, v1")

def m1_bias(a, sw):
    make_srd(a, 16, 24, SIZES['b1'])
    a(f"s_lshl_b32 s32, s28, 2\ns_add_u32 s45, s32, s{sw}")
    a("s_lshl_b32 s32, s45, 6\nv_lshrrev_b32 v9, 5, v8\nv_lshlrev_b32 v9, 3, v9")
    for q in range(4): a(f"buffer_load_dwordx2 {vr(152+2*q,2)}, v9, s[16:19], s32 offen offset:{16*q}")
    make_ws_srd(a, 20, 4, 'u')
    a("v_bfe_u32 v9, v8, 4, 1\nv_mul_u32_u24 v9, 147456, v9\nv_lshrrev_b32 v10, 5, v8\nv_lshl_add_u32 v9, v10, 8, v9")
    a("v_and_b32 v10, 15, v8\nv_lshl_add_u32 v6, v10, 4, v9")
    a(f"s_mul_i32 s39, s29, {6*147456}\ns_lshl_b32 s33, s45, 10\ns_add_u32 s39, s39, s33")

def m1_gelu(a, keep, oth, h0):
    a("s_waitcnt vmcnt(0)" if h0 == 0 else "")
    for q in range(4):
        for h in range(2):
            a(f"v_lshlrev_b32 v{160+4*q+2*h}, 16, v{152+2*q+h}\nv_and_b32 v{161+4*q+2*h}, 0xffff0000, v{152+2*q+h}")
    c1 = -2 * math.sqrt(2 / math.pi) * math.log2(math.e); c2 = c1 * 0.044715
    a(f"v_mov_b32 v10, {f32(c1)}\nv_mov_b32 v11, {f32(c2)}")
    for i in range(3):
        d, e = (h0 + i) >> 1, (h0 + i) & 1
        if h0: a(f"s_waitcnt lgkmcnt({4 - 2*i})")
        b = keep + 8*i; o = oth + 8*i
        for r in range(8): a(f"v_add_f32 v{b+r}, v{b+r}, v{160+8*e+r}")
        for r in range(8): a(f"v_mul_f32 v{o+r}, v{b+r}, v{b+r}")
        for r in range(8): a(f"v_fma_f32 v{o+r}, v{o+r}, v11, v10")
        for r in range(8): a(f"v_mul_f32 v{o+r}, v{o+r}, v{b+r}")
        for r in range(8): a(f"v_exp_f32 v{o+r}, v{o+r}")
        for r in range(8): a(f"v_add_f32 v{o+r}, 1.0, v{o+r}")
        for r in range(8): a(f"v_rcp_f32 v{o+r}, v{o+r}")
        for r in range(8): a(f"v_mul_f32 v{b+r}, v{b+r}, v{o+r}")
        for p in range(4): a(f"v_cvt_pk_bf16_f32 v{o+p}, v{b+2*p}, v{b+2*p+1}")
        a(f"s_add_u32 s32, s39, {d*2*147456}\nbuffer_store_dwordx4 {vr(o,4)}, v6, s[20:23], s32 offen offset:{e*512} sc1")

def m1_loader_setup(a):
    m1_ids(a)
    a("v_lshrrev_b32 v2, 4, v8\nv_mul_u32_u24 v2, 36864, v2\nv_and_b32 v9, 15, v8\nv_lshl_add_u32 v2, v9, 4, v2")
    a(f"s_mul_i32 s32, s6, {16*9216}\nv_add_u32 v2, s32, v2")
    make_srd(a, 8, 58, SIZES['w1']); make_ws_srd(a, 12, 4, 'h2')
    a("s_lshl_b32 s34, s28, 8")
    a(f"s_mul_i32 s35, s29, {3*131072}\ns_lshl_b32 s32, s6, 10\ns_add_u32 s35, s35, s32")
    a(f"s_mul_i32 s37, s6, 4352\ns_lshl_b32 s38, s6, 10\ns_add_u32 s38, s38, {M1_W}")
    a(f"s_and_b32 s32, s2, 7\ns_lshl_b32 s32, s32, 4\ns_add_u32 s32, s32, {C_H2}\nv_and_b32 v7, 7, v8\nv_add_u32 v7, s32, v7\nv_lshlrev_b32 v7, 7, v7")
def m1_w(a):
    a("s_add_u32 s32, s40, s37")
    for jj in range(4): a(f"s_add_u32 m0, s32, {1088*jj}\ns_add_u32 s33, s34, {9216*jj}\nbuffer_load_dwordx4 v2, s[8:11], s33 offen lds")
    a(f"s_add_u32 s34, s34, {64*9216}")
def m1_f(a):
    a("s_add_u32 s32, s40, s38")
    for d in range(3): a(f"s_add_u32 m0, s32, {4096*d}\ns_add_u32 s33, s35, {131072*d}\nbuffer_load_dwordx4 v1, s[12:15], s33 offen sc1 lds")
    a("s_add_u32 s35, s35, 4096")
def m1_loader_main(a):
    def st(w): a(f"s_waitcnt vmcnt({w})\ns_barrier"); m1_f(a); m1_w(a); a(adv_slot(M1_SLOT, 5))
    a(f"s_mov_b32 s40, {4*M1_SLOT}")
    st(6)
    a("s_waitcnt vmcnt(7)\ns_barrier")
    a("s_cmp_lg_u32 s6, 0\ns_cbranch_scc1 Lm1_ns\ns_cmp_lt_u32 s43, 8\ns_cbranch_scc1 Lm1_ns")
    h2_signal(a)
    a.label("Lm1_ns")
    m1_f(a); m1_w(a); a(adv_slot(M1_SLOT, 5))
    a("s_mov_b32 s41, 8\nv_add_u32 v7, 1024, v7")
    a.label("Lm1_lloop0")
    st(14)
    a("s_sub_u32 s41, s41, 1\ns_cmp_lg_u32 s41, 0\ns_cbranch_scc1 Lm1_lloop0")
    a(f"s_cmp_lg_u32 s6, 0\ns_cbranch_scc1 Lm1_nl\nbuffer_load_dword v244, v7, {SYNC}, 0 offen sc1\nLm1_nl:")
    st(14); st(14)
    a("s_cmp_lg_u32 s6, 0\ns_cbranch_scc1 Lm1_np\ns_waitcnt vmcnt(14)\nv_cmp_gt_u32 vcc, 16, v244\ns_nop 1\ns_cbranch_vccz Lm1_np")
    poll(a, 7, 16, 244)
    a.label("Lm1_np")
    a("s_mov_b32 s41, 16")
    a.label("Lm1_lloop")
    st(14)
    a("s_sub_u32 s41, s41, 1\ns_cmp_lg_u32 s41, 0\ns_cbranch_scc1 Lm1_lloop")
    for w in (14, 7, 0, 0): a(f"s_waitcnt vmcnt({w})\ns_barrier")
    a("s_barrier")

def sig_wave4(a, soff_code, soff, lab, vtmp):
    a(f"s_cmp_lg_u32 s6, 0\ns_cbranch_scc1 {lab}")
    a(soff_code); signal(a, soff, vtmp)
    a.label(lab)

def mega():
    a = Asm(); n = NAME + '_kernel'
    a("s_cmp_ge_u32 s2, 256\ns_cbranch_scc1 Lend")
    stamp(a, 'start')
    phase_kv(a)
    phase_attn_compute(a)
    g16_compute_setup(a, 'o')
    a("s_waitcnt vmcnt(0)")
    stamp(a, 'at_dr')
    signal(a, 60, 9)
    ln2_pre(a)
    g16_compute(a, 'o')
    stamp(a, 'o_st')
    a("s_waitcnt vmcnt(18)")
    ln2_mid(a)
    if not SENT: a("s_waitcnt vmcnt(0)")
    stamp(a, 'o_dr')
    a("s_barrier")
    stamp(a, 'S')
    if not SENT: a("s_barrier")
    a.label("Lln_shared")
    stamp(a, 'R')
    ln2_body(a)
    stamp(a, 'S2')
    a("s_cmp_ge_u32 s3, 4\ns_cbranch_scc1 Ll_after_ln")
    a("s_cmp_lt_u32 s2, 216\ns_cbranch_scc1 Lc_g1\ns_waitcnt vmcnt(0)\ns_barrier\ns_branch Lc_g2")
    a.label("Lc_g1")
    a("s_cmp_ge_u32 s43, 8\ns_cbranch_scc1 Lc_g1b\ns_waitcnt vmcnt(0)\ns_barrier\ns_barrier")
    a.label("Lc_g1b")
    m1_compute(a)
    stamp(a, 'm1_st')
    a("s_waitcnt vmcnt(0)")
    stamp(a, 'm1_dr')
    a("s_barrier")
    stamp(a, 'S3')
    a.label("Lc_g2")
    g16_compute_setup(a, 'y')
    final_pre(a)
    g16_compute(a, 'y')
    stamp(a, 'y_st')
    a("s_waitcnt vmcnt(9)")
    final_mid(a)
    if not SENT: a("s_waitcnt vmcnt(0)\ns_barrier\ns_barrier")
    stamp(a, 'R4')
    a("s_branch Lfinal")
    phase_attn_loader(a)
    g16_loader_setup(a, 'o')
    a("s_barrier\ns_barrier")
    o_loader_main(a)
    ln2_pre(a)
    m1_loader_setup(a)
    a("s_load_dwordx2 s[24:25], s[0:1], 64\ns_waitcnt lgkmcnt(0)")
    m1_bias(a, 6)
    a("s_waitcnt vmcnt(0)")
    ln2_mid(a)
    a("s_barrier")
    sig_wave4(a, f"s_lshr_b32 s32, s2, 5\ns_add_u32 s32, s32, {C_P3 + 8}\ns_lshl_b32 s32, s32, 7", 32, "Ll_s1", 9)
    a("s_cmp_ge_u32 s2, 216\ns_cbranch_scc1 Ll_now1")
    for i in range(4):
        a(f"s_mov_b32 s40, {i*M1_SLOT}"); m1_w(a)
    a.label("Ll_now1")
    if not SENT:
        a("s_cmp_lg_u32 s6, 0\ns_cbranch_scc1 Ll_np1")
        a(f"s_add_u32 s32, s43, {C_P3}\ns_lshl_b32 s32, s32, 7\nv_mov_b32 v10, s32")
        poll(a, 10, 32, 244)
        a.label("Ll_np1")
        a("s_barrier")
    a("s_branch Lln_shared")
    a.label("Ll_after_ln")
    a("s_cmp_ge_u32 s2, 216\ns_cbranch_scc1 Ll_nom1")
    a("s_cmp_ge_u32 s43, 8\ns_cbranch_scc1 Ll_late\ns_waitcnt vmcnt(0)\ns_barrier\ns_cmp_lg_u32 s6, 0\ns_cbranch_scc1 Ll_s2")
    h2_signal(a)
    stamp(a, 'l_h2p0')
    poll(a, 7, 16, 244)
    stamp(a, 'l_h2p1')
    a.label("Ll_s2")
    a("s_barrier")
    for i in range(4):
        a(f"s_mov_b32 s40, {i*M1_SLOT}"); m1_f(a)
    a.label("Ll_late")
    m1_loader_main(a)
    a(f"s_mul_hi_u32 s32, s28, 0x1c71c71d\ns_mul_i32 s32, s32, 6\ns_add_u32 s32, s32, s29\ns_add_u32 s32, s32, {C_U}\ns_lshl_b32 s63, s32, 7")
    g16_loader_setup(a, 'y')
    g16_loader_wpro(a, 'y')
    m1_xaddr(a, 6)
    a("s_barrier")
    for i in range(6): a(f"ds_read_b128 {vr(16+4*i,4)}, v4 offset:{1024*i}")
    m1_gelu(a, 16, 40, 3)
    a("s_waitcnt vmcnt(0)\ns_barrier")
    sig_wave4(a, "", 63, "Ll_s3", 9)
    a("s_branch Ll_g2")
    a.label("Ll_nom1")
    a("s_waitcnt vmcnt(0)\ns_barrier\ns_cmp_lg_u32 s6, 0\ns_cbranch_scc1 Ll_nh")
    h2_signal(a)
    a.label("Ll_nh")
    g16_loader_setup(a, 'y')
    g16_loader_wpro(a, 'y')
    if 'fastidle' not in os.environ.get('XP', ''):
        a("s_cmp_lg_u32 s6, 0\ns_cbranch_scc1 Ll_g2\ns_mov_b32 s100, 0x2000")
        a.label("Ll_idle")
        a(f"s_sleep 32\nbuffer_load_dword v244, v7, {SYNC}, 0 offen sc1\ns_waitcnt vmcnt(0)\nv_cmp_gt_u32 vcc, 1, v244\ns_sub_u32 s100, s100, 1")
        a("s_cbranch_vccz Ll_g2\ns_cmp_lg_u32 s100, 0\ns_cbranch_scc1 Ll_idle")
    a.label("Ll_g2")
    g16_loader_main(a, 'y')
    final_pre(a)
    a("s_waitcnt vmcnt(0)")
    final_mid(a)
    if not SENT:
        a("s_barrier")
        a("s_cmp_lg_u32 s6, 0\ns_cbranch_scc1 Ll_np2")
        a(f"s_add_u32 s32, s43, {C_P6}\ns_lshl_b32 s32, s32, 7\nv_mov_b32 v10, s32")
        signal(a, 32, 9)
        poll(a, 10, 16, 244)
        a.label("Ll_np2")
        a("s_barrier")
    a.label("Lfinal")
    final_body(a)
    if STAMP:
        a(f"s_cmp_lg_u32 s3, {STAMP_WAVE}\ns_cbranch_scc1 Lend\ns_waitcnt vmcnt(0)")
        a("s_memrealtime s[92:93]\ns_waitcnt lgkmcnt(0)")
        stamp_flush(a, 15, "Lstf")
    a.label("Lend")
    a("s_endpgm")
    return n, a

def build(path):
    n, a = mega()
    txt = a.text()
    hdr = open('cdna_kernels/' + NAME + '.s.ref').read().split('\n')
    top = [l for l in hdr if l.startswith(';') and '@launch' not in l][:19]
    out = '\n'.join(top) + '\n'
    if os.environ.get('LIST'):
        out += f"; @launch kernel={n} grid=(256,1,1) block=(512,1,1) lds={LDS_TOTAL}\n"
    else:
        out += f"; @launch grid=(256,1,1) block=(512,1,1) lds={LDS_TOTAL}\n"
    if STAMP: out += '; stamps: ' + ','.join(STAMP_LIST) + '\n'
    out += '.amdgcn_target "amdgcn-amd-amdhsa--gfx950"\n' + kernel_header(n) + txt + kernel_desc(n, 256, 102)
    open(path, 'w').write(out)

if __name__ == '__main__':
    build(sys.argv[1] if len(sys.argv) > 1 else 'm.s')
```

```python
import sys, math, os
from gen_common import *
import k_attn as AT
from k_attn import (period, rare_path, build_ci, qk_group, pv_group, rd, mf, ADV, W4, KPOS, VPOS, BIG, QSCALE, THRESH, WQ_BYTES,
                    V_LANE16, V_RD, V_L, V_NEGM, V_Y, V_YD, V_T0, LU, T, CI, S, P, FR, Q, Q2, O)

OOB = "0xffffff00"
OUT16 = ' sc1'
KPRIO = 'xkprio' not in os.environ.get('XP', '')
WF = 4 if 'afirst' not in os.environ.get('XP', '') else 0
SENT = ('sent' in os.environ.get('XP', '').split(','))
KORDER = [0, 1, 2, 3, 8, 9, 10, 11, 12, 13, 14, 15, 4, 5, 6, 7]
KREG = {k: (240 + 4*k if k < 4 else 128 + 4*(k - 8) if k >= 8 else 160 + 4*(k - 4)) for k in range(16)}
def kstore(k):
    return f"s_add_u32 s55, s57, {(k >> 2) * 65536}\nbuffer_store_dwordx4 {vr(KREG[k],4)}, v6, s[16:19], s55 offen offset:{(k & 3) * 1024}" + ("" if 'wb' in os.environ.get('XP', '').split(',') else " sc1")
LDS_TOTAL = 163840

def srd_off(a, srd, sptr, soff, add, size):
    a(f"s_add_u32 s{srd+2}, s{soff}, {add}\ns_add_u32 s{srd}, s{sptr}, s{srd+2}\ns_addc_u32 s{srd+1}, s{sptr+1}, 0\ns_and_b32 s{srd+1}, s{srd+1}, 0xffff")
    a(f"s_mov_b32 s{srd+2}, {size}\ns_mov_b32 s{srd+3}, 0x20000")

def phase_kv(a):
    A_BYTES = 32 * 1040; W_BYTES = 16 * 1088; SLOT = A_BYTES + 2 * W_BYTES
    GL = 2 * SLOT
    ML = GL + 2048
    XL = ML + 8192
    HAND = 131072
    ACC = 64; SET = [16, 40]
    NT = ' nt' if 'ntw' in os.environ.get('XP', '') else ''
    NT2 = ' nt' if 'ntg' in os.environ.get('XP', '') else ''
    a("s_load_dwordx8 s[28:35], s[0:1], 0\ns_load_dwordx2 s[36:37], s[0:1], 32\ns_load_dwordx4 s[40:43], s[0:1], 88\ns_load_dwordx4 s[44:47], s[0:1], 112")
    a("v_and_b32 v1, 63, v0\nv_lshrrev_b32 v2, 6, v0\ns_nop 1\nv_readfirstlane_b32 s3, v2")
    a("s_and_b32 s48, s2, 7\ns_lshr_b32 s49, s2, 3")
    a("s_and_b32 s55, s49, 3\ns_lshl_b32 s48, s48, 2\ns_add_u32 s48, s48, s55\ns_lshr_b32 s49, s49, 2")
    a("v_bfe_u32 v3, v1, 3, 2\nv_lshlrev_b32 v3, 13, v3\nv_lshrrev_b32 v4, 5, v1\nv_lshl_add_u32 v3, v4, 18, v3\nv_and_b32 v4, 7, v1\nv_lshl_add_u32 v3, v4, 4, v3")
    a("s_and_b32 s55, s3, 1\ns_lshl_b32 s55, s55, 12\ns_lshr_b32 s56, s3, 1\ns_lshl_b32 s56, s56, 19\ns_add_u32 s55, s55, s56")
    a("v_add_u32 v3, s55, v3")
    a("v_lshrrev_b32 v4, 4, v1\nv_lshlrev_b32 v4, 15, v4\nv_and_b32 v5, 15, v1\nv_lshl_add_u32 v4, v5, 4, v4")
    a("s_and_b32 s55, s3, 3\ns_lshl_b32 s55, s55, 17\nv_add_u32 v4, s55, v4")
    a("s_lshl_b32 s50, s49, 15\ns_lshl_b32 s51, s48, 8\ns_mul_i32 s52, s3, 4160")
    a(f"s_mul_i32 s53, s3, 4352\ns_add_u32 s53, s53, {A_BYTES}")
    a("s_and_b32 s61, s2, 3\ns_mul_i32 s55, s61, 144\nv_lshrrev_b32 v8, 3, v0\nv_add_u32 v8, s55, v8\nv_mul_u32_u24 v245, 6912, v8\nv_and_b32 v2, 7, v0")
    a("v_lshl_add_u32 v245, v2, 4, v245\ns_lshr_b32 s55, s2, 2\ns_lshl_b32 s55, s55, 7\nv_add_u32 v245, s55, v245\nv_lshlrev_b32 v8, 1, v8")
    a("s_lshl_b32 s60, s2, 3\ns_add_u32 s60, s60, s3\ns_mul_i32 s55, s60, 1152\nv_lshlrev_b32 v10, 4, v1\nv_add_u32 v10, s55, v10")
    a(f"v_cmp_gt_u32 vcc, 8, v1\nv_mov_b32 v15, {OOB}\nv_add_u32 v11, 1024, v10\nv_cndmask_b32 v11, v15, v11, vcc")
    a("s_waitcnt lgkmcnt(0)")
    a("s_mov_b32 s4, s46\ns_mov_b32 s5, s47")
    make_srd(a, 8, 30, SIZES['ckv'])
    a("s_cmp_lt_u32 s3, 4\ns_cselect_b32 s34, s34, s36\ns_cselect_b32 s35, s35, s37")
    make_srd(a, 12, 34, SIZES['wuk'])
    def dma_ops(slot):
        ops = []
        for jj in range(4):
            ops.append(f"s_add_u32 m0, s52, {slot*SLOT + 16*jj}\ns_nop 0\nbuffer_load_dwordx4 v3, s[8:11], s50 offen offset:{1024*jj} lds")
        for jj in range(4):
            ops.append(f"s_add_u32 m0, s53, {slot*SLOT + 1088*jj}\ns_add_u32 s55, s51, {8192*jj}\nbuffer_load_dwordx4 v4, s[12:15], s55 offen{NT} lds")
        return ops
    ADVD = f"s_add_u32 s50, s50, 128\ns_add_u32 s51, s51, {64*8192}"
    for st in range(2):
        for o in dma_ops(st): a(o)
        a(ADVD)
    CPF = 0 if 'nocpf' in os.environ.get('XP', '') else 1
    if CPF:
        a("s_getpc_b64 s[16:17]")
        a.label("Lpc")
        a("s_and_b32 s17, s17, 0xffff\ns_mov_b32 s18, Lend-Lpc\ns_mov_b32 s19, 0x20000")
        a("s_lshr_b32 s55, s2, 3\ns_lshl_b32 s55, s55, 3\ns_add_u32 s55, s55, s3\ns_lshl_b32 s55, s55, 9\nv_lshlrev_b32 v2, 3, v1")
        a("buffer_load_dwordx2 v[220:221], v2, s[16:19], s55 offen")
    a("s_lshl_b32 s63, s49, 15\ns_and_b32 s55, s48, 3\ns_lshl_b32 s55, s55, 10\ns_add_u32 s63, s63, s55")
    a("s_and_b32 s7, s49, 3\ns_lshl_b32 s7, s7, 13\ns_lshl_b32 s55, s48, 8\ns_add_u32 s7, s7, s55")
    a("s_bfe_u32 s55, s3, 0x10001\ns_lshr_b32 s56, s49, 2\ns_cmp_eq_u32 s55, s56\ns_cselect_b32 s7, s7, 0x7f000000")
    if 'nol2' in os.environ.get('XP', ''): a("s_mov_b32 s7, 0x7f000000\ns_mov_b32 s63, 0x7f000000")
    def l2pf(t):
        return [f"buffer_load_dwordx4 v[220:223], v3, s[8:11], s63 offen offset:{128*t}",
                f"s_add_u32 s56, s7, {t*64*8192}\nbuffer_load_dwordx4 v[220:223], v4, s[12:15], s56 offen{NT}"]
    l = Ops()
    make_srd(l, 16, 40, SIZES['c']); make_srd(l, 20, 42, SIZES['wmod']); make_srd(l, 24, 28, SIZES['x'])
    l("s_cmp_lt_u32 s2, 216\ns_cselect_b32 s22, s22, 0")
    l(f"s_mov_b32 s59, 0x7f000000\ns_cmp_lt_u32 s3, 2\ns_cselect_b32 s58, {128*6912}, s59\ns_cselect_b32 s59, 256, s59\ns_mov_b32 s55, {64*6912}")
    for i, (so, sc) in enumerate((('0', '0 offen'), ('s55', '0 offen offset:128'), ('s58', 's59 offen'))):
        l(f"buffer_load_dwordx4 {vr(192+4*i,4)}, v245, s[20:23], {so} offen{NT2}")
        l(f"buffer_load_ushort v{204+i}, v8, s[16:19], {sc}")
    l(f"buffer_load_dwordx4 v[224:227], v10, s[24:27], 0 offen\nbuffer_load_dwordx4 v[228:231], v11, s[24:27], 0 offen")
    make_ws_srd(l, 96, 4, 'sync')
    l(f"v_lshlrev_b32 v2, 2, v1\ns_lshl_b32 s55, s2, 8\nv_add_u32 v2, s55, v2\nv_mov_b32 v243, 0")
    l.lines.append("ZSTORE")
    make_srd(l, 36, 44, 256); make_ws_srd(l, 40, 4, 'modp'); make_srd(l, 16, 32, SIZES['wq']); make_ws_srd(l, 24, 4, 'h1'); make_ws_srd(l, 20, 4, 'mod')
    def sloads(role):
        return [(f"s_cmp_lg_u32 s3, 0\ns_cbranch_scc1 Lkv_nz\nbuffer_store_dword v243, v2, {SYNC}, 0 offen sc1\nLkv_nz:" if role == 0 else "s_nop 0")
                if o == "ZSTORE" else o for o in l.ops()]
    a("v_and_b32 v5, 7, v1\nv_mul_u32_u24 v5, 1040, v5\nv_bfe_u32 v6, v1, 3, 2\nv_lshl_add_u32 v5, v6, 7, v5")
    a("v_lshrrev_b32 v6, 5, v1\nv_lshl_add_u32 v5, v6, 4, v5")
    a("s_and_b32 s55, s3, 1\ns_mul_i32 s55, s55, 16640\nv_add_u32 v5, s55, v5")
    a("v_bfe_u32 v6, v1, 2, 2\nv_mul_u32_u24 v6, 1088, v6\nv_lshrrev_b32 v7, 5, v1\nv_lshl_add_u32 v6, v7, 9, v6")
    a("v_bfe_u32 v7, v1, 4, 1\nv_lshl_add_u32 v6, v7, 5, v6\nv_and_b32 v7, 3, v1\nv_lshl_add_u32 v6, v7, 3, v6")
    a(f"s_lshr_b32 s55, s3, 2\ns_mul_i32 s55, s55, {W_BYTES}\ns_bfe_u32 s56, s3, 0x10001\ns_lshl_b32 s56, s56, 7")
    a(f"s_add_u32 s55, s55, s56\ns_add_u32 s55, s55, {A_BYTES}\nv_add_u32 v6, s55, v6")
    a(f"v_lshrrev_b32 v9, 3, v0\nv_lshlrev_b32 v13, 9, v9\nv_lshlrev_b32 v9, 5, v9\nv_add_u32 v9, {ML}, v9\nv_lshlrev_b32 v12, 4, v0\nv_cmp_gt_u32 vcc, 288, v0\ns_nop 1\nv_cndmask_b32 v12, v15, v12, vcc")
    a("s_lshr_b32 s55, s2, 2\ns_mul_i32 s55, s55, 36864\ns_and_b32 s56, s2, 3\ns_lshl_b32 s56, s56, 7\ns_add_u32 s62, s55, s56")
    a(f"v_and_b32 v14, 7, v0\nv_lshl_add_u32 v13, v14, 4, v13\ns_lshl_b32 s55, s3, 4\ns_add_u32 s55, s55, {XL}\nv_lshlrev_b32 v14, 7, v1\nv_add_u32 v14, s55, v14")
    a(f"s_lshl_b32 s55, s3, 8\ns_add_u32 s55, s55, {GL}\nv_lshlrev_b32 v7, 5, v1\nv_add_u32 v7, s55, v7")
    for i in range(0, 128, 2): a(f"v_mov_b64 {vr(ACC+i,2)}, 0")

    pf = ["s_mul_i32 s55, s60, 2304\nv_lshlrev_b32 v2, 4, v1"] + [f"buffer_load_dwordx4 v[220:223], v2, s[16:19], s55 offen offset:{1024*i}" for i in range(3)]
    g = Ops()
    for i in range(3):
        c = 204 + i
        g(f"v_lshlrev_b32 v{c}, 16, v{c}\nv_mul_f32 v216, 0xbfb8aa3b, v{c}\nv_exp_f32 v216, v216\ns_nop 0\nv_add_f32 v216, 1.0, v216\nv_rcp_f32 v216, v216\ns_nop 0\nv_mul_f32 v{c}, v{c}, v216")
        round_bf16(g, c)
        for d in range(4):
            w = 192 + 4*i + d
            op = "v_mul_f32" if i == 0 else "v_fmac_f32"
            g(f"v_lshlrev_b32 v216, 16, v{w}\nv_and_b32 v217, 0xffff0000, v{w}\n{op} v{208+2*d}, v{c}, v216\n{op} v{209+2*d}, v{c}, v217")
    g("s_nop 1")
    for k in range(8): g(f"v_add_f32_dpp v{208+k}, v{208+k}, v{208+k} row_ror:8 row_mask:0xf bank_mask:0xf")
    for sw in ("v_permlane16_swap_b32", "v_permlane32_swap_b32"):
        for k in range(8): g(f"v_mov_b32 v{192+k}, v{208+k}")
        g("s_nop 0")
        for k in range(8): g(f"{sw} v{208+k}, v{192+k}")
        for k in range(8): g(f"v_add_f32 v{208+k}, v{208+k}, v{192+k}")
    gemv = g.ops() + ["s_mov_b64 exec, 0xff\nds_write_b128 v7, v[208:211]\nds_write_b128 v7, v[212:215] offset:16\ns_mov_b64 exec, -1"]
    mload = [f"v_lshlrev_b32 v10, 4, v0\nv_add_u32 v10, {ML}, v10"] + [f"s_mov_b32 s55, {13824*r}\nbuffer_load_dwordx4 {vr(192+4*r,4)}, v12, s[40:43], s55 offen sc1" for r in range(4)]
    q = Ops()
    for k in range(4): q(f"v_add_f32 v{192+k}, v{192+k}, v{196+k}\nv_add_f32 v{200+k}, v{200+k}, v{204+k}")
    for k in range(4): q(f"v_add_f32 v{192+k}, v{192+k}, v{200+k}")
    round_pairs(q, 192, 4, 2)
    q("v_cmp_lt_u32 vcc, 143, v0\ns_nop 1\nv_cndmask_b32 v196, 0, 1.0, vcc")
    for k in range(4): q(f"v_add_f32 v{192+k}, v{192+k}, v196")
    round_pairs(q, 192, 4, 2)
    q("ds_write_b128 v10, v[192:195]")
    msum = q.ops()
    x = Ops()
    unpack8(x, 224, 232); unpack8(x, 228, 240)
    x("v_add_f32 v216, v232, v233")
    for i in range(234, 248): x(f"v_add_f32 v216, v216, v{i}")
    wave_allsum(x, 216, 217)
    x("v_mul_f32 v216, 0x3ae38e39, v216\nv_cmp_gt_u32 vcc, 8, v1\nv_mov_b32 v219, 0\ns_nop 0\nv_cndmask_b32 v218, 0, v216, vcc")
    for i in range(16): x(f"v_sub_f32 v217, v{232+i}, v{216 if i < 8 else 218}\nv_fmac_f32 v219, v217, v217")
    wave_allsum(x, 219, 217)
    x("v_mul_f32 v219, 0x3ae38e39, v219")
    round_bf16(x, 216); round_bf16(x, 219)
    x("v_add_f32 v219, 0x3727c5ac, v219"); round_bf16(x, 219)
    x("v_sqrt_f32 v219, v219\ns_nop 0"); round_bf16(x, 219)
    x("v_rcp_f32 v219, v219\ns_nop 0")
    for i in range(16): x(f"v_sub_f32 v{232+i}, v{232+i}, v216")
    round_pairs(x, 232, 16, 217)
    for i in range(16): x(f"v_mul_f32 v{232+i}, v{232+i}, v219")
    for p in range(8): x(f"v_cvt_pk_bf16_f32 v{248+p}, v{232+2*p}, v{233+2*p}")
    x("ds_write_b128 v14, v[248:251]\nds_write_b128 v14, v[252:255] offset:8192")
    xst = x.ops()
    def h1fin(u):
        h = Ops()
        h(f"ds_read_b128 v[224:227], v10 offset:{XL - ML + 8192*u}")
        for k, off in enumerate((0, 16, 2304, 2320)): h(f"ds_read_b128 {vr(192+4*k,4)}, v9 offset:{off + 2048*u}")
        h("s_waitcnt lgkmcnt(0)")
        unpack8(h, 224, 232)
        for i in range(8): h(f"v_mul_f32 v{232+i}, v{232+i}, v{200+i}")
        round_pairs(h, 232, 8, 2)
        for i in range(8): h(f"v_add_f32 v{232+i}, v{232+i}, v{192+i}")
        for p in range(4): h(f"v_cvt_pk_bf16_f32 v{228+4*u+p}, v{232+2*p}, v{233+2*p}") if u == 0 else h(f"v_cvt_pk_bf16_f32 v{240+p}, v{232+2*p}, v{233+2*p}")
        h(f"s_add_u32 s55, s62, {32768*u}\nbuffer_store_dwordx4 {vr(228 if u == 0 else 240,4)}, v13, s[24:27], s55 offen sc1")
        return h.ops()

    def reads(ks, s):
        b = SET[s]; r = []
        for nn in range(2):
            for e in range(2): r.append(f"ds_read_b64_tr_b16 {vr(b+16+4*nn+2*e,2)}, v6 offset:{ks*4352 + e*256 + nn*64}")
        for m in range(4): r.append(f"ds_read_b128 {vr(b+4*m,4)}, v5 offset:{(m>>1)*8320 + (m&1)*512 + ks*32}")
        return r
    def mfmas(s, role):
        b = SET[s]; r = []
        for m in range(4):
            for nn in range(2):
                acc = vr(ACC + 16*(2*m+nn), 16); c = vr(b+4*m, 4); w = vr(b+16+4*nn, 4)
                r.append(mf(acc, w, c, acc) if role == 0 else mf(acc, c, w, acc))
        return r
    stamp(a, 'kv_pro')
    a(f"s_waitcnt vmcnt({8 + CPF})\ns_barrier")
    stamp(a, 'kv_b0')
    for o in reads(0, 0): a(o)
    a("s_cmp_lt_u32 s3, 4\ns_cbranch_scc0 Lkv_r1")
    for role in range(2):
        a.label(f"Lkv_r{role}")
        if role == 1 and 'p1' in os.environ.get('PR', ''): a("s_setprio 1")
        if role == 0 and 'p0' in os.environ.get('PR', ''): a("s_setprio 1")
        hx = len(xst) // 2
        for t in range(8):
            pl = ['s_cmp_lg_u32 s3, 0\ns_cbranch_scc1 Lkv_npl\nbuffer_load_dword v15, v11, s[36:39], 0 offen sc1\nLkv_npl:'] if role == 0 else []
            side = {0: l2pf(2) + l2pf(3) + sloads(role), 1: gemv, 2: xst[:hx], 3: xst[hx:], 4: ['s_nop 0'] * 10 + pl + pf,
                    5: mload + ['s_nop 0'] * 40 + ['s_waitcnt vmcnt(0)'] + msum, 6: h1fin(0) + ['s_nop 0'] * 46}.get(t, [])
            if 'noval' in os.environ.get('XP', '') and t in (1, 2, 3): side = [o for o in side if 'buffer' in o or 'ds_' in o]
            if 'novm' in os.environ.get('XP', '') and t == 4: side = [o if 'buffer' not in o else o.replace('s55 offen', 's100 offen') for o in side]; a('s_mov_b32 s100, 0x7f000000')
            g0 = 8 * (int(os.environ.get('DKS', '0')) + 1) if ((role == 1 or ('nospread' not in os.environ.get('XP', ''))) and t in (4, 5, 6)) else 0
            if 1 <= t <= 4: side = side + l2pf(t + 3)
            per = (len(side) + 23 - g0) // (24 - g0)
            if t == 1: a(f"s_waitcnt vmcnt({0 if 'nospread' in os.environ.get('XP', '') and role == 1 else 4})")
            if t == 2 and role == 0:
                a("s_cmp_lg_u32 s3, 0\ns_cbranch_scc1 Lkv_nofin")
                a(f"v_lshlrev_b32 v2, 2, v1\nv_add_u32 v15, {GL}, v2")
                for w in range(8): a(f"ds_read_b32 v{192+w}, v15 offset:{256*w}")
                a("s_mul_i32 s55, s61, 13824\ns_lshr_b32 s56, s2, 2\ns_lshl_b32 s56, s56, 8\ns_add_u32 s55, s55, s56\ns_cmp_lt_u32 s2, 216\ns_cselect_b32 s55, s55, 0x7f000000\ns_waitcnt lgkmcnt(0)")
                for w in range(1, 8): a(f"v_add_f32 v192, v192, v{192+w}")
                a("buffer_store_dword v192, v2, s[40:43], s55 offen sc1\nv_mov_b32 v2, 1\ns_lshl_b32 s55, s61, 6\nv_and_b32 v11, 3, v1\nv_lshlrev_b32 v11, 6, v11")
                a("s_waitcnt vmcnt(0)\ns_mov_b64 exec, 1\nbuffer_atomic_add v2, off, s[36:39], s55 sc1\ns_mov_b64 exec, -1")
                a.label("Lkv_nofin")
            if t in (5, 6) and role == 1:
                a(f"s_cmp_lg_u32 s3, 7\ns_cbranch_scc1 Lkv_nofm{t}")
                if t == 5:
                    a(f"s_lshl_b32 s55, s2, 6\nv_lshlrev_b32 v15, 2, v1\nv_add_u32 v15, s55, v15\nv_cmp_gt_u32 vcc, 16, v1\nv_mov_b32 v2, {OOB}\ns_cmp_lt_u32 s2, 216\ns_cselect_b64 vcc, vcc, 0\ns_nop 1\nv_cndmask_b32 v15, v2, v15, vcc")
                    for r in range(4): a(f"s_mov_b32 s55, {13824*r}\nbuffer_load_dword v{216+r}, v15, s[40:43], s55 offen sc1")
                else:
                    a("v_add_f32 v216, v216, v217\nv_add_f32 v218, v218, v219\nv_add_f32 v216, v216, v218")
                    round_bf16(a, 216)
                    a("buffer_store_dword v216, v15, s[20:23], 0 offen sc1")
                a.label(f"Lkv_nofm{t}")
            if t == 7 and role == 1:
                a("s_sub_u32 s6, s3, 4\ns_cmp_ge_u32 s3, 6\ns_cbranch_scc1 Lkv_nls")
                attn_loader_setup(a)
                a.label("Lkv_nls")
                a("s_cmp_lg_u32 s3, 7\ns_cbranch_scc1 Lkv_nl7\ns_lshr_b32 s31, s2, 5\ns_sub_u32 s30, 15, s31")
                a(f"v_and_b32 v3, 1, v1\nv_mov_b32 v4, s30\nv_mov_b32 v2, s31\nv_cmp_eq_u32 vcc, 0, v3\ns_nop 1\nv_cndmask_b32 v3, v2, v4, vcc\nv_lshlrev_b32 v3, 7, v3")
                a.label("Lkv_nl7")
            for ks in range(3):
                if t == 6 and role == 0 and ks == 2:
                    a("s_cmp_lg_u32 s3, 0\ns_cbranch_scc1 Lkv_noh2")
                    for o in h1fin(1): a(o)
                    a.label("Lkv_noh2")
                if t == 7 and role == 1 and ks == 1:
                    a(f"s_cmp_lg_u32 s3, 7\ns_cbranch_scc1 Lkv_nl8\nbuffer_load_dword v244, v3, {SYNC}, 0 offen sc1\nLkv_nl8:")
                if KPRIO: a(f"s_setprio {2 - ks}")
                a("s_waitcnt lgkmcnt(0)")
                m = mfmas(ks & 1, role); r = reads(ks + 1, (ks + 1) & 1)
                dm = dma_ops((t - 1) & 1) if ((role == 1 or ('nospread' not in os.environ.get('XP', ''))) and ks == int(os.environ.get('DKS', '0')) and 1 <= t <= 6) else None
                for i in range(8):
                    a(m[i])
                    for o in r[2*i:2*i+2]: a(o)
                    if dm and not ('nospread' not in os.environ.get('XP', '')): a(dm[i])
                    if dm and ('nospread' not in os.environ.get('XP', '')) and i % 2 == role: a(dm[(4 - WF) + i // 2])
                    k = (ks * 8 + i - g0) * per
                    if k >= 0:
                        for o in side[k:k+per]:
                            if o != 's_nop 0' or t not in (4, 5, 6): a(o)
                if dm: a(ADVD)
            d = SLOT if t % 2 == 0 else -SLOT
            a(f"v_add_u32 v5, {d & 0xffffffff}, v5\nv_add_u32 v6, {d & 0xffffffff}, v6")
            a(f"s_waitcnt vmcnt({ {0: 12 + CPF, 1: 2, 2: 2, 3: 2, 4: 5}.get(t, 0) }) lgkmcnt(0)")
            if t == 4 and role == 0:
                a("s_cmp_lg_u32 s3, 0\ns_cbranch_scc1 Lkv_mpd\ns_mov_b32 s100, 0x8000")
                a.label("Lkv_mp")
                a("v_cmp_gt_u32 vcc, 64, v15\ns_sub_u32 s100, s100, 1\ns_cbranch_vccz Lkv_mpd\ns_cmp_eq_u32 s100, 0\ns_cbranch_scc1 Lkv_mpd")
                a("buffer_load_dword v15, v11, s[36:39], 0 offen sc1\ns_waitcnt vmcnt(0)\ns_branch Lkv_mp")
                a.label("Lkv_mpd")
            if t == 7 and role == 1:
                a(f"s_cmp_lg_u32 s3, 7\ns_cbranch_scc1 Lkv_np1\nv_cmp_gt_u32 vcc, 16, v244\nv_mov_b32 v247, {GL}\ns_nop 1")
                a("s_cmp_eq_u64 vcc, 0\ns_cselect_b32 s59, 1, 0\nv_mov_b32 v248, s59\nds_write_b32 v247, v248\ns_waitcnt lgkmcnt(0)")
                a.label("Lkv_np1")
            stamp(a, f'kw{t}')
            a("s_barrier")
            stamp(a, f'kv{t}')
            if t == 7 and role == 1:
                a(f"s_cmp_ge_u32 s3, 6\ns_cbranch_scc1 Lkv_nq0\nv_mov_b32 v247, {GL}\nds_read_b32 v248, v247\ns_waitcnt lgkmcnt(0)")
                a("v_readfirstlane_b32 s51, v248\ns_cmp_eq_u32 s51, 0\ns_cbranch_scc1 Lkv_nq0")
                for i in range(2): wq_part(a); h_part(a)
                a.label("Lkv_nq0")
            if t == 6 and role == 1:
                a("s_cmp_lg_u32 s3, 7\ns_cbranch_scc1 Lkv_ns1\ns_lshr_b32 s55, s2, 4\ns_lshl_b32 s55, s55, 7")
                signal(a, 55, 2)
                a.label("Lkv_ns1")
            if KPRIO: a("s_setprio 3")
            m = mfmas(1, role); r = reads(0, 0) if t < 7 else []; dm = dma_ops(t & 1)
            for i in range(8):
                a(m[i])
                for o in r[2*i:2*i+2]: a(o)
                if t < 6 and role == 0 and not ('nospread' not in os.environ.get('XP', '')): a(dm[i])
                if t < 6 and ('nospread' not in os.environ.get('XP', '')) and i % 2 == role: a(dm[WF + i // 2])
            if t < 6 and role == 0 and not ('nospread' not in os.environ.get('XP', '')): a(ADVD)
        stamp(a, 'kv_end')
        if KPRIO: a("s_setprio 0")
        def pack(k, dst):
            src = ACC + 8*k
            for p in range(4): a(f"v_cvt_pk_bf16_f32 v{dst+p}, v{src+2*p}, v{src+2*p+1}")
        if role == 1:
            a("s_cmp_ge_u32 s3, 6\ns_cbranch_scc1 Lkv_sw")
            a(f"s_lshl_b32 s55, s6, 14\ns_add_u32 s55, s55, {HAND}\nv_add_u32 v12, s55, v{V_LANE16}\ns_nop 7")
            for k in range(16):
                dst = 16 + 4 * (k % 8)
                pack(k, dst)
                a(f"ds_write_b128 v12, {vr(dst,4)} offset:{1024*k}")
            a("s_waitcnt lgkmcnt(0)\ns_barrier")
            a("s_branch Lat_load")
            a.label("Lkv_sw")
        a("v_lshlrev_b32 v7, 4, v1")
        a("s_lshl_b32 s55, s48, 19\ns_lshl_b32 s56, s49, 13\ns_add_u32 s55, s55, s56")
        a("s_and_b32 s56, s3, 1\ns_lshl_b32 s56, s56, 18\ns_add_u32 s57, s55, s56")
        if role == 1:
            a(f"s_and_b32 s55, s3, 1\ns_lshl_b32 s55, s55, 14\ns_add_u32 s55, s55, {HAND}\nv_add_u32 v2, s55, v7")
            for k in range(16): pack(k, ACC + 4*k)
            make_ws_srd(a, 20, 4, 'vf')
            a("s_cmp_lg_u32 s3, 7\ns_cbranch_scc1 Lkv_np2\ns_cmp_lg_u32 s59, 0\ns_cbranch_scc1 Lkv_np2")
            stamp(a, 'l_h1p0')
            poll(a, 3, 16, 244)
            stamp(a, 'l_h1p1')
            a.label("Lkv_np2")
            a("s_barrier")
            for k in range(16): a(f"ds_read_b128 {vr(128+4*k,4)}, v2 offset:{1024*k}")
            a("s_branch Lat_sw")
        else:
            for k in KORDER: pack(k, KREG[k])
            make_ws_srd(a, 16, 4, 'kf')
            if 'nok' in os.environ.get('XP', ''): a("s_mov_b32 s18, 0")
            a("s_lshr_b32 s56, s3, 1\ns_lshl_b32 s56, s56, 12\ns_add_u32 s57, s57, s56")
            a("v_mov_b32 v6, v7")
            a("s_branch Lat_comp")

def attn_ids(a):
    a("s_and_b32 s28, s2, 7\ns_lshr_b32 s29, s2, 3")
    a("s_and_b32 s30, s29, 3\ns_lshl_b32 s28, s28, 2\ns_add_u32 s28, s28, s30")
    if 'longfirst' in os.environ.get('XP', ''): a("s_lshr_b32 s31, s29, 2\ns_sub_u32 s30, 15, s31")
    else: a("s_lshr_b32 s30, s29, 2\ns_sub_u32 s31, 15, s30")
    a(f"v_and_b32 v8, 63, v0\nv_lshlrev_b32 v{V_LANE16}, 4, v8")

def phase_attn_compute(a):
    a.label("Lat_comp")
    a("s_setprio 1" if 'pc' in os.environ.get('PR', '') else "s_setprio 0" if os.environ.get('PR') else "")
    attn_ids(a)
    a("v_bfe_u32 v2, v8, 2, 2\nv_mul_u32_u24 v2, 1088, v2\nv_lshrrev_b32 v9, 5, v8\nv_lshl_add_u32 v2, v9, 9, v2")
    a("v_bfe_u32 v9, v8, 4, 1\nv_lshl_add_u32 v2, v9, 5, v2\nv_and_b32 v9, 3, v8\nv_lshl_add_u32 v2, v9, 3, v2")
    a(f"s_lshl_b32 s32, s3, 11\ns_add_u32 s32, s32, {WQ_BYTES}\nv_add_u32 v3, s32, v{V_LANE16}")
    a("v_and_b32 v9, 31, v8\ns_lshl_b32 s32, s3, 5\nv_add_u32 v9, s32, v9\nv_lshrrev_b32 v10, 5, v8\nv_lshlrev_b32 v10, 2, v10")
    a(f"v_sub_u32 v9, v9, v10\nv_cvt_f32_i32 v9, v9\nv_add_f32 v9, 0.5, v9\nv_mul_f32 v{V_YD}, {f32(BIG)}, v9")
    QACC = lambda qt, t: (16 + 16*t) if qt == 0 else (O + 16*t)
    QSET = [FR, FR + 24]
    for i in range(0, 64, 2): a(f"v_mov_b64 {vr(16+i,2)}, 0\nv_mov_b64 {vr(O+i,2)}, 0")
    make_ws_srd(a, 20, 4, 'ctx')
    a(f"s_mov_b32 s46, {f32(QSCALE)}\ns_mov_b32 s47, {f32(QSCALE)}")
    def qreads(ks, st):
        b = QSET[st]; r = []
        for qt in range(2): r.append(f"ds_read_b128 {vr(b+16+4*qt,4)}, v3 offset:{qt*8192 + ks*1024}")
        for t in range(4):
            for e in range(2): r.append(f"ds_read_b64_tr_b16 {vr(b+4*t+2*e,2)}, v2 offset:{ks*4352 + e*256 + t*64}")
        return r
    def qmf(st):
        b = QSET[st]
        return [mf(vr(QACC(qt, t), 16), vr(b+4*t, 4), vr(b+16+4*qt, 4), vr(QACC(qt, t), 16)) for t in range(4) for qt in range(2)]
    def front(m, r):
        out = []
        for i, x in enumerate(m):
            out.append(x); out += r[2*i:2*i+2]
        return out
    a("s_mov_b32 s40, 0")
    stamp(a, 'q_pre')
    a("s_barrier\ns_barrier")
    stamp(a, 'q_b0')
    for o in qreads(0, 0): a(o)
    for c in range(18):
        a("s_waitcnt lgkmcnt(0)")
        ops = front(qmf(0), qreads(1, 1))
        if c < 16: ops.insert(20, kstore(c))
        for o in ops: a(o)
        d = AT.SLOT if c % 5 != 4 else -4 * AT.SLOT
        a(f"v_add_u32 v2, {d & 0xffffffff}, v2\nv_add_u32 v3, {d & 0xffffffff}, v3")
        if c == 9: a("s_waitcnt vmcnt(2)")
        if c == 17: a("s_waitcnt vmcnt(0)")
        a("s_waitcnt lgkmcnt(0)")
        for o in front(qmf(1), qreads(0, 0) if c < 17 else []): a(o)
        a("s_barrier")
        stamp(a, f'q{c}')
    a(f"s_mov_b32 s40, {3*AT.SLOT}")
    stamp(a, 'q_end')
    a("v_and_b32 v8, 63, v0\nv_bfe_u32 v9, v8, 4, 1\nv_lshlrev_b32 v9, 17, v9\nv_lshrrev_b32 v10, 5, v8\nv_lshl_add_u32 v9, v10, 8, v9")
    a(f"v_and_b32 v10, 15, v8\nv_lshl_add_u32 v{V_T0}, v10, 4, v9\nv_mov_b32 v{V_T0+1}, {f32(THRESH)}")
    a(ADV[1])
    a("s_nop 7")
    for qt in (1, 0):
        for t in range(4):
            for e in range(2):
                for p in range(4):
                    s_ = QACC(qt, t) + 8*e + 2*p
                    a(f"v_pk_mul_f32 {vr(s_,2)}, {vr(s_,2)}, s[46:47]")
                for p in range(4):
                    s_ = QACC(qt, t) + 8*e + 2*p
                    a(f"v_cvt_pk_bf16_f32 v{(Q, Q2)[qt] + 4*(2*t+e) + p}, v{s_}, v{s_+1}")
        if qt == 1:
            for i in range(8): a(rd(i, KPOS[1]))
    a("s_mov_b32 s42, s30\ns_mov_b32 s43, 0")
    a.label("Lat_qk0")
    a(f"s_lshl_b32 s32, s42, 7\nv_cvt_f32_u32 v{V_Y}, s32\nv_mul_f32 v{V_Y}, {f32(BIG)}, v{V_Y}\nv_add_f32 v{V_Y}, v{V_Y}, v{V_YD}")
    a(f"v_mov_b32 v{V_NEGM}, 0")
    for o in build_ci(): a(o)
    a(ADV[0]); a(ADV[1])
    z = [f"v_mov_b64 {vr(O+i,2)}, 0" for i in range(0, 64, 2)] + [f"v_mov_b64 {vr(P[1]+i,2)}, 0" for i in range(0, 8, 2)]
    z += [f"v_mov_b32 v{V_L}, 0", f"v_mov_b32 v{LU[1]}, 0"]
    m = qk_group(0)
    for i in range(8):
        if i == 0: a("s_waitcnt lgkmcnt(5)")
        if i % 4 == 3: a(W4)
        a(m[i]); a(rd(i, KPOS[0]))
        for o in z[5*i:5*i+5]: a(o)
    a("s_nop 7\ns_nop 1")
    s = S[0]; t = V_T0 + 2; d = V_T0 + 3
    a(f"v_max3_f32 v{d}, v{s}, v{s+1}, v{s+2}")
    for r in range(3, 15, 2): a(f"v_max3_f32 v{d}, v{d}, v{s+r}, v{s+r+1}")
    a(f"v_max_f32 v{d}, v{d}, v{s+15}")
    a(f"v_mov_b32 v{t}, v{d}\ns_nop 1\nv_permlane32_swap_b32 v{d}, v{t}\ns_nop 1")
    a(f"v_max_f32 v{d}, v{d}, v{t}")
    a(f"v_sub_f32 v{V_NEGM}, 0, v{d}")
    for r in range(16): a(f"v_sub_f32 v{s+r}, v{s+r}, v{d}")
    for o in build_ci(): a(o)
    sites = []
    a(f"s_cmp_eq_u32 s43, 0\ns_cbranch_scc1 Lat_ns0\ns_lshr_b32 s32, s28, 2\ns_add_u32 s32, s32, {C_CTX}\ns_lshl_b32 s33, s30, 3\ns_add_u32 s33, s33, s32\ns_lshl_b32 s33, s33, 7\ns_waitcnt vmcnt(0)")
    signal(a, 33, V_Y)
    a.label("Lat_ns0")
    a(f"v_mov_b32 v{V_Y}, v{V_YD}")
    a("s_cmp_eq_u32 s42, 0\ns_cbranch_scc0 Lat_plain_pre")
    a(f"v_add_f32 v{V_Y}, {f32(-64*BIG)}, v{V_Y}\ns_mov_b32 s41, 1\ns_branch Lat_rebuild")
    a.label("Lat_plain_pre")
    a("s_lshl_b32 s41, s42, 1\ns_sub_u32 s41, s41, 1")
    a.label("Lat_plain")
    a("s_barrier")
    sites.append(period(a, 0, 0, VPOS[0], KPOS[1]))
    sites.append(period(a, 1, 1, VPOS[1], KPOS[0], adv=True, tail_ops=["s_sub_u32 s41, s41, 1\ns_cmp_lg_u32 s41, 0"]))
    a("s_cbranch_scc1 Lat_plain")
    a("s_mov_b32 s41, 2")
    a.label("Lat_rebuild")
    a("s_barrier")
    sites.append(period(a, 0, 2, VPOS[0], KPOS[1], rebuild=True))
    sites.append(period(a, 1, 3, VPOS[1], KPOS[0], rebuild=True, adv=True, tail_ops=["s_sub_u32 s41, s41, 1\ns_cmp_lg_u32 s41, 0"]))
    a("s_cbranch_scc1 Lat_rebuild")
    a("s_barrier")
    sites.append(period(a, 0, 4, VPOS[0], VPOS[1]))
    sites.append(period(a, 1, 5, None, VPOS[0], qk=False, adv=True))
    a("s_barrier")
    m = pv_group(1)
    mv = [f"v_mov_b64 {vr(Q+i,2)}, {vr(Q2+i,2)}" for i in range(0, 32, 2)]
    for i in range(8):
        if i % 4 == 3: a(W4)
        a(m[i]); a(rd(i, KPOS[1]))
        for o in mv[2*i:2*i+2]: a(o)
    a(f"v_add_f32 v{V_L}, v{V_L}, v{LU[1]}")
    a(f"v_mov_b32 v{t}, v{V_L}\ns_nop 1\nv_permlane32_swap_b32 v{V_L}, v{t}\ns_nop 1\nv_add_f32 v{V_L}, v{V_L}, v{t}")
    a(f"v_rcp_f32 v{T}, v{V_L}\ns_nop 0\nv_mov_b32 v{T+1}, v{T}")
    a("s_lshl_b32 s32, s42, 20\ns_lshl_b32 s33, s3, 18\ns_add_u32 s32, s32, s33\ns_lshl_b32 s33, s28, 12\ns_add_u32 s32, s32, s33")
    a("s_nop 3")
    k = 0
    for tt in range(4):
        for e in range(2):
            src = O + 16*tt + 8*e; dst = S[0] + 4 * k; k += 1
            for p in range(4): a(f"v_pk_mul_f32 {vr(src+2*p,2)}, {vr(src+2*p,2)}, {vr(T,2)}")
            for p in range(4): a(f"v_cvt_pk_bf16_f32 v{dst+p}, v{src+2*p}, v{src+2*p+1}")
            a(f"buffer_store_dwordx4 {vr(dst,4)}, v{V_T0}, s[20:23], s32 offen offset:{tt*1024 + e*512} sc1")
    a("s_cmp_lg_u32 s43, 0\ns_cbranch_scc1 Lat_cend")
    a("s_mov_b32 s43, 1\ns_mov_b32 s42, s31\ns_branch Lat_qk0")
    for site, par in sites:
        a.label(f"Lat_rs{site}")
        a(f"s_call_b64 s[44:45], Lat_rare{par}\ns_branch Lat_rb{site}")
    rare_path(a, 0); rare_path(a, 1)
    a.label("Lat_cend")
    stamp(a, 'at_end')
    a(f"s_lshr_b32 s32, s28, 2\ns_add_u32 s32, s32, {C_CTX}\ns_lshl_b32 s60, s31, 3\ns_add_u32 s60, s60, s32\ns_lshl_b32 s60, s60, 7")

def wq_part(a):
    a("s_add_u32 s32, s40, s37")
    for jj in range(4): a(f"s_add_u32 m0, s32, {1088*jj}\ns_add_u32 s33, s34, {8192*jj}\nbuffer_load_dwordx4 v2, s[8:11], s33 offen lds")
    a(f"s_add_u32 s34, s34, {32*8192}")

def h_part(a):
    a("s_add_u32 s32, s40, s38")
    for qt in range(2):
        for b in range(2):
            a(f"s_add_u32 m0, s32, {qt*8192 + b*2048}\ns_add_u32 s33, s{35+qt}, {b*36864}")
            a(f"buffer_load_dwordx4 v{V_LANE16}, s[12:15], s33 offen sc1 lds\nbuffer_load_dwordx4 v{V_LANE16}, s[12:15], s33 offen offset:1024 sc1 lds")
    a("s_add_u32 s35, s35, 2048\ns_add_u32 s36, s36, 2048")
    a(ADV[0])

def attn_loader_setup(a):
    SLOT = AT.SLOT
    make_srd(a, 8, 32, SIZES['wq'])
    a("s_load_dwordx2 s[56:57], s[0:1], 40\ns_load_dwordx2 s[58:59], s[0:1], 56\ns_load_dwordx2 s[60:61], s[0:1], 72")
    attn_ids(a)
    a("v_lshrrev_b32 v2, 4, v8\nv_lshlrev_b32 v2, 15, v2\nv_and_b32 v3, 15, v8\nv_lshl_add_u32 v2, v3, 4, v2")
    a("s_lshl_b32 s32, s6, 17\nv_add_u32 v2, s32, v2")
    a("s_lshl_b32 s34, s28, 8\ns_mul_i32 s37, s6, 4352")
    make_ws_srd(a, 12, 4, 'h1')
    a("s_lshl_b32 s32, s28, 19")
    srd_off(a, 16, 4, 32, WS['kf'][0], 512*1024); srd_off(a, 20, 4, 32, WS['vf'][0], 512*1024)
    a("s_lshl_b32 s35, s30, 1\ns_add_u32 s35, s35, s6\ns_mul_i32 s35, s35, 73728")
    a("s_lshl_b32 s36, s31, 1\ns_add_u32 s36, s36, s6\ns_mul_i32 s36, s36, 73728")
    a(f"s_lshl_b32 s38, s6, 12\ns_add_u32 s38, s38, {WQ_BYTES}\ns_lshl_b32 s39, s6, 13\ns_mov_b32 s40, 0")
    a("s_sub_u32 s44, s39, 8192\ns_sub_u32 s45, s39, 24576")
    a("s_mov_b32 s46, s44\ns_mov_b32 s47, s45\ns_mov_b32 s48, 0\ns_lshl_b32 s49, s30, 1\ns_add_u32 s49, s49, 3")

def phase_attn_loader(a):
    a.label("Lat_load")
    a("s_setprio 1" if 'pl' in os.environ.get('PR', '') else "s_setprio 0" if os.environ.get('PR') else "")
    a("s_cmp_lg_u32 s51, 0\ns_cbranch_scc1 Lat_early")
    for i in range(2): wq_part(a); h_part(a)
    a.label("Lat_early")
    for i in range(2): wq_part(a); h_part(a)
    a("s_mov_b32 s41, 14")
    a.label("Lat_lq")
    a("s_waitcnt vmcnt(24)\ns_barrier")
    wq_part(a); h_part(a)
    a("s_sub_u32 s41, s41, 1\ns_cmp_lg_u32 s41, 0\ns_cbranch_scc1 Lat_lq")
    a("s_waitcnt vmcnt(24)\ns_barrier")
    def kvload():
        for (srd, so, lo) in ((16, 46, 0), (20, 47, 16384)):
            a(f"s_add_u32 s32, s40, s39\ns_add_u32 m0, s32, {lo}\ns_add_u32 s33, s{so}, 4096")
            for j in range(4): a(f"buffer_load_dwordx4 v{V_LANE16}, {sr(srd,4)}, s{so} offen offset:{1024*j} sc1 lds")
            a(f"s_add_u32 m0, s32, {lo + 4096}\ns_nop 0")
            for j in range(4): a(f"buffer_load_dwordx4 v{V_LANE16}, {sr(srd,4)}, s33 offen offset:{1024*j} sc1 lds")
        a("s_add_u32 s46, s46, 16384\ns_add_u32 s47, s47, 16384\ns_add_u32 s48, s48, 1")
        a("s_cmp_eq_u32 s48, s49\ns_cselect_b32 s46, s44, s46")
        a("s_add_u32 s32, s49, 1\ns_add_u32 s33, s45, 16384\ns_cmp_eq_u32 s48, s32\ns_cselect_b32 s47, s33, s47")
        a(ADV[0])
    kvload()
    a("s_waitcnt vmcnt(28)\ns_barrier")
    kvload()
    a("s_waitcnt lgkmcnt(0)\ns_lshl_b32 s52, s2, 1\ns_add_u32 s52, s52, s6\ns_mul_i32 s50, s52, 9216\ns_mul_i32 s52, s52, 36864\ns_mov_b32 s41, 0")
    make_srd(a, 24, 56, 0 if 'nopf' in os.environ.get('XP', '') else SIZES['wo'])
    a.label("Lat_lpf")
    a("s_waitcnt vmcnt(32)\ns_barrier")
    kvload()
    for g in range(3):
        for j in range(3): a(f"buffer_load_dwordx4 v[8:11], v{V_LANE16}, s[24:27], s50 offen offset:{1024*j}")
        a("s_add_u32 s50, s50, 3072")
    for r in range(2):
        a("s_waitcnt vmcnt(41)\ns_barrier")
        kvload()
    a("s_add_u32 s41, s41, 1")
    for (n, ptr) in ((1, 58), (5, 60)):
        a(f"s_and_b32 s33, s{ptr+1}, 0xffff\ns_cmp_eq_u32 s41, {n}\ns_cselect_b32 s24, s{ptr}, s24\ns_cselect_b32 s25, s33, s25\ns_cselect_b32 s50, s52, s50")
    if 'nopf' not in os.environ.get('XP', ''): a(f"s_mov_b32 s26, {SIZES['w1']}")
    a("s_cmp_lt_u32 s41, 9\ns_cbranch_scc1 Lat_lpf")
    a("s_mov_b32 s41, 8")
    a.label("Lat_lkv")
    a("s_waitcnt vmcnt(32)\ns_barrier")
    kvload()
    a("s_sub_u32 s41, s41, 1\ns_cmp_lg_u32 s41, 0\ns_cbranch_scc1 Lat_lkv")
    a("s_waitcnt vmcnt(32)\ns_barrier\ns_waitcnt vmcnt(16)\ns_barrier")
    a("s_waitcnt vmcnt(0) lgkmcnt(0)\ns_barrier")
    a("s_branch Lat_ldone")

    a.label("Lat_sw")
    a("s_setprio 1" if 'pl' in os.environ.get('PR', '') else "s_setprio 0" if os.environ.get('PR') else "")
    a("s_mov_b32 s62, s57")
    a("s_load_dwordx2 s[56:57], s[0:1], 40\ns_load_dwordx2 s[58:59], s[0:1], 56\ns_load_dwordx2 s[60:61], s[0:1], 72")
    def vstore(n):
        k = n & 15; m_, nn, e = k >> 2, (k >> 1) & 1, k & 1
        reg = 64 + 4*k if n < 16 else 128 + 4*k
        a(f"s_add_u32 s55, s62, {m_*65536 + e*4096 + (2048 if n < 16 else 0)}\nbuffer_store_dwordx4 {vr(reg,4)}, v7, s[20:23], s55 offen offset:{nn*1024}" + ("" if 'wb' in os.environ.get('XP', '').split(',') else " sc1"))
    order = [n for m_ in range(4) for n in list(range(4*m_, 4*m_ + 4)) + list(range(16 + 4*m_, 16 + 4*m_ + 4))]
    a(f"s_add_u32 s32, s48, {C_KV}\ns_lshl_b32 s32, s32, 7\nv_mov_b32 v3, s32\ns_add_u32 s33, s32, {(C_KV2 - C_KV) * 128}\nv_mov_b32 v5, s33")
    a("s_waitcnt lgkmcnt(0)\ns_barrier")
    a("s_cmp_eq_u32 s3, 7\ns_cbranch_scc1 Lat_w7")
    for c in range(30):
        if c < 16 and c != 13: vstore(order[2*c]); vstore(order[2*c + 1])
        if c == 9: a("s_waitcnt vmcnt(4)")
        if c == 17: a("s_waitcnt vmcnt(0)")
        if c in (10, 18): signal(a, 32 if c == 10 else 33, 4)
        if c == 26:
            a("v_and_b32 v6, 15, v1\nv_lshlrev_b32 v6, 7, v6")
            poll(a, 6, 16, 244)
        if c in (13, 21, 29):
            if c == 29: a(f"v_add_u32 v5, {(C_KV3 - C_KV2) * 128}, v5")
            stamp(a, 'l_kvp0' if c == 13 else 'l_kvq0')
            poll(a, 3 if c == 13 else 5, 8, 244)
            stamp(a, 'l_kvp1' if c == 13 else 'l_kvq1')
            if c == 13: vstore(order[2*c]); vstore(order[2*c + 1])
        a("s_barrier")
    a("s_branch Lat_w67")
    a.label("Lat_w7")
    for c in range(30):
        if 18 <= c < 26:
            for q in range(4): vstore(order[4*(c - 18) + q])
        if c == 27:
            a(f"s_waitcnt vmcnt(0)\ns_add_u32 s33, s32, {(C_KV3 - C_KV) * 128}")
            signal(a, 33, 4)
        a("s_barrier")
    a.label("Lat_w67")
    if SENT:
        tok_ids(a)
        a(f"s_mov_b32 s33, {WS['p6'][0]}\ns_cmp_eq_u32 s3, 6\ns_cselect_b32 s32, {WS['p3'][0]}, s33")
        srd_off(a, 24, 4, 32, 0, WS['p3'][1])
        a("v_mov_b32 v8, -1\nv_mov_b32 v9, -1\nv_mov_b32 v10, -1\nv_mov_b32 v11, -1\ns_mov_b32 s50, s44\ns_mov_b32 s41, 4")
        a.label("Lat_pz")
        for g in range(3):
            a("s_barrier")
            for j in range(3): a(f"buffer_store_dwordx4 v[8:11], v7, s[24:27], s50 offen offset:{1024*j} sc1")
            a(f"s_add_u32 s50, s50, {3072 if g < 2 else 256*9216 - 6144}")
        a("s_sub_u32 s41, s41, 1\ns_cmp_lg_u32 s41, 0\ns_cbranch_scc1 Lat_pz")
        a(f"s_barrier\ns_barrier\ns_waitcnt vmcnt(0)\ns_add_u32 s32, s43, {C_PZ}\ns_lshl_b32 s32, s32, 7")
        signal(a, 32, 4)
    a(f"s_mov_b32 s41, {51 - 30 - (14 if SENT else 0)}")
    a.label("Lat_pfd")
    a("s_barrier\ns_sub_u32 s41, s41, 1\ns_cmp_lg_u32 s41, 0\ns_cbranch_scc1 Lat_pfd")
    if 'wpf' in os.environ.get('XP', ''):
        make_srd(a, 24, 56, SIZES['wo'])
        a(f"s_bfe_u32 s50, s2, 0x20001\ns_mul_i32 s50, s50, {1024*1152}\ns_lshr_b32 s32, s2, 3\ns_lshl_b32 s32, s32, 1\ns_and_b32 s33, s3, 1\ns_add_u32 s32, s32, s33")
        a("s_mul_i32 s32, s32, 18432\ns_add_u32 s50, s50, s32")
        for g in range(6):
            for j in range(3): a(f"buffer_load_dwordx4 v[8:11], v7, s[24:27], s50 offen offset:{1024*j}")
            a("s_add_u32 s50, s50, 3072")
    a("s_cmp_lg_u32 s3, 6\ns_cbranch_scc1 Lat_nc0")
    a(f"s_lshr_b32 s32, s2, 5\ns_lshl_b32 s32, s32, 3\ns_and_b32 s33, s2, 7\ns_add_u32 s32, s32, s33\ns_add_u32 s32, s32, {C_CTX}\ns_lshl_b32 s32, s32, 7\nv_mov_b32 v3, s32")
    poll(a, 3, 16, 244)
    a.label("Lat_nc0")
    a("s_barrier\ns_barrier")
    a("s_waitcnt vmcnt(0)")
    a.label("Lat_ldone")

def adv_slot(slot, nslot):
    return f"s_add_u32 s40, s40, {slot}\ns_cmp_eq_u32 s40, {slot*nslot}\ns_cselect_b32 s40, 0, s40"

G16 = {'o': dict(F=16384, W=20480, NST=16, nF=4, nW=5), 'y': dict(F=20480, W=16896, NST=18, nF=5, nW=4)}

def g16_ids(a, kind):
    if kind == 'o':
        a("s_and_b32 s28, s2, 7\ns_lshr_b32 s29, s2, 5\ns_bfe_u32 s30, s2, 0x20003\nv_and_b32 v8, 63, v0\nv_lshlrev_b32 v1, 4, v8")
        return
    a("s_bfe_u32 s28, s2, 0x20001")
    a("s_and_b32 s29, s2, 1\ns_lshl_b32 s29, s29, 3\ns_lshr_b32 s30, s2, 5\ns_add_u32 s29, s29, s30")
    a("s_bfe_u32 s30, s2, 0x20003")
    a("v_and_b32 v8, 63, v0\nv_lshlrev_b32 v1, 4, v8")

def g16_compute_setup(a, kind):
    p = G16[kind]
    g16_ids(a, kind)
    a("v_bfe_u32 v2, v8, 4, 1\nv_lshlrev_b32 v2, 2, v2\nv_bfe_u32 v9, v8, 2, 2\nv_add_u32 v2, v2, v9")
    a("v_lshrrev_b32 v9, 5, v8\nv_and_b32 v10, 3, v8")
    if kind == 'o':
        a("v_lshl_add_u32 v2, v9, 4, v2\nv_mul_u32_u24 v2, 288, v2\nv_lshl_add_u32 v2, v10, 3, v2")
        a(f"v_add_u32 v4, {p['F']}, v2\ns_lshl_b32 s35, s3, 12\nv_add_u32 v5, s35, v1")
    else:
        a("v_mul_u32_u24 v2, 1056, v2\nv_lshl_add_u32 v2, v9, 9, v2\nv_lshl_add_u32 v2, v10, 3, v2")
        a(f"s_lshl_b32 s35, s3, 6\ns_add_u32 s35, s35, {p['F']}\nv_add_u32 v4, s35, v2\nv_mov_b32 v5, v1")
    a("v_mov_b32 v2, v4\nv_mov_b32 v3, v5")
    for i in range(0, 72, 2): a(f"v_mov_b64 {vr(16+i,2)}, 0")
    make_ws_srd(a, 20, 4, 'p3' if kind == 'o' else 'p6')
    a("v_bfe_u32 v6, v8, 4, 1\nv_lshlrev_b32 v6, 1, v6\nv_lshrrev_b32 v9, 5, v8\nv_add_u32 v6, v6, v9\nv_mul_u32_u24 v6, 9216, v6\nv_and_b32 v9, 15, v8\nv_lshl_add_u32 v6, v9, 4, v6")

def g16_compute(a, kind):
    p = G16[kind]; pre = 'Lg' + kind; SLOT = p['F'] + p['W']
    ACC = 16; SET = [96, 144]
    def reads(ks, st):
        b = SET[st]; r = []
        if kind == 'o':
            for t in range(2): r.append(f"ds_read_b128 {vr(b+4*t,4)}, v3 offset:{t*2048 + ks*1024}")
            for c in range(9):
                for e in range(2): r.append(f"ds_read_b64_tr_b16 {vr(b+8+4*c+2*e,2)}, v2 offset:{(32*ks + 8*e)*288 + c*32}")
        else:
            for t in range(2):
                for e in range(2): r.append(f"ds_read_b64_tr_b16 {vr(b+4*t+2*e,2)}, v2 offset:{8*ks*1056 + e*256 + t*32}")
            for c in range(9): r.append(f"ds_read_b128 {vr(b+8+4*c,4)}, v3 offset:{c*2048 + ks*1024}")
        return r
    def mfs(st):
        b = SET[st]
        return [f"v_mfma_f32_16x16x32_bf16 {vr(ACC+4*(9*t+c),4)}, {vr(b+4*t,4)}, {vr(b+8+4*c,4)}, {vr(ACC+4*(9*t+c),4)}"
                for c in range(9) for t in range(2)]
    def kstep(m, r, extra):
        n = len(r); NL = 6 if kind == 'o' else 3
        take = [(n * (i + 1)) // 16 - (n * i) // 16 if i < 16 else 0 for i in range(18)]
        k = 0
        a(f"s_waitcnt lgkmcnt({NL})")
        for i, x in enumerate(m):
            if i == 12: a(f"s_waitcnt lgkmcnt({min(15, k)})")
            a(x)
            for o in r[k:k+take[i]]: a(o)
            k += take[i]
            for o in extra.get(i, []): a(o)
    a(f"s_mov_b32 s40, 0\ns_mov_b32 s41, {p['NST'] if kind == 'y' else 8}\ns_mov_b32 s45, {0 if kind == 'o' else 1}")
    a("s_lshl_b32 s34, s28, 8\ns_lshl_b32 s33, s29, 4\ns_add_u32 s34, s34, s33\ns_lshl_b32 s33, s3, 2\ns_add_u32 s34, s34, s33")
    a("s_mul_i32 s34, s34, 9216\ns_mul_i32 s33, s30, 2304\ns_add_u32 s34, s34, s33")
    if kind == 'y': a("s_barrier")
    a("s_barrier")
    stamp(a, kind + '_b0')
    for o in reads(0, 0): a(o)
    a(f"s_branch {pre}_cin")
    a.label(f"{pre}_cloop")
    a("s_barrier")
    a.label(f"{pre}_cin")
    kstep(mfs(0), reads(1, 1), {14: [adv_slot(SLOT, 4)], 16: ["v_add_u32 v2, s40, v4"], 17: ["v_add_u32 v3, s40, v5"]})
    kstep(mfs(1), reads(0, 0), {16: ["s_sub_u32 s41, s41, 1"], 17: ["s_cmp_lg_u32 s41, 0"],
                                 13: ["s_cmp_lg_u32 s41, 5\ns_cbranch_scc1 Lgo_nd\ns_waitcnt vmcnt(0)\nLgo_nd:"] if kind == 'o' else []})
    a(f"s_cbranch_scc1 {pre}_cloop")
    a.label(f"{pre}_cend")
    stamp(a, kind + '_end')
    a("s_nop 4")
    for c in range(9):
        A_ = ACC + 4*c; B_ = ACC + 4*(9 + c)
        a(f"v_cvt_pk_bf16_f32 v{A_}, v{A_}, v{A_+1}\nv_cvt_pk_bf16_f32 v{A_+1}, v{A_+2}, v{A_+3}")
        a(f"v_cvt_pk_bf16_f32 v{A_+2}, v{B_}, v{B_+1}\nv_cvt_pk_bf16_f32 v{A_+3}, v{B_+2}, v{B_+3}")
    for c in range(9):
        dst = ACC + 4*c
        a(f"v_permlane16_swap_b32 v{dst}, v{dst+2}\nv_permlane16_swap_b32 v{dst+1}, v{dst+3}")
        a(f"buffer_store_dwordx4 {vr(dst,4)}, v6, s[20:23], s34 offen offset:{256*c} sc1")
    if kind == 'o':
        a(f"s_cmp_lg_u32 s45, 0\ns_cbranch_scc1 {pre}_cfin\ns_mov_b32 s45, 1\ns_mov_b32 s41, 8\ns_add_u32 s34, s34, {128*9216}")
        for i in list(range(36, 72, 2)) + list(range(0, 36, 2)): a(f"v_mov_b64 {vr(16+i,2)}, 0")
        a(f"s_branch {pre}_cloop")
        a.label(f"{pre}_cfin")
    a("s_waitcnt lgkmcnt(0)")

def g16_loader_setup(a, kind):
    p = G16[kind]
    g16_ids(a, kind)
    if kind == 'o':
        a("s_mul_i32 s32, s6, 320\ns_mov_b32 s33, 0xe38e38f")
        for jj in range(5):
            a(f"v_add_u32 v9, s32, v8\nv_add_u32 v9, {64*jj}, v9\nv_mul_hi_u32 v10, v9, s33")
            a(f"v_mul_u32_u24 v11, 18, v10\nv_sub_u32 v11, v9, v11\nv_mul_u32_u24 v10, 1152, v10\nv_lshl_add_u32 v{2+jj}, v11, 4, v10")
            a(f"v_cmp_gt_u32 vcc, 1152, v9\nv_mov_b32 v10, {OOB}\ns_nop 1\nv_cndmask_b32 v{2+jj}, v10, v{2+jj}, vcc")
        make_srd(a, 8, 56, SIZES['wo']); make_ws_srd(a, 12, 4, 'ctx')
        a(f"s_mul_i32 s34, s28, {512*1152}\ns_mul_i32 s32, s30, 288\ns_add_u32 s34, s34, s32")
        a("s_lshl_b32 s35, s29, 3\ns_lshl_b32 s32, s6, 1\ns_add_u32 s35, s35, s32\ns_lshl_b32 s35, s35, 17\ns_lshl_b32 s32, s28, 14\ns_add_u32 s35, s35, s32")
        a(f"s_mul_i32 s37, s6, 5120\ns_add_u32 s37, s37, {p['F']}\ns_lshl_b32 s38, s6, 12")
        a(f"s_lshl_b32 s32, s29, 3\ns_add_u32 s32, s32, s28\ns_add_u32 s32, s32, {C_CTX + 64}\ns_lshl_b32 s32, s32, 7\nv_mov_b32 v7, s32")
        if SENT: a(f"s_add_u32 s32, s29, {C_PZ}\ns_lshl_b32 s32, s32, 7\nv_mov_b32 v9, s32\nv_cmp_gt_u32 vcc, 32, v8\ns_nop 1\nv_cndmask_b32 v7, v9, v7, vcc")
    else:
        a("v_lshrrev_b32 v2, 4, v8\nv_lshlrev_b32 v2, 15, v2\nv_and_b32 v9, 15, v8\nv_lshl_add_u32 v2, v9, 4, v2")
        a("s_and_b32 s32, s6, 1\ns_lshl_b32 s32, s32, 14\ns_lshr_b32 s33, s6, 1\ns_lshl_b32 s33, s33, 17\ns_add_u32 s32, s32, s33\nv_add_u32 v2, s32, v2")
        make_srd(a, 8, 60, SIZES['w2']); make_ws_srd(a, 12, 4, 'u')
        a(f"s_mul_i32 s34, s28, {1152*4096}\ns_lshl_b32 s32, s29, 8\ns_add_u32 s34, s34, s32")
        a(f"s_mul_i32 s35, s30, {9*147456}\ns_mul_i32 s32, s28, {36*1024}\ns_add_u32 s35, s35, s32")
        for jj in range(5):
            a(f"s_mul_i32 s32, s6, 5\ns_add_u32 s32, s32, {jj}\ns_lshr_b32 s33, s32, 1\ns_mul_i32 s33, s33, 147456")
            a(f"s_and_b32 s36, s32, 1\ns_lshl_b32 s36, s36, 10\ns_add_u32 s33, s33, s36\ns_add_u32 s33, s33, s35")
            a(f"s_cmp_lt_u32 s32, 18\ns_cselect_b32 s{46+jj}, s33, 0x7f000000")
        a(f"s_mul_i32 s37, s6, 4224\ns_add_u32 s37, s37, {p['F']}\ns_mul_i32 s38, s6, 5120")
        a(f"s_mul_i32 s32, s28, 6\ns_mul_i32 s33, s30, 3\ns_lshr_b32 s33, s33, 1\ns_add_u32 s32, s32, s33\ns_add_u32 s32, s32, {C_U}")
        a("v_and_b32 v7, 1, v8\nv_add_u32 v7, s32, v7\nv_lshlrev_b32 v7, 7, v7")

def g16_w(a, kind):
    if kind == 'o':
        a("s_add_u32 s32, s40, s37")
        for jj in range(5): a(f"s_add_u32 m0, s32, {1024*jj}\ns_nop 0\nbuffer_load_dwordx4 v{2+jj}, s[8:11], s34 offen lds")
        a(f"s_add_u32 s34, s34, {64*1152}")
    else:
        a("s_add_u32 s32, s40, s37")
        for jj in range(4): a(f"s_add_u32 m0, s32, {1056*jj}\ns_add_u32 s33, s34, {4096*jj}\nbuffer_load_dwordx4 v2, s[8:11], s33 offen lds")
        a(f"s_add_u32 s34, s34, {64*4096}")
def g16_f(a, kind):
    if kind == 'o':
        a("s_add_u32 m0, s40, s38\ns_add_u32 s33, s35, 0x20000")
        a("buffer_load_dwordx4 v1, s[12:15], s35 offen sc1 lds\nbuffer_load_dwordx4 v1, s[12:15], s35 offen offset:1024 sc1 lds")
        a("s_add_u32 s32, s40, s38\ns_add_u32 m0, s32, 2048\ns_nop 0")
        a("buffer_load_dwordx4 v1, s[12:15], s33 offen sc1 lds\nbuffer_load_dwordx4 v1, s[12:15], s33 offen offset:1024 sc1 lds")
        a("s_add_u32 s35, s35, 2048")
    else:
        a("s_add_u32 s32, s40, s38")
        for jj in range(5):
            a(f"s_add_u32 m0, s32, {1024*jj}\ns_nop 0\nbuffer_load_dwordx4 v1, s[12:15], s{46+jj} offen sc1 lds\ns_add_u32 s{46+jj}, s{46+jj}, 2048")

def g16_loader_wpro(a, kind):
    p = G16[kind]; SLOT = p['F'] + p['W']
    for i in range(3):
        a(f"s_mov_b32 s40, {i*SLOT}"); g16_w(a, kind)

def g2_wpf(a):
    if 'wpf' not in os.environ.get('XP', ''): return
    a(f"s_mul_i32 s32, s30, {64*4096}\ns_add_u32 s32, s32, s34")
    for i in range(4):
        a(f"s_add_u32 s36, s30, {3 + 4*i}\ns_cmp_lt_u32 s36, 18\ns_cselect_b32 s36, s32, 0x7f000000")
        for jj in range(4): a(f"s_add_u32 s33, s36, {(4*i*64 + jj)*4096}\nbuffer_load_dwordx4 v[12:15], v2, s[8:11], s33 offen")

def o_loader_main(a):
    p = G16['o']; SLOT = p['F'] + p['W']
    for n in range(16):
        if n == 2: a("s_barrier")
        if n >= 3:
            a("s_waitcnt vmcnt(9)")
            if n == 8:
                a("s_cmp_lg_u32 s6, 0\ns_cbranch_scc1 Lgo_np\nv_cmp_gt_u32 vcc, 16, v244\ns_nop 1\ns_cbranch_vccz Lgo_np")
                stamp(a, 'l_op0')
                poll(a, 7, 16, 244)
                stamp(a, 'l_op1')
                a.label("Lgo_np")
            a("s_barrier")
        if n == 8: a(f"s_add_u32 s35, s35, {(64 << 17) - 16384}\ns_sub_u32 s34, s34, {8*64*1152}")
        a(f"s_mov_b32 s40, {(n % 4) * SLOT}")
        g16_w(a, 'o'); g16_f(a, 'o')
        if n == 6: a(f"s_cmp_lg_u32 s6, 0\ns_cbranch_scc1 Lgo_nl\nbuffer_load_dword v244, v7, {SYNC}, 0 offen sc1\nLgo_nl:")
    sig_wave4(a, f"s_add_u32 s32, s29, {C_P3}\ns_lshl_b32 s32, s32, 7", 32, "Lgo_ns", 9)
    a("s_waitcnt vmcnt(9)\ns_barrier\ns_waitcnt vmcnt(0)\ns_barrier\ns_barrier")

def g16_loader_main(a, kind):
    p = G16[kind]; pre = 'Lg' + kind; SLOT = p['F'] + p['W']
    if 'gnodma' in os.environ.get('XP', ''): a("s_mov_b32 s10, 0\ns_mov_b32 s14, 0")
    stamp(a, 'l_' + kind + 'p0')
    if kind == 'y': a(f"s_cmp_lg_u32 s6, 0\ns_cbranch_scc1 {pre}_np")
    poll(a, 7, 32 if kind == 'o' else 9, 244)
    if kind == 'y':
        a.label(f"{pre}_np"); a("s_barrier")
    stamp(a, 'l_' + kind + 'p1')
    for i in range(3):
        a(f"s_mov_b32 s40, {i*SLOT}"); g16_f(a, kind)
    a(f"s_mov_b32 s40, {3*SLOT}\ns_mov_b32 s41, {p['NST'] - 3}")
    a(f"s_waitcnt vmcnt({p['nF']})\ns_branch {pre}_lb")
    a.label(f"{pre}_lloop")
    a("s_waitcnt vmcnt(9)")
    a.label(f"{pre}_lb")
    a("s_barrier")
    g16_f(a, kind); g16_w(a, kind)
    a(adv_slot(SLOT, 4))
    a(f"s_sub_u32 s41, s41, 1\ns_cmp_lg_u32 s41, 0\ns_cbranch_scc1 {pre}_lloop")
    a("s_waitcnt vmcnt(9)\ns_barrier\ns_waitcnt vmcnt(0)\ns_barrier\ns_barrier")

def tok_ids(a):
    a("s_bfe_u32 s32, s2, 0x20001\ns_lshl_b32 s32, s32, 2\ns_bfe_u32 s33, s2, 0x20003\ns_add_u32 s32, s32, s33")
    a("s_and_b32 s43, s2, 1\ns_lshl_b32 s43, s43, 3\ns_lshr_b32 s33, s2, 5\ns_add_u32 s43, s43, s33")
    a("s_lshl_b32 s42, s43, 4\ns_add_u32 s42, s42, s32\ns_mul_i32 s44, s42, 9216")
    a(f"v_mov_b32 v232, v0\nv_add_u32 v233, 512, v0\nv_cmp_gt_u32 vcc, 64, v0\nv_mov_b32 v234, 0x0ffffff0\ns_nop 1\nv_cndmask_b32 v233, v234, v233, vcc")
    a("v_lshlrev_b32 v236, 4, v232\nv_lshlrev_b32 v237, 4, v233\nv_mov_b32 v240, 0x3f80\nv_mov_b32 v241, 0x3f800000")

def partial_loads(a, srd, lab, ns):
    for u in range(2):
        if u == 1: a(f"s_cmp_lg_u32 s3, 0\ns_cbranch_scc1 {lab}a")
        a("s_mov_b32 s32, s44")
        for s in range(ns):
            a(f"buffer_load_dwordx4 {vr(96+32*u+4*s,4)}, v{236+u}, {sr(srd,4)}, s32 offen sc1")
            if s < ns - 1: a(f"s_add_u32 s32, s32, {256*9216}")
    a.label(f"{lab}a")
    a("s_waitcnt vmcnt(0)")

def partial_sum(a, u, dst, ns):
    b = 96 + 32*u
    unpack8(a, b, dst)
    for s in range(1, ns):
        for d in range(4):
            a(f"v_dot2c_f32_bf16 v{dst+2*d}, v{b+4*s+d}, v240\nv_dot2c_f32_bf16 v{dst+2*d+1}, v{b+4*s+d}, v241")
    a("s_nop 2")

def ln_row(a, x, n, t0):
    m, v, t = t0, t0 + 1, t0 + 2
    a(f"v_add_f32 v{m}, v{x}, v{x+1}")
    for i in range(2, n): a(f"v_add_f32 v{m}, v{m}, v{x+i}")
    wave_allsum(a, m, t)
    a(f"v_mul_f32 v{m}, 0x3ae38e39, v{m}\nv_mov_b32 v{v}, 0")
    for i in range(n): a(f"v_sub_f32 v{t}, v{x+i}, v{m}\nv_fmac_f32 v{v}, v{t}, v{t}")
    wave_allsum(a, v, t)
    a(f"v_mul_f32 v{v}, 0x3ae38e39, v{v}")
    round_bf16(a, m); round_bf16(a, v)
    a(f"v_add_f32 v{v}, 0x3727c5ac, v{v}"); round_bf16(a, v)
    a(f"v_sqrt_f32 v{v}, v{v}\ns_nop 0"); round_bf16(a, v)
    a(f"v_rcp_f32 v{v}, v{v}")
    for i in range(n): a(f"v_sub_f32 v{x+i}, v{x+i}, v{m}")
    for i in range(n): a(f"v_mul_f32 v{x+i}, v{x+i}, v{v}")

LN_LDS = 4 * 29696

def ln2_pre(a):
    a("s_load_dwordx2 s[46:47], s[0:1], 0")
    tok_ids(a)
    make_ws_srd(a, 48, 4, 'mod')
    a("v_lshlrev_b32 v238, 2, v232\nv_lshlrev_b32 v239, 2, v233\nv_and_b32 v235, 63, v0\nv_lshlrev_b32 v235, 2, v235")
    a(f"s_mov_b32 s32, {2*2304}\nbuffer_load_dword v208, v238, s[48:51], s32 offen sc1\nbuffer_load_dword v209, v239, s[48:51], s32 offen sc1")
    a(f"s_mov_b32 s32, {3*2304}\ns_mov_b32 s33, {4*2304}")
    for i in range(9):
        a(f"buffer_load_dword v{210+i}, v235, s[48:51], s32 offen offset:{256*i} sc1\nbuffer_load_dword v{220+i}, v235, s[48:51], s33 offen offset:{256*i} sc1")
    a("v_lshlrev_b32 v230, 1, v232\nv_lshlrev_b32 v231, 1, v233")
    a("s_waitcnt lgkmcnt(0)")
    make_srd(a, 48, 46, SIZES['x'])
    a("s_mov_b32 s32, s44")
    for t in range(8):
        for u in range(2): a(f"buffer_load_short_d16_hi v{192+8*u+t}, v{230+u}, s[48:51], s32 offen" + (f" offset:{1152*(t%3)}" if t % 3 else ""))
        if t % 3 == 2: a("s_add_u32 s32, s32, 3456")
    a(f"v_add_u32 v238, {LN_LDS}, v238\ns_mul_i32 s32, s3, 2304\ns_add_u32 s32, s32, {LN_LDS}\nv_add_u32 v239, s32, v235")

def ln2_mid(a):
    for i in range(16): a(f"v_and_b32 v{192+i}, 0xffff0000, v{192+i}")
    for i in range(9):
        a(f"v_add_f32 v{220+i}, 1.0, v{220+i}"); round_bf16(a, 220 + i)
    for u in range(2):
        a(f"v_lshrrev_b32 v{230+u}, 5, v{232+u}\nv_lshlrev_b32 v{230+u}, 17, v{230+u}\nv_and_b32 v234, 31, v{232+u}\nv_lshl_add_u32 v{230+u}, v234, 4, v{230+u}")

def ln2_body(a):
    make_ws_srd(a, 48, 4, 'p3')
    partial_loads(a, 48, "Lln_sp", 8)
    make_ws_srd(a, 48, 4, 'x1'); make_ws_srd(a, 52, 4, 'h2')
    stamp(a, 'ln_ld')
    for u in range(2):
        if u == 1: a("s_cmp_lg_u32 s3, 0\ns_cbranch_scc1 Lln_u1")
        partial_sum(a, u, 160, 8)
        for t in range(8): a(f"v_fmac_f32 v{192+8*u+t}, v{208+u}, v{160+t}")
        for p in range(4): a(f"v_cvt_pk_bf16_f32 v{168+4*u+p}, v{192+8*u+2*p}, v{193+8*u+2*p}")
        unpack8(a, 168 + 4*u, 160)
        for t in range(8): a(f"ds_write_b32 v238, v{160+t} offset:{2304*t + 2048*u}")
        a(f"buffer_store_dwordx4 {vr(168+4*u,4)}, v{236+u}, s[48:51], s44 offen sc1")
    a.label("Lln_u1")
    a("s_waitcnt lgkmcnt(0)\ns_barrier")
    a("s_cmp_eq_u32 s3, 4\ns_cselect_b32 s36, 1, 0\ns_cmp_ge_u32 s43, 8\ns_cselect_b32 s36, s36, 0\ns_cmp_lt_u32 s2, 216\ns_cselect_b32 s36, s36, 0")
    a(f"s_cmp_eq_u32 s36, 0\ns_cbranch_scc1 Lln_n1\nbuffer_load_dword v247, v7, {SYNC}, 0 offen sc1\nLln_n1:")
    for i in range(9): a(f"ds_read_b32 v{96+i}, v239 offset:{256*i}")
    a("s_waitcnt lgkmcnt(0)")
    ln_row(a, 96, 9, 108)
    for i in range(9): a(f"v_fma_f32 v{96+i}, v{96+i}, v{220+i}, v{210+i}")
    ln_row(a, 96, 9, 108)
    for i in range(9): a(f"ds_write_b32 v239, v{96+i} offset:{256*i}")
    a("s_cmp_eq_u32 s36, 0\ns_cbranch_scc1 Lln_n2\ns_waitcnt vmcnt(0)\nv_cmp_gt_u32 vcc, 16, v247\ns_nop 1\ns_cbranch_vccz Lln_n2")
    poll(a, 7, 16, 244)
    a.label("Lln_n2")
    a("s_waitcnt lgkmcnt(0)\ns_barrier")
    a("s_cmp_lt_u32 s3, 4\ns_cbranch_scc1 Lln_nf\ns_cmp_ge_u32 s2, 216\ns_cbranch_scc1 Lln_nf\ns_cmp_lt_u32 s43, 8\ns_cbranch_scc1 Lln_nf")
    for i in range(4):
        a(f"s_mov_b32 s40, {i*M1_SLOT}"); m1_f(a)
    a.label("Lln_nf")
    a("s_lshl_b32 s32, s42, 9")
    for u in range(2):
        if u == 1: a("s_cmp_lg_u32 s3, 0\ns_cbranch_scc1 Lln_u2")
        for t in range(8): a(f"ds_read_b32 v{96+8*u+t}, v238 offset:{2304*t + 2048*u}")
        a("s_waitcnt lgkmcnt(0)")
        for p in range(4): a(f"v_cvt_pk_bf16_f32 v{112+4*u+p}, v{96+8*u+2*p}, v{97+8*u+2*p}")
        a(f"buffer_store_dwordx4 {vr(112+4*u,4)}, v{230+u}, s[52:55], s32 offen sc1")
    a.label("Lln_u2")
    stamp(a, 'ln_st')

def h2_signal(a):
    a(f"s_add_u32 s32, s43, {C_H2}\ns_lshl_b32 s32, s32, 7\nv_lshlrev_b32 v10, 11, v8\nv_mov_b32 v9, 1\ns_mov_b64 exec, 0xff")
    a(f"buffer_atomic_add v9, v10, {SYNC}, s32 offen sc1\ns_mov_b64 exec, -1")

def final_pre(a):
    a("s_load_dwordx2 s[46:47], s[0:1], 80\ns_load_dwordx2 s[52:53], s[0:1], 104")
    tok_ids(a)
    make_ws_srd(a, 48, 4, 'mod')
    a("v_lshlrev_b32 v238, 2, v232\nv_lshlrev_b32 v239, 2, v233")
    a(f"s_mov_b32 s32, {5*2304}\nbuffer_load_dword v208, v238, s[48:51], s32 offen sc1\nbuffer_load_dword v209, v239, s[48:51], s32 offen sc1")
    make_ws_srd(a, 48, 4, 'x1')
    for u in range(2): a(f"buffer_load_dwordx4 {vr(192+4*u,4)}, v{236+u}, s[48:51], s44 offen sc1")
    a("v_lshlrev_b32 v230, 1, v232\nv_lshlrev_b32 v231, 1, v233")
    a("s_waitcnt lgkmcnt(0)")
    a("s_lshl_b32 s32, s42, 4\ns_add_u32 s46, s46, s32\ns_addc_u32 s47, s47, 0\ns_load_dwordx4 s[36:39], s[46:47], 0")
    make_srd(a, 24, 52, SIZES['out'])
    a("s_waitcnt lgkmcnt(0)")

def final_mid(a):
    for p in range(4): a(f"s_lshl_b32 s{48+2*p}, s{36+p}, 16\ns_and_b32 s{49+2*p}, s{36+p}, 0xffff0000")
    for u in range(2):
        unpack8(a, 192 + 4*u, 210 + 8*u)
        for t in range(8): a(f"v_fmac_f32 v{210+8*u+t}, s{48+t}, v{208+u}")

def final_body(a):
    make_ws_srd(a, 48, 4, 'p6')
    partial_loads(a, 48, "Lfi_sp", 4)
    for u in range(2):
        if u == 1: a("s_cmp_lg_u32 s3, 0\ns_cbranch_scc1 Lfi_u1")
        partial_sum(a, u, 160, 4)
        for t in range(8): a(f"v_fmac_f32 v{210+8*u+t}, v{208+u}, v{160+t}")
        for p in range(4): a(f"v_cvt_pk_bf16_f32 v{168+4*u+p}, v{210+8*u+2*p}, v{211+8*u+2*p}")
        if OUT16:
            for t in range(8):
                op = "ds_write_b16" if t % 2 == 0 else "ds_write_b16_d16_hi"
                a(f"{op} v230, v{168+4*u+t//2} offset:{1152*t + 1024*u}")
        else:
            a("s_mov_b32 s32, s44")
            for t in range(8):
                op = "buffer_store_short" if t % 2 == 0 else "buffer_store_short_d16_hi"
                a(f"{op} v{168+4*u+t//2}, v{230+u}, s[24:27], s32 offen" + (f" offset:{1152*(t%3)}" if t % 3 else ""))
                if t % 3 == 2: a("s_add_u32 s32, s32, 3456")
    a.label("Lfi_u1")
    if OUT16:
        a("s_waitcnt lgkmcnt(0)\ns_barrier\nds_read_b128 v[96:99], v236\nds_read_b128 v[100:103], v236 offset:8192\ns_waitcnt lgkmcnt(0)")
        a(f"buffer_store_dwordx4 v[96:99], v236, s[24:27], s44 offen{OUT16}\nbuffer_store_dwordx4 v[100:103], v237, s[24:27], s44 offen{OUT16}")

M1_W = 17408; M1_SLOT = M1_W + 12288; M1_NST = 32; M1_X = 114688
def m1_ids(a):
    a("s_and_b32 s32, s2, 7\ns_mul_i32 s32, s32, 27\ns_lshr_b32 s33, s2, 3\ns_add_u32 s32, s32, s33")
    a("s_mul_hi_u32 s28, s32, 0x2aaaaaab\ns_mul_i32 s33, s28, 6\ns_sub_u32 s29, s32, s33")
    a("v_and_b32 v8, 63, v0\nv_lshlrev_b32 v1, 4, v8")

def m1_compute(a):
    pre = 'Lm1'
    ACC = 16; SET = [64, 96]
    a("s_load_dwordx2 s[24:25], s[0:1], 64")
    m1_ids(a)
    a("v_bfe_u32 v2, v8, 2, 2\nv_mul_u32_u24 v2, 1088, v2\nv_lshrrev_b32 v9, 5, v8\nv_lshl_add_u32 v2, v9, 9, v2")
    a("v_bfe_u32 v9, v8, 4, 1\nv_lshl_add_u32 v2, v9, 5, v2\nv_and_b32 v9, 3, v8\nv_lshl_add_u32 v2, v9, 3, v2")
    a(f"s_lshl_b32 s32, s3, 6\nv_add_u32 v4, s32, v2\nv_add_u32 v5, {M1_W}, v1")
    a("v_mov_b32 v2, v4\nv_mov_b32 v3, v5")
    for i in range(0, 48, 2): a(f"v_mov_b64 {vr(ACC+i,2)}, 0")
    a("s_waitcnt lgkmcnt(0)")
    m1_bias(a, 3)
    def reads(hs, st):
        r = []
        for k in range(2):
            b = SET[st] + 16*k; ks = 2*hs + k
            for e in range(2): r.append(f"ds_read_b64_tr_b16 {vr(b+2*e,2)}, v2 offset:{ks*4352 + e*256}")
            for d in range(3): r.append(f"ds_read_b128 {vr(b+4+4*d,4)}, v3 offset:{d*4096 + ks*1024}")
        return r
    def mfs(st):
        return [mf(vr(ACC+16*d,16), vr(SET[st]+16*k,4), vr(SET[st]+16*k+4+4*d,4), vr(ACC+16*d,16)) for k in range(2) for d in range(3)]
    def half(m, r, extra):
        a("s_waitcnt lgkmcnt(5)")
        for i, x in enumerate(m):
            if i == 3: a("s_waitcnt lgkmcnt(6)")
            a(x)
            for o in r[2*i:2*i+2]: a(o)
            for o in extra.get(i, []): a(o)
    a(f"s_mov_b32 s40, 0\ns_mov_b32 s41, {M1_NST}")
    a("s_barrier")
    stamp(a, 'm1_b0')
    for o in reads(0, 0): a(o)
    a.label(f"{pre}_cloop")
    half(mfs(0), reads(1, 1), {3: [adv_slot(M1_SLOT, 5)], 5: ["v_add_u32 v2, s40, v4\nv_add_u32 v3, s40, v5"]})
    half(mfs(1), reads(0, 0), {5: ["s_sub_u32 s41, s41, 1\ns_cmp_lg_u32 s41, 0\ns_waitcnt vmcnt(0)"]})
    a(f"s_barrier\ns_cbranch_scc1 {pre}_cloop")
    stamp(a, 'm1_end')
    m1_xaddr(a, 3)
    a("s_waitcnt lgkmcnt(0)\ns_nop 3")
    for i in range(6): a(f"ds_write_b128 v4, {vr(ACC+24+4*i,4)} offset:{1024*i}")
    a("s_waitcnt lgkmcnt(0)\ns_barrier")
    m1_gelu(a, ACC, 64, 0)

def m1_xaddr(a, sw):
    a(f"s_mul_i32 s32, s{sw}, 6144\ns_add_u32 s32, s32, {M1_X}\nv_add_u32 v4, s32, v1")

def m1_bias(a, sw):
    make_srd(a, 16, 24, SIZES['b1'])
    a(f"s_lshl_b32 s32, s28, 2\ns_add_u32 s45, s32, s{sw}")
    a("s_lshl_b32 s32, s45, 6\nv_lshrrev_b32 v9, 5, v8\nv_lshlrev_b32 v9, 3, v9")
    for q in range(4): a(f"buffer_load_dwordx2 {vr(152+2*q,2)}, v9, s[16:19], s32 offen offset:{16*q}")
    make_ws_srd(a, 20, 4, 'u')
    a("v_bfe_u32 v9, v8, 4, 1\nv_mul_u32_u24 v9, 147456, v9\nv_lshrrev_b32 v10, 5, v8\nv_lshl_add_u32 v9, v10, 8, v9")
    a("v_and_b32 v10, 15, v8\nv_lshl_add_u32 v6, v10, 4, v9")
    a(f"s_mul_i32 s39, s29, {6*147456}\ns_lshl_b32 s33, s45, 10\ns_add_u32 s39, s39, s33")

def m1_gelu(a, keep, oth, h0):
    a("s_waitcnt vmcnt(0)" if h0 == 0 else "")
    for q in range(4):
        for h in range(2):
            a(f"v_lshlrev_b32 v{160+4*q+2*h}, 16, v{152+2*q+h}\nv_and_b32 v{161+4*q+2*h}, 0xffff0000, v{152+2*q+h}")
    c1 = -2 * math.sqrt(2 / math.pi) * math.log2(math.e); c2 = c1 * 0.044715
    a(f"v_mov_b32 v10, {f32(c1)}\nv_mov_b32 v11, {f32(c2)}")
    for i in range(3):
        d, e = (h0 + i) >> 1, (h0 + i) & 1
        if h0: a(f"s_waitcnt lgkmcnt({4 - 2*i})")
        b = keep + 8*i; o = oth + 8*i
        for r in range(8): a(f"v_add_f32 v{b+r}, v{b+r}, v{160+8*e+r}")
        for r in range(8): a(f"v_mul_f32 v{o+r}, v{b+r}, v{b+r}")
        for r in range(8): a(f"v_fma_f32 v{o+r}, v{o+r}, v11, v10")
        for r in range(8): a(f"v_mul_f32 v{o+r}, v{o+r}, v{b+r}")
        for r in range(8): a(f"v_exp_f32 v{o+r}, v{o+r}")
        for r in range(8): a(f"v_add_f32 v{o+r}, 1.0, v{o+r}")
        for r in range(8): a(f"v_rcp_f32 v{o+r}, v{o+r}")
        for r in range(8): a(f"v_mul_f32 v{b+r}, v{b+r}, v{o+r}")
        for p in range(4): a(f"v_cvt_pk_bf16_f32 v{o+p}, v{b+2*p}, v{b+2*p+1}")
        a(f"s_add_u32 s32, s39, {d*2*147456}\nbuffer_store_dwordx4 {vr(o,4)}, v6, s[20:23], s32 offen offset:{e*512} sc1")

def m1_loader_setup(a):
    m1_ids(a)
    a("v_lshrrev_b32 v2, 4, v8\nv_mul_u32_u24 v2, 36864, v2\nv_and_b32 v9, 15, v8\nv_lshl_add_u32 v2, v9, 4, v2")
    a(f"s_mul_i32 s32, s6, {16*9216}\nv_add_u32 v2, s32, v2")
    make_srd(a, 8, 58, SIZES['w1']); make_ws_srd(a, 12, 4, 'h2')
    a("s_lshl_b32 s34, s28, 8")
    a(f"s_mul_i32 s35, s29, {3*131072}\ns_lshl_b32 s32, s6, 10\ns_add_u32 s35, s35, s32")
    a(f"s_mul_i32 s37, s6, 4352\ns_lshl_b32 s38, s6, 10\ns_add_u32 s38, s38, {M1_W}")
    a(f"s_and_b32 s32, s2, 7\ns_lshl_b32 s32, s32, 4\ns_add_u32 s32, s32, {C_H2}\nv_and_b32 v7, 7, v8\nv_add_u32 v7, s32, v7\nv_lshlrev_b32 v7, 7, v7")
def m1_w(a):
    a("s_add_u32 s32, s40, s37")
    for jj in range(4): a(f"s_add_u32 m0, s32, {1088*jj}\ns_add_u32 s33, s34, {9216*jj}\nbuffer_load_dwordx4 v2, s[8:11], s33 offen lds")
    a(f"s_add_u32 s34, s34, {64*9216}")
def m1_f(a):
    a("s_add_u32 s32, s40, s38")
    for d in range(3): a(f"s_add_u32 m0, s32, {4096*d}\ns_add_u32 s33, s35, {131072*d}\nbuffer_load_dwordx4 v1, s[12:15], s33 offen sc1 lds")
    a("s_add_u32 s35, s35, 4096")
def m1_loader_main(a):
    def st(w): a(f"s_waitcnt vmcnt({w})\ns_barrier"); m1_f(a); m1_w(a); a(adv_slot(M1_SLOT, 5))
    a(f"s_mov_b32 s40, {4*M1_SLOT}")
    st(6)
    a("s_waitcnt vmcnt(7)\ns_barrier")
    a("s_cmp_lg_u32 s6, 0\ns_cbranch_scc1 Lm1_ns\ns_cmp_lt_u32 s43, 8\ns_cbranch_scc1 Lm1_ns")
    h2_signal(a)
    a.label("Lm1_ns")
    m1_f(a); m1_w(a); a(adv_slot(M1_SLOT, 5))
    a("s_mov_b32 s41, 8\nv_add_u32 v7, 1024, v7")
    a.label("Lm1_lloop0")
    st(14)
    a("s_sub_u32 s41, s41, 1\ns_cmp_lg_u32 s41, 0\ns_cbranch_scc1 Lm1_lloop0")
    a(f"s_cmp_lg_u32 s6, 0\ns_cbranch_scc1 Lm1_nl\nbuffer_load_dword v244, v7, {SYNC}, 0 offen sc1\nLm1_nl:")
    st(14); st(14)
    a("s_cmp_lg_u32 s6, 0\ns_cbranch_scc1 Lm1_np\ns_waitcnt vmcnt(14)\nv_cmp_gt_u32 vcc, 16, v244\ns_nop 1\ns_cbranch_vccz Lm1_np")
    poll(a, 7, 16, 244)
    a.label("Lm1_np")
    a("s_mov_b32 s41, 16")
    a.label("Lm1_lloop")
    st(14)
    a("s_sub_u32 s41, s41, 1\ns_cmp_lg_u32 s41, 0\ns_cbranch_scc1 Lm1_lloop")
    for w in (14, 7, 0, 0): a(f"s_waitcnt vmcnt({w})\ns_barrier")
    a("s_barrier")

def sig_wave4(a, soff_code, soff, lab, vtmp):
    a(f"s_cmp_lg_u32 s6, 0\ns_cbranch_scc1 {lab}")
    a(soff_code); signal(a, soff, vtmp)
    a.label(lab)

def mega():
    a = Asm(); n = NAME + '_kernel'
    a("s_cmp_ge_u32 s2, 256\ns_cbranch_scc1 Lend")
    stamp(a, 'start')
    phase_kv(a)
    phase_attn_compute(a)
    a("s_waitcnt lgkmcnt(0)")
    g16_compute_setup(a, 'o')
    ln2_pre(a)
    a("s_waitcnt vmcnt(36)")
    stamp(a, 'at_dr')
    signal(a, 60, 9)
    g16_compute(a, 'o')
    stamp(a, 'o_st')
    a("s_waitcnt vmcnt(18)")
    ln2_mid(a)
    if not SENT: a("s_waitcnt vmcnt(0)")
    stamp(a, 'o_dr')
    a("s_barrier")
    stamp(a, 'S')
    if not SENT: a("s_barrier")
    a.label("Lln_shared")
    stamp(a, 'R')
    ln2_body(a)
    stamp(a, 'S2')
    a("s_cmp_ge_u32 s3, 4\ns_cbranch_scc1 Ll_after_ln")
    a("s_cmp_lt_u32 s2, 216\ns_cbranch_scc1 Lc_g1\ns_waitcnt vmcnt(0)\ns_barrier\ns_branch Lc_g2")
    a.label("Lc_g1")
    a("s_cmp_ge_u32 s43, 8\ns_cbranch_scc1 Lc_g1b\ns_waitcnt vmcnt(0)\ns_barrier\ns_barrier")
    a.label("Lc_g1b")
    m1_compute(a)
    stamp(a, 'm1_st')
    a("s_waitcnt vmcnt(0)")
    stamp(a, 'm1_dr')
    a("s_barrier")
    stamp(a, 'S3')
    a.label("Lc_g2")
    g16_compute_setup(a, 'y')
    final_pre(a)
    g16_compute(a, 'y')
    stamp(a, 'y_st')
    a("s_waitcnt vmcnt(9)")
    final_mid(a)
    if not SENT: a("s_waitcnt vmcnt(0)\ns_barrier\ns_barrier")
    stamp(a, 'R4')
    a("s_branch Lfinal")
    phase_attn_loader(a)
    g16_loader_setup(a, 'o')
    o_loader_main(a)
    ln2_pre(a)
    m1_loader_setup(a)
    a("s_load_dwordx2 s[24:25], s[0:1], 64\ns_waitcnt lgkmcnt(0)")
    m1_bias(a, 6)
    a("s_waitcnt vmcnt(0)")
    ln2_mid(a)
    a("s_barrier")
    sig_wave4(a, f"s_lshr_b32 s32, s2, 5\ns_add_u32 s32, s32, {C_P3 + 8}\ns_lshl_b32 s32, s32, 7", 32, "Ll_s1", 9)
    a("s_cmp_ge_u32 s2, 216\ns_cbranch_scc1 Ll_now1")
    for i in range(4):
        a(f"s_mov_b32 s40, {i*M1_SLOT}"); m1_w(a)
    a.label("Ll_now1")
    if not SENT:
        a("s_cmp_lg_u32 s6, 0\ns_cbranch_scc1 Ll_np1")
        a(f"s_add_u32 s32, s43, {C_P3}\ns_lshl_b32 s32, s32, 7\nv_mov_b32 v10, s32")
        poll(a, 10, 32, 244)
        a.label("Ll_np1")
        a("s_barrier")
    a("s_branch Lln_shared")
    a.label("Ll_after_ln")
    a("s_cmp_ge_u32 s2, 216\ns_cbranch_scc1 Ll_nom1")
    a("s_cmp_ge_u32 s43, 8\ns_cbranch_scc1 Ll_late\ns_waitcnt vmcnt(0)\ns_barrier\ns_cmp_lg_u32 s6, 0\ns_cbranch_scc1 Ll_s2")
    h2_signal(a)
    stamp(a, 'l_h2p0')
    poll(a, 7, 16, 244)
    stamp(a, 'l_h2p1')
    a.label("Ll_s2")
    a("s_barrier")
    for i in range(4):
        a(f"s_mov_b32 s40, {i*M1_SLOT}"); m1_f(a)
    a.label("Ll_late")
    m1_loader_main(a)
    a(f"s_mul_hi_u32 s32, s28, 0x1c71c71d\ns_mul_i32 s32, s32, 6\ns_add_u32 s32, s32, s29\ns_add_u32 s32, s32, {C_U}\ns_lshl_b32 s63, s32, 7")
    g16_loader_setup(a, 'y')
    g16_loader_wpro(a, 'y')
    m1_xaddr(a, 6)
    a("s_barrier")
    for i in range(6): a(f"ds_read_b128 {vr(16+4*i,4)}, v4 offset:{1024*i}")
    m1_gelu(a, 16, 40, 3)
    a("s_waitcnt vmcnt(0)\ns_barrier")
    sig_wave4(a, "", 63, "Ll_s3", 9)
    a("s_branch Ll_g2")
    a.label("Ll_nom1")
    a("s_waitcnt vmcnt(0)\ns_barrier\ns_cmp_lg_u32 s6, 0\ns_cbranch_scc1 Ll_nh")
    h2_signal(a)
    a.label("Ll_nh")
    g16_loader_setup(a, 'y')
    g16_loader_wpro(a, 'y')
    if 'fastidle' not in os.environ.get('XP', ''):
        a("s_cmp_lg_u32 s6, 0\ns_cbranch_scc1 Ll_g2\ns_mov_b32 s100, 0x2000")
        a.label("Ll_idle")
        a(f"s_sleep 32\nbuffer_load_dword v244, v7, {SYNC}, 0 offen sc1\ns_waitcnt vmcnt(0)\nv_cmp_gt_u32 vcc, 1, v244\ns_sub_u32 s100, s100, 1")
        a("s_cbranch_vccz Ll_g2\ns_cmp_lg_u32 s100, 0\ns_cbranch_scc1 Ll_idle")
    a.label("Ll_g2")
    g16_loader_main(a, 'y')
    final_pre(a)
    a("s_waitcnt vmcnt(0)")
    final_mid(a)
    if not SENT:
        a("s_barrier")
        a("s_cmp_lg_u32 s6, 0\ns_cbranch_scc1 Ll_np2")
        a(f"s_add_u32 s32, s43, {C_P6}\ns_lshl_b32 s32, s32, 7\nv_mov_b32 v10, s32")
        signal(a, 32, 9)
        poll(a, 10, 16, 244)
        a.label("Ll_np2")
        a("s_barrier")
    a.label("Lfinal")
    final_body(a)
    if STAMP:
        a(f"s_cmp_lg_u32 s3, {STAMP_WAVE}\ns_cbranch_scc1 Lend\ns_waitcnt vmcnt(0)")
        a("s_memrealtime s[92:93]\ns_waitcnt lgkmcnt(0)")
        stamp_flush(a, 15, "Lstf")
    a.label("Lend")
    a("s_endpgm")
    return n, a

def build(path):
    n, a = mega()
    txt = a.text()
    hdr = open('cdna_kernels/' + NAME + '.s.ref').read().split('\n')
    top = [l for l in hdr if l.startswith(';') and '@launch' not in l][:19]
    out = '\n'.join(top) + '\n'
    if os.environ.get('LIST'):
        out += f"; @launch kernel={n} grid=(256,1,1) block=(512,1,1) lds={LDS_TOTAL}\n"
    else:
        out += f"; @launch grid=(256,1,1) block=(512,1,1) lds={LDS_TOTAL}\n"
    if STAMP: out += '; stamps: ' + ','.join(STAMP_LIST) + '\n'
    out += '.amdgcn_target "amdgcn-amd-amdhsa--gfx950"\n' + kernel_header(n) + txt + kernel_desc(n, 256, 102)
    open(path, 'w').write(out)

if __name__ == '__main__':
    build(sys.argv[1] if len(sys.argv) > 1 else 'm.s')
```
